```python
import torch

def _softmax(x, axis=-1):
    return torch.softmax(x, dim=axis)
def _gelu(x):
    return torch.nn.functional.gelu(x, approximate="tanh")
def _silu(x):
    return torch.nn.functional.silu(x)
def _sigmoid(x):
    return torch.sigmoid(x)
def _layernorm(x, axis=-1, eps=1e-5):
    m = x.mean(dim=axis, keepdim=True)
    v = x.var(dim=axis, keepdim=True, unbiased=False)
    return (x - m) / torch.sqrt(v + eps)
def _scatter_add(tgt, idx, src, axis=0):
    return tgt.clone().index_add_(axis, idx, src)
def _segment_sum(src, seg, n):
    out = torch.zeros((n,) + src.shape[1:], dtype=src.dtype)
    return out.index_add_(0, seg, src)
def _pad(x, pw):
    flat = tuple(v for pair in reversed(pw) for v in pair)
    return torch.nn.functional.pad(x, flat)

kernel_name = 'standalone__modern_conv_block_convnext__vision'

def setup_inputs():

    _w = (lambda a: (lambda t: t.to(torch.bfloat16) if t.is_floating_point() else t)(torch.as_tensor(a)))
    H = W = 224
    C = 96
    K = 5
    return {
        "x": _w((lambda *s: torch.randn(*s, dtype=torch.bfloat16) * 0.05)(1, H, W, C)),
        "dw": _w((lambda *s: torch.randn(*s, dtype=torch.bfloat16) * 0.05)(K, K, C)),
        "w1": _w((lambda *s: torch.randn(*s, dtype=torch.bfloat16) * 0.05)(C, 4 * C)),
        "b1": _w((lambda *s: torch.randn(*s, dtype=torch.bfloat16) * 0.2)(4 * C)),
        "w2": _w((lambda *s: torch.randn(*s, dtype=torch.bfloat16) * 0.05)(4 * C, C)),
        "b2": _w((lambda *s: torch.randn(*s, dtype=torch.bfloat16) * 0.4)(C)),
        "gamma": _w((lambda *s: torch.randn(*s, dtype=torch.bfloat16) * 0.05)(C)),
    }

def reference(x, dw, w1, b1, w2, b2, gamma):
    B, H, W, C = x.shape
    K = dw.shape[0]
    pad = K // 2
    xp = _pad(x, ((0,0),(pad,pad),(pad,pad),(0,0)))
    out = torch.zeros_like(x)
    for i in range(K):
        for j in range(K):
            out = out + xp[:, i:i+H, j:j+W, :] * dw[i, j][None, None, None, :]
    h = _layernorm(out, axis=-1)
    h = torch.einsum('bhwc,ce->bhwe', h, w1) + b1
    h = _gelu(h)
    h = torch.einsum('bhwe,ec->bhwc', h, w2) + b2
    return x + gamma[None, None, None, :] * h
```

```python
import re

TRANS = ("v_exp_f32", "v_rcp_f32", "v_rsq_f32", "v_log_f32", "v_sqrt_f32")


def regs_of(op):
    op = op.strip()
    op = op.lstrip("-")
    if op.startswith("abs(") or op.startswith("|"):
        op = op.replace("abs(", "").replace(")", "").replace("|", "")
    m = re.fullmatch(r"([vas])\[(\d+):(\d+)\]", op)
    if m:
        return [f"{m.group(1)}{i}" for i in range(int(m.group(2)), int(m.group(3)) + 1)]
    m = re.fullmatch(r"([vas])(\d+)", op)
    if m:
        return [op]
    if op in ("vcc", "exec", "m0", "exec_hi", "exec_lo", "vcc_lo", "vcc_hi"):
        return [op.split("_")[0]]
    return []


class Ins:
    def __init__(self, text):
        self.text = text
        t = text.split(";")[0].strip()
        self.op = t.split()[0] if t else ""
        rest = t[len(self.op):].strip()
        self.op = self.op.replace("_e64", "")
        parts = [p.strip() for p in re.split(r",(?![^\[]*\])", rest)] if rest else []
        self.mods = ""
        if parts:
            last = parts[-1].split()
            if last:
                parts[-1] = last[0]
                self.mods = " ".join(last[1:])
        self.parts = parts
        op = self.op
        self.kind = "other"
        self.w, self.r = [], []
        self.passes = 0
        self.srcc = []
        R = lambda xs: [r for x in xs for r in regs_of(x)]
        if op.startswith("v_mfma") or op.startswith("v_smfmac"):
            self.kind = "mfma"
            self.passes = 8 if "32x32" in op else 4
            self.w = R(parts[:1])
            if op.startswith("v_smfmac"):
                self.srcc = R(parts[:1])
                self.r = R(parts[1:]) + self.srcc
            else:
                self.srcc = R(parts[3:4])
                self.r = R(parts[1:])
            self.ab = R(parts[1:3]) + (R(parts[3:4]) if op.startswith("v_smfmac") else [])
        elif op.startswith("v_"):
            self.kind = "valu"
            if op.startswith("v_cmp"):
                self.w = R(parts[:1]); self.r = R(parts[1:])
            elif op.startswith("v_permlane") or op.startswith("v_swap"):
                self.w = R(parts[:2]); self.r = R(parts[:2])
            elif op in ("v_add_co_u32", "v_addc_co_u32"):
                self.w = R(parts[:2]); self.r = R(parts[2:])
            else:
                self.w = R(parts[:1]); self.r = R(parts[1:])
                if op.startswith("v_fmac") or op.startswith("v_dot2c"):
                    self.r += self.w
        elif op.startswith("ds_"):
            self.kind = "lds"
            if op.startswith("ds_read"):
                self.w = R(parts[:1]); self.r = R(parts[1:])
            else:
                self.r = R(parts)
        elif op.startswith("buffer_") or op.startswith("global_"):
            self.kind = "vmem"
            islds = " lds" in (" " + self.mods) or "_lds_" in op
            if "load" in op and not islds:
                self.w = R(parts[:1]); self.r = R(parts[1:])
            else:
                self.r = R(parts)
                if islds:
                    self.r.append("m0")
            self.islds = islds
        elif op.startswith("s_load") or op in ("s_memtime", "s_memrealtime"):
            self.kind = "smem"
            self.w = R(parts[:1]); self.r = R(parts[1:])
        elif op == "s_waitcnt":
            self.kind = "wait"
        elif op == "s_nop":
            self.kind = "nop"
        elif op.startswith("s_"):
            self.kind = "salu"
            if op.startswith("s_cmp") or op.startswith("s_cbranch") or op in ("s_branch", "s_barrier", "s_endpgm", "s_setprio"):
                self.r = R(parts)
            else:
                self.w = R(parts[:1]); self.r = R(parts[1:])
                if "saveexec" in op:
                    self.w.append("exec")

    def states(self):
        if self.kind == "nop":
            return int(self.parts[0], 0) + 1
        return 1


def check(trace, name="trace"):
    ins = [Ins(t) for t in trace]
    errs = []
    pos = []
    p = 0
    for i in ins:
        pos.append(p)
        p += i.states()

    last_w = {}
    last_c_read = {}
    last_store_read = {}
    vm, lg = [], []
    pending = {}
    for k, i in enumerate(ins):
        def dist(j):
            return pos[k] - pos[j] - ins[j].states()

        def need(j, n, why):
            if dist(j) < n:
                errs.append(f"{name}[{k}] '{i.text.strip()}' needs {n} states after '{ins[j].text.strip()}' ({why}), has {dist(j)}")

        if i.kind == "wait":
            m = re.search(r"vmcnt\((\d+)\)", i.text)
            if m:
                n = int(m.group(1))
                while len(vm) > n:
                    j = vm.pop(0)
                    for r in ins[j].w:
                        if pending.get(r) == j:
                            del pending[r]
            m = re.search(r"lgkmcnt\((\d+)\)", i.text)
            if m:
                n = int(m.group(1))
                if any(ins[j].kind == "smem" for j in lg) and n != 0:
                    errs.append(f"{name}[{k}] counted lgkmcnt with SMEM outstanding")
                while len(lg) > n:
                    j = lg.pop(0)
                    for r in ins[j].w:
                        if pending.get(r) == j:
                            del pending[r]
            continue
        for r in set(i.r + i.w):
            if r in pending:
                errs.append(f"{name}[{k}] '{i.text.strip()}' touches {r} with load outstanding: '{ins[pending[r]].text.strip()}'")
        for r in set(i.r):
            j = last_w.get(r)
            if j is None:
                continue
            pj = ins[j]
            if pj.kind == "valu":
                if i.kind == "mfma" and r[0] in "va":
                    need(j, 2, "VALU->MFMA")
                if pj.op in TRANS and i.kind == "valu" and i.op not in TRANS:
                    need(j, 1, "trans->VALU")
                if i.op in ("v_readfirstlane_b32", "v_readlane_b32") and r[0] == "v":
                    need(j, 1, "VALU->readlane")
                if i.op.startswith("v_permlane"):
                    need(j, 2, "VALU->permlane")
                if "dpp" in i.mods or "row_" in i.mods or "quad_perm" in i.mods:
                    need(j, 2, "VALU->DPP")
                if (r[0] == "s" or r == "vcc") and i.kind == "valu":
                    need(j, 2, "VALU sgpr->VALU")
                if r[0] == "s" and i.kind == "vmem":
                    need(j, 5, "VALU sgpr->VMEM")
            if pj.kind == "mfma":
                if i.kind == "mfma":
                    if r in i.ab:
                        need(j, {4: 8, 8: 12}[pj.passes], "MFMA->MFMA A/B")
                    elif r in i.srcc:
                        same = (i.srcc == pj.w and i.passes == pj.passes)
                        if not same:
                            need(j, {4: 6, 8: 10}[pj.passes], "MFMA->MFMA C overlap")
                else:
                    need(j, {4: 8, 8: 12}[pj.passes], "MFMA->read")
            if pj.kind == "salu" and r == "m0" and i.kind == "vmem":
                need(j, 1, "m0->DMA")
        for r in set(i.w):
            j = last_w.get(r)
            if j is not None and ins[j].kind == "mfma" and i.kind != "mfma":
                need(j, {4: 8, 8: 12}[ins[j].passes], "MFMA->WAW")
            if j is not None and ins[j].kind == "mfma" and i.kind == "mfma" and r not in i.srcc:
                need(j, {4: 6, 8: 10}[ins[j].passes], "MFMA->MFMA WAW (conservative)")
            j = last_c_read.get(r)
            if j is not None and i.kind == "valu":
                need(j, {4: 3, 8: 7}[ins[j].passes], "MFMA C read->VALU write")
            j = last_store_read.get(r)
            if j is not None:
                need(j, 2 if i.kind == "valu" else 1, "wide store data WAR")
        if i.kind in ("valu", "mfma") or i.kind == "lds" or i.kind == "vmem":
            j = last_w.get("exec")
            if j is not None and ins[j].kind == "valu" and i.kind == "mfma":
                need(j, 4, "VALU exec->MFMA")
        for r in i.w:
            last_w[r] = k
            last_c_read.pop(r, None)
            last_store_read.pop(r, None)
        if i.kind == "mfma":
            for r in i.srcc:
                last_c_read[r] = k
        if i.kind == "vmem" and "store" in i.op and ("x4" in i.op or "x3" in i.op):
            for r in regs_of(i.parts[0]):
                last_store_read[r] = k
        if i.kind == "vmem":
            vm.append(k)
            if len(vm) > 63:
                errs.append(f"{name}[{k}] more than 63 vmem outstanding")
            for r in i.w:
                pending[r] = k
        if i.kind in ("lds", "smem"):
            lg.append(k)
            for r in i.w:
                pending[r] = k
    return errs
```

```python
import math
import struct
import sys

from asmlint import check

KNAME = "standalone__modern_conv_block_convnext__vision_kernel"

OPT = dict(nt="nt", stamps=False, dump=None)


def f32bits(x):
    return struct.unpack("<I", struct.pack("<f", x))[0]


def bf16_rne(x):
    u = f32bits(x)
    return (u + 0x7FFF + ((u >> 16) & 1)) >> 16


def bf16_val(h):
    return struct.unpack("<f", struct.pack("<I", h << 16))[0]


C1 = 2.0 * math.sqrt(2.0 / math.pi) * math.log2(math.e)
ALPHA = (C1 * 0.044715) ** (1.0 / 3.0)
CP = C1 / ALPHA
A_HI = bf16_rne(ALPHA)
A_LO = bf16_rne(ALPHA - bf16_val(A_HI))

W2TOP = 147456
XP, XG, XPL = 49152, 5776, 2880
ACT, AP = 49152, 208
TBL = 147456
ST = TBL
RBUF = TBL
PB1, PB2, PG, PGB = 159744, 160768, 161792, 162176
ZERO = PB2 + 512
XCH = 0
LDS_BYTES = 162560
ROWB = 43008
XBYTES = 9633792

sW, sPAR, sX0, sY0, sK = 54, 55, 56, 57, 58
sT0, sT1, sT2, sT3 = 59, 60, 61, 62
sCP, sONE, sINV, sLUT = 64, 66, 68, 70
sALPHA, sEPS, sMASK, sIA = 72, 73, 74, 76
sM0B, sSOF = 78, 79
SRD_X, SRD_DW, SRD_W1, SRD_W2, SRD_B1, SRD_B2, SRD_G, SRD_O = 20, 24, 28, 32, 36, 40, 44, 48
sSTAMP = 80

vL = 1
vW1L, vW1A, vW1B, vW1C = 2, 3, 4, 5
vB1L, vB1C, vB1N = 6, 7, 8
vW2 = (9, 10, 11)
vOFA, vOFB, vOH, vOR = 12, 13, 14, 15
vGA, vGB = 16, 17
vB20, vB21, vB22 = 18, 19, 20
vL16 = 21
vIDX, vTA, vXB, vXW, vXO, vAW, vBF, vBH, vBR, vPF = 22, 23, 24, 25, 26, 27, 28, 29, 30, 31
ACC = 32
X = (80, 96, 112)
Z, E, R, H = 128, 144, 160, 176
CV = 80
TMP = 184

aA = 0
aSTG = 72
aRB = (144, 172, 200)
aW1, aW2 = 0, 24
aB, aBH, aBR = 52, 76, 100
aRF, aRACC, aRBIAS = 120, 192, 240
aBIAS, aC32, aC16 = 228, 232, 236


def v(i, n=1):
    return f"v{i}" if n == 1 else f"v[{i}:{i+n-1}]"


def a(i, n=1):
    return f"a{i}" if n == 1 else f"a[{i}:{i+n-1}]"


def s(i, n=1):
    return f"s{i}" if n == 1 else f"s[{i}:{i+n-1}]"


def cost(t):
    op = t.split()[0]
    if op in ("v_exp_f32", "v_rcp_f32", "v_rsq_f32"):
        return 8
    return 4


def o1(U):
    return (U >> 1) * 12288 + (U & 1) * 512


def w2base(T):
    return W2TOP - 6144 * (3 * T + 3)


class Block(list):
    def __call__(self, t):
        for line in t.strip("\n").split("\n"):
            line = line.strip()
            if line:
                self.append(line)

    def stamp(self, k):
        if OPT["stamps"]:
            self(f"s_memtime s[100:101]\ns_waitcnt lgkmcnt(0)\ns_mov_b32 {s(sSTAMP + k)}, s100")

    def align8(self):
        self.append(".p2align 3")


def interleave(M, G, V, gap=24, tail=36):
    n = len(M)
    extra = [4 * max(0, len(G[i]) - 1) for i in range(n)]
    total = sum(extra) + sum(cost(x) for x in V)
    per = max(0.0, (total - tail) / max(1, n - 1)) if n > 1 else 0
    out = []
    V = list(V)
    acc = 0.0
    for i in range(n):
        out.append(M[i])
        out += G[i]
        acc += extra[i]
        if i == n - 1:
            out += V
            V = []
        else:
            while V and acc + cost(V[0]) / 2 <= per * (i + 1):
                acc += cost(V[0])
                out.append(V.pop(0))
    return out


def pk(op, d, x, y, z=None, mod=""):
    t = f"v_pk_{op}_f32 {v(d, 2)}, {x}, {y}"
    if z is not None:
        t += f", {z}"
    return t + mod


def p_tz(xb, zb, n=16):
    o = [pk("fma", zb + i, v(xb + i, 2), v(xb + i, 2), s(sCP, 2)) for i in range(0, n, 2)]
    return o, [pk("mul", zb + i, v(zb + i, 2), v(xb + i, 2), mod=" neg_lo:[1,0] neg_hi:[1,0]") for i in range(0, n, 2)]


def p_add(eb, n=16):
    return [pk("add", eb + i, v(eb + i, 2), s(sONE, 2)) for i in range(0, n, 2)]


def p_mul(rb, xb, n=16):
    return [pk("mul", rb + i, v(rb + i, 2), v(xb + i, 2)) for i in range(0, n, 2)]


def t_cvt(hb, rb, n=16):
    return [f"v_cvt_pk_bf16_f32 {v(hb + i // 2)}, {v(rb + i)}, {v(rb + i + 1)}" for i in range(0, n, 2)]


def t_rcp(rb, eb, n=16):
    return [f"v_rcp_f32 {v(rb + i)}, {v(eb + i)}" for i in range(n)]


def t_exp(eb, zb, n=16):
    return [f"v_exp_f32 {v(eb + i)}, {v(zb + i)}" for i in range(n)]


def P(j, lo, hi, late_x=False):
    o = []
    has = lambda u: lo <= u <= hi
    t, z = p_tz(X[j % 3], Z) if has(j) else ([], [])
    m = p_mul(R, X[(j - 2) % 3]) if has(j - 2) else []
    d = p_add(E) if has(j - 1) else []
    return m + d + t + z if late_x else t + m + z + d


def m_fc1(xb):
    o = [f"v_mfma_f32_32x32x16_bf16 {v(xb, 16)}, {a(aBIAS, 4)}, {a(aC32, 4)}, 0"]
    o += [f"v_mfma_f32_32x32x16_bf16 {v(xb, 16)}, {a(aW1 + 4 * k, 4)}, {a(aB + 4 * k, 4)}, {v(xb, 16)}" for k in range(6)]
    return o


def m_fc2(order=(0, 1, 2)):
    return [f"v_mfma_f32_32x32x16_bf16 {v(ACC + 16 * t, 16)}, {a(aW2 + 4 * (3 * k + t), 4)}, {v(H + 4 * k, 4)}, {v(ACC + 16 * t, 16)}"
            for k in range(2) for t in order]


def r_w1(areg):
    return [f"ds_read_b64_tr_b16 {a(aW1 + 4 * k + 2 * jj, 2)}, {v(areg)} offset:{2048 * k + 256 * jj}"
            for k in range(6) for jj in range(2)]


def r_w2(u, order=(0, 1, 2)):
    return [f"ds_read_b64_tr_b16 {a(aW2 + 4 * (3 * k + t) + 2 * jj, 2)}, {v(vW2[t])} offset:{(2 - u) * 6144 + 3072 * k + 1536 * jj}"
            for k in range(2) for t in order for jj in range(2)]


def r_b1(areg, off):
    return [f"ds_read_u16 {a(aBIAS)}, {v(areg)} offset:{off}"]


def T(j, lo, hi, w1reg=None, b1=None, w2u=None, order=(0, 1, 2), extra=None):
    has = lambda u: lo <= u <= hi
    V = []
    if has(j - 2):
        V += t_cvt(H, R)
    if has(j - 1):
        V += t_rcp(R, E)
    if has(j):
        V += t_exp(E, Z)
    f1 = m_fc1(X[(j + 1) % 3]) if has(j + 1) else []
    f2 = m_fc2(order) if has(j - 2) else []
    head = []
    w1r = (r_b1(*b1) + r_w1(w1reg)) if w1reg is not None else []
    if f1 and f2:
        M = f1 + f2
        w2r = r_w2(w2u, order)
        G = [[] for _ in M]
        for i, n in enumerate((3, 3, 2, 2, 2)):
            G[i] = w2r[:n]
            w2r = w2r[n:]
        G[5] = w1r[:3]
        G[6] = ["s_waitcnt lgkmcnt(9)"]
        G[7] = w1r[3:5]
        G[8] = w1r[5:7]
        G[9] = ["s_waitcnt lgkmcnt(7)"]
        G[10] = w1r[7:9]
        G[11] = w1r[9:11]
        G[12] = w1r[11:13]
        head = ["s_waitcnt lgkmcnt(0)"]
        return head + interleave(M, G, V)
    if f1:
        M = f1
        G = [[] for _ in M]
        G[0] = list(extra or [])
        G[1] = w1r[:1]
        for k in range(5):
            G[2 + k] = w1r[1 + 2 * k:3 + 2 * k]
        G[6] = G[6] + w1r[11:13]
        head = ["s_waitcnt lgkmcnt(0)"]
        return head + interleave(M, G, V)
    M = f2
    G = [[] for _ in M]
    return V[:5] + ["s_waitcnt lgkmcnt(0)"] + interleave(M, G, V[5:])


def dma(srd, vaddr, lds_expr_sreg, soff):
    return [f"s_mov_b32 m0, {lds_expr_sreg}", "s_nop 0",
            f"buffer_load_dwordx4 {v(vaddr)}, {s(srd, 4)}, {soff} offen lds"]


def gen():
    B = {}
    nt = OPT["nt"]

    b = B["entry"] = Block()
    t0, t1, t2, t3, t4, t5 = range(TMP, TMP + 6)
    b.stamp(0)
    b(f"""
    s_cmp_ge_u32 s2, 256
    s_cbranch_scc1 L_end
    s_load_dwordx16 s[4:19], s[0:1], 0
    s_getpc_b64 s[52:53]
    L_pc:
    v_lshlrev_b32 {v(t0)}, 7, v0
    v_min_u32 {v(t0)}, L_end-L_pc, {v(t0)}
    global_load_dword {v(vPF)}, {v(t0)}, s[52:53]
    v_lshrrev_b32 {v(t1)}, 6, v0
    v_and_b32 {v(vL)}, 63, v0
    v_readfirstlane_b32 {s(sW)}, {v(t1)}
    s_and_b32 {s(sT0)}, s2, 1
    s_lshl_b32 {s(sT0)}, {s(sT0)}, 3
    s_bfe_u32 {s(sT1)}, s2, 0x30003
    s_add_u32 {s(sT0)}, {s(sT0)}, {s(sT1)}
    s_mul_i32 {s(sX0)}, {s(sT0)}, 14
    s_bfe_u32 {s(sT0)}, s2, 0x20001
    s_lshl_b32 {s(sT0)}, {s(sT0)}, 2
    s_lshr_b32 {s(sT1)}, s2, 6
    s_add_u32 {s(sT0)}, {s(sT0)}, {s(sT1)}
    s_mul_i32 {s(sY0)}, {s(sT0)}, 14
    v_mul_u32_u24 {v(t0)}, 43, {v(vL)}
    v_lshrrev_b32 {v(t0)}, 7, {v(t0)}
    v_mul_u32_u24 {v(t1)}, 3, {v(t0)}
    v_sub_u32 {v(t1)}, {v(vL)}, {v(t1)}
    v_and_b32 {v(t2)}, 7, {v(t0)}
    v_lshrrev_b32 {v(t0)}, 3, {v(t0)}
    v_mad_u32_u24 {v(t0)}, {v(t0)}, 5, {v(t2)}
    v_cmp_le_u32 vcc, 3, {v(t2)}
    v_mul_u32_u24 {v(t0)}, 192, {v(t0)}
    s_mul_i32 {s(sT0)}, {s(sW)}, 48
    s_sub_u32 {s(sT0)}, {s(sT0)}, 576
    v_lshl_add_u32 {v(t0)}, {v(t1)}, 4, {v(t0)}
    v_add_u32 {v(t0)}, {s(sT0)}, {v(t0)}
    v_mov_b32 {v(t5)}, 0x80000000
    v_cndmask_b32 {v(t0)}, {v(t5)}, {v(t0)}, vcc
    s_mul_i32 {s(sT1)}, {s(sW)}, 56
    v_add_u32 {v(t1)}, {s(sT1)}, {v(vL)}
    v_mul_u32_u24 {v(t2)}, 171, {v(t1)}
    v_lshrrev_b32 {v(t2)}, 11, {v(t2)}
    s_sub_u32 {s(sT2)}, {s(sX0)}, 2
    v_add_u32 {v(t3)}, {s(sT2)}, {v(t2)}
    v_cmp_gt_u32 vcc, 224, {v(t3)}
    v_cmp_gt_u32 {s(sMASK, 2)}, 18, {v(t2)}
    s_mul_i32 {s(sT3)}, {s(sY0)}, {ROWB}
    s_mul_i32 {s(sT2)}, {s(sT2)}, 192
    s_add_u32 {s(sT3)}, {s(sT3)}, {s(sT2)}
    s_sub_u32 {s(sT3)}, {s(sT3)}, {2 * ROWB}
    s_and_b64 vcc, vcc, {s(sMASK, 2)}
    v_lshl_add_u32 {v(vXO)}, {v(t1)}, 4, {s(sT3)}
    s_mul_i32 {s(sM0B)}, {s(sW)}, 3072
    v_cndmask_b32 {v(vXO)}, {v(t5)}, {v(vXO)}, vcc
    s_add_u32 {s(sM0B)}, {s(sM0B)}, {TBL}
    s_waitcnt lgkmcnt(0)
    """)
    b.stamp(1)

    def srd(dst, src, nbytes):
        b(f"""
        s_mov_b32 {s(dst)}, {s(src)}
        s_mov_b32 {s(dst + 1)}, {s(src + 1)}
        s_mov_b32 {s(dst + 2)}, {nbytes}
        s_mov_b32 {s(dst + 3)}, 0x20000
        """)
    srd(SRD_DW, 6, 4800)
    srd(SRD_X, 4, XBYTES)
    b("s_mov_b32 exec_hi, 0xffff")
    for d in range(4):
        b(f"s_mov_b32 m0, {s(sM0B)}")
        if d:
            b(f"v_add_u32 {v(t0)}, 1920, {v(t0)}")
        else:
            b("s_nop 0")
        b(f"buffer_load_dwordx4 {v(t0)}, {s(SRD_DW, 4)}, 0 offen lds")
        if d < 3:
            b(f"s_add_u32 {s(sM0B)}, {s(sM0B)}, 768")
    b("s_mov_b32 exec_hi, 0xffffff")

    def xload(r):
        b(f"buffer_load_dwordx4 {a(aSTG + 4 * r, 4)}, {v(vXO)}, {s(SRD_X, 4)}, 0 offen {nt}")
        if r < 17:
            b(f"v_add_u32 {v(vXO)}, {ROWB}, {v(vXO)}")
    for r in range(12):
        xload(r)
    b("s_mov_b32 exec_hi, -1")
    b.stamp(2)

    srd(SRD_W1, 8, 73728)
    srd(SRD_B1, 10, 768)
    srd(SRD_W2, 12, 73728)
    srd(SRD_B2, 14, 192)
    srd(SRD_G, 16, 192)
    srd(SRD_O, 18, XBYTES)
    lut = 0
    for cp, col in enumerate([0, 4, 8, 12, 1, 5, 9, 13, 2, 6, 10, 3, 7, 11]):
        lut |= col << (4 * cp)
    ln, lg, lxg, lrp, lh, lq, lr, lcq, l31 = range(TMP + 8, TMP + 17)
    b(f"""
    s_and_b32 {s(sPAR)}, {s(sW)}, 1
    s_mov_b32 {s(sCP)}, {f32bits(CP):#x}
    s_mov_b32 {s(sCP + 1)}, {f32bits(CP):#x}
    s_mov_b32 {s(sONE)}, 1.0
    s_mov_b32 {s(sONE + 1)}, 1.0
    s_mov_b32 {s(sINV)}, {f32bits(1 / 96):#x}
    s_mov_b32 {s(sINV + 1)}, {f32bits(1 / 96):#x}
    s_mov_b32 {s(sIA)}, {f32bits(1 / ALPHA):#x}
    s_mov_b32 {s(sIA + 1)}, {f32bits(1 / ALPHA):#x}
    s_mov_b32 {s(sLUT)}, {lut & 0xffffffff:#x}
    s_mov_b32 {s(sLUT + 1)}, {lut >> 32:#x}
    s_mov_b32 {s(sALPHA)}, {f32bits(ALPHA):#x}
    s_mov_b32 {s(sEPS)}, {f32bits(1e-5):#x}
    v_mul_u32_u24 {v(t3)}, 12, {v(t2)}
    v_sub_u32 {v(t3)}, {v(t1)}, {v(t3)}
    v_mul_u32_u24 {v(t3)}, {XG}, {v(t3)}
    v_lshl_add_u32 {v(t3)}, {v(t2)}, 3, {v(t3)}
    v_add_u32 {v(vXW)}, {XP}, {v(t3)}
    v_and_b32 {v(ln)}, 15, {v(vL)}
    v_lshrrev_b32 {v(lg)}, 4, {v(vL)}
    v_and_b32 {v(lxg)}, 3, {v(vL)}
    v_lshrrev_b32 {v(lr)}, 2, {v(ln)}
    v_lshrrev_b32 {v(t0)}, 1, {v(lr)}
    v_xor_b32 {v(lrp)}, {v(lr)}, {v(t0)}
    v_lshrrev_b32 {v(lh)}, 5, {v(vL)}
    v_and_b32 {v(lq)}, 1, {v(lg)}
    v_and_b32 {v(l31)}, 31, {v(vL)}
    v_lshlrev_b32 {v(vL16)}, 4, {v(vL)}
    """)
    b(f"""
    v_xor_b32 {v(t0)}, 1, {v(lxg)}
    v_lshl_or_b32 {v(t0)}, {v(t0)}, 2, {v(lxg)}
    v_mul_u32_u24 {v(vIDX)}, 0x1111, {v(t0)}
    v_lshlrev_b32 {v(t0)}, 2, {v(lg)}
    v_sub_u32 {v(t0)}, {v(t0)}, {v(lr)}
    v_add_u32 {v(t0)}, 3, {v(t0)}
    v_mul_u32_u24 {v(t0)}, 48, {v(t0)}
    s_mul_i32 {s(sT0)}, {s(sW)}, 3072
    s_add_u32 {s(sT0)}, {s(sT0)}, {TBL}
    v_lshl_add_u32 {v(t0)}, {v(lxg)}, 1, {v(t0)}
    v_add_u32 {v(vTA)}, {s(sT0)}, {v(t0)}
    """)
    b(f"""
    v_lshlrev_b32 {v(t0)}, 1, {v(lxg)}
    v_add_u32 {v(t0)}, {v(t0)}, {v(lg)}
    v_min_u32 {v(t0)}, 8, {v(t0)}
    v_mul_u32_u24 {v(t1)}, 320, {v(lrp)}
    s_mul_i32 {s(sT0)}, {s(sW)}, {3 * XG}
    s_add_u32 {s(sT0)}, {s(sT0)}, {XP}
    v_lshl_add_u32 {v(t0)}, {v(t0)}, 4, {v(t1)}
    v_add_u32 {v(vXB)}, {s(sT0)}, {v(t0)}
    """)
    b(f"""
    v_lshrrev_b32 {v(t0)}, 1, {v(lg)}
    v_and_b32 {v(t0)}, {v(t0)}, {v(lg)}
    v_lshl_add_u32 {v(t1)}, {v(lg)}, 2, {v(lxg)}
    v_sub_u32 {v(t1)}, {v(t1)}, {v(t0)}
    v_mad_u32_u24 {v(t1)}, {v(lrp)}, 28, {v(t1)}
    v_lshl_add_u32 {v(t2)}, {v(lxg)}, 2, {v(lg)}
    v_cmp_gt_u32 vcc, 14, {v(t2)}
    v_mul_u32_u24 {v(t1)}, {AP}, {v(t1)}
    s_mul_i32 {s(sT0)}, {s(sW)}, 48
    s_add_u32 {s(sT0)}, {s(sT0)}, {ACT}
    v_add_u32 {v(t1)}, {s(sT0)}, {v(t1)}
    v_add_u32 {v(t2)}, {ACT + 196 * AP}, {v(vL16)}
    v_cndmask_b32 {v(vAW)}, {v(t2)}, {v(t1)}, vcc
    """)
    pF, pH, pR = TMP + 20, TMP + 21, TMP + 22
    b(f"""
    s_lshl_b32 {s(sT0)}, {s(sW)}, 5
    v_add_u32 {v(pF)}, {s(sT0)}, {v(l31)}
    s_lshr_b32 {s(sT0)}, {s(sW)}, 1
    s_lshl_b32 {s(sT0)}, {s(sT0)}, 5
    s_add_u32 {s(sT0)}, {s(sT0)}, 128
    v_add_u32 {v(pH)}, {s(sT0)}, {v(l31)}
    s_add_u32 {s(sT0)}, {s(sW)}, 192
    v_mov_b32 {v(pR)}, {s(sT0)}
    v_lshlrev_b32 {v(t0)}, 4, {v(lh)}
    v_add_u32 {v(t1)}, {ACT}, {v(t0)}
    s_movk_i32 {s(sT1)}, {AP}
    v_mad_u32_u24 {v(vBF)}, {v(pF)}, {s(sT1)}, {v(t1)}
    v_mad_u32_u24 {v(vBH)}, {v(pH)}, {s(sT1)}, {v(t1)}
    v_lshlrev_b32 {v(t1)}, 4, {v(lg)}
    v_add_u32 {v(t1)}, {ACT + 192 * AP}, {v(t1)}
    v_mad_u32_u24 {v(vBR)}, {v(lxg)}, {s(sT1)}, {v(t1)}
    s_mul_i32 {s(sT2)}, {s(sY0)}, 224
    s_add_u32 {s(sT2)}, {s(sT2)}, {s(sX0)}
    s_movk_i32 {s(sT3)}, 224
    """)
    for p, dst in ((pF, vOFA), (pH, vOH), (pR, vOR)):
        b(f"""
        v_mul_u32_u24 {v(t1)}, 2341, {v(p)}
        v_lshrrev_b32 {v(t1)}, 15, {v(t1)}
        v_mul_u32_u24 {v(t2)}, 14, {v(t1)}
        v_sub_u32 {v(t2)}, {v(p)}, {v(t2)}
        v_lshlrev_b32 {v(t2)}, 2, {v(t2)}
        v_lshrrev_b64 {v(t4, 2)}, {v(t2)}, {s(sLUT, 2)}
        v_and_b32 {v(t4)}, 15, {v(t4)}
        v_mad_u32_u24 {v(t1)}, {v(t1)}, {s(sT3)}, {v(t4)}
        v_add_u32 {v(t1)}, {s(sT2)}, {v(t1)}
        v_mul_u32_u24 {v(dst)}, 192, {v(t1)}
        """)
    b(f"""
    s_mul_i32 {s(sT0)}, {s(sPAR)}, 96
    s_sub_u32 {s(sT1)}, 96, {s(sT0)}
    v_add3_u32 {v(vOFB)}, {v(vOFA)}, {v(t0)}, {s(sT1)}
    v_add3_u32 {v(vOFA)}, {v(vOFA)}, {v(t0)}, {s(sT0)}
    v_add3_u32 {v(vOH)}, {v(vOH)}, {v(t0)}, {s(sT0)}
    v_add_u32 {v(vOR)}, {v(vOR)}, {v(vL16)}
    v_cmp_gt_u32 vcc, 12, {v(vL)}
    v_mov_b32 {v(t5)}, 0x80000000
    v_lshlrev_b32 {v(t1)}, 1, {v(t0)}
    v_cndmask_b32 {v(vOR)}, {v(t5)}, {v(vOR)}, vcc
    v_add_u32 {v(t1)}, {PG}, {v(t1)}
    s_lshl_b32 {s(sT0)}, {s(sT0)}, 1
    s_lshl_b32 {s(sT1)}, {s(sT1)}, 1
    v_add_u32 {v(vGA)}, {s(sT0)}, {v(t1)}
    v_add_u32 {v(vGB)}, {s(sT1)}, {v(t1)}
    """)
    b(f"""
    v_lshlrev_b32 {v(t0)}, 10, {v(lh)}
    v_lshl_add_u32 {v(t0)}, {v(lr)}, 6, {v(t0)}
    v_lshl_add_u32 {v(t0)}, {v(lq)}, 5, {v(t0)}
    v_lshl_add_u32 {v(vW1L)}, {v(lxg)}, 3, {v(t0)}
    v_lshlrev_b32 {v(t0)}, 1, {v(l31)}
    v_add_u32 {v(vB1L)}, {PB1}, {v(t0)}
    v_lshl_add_u32 {v(t0)}, {v(lh)}, 2, {v(lr)}
    v_mul_u32_u24 {v(t0)}, 192, {v(t0)}
    v_and_b32 {v(t1)}, 1, {v(lxg)}
    v_lshrrev_b32 {v(t2)}, 1, {v(lxg)}
    v_lshl_add_u32 {v(t1)}, {v(t1)}, 1, {v(t2)}
    v_lshl_add_u32 {v(t0)}, {v(t1)}, 3, {v(t0)}
    v_add_u32 {v(t0)}, {w2base(0)}, {v(t0)}
    v_and_b32 {v(t1)}, 1, {v(lr)}
    v_lshrrev_b32 {v(t2)}, 1, {v(lr)}
    v_lshlrev_b32 {v(t2)}, 2, {v(t2)}
    v_lshl_add_u32 {v(t1)}, {v(t1)}, 3, {v(t2)}
    v_add_u32 {v(t1)}, {v(t1)}, {v(lxg)}
    v_lshlrev_b32 {v(t1)}, 1, {v(t1)}
    v_add_u32 {v(t1)}, {PB2}, {v(t1)}
    s_mul_i32 {s(sT0)}, {s(sPAR)}, 3
    """)
    for t, dst2 in enumerate((vB20, vB21, vB22)):
        b(f"""
        s_add_u32 {s(sT1)}, {s(sT0)}, {2 * t}
        v_add_u32 {v(t2)}, {s(sT1)}, {v(lq)}
        v_subrev_u32 {v(t3)}, 6, {v(t2)}
        v_min_u32 {v(t2)}, {v(t2)}, {v(t3)}
        v_lshl_add_u32 {v(vW2[t])}, {v(t2)}, 5, {v(t0)}
        v_lshl_add_u32 {v(dst2)}, {v(t2)}, 5, {v(t1)}
        """)
    b(f"""
    v_mov_b32 {v(t0)}, {A_HI:#x}
    v_mov_b32 {v(t1)}, {A_LO:#x}
    v_cmp_eq_u32 vcc, 0, {v(lh)}
    v_cmp_eq_u32 {s(sMASK, 2)}, 0, {v(lg)}
    v_mov_b32 {v(t3)}, 0
    v_cndmask_b32 {v(t2)}, {v(t1)}, {v(t0)}, vcc
    v_accvgpr_write_b32 {a(aC32)}, {v(t2)}
    v_cndmask_b32 {v(t2)}, {v(t1)}, {v(t0)}, {s(sMASK, 2)}
    v_cndmask_b32 {v(t2)}, {v(t3)}, {v(t2)}, vcc
    v_accvgpr_write_b32 {a(aC16)}, {v(t2)}
    """)
    for r in (aBIAS + 1, aBIAS + 2, aBIAS + 3, aC32 + 1, aC32 + 2, aC32 + 3, aC16 + 1, aC16 + 2, aC16 + 3):
        b(f"v_accvgpr_write_b32 {a(r)}, 0")
    for r in (1, 3, 5, 7, 9, 11, 12, 13):
        b(f"v_accvgpr_write_b32 {a(aRBIAS + r)}, 0")
    for rb in aRB:
        for k in range(4):
            b(f"v_accvgpr_write_b32 {a(rb + 24 + k)}, 0")
    for i in range(0, 96, 2):
        b(f"v_mov_b64 {v(CV + i, 2)}, 0")
    vD1, vG, vB2 = TMP + 24, TMP + 26, TMP + 27
    b(f"""
    v_lshrrev_b32 {v(t0)}, 2, {v(l31)}
    v_mul_u32_u24 {v(t0)}, 768, {v(t0)}
    v_lshl_add_u32 {v(t0)}, {v(lh)}, 6, {v(t0)}
    v_lshl_add_u32 {v(vD1)}, {v(lxg)}, 4, {v(t0)}
    v_lshlrev_b32 {v(t4)}, 2, {v(vL)}
    """)
    b.stamp(3)
    b("s_mov_b32 exec_hi, 0xffffff")
    for r in range(12, 18):
        xload(r)
    b("s_mov_b32 exec_hi, -1")
    b(f"buffer_load_dword {v(vG)}, {v(t4)}, {s(SRD_G, 4)}, 0 offen")
    b(f"buffer_load_dword {v(vB2)}, {v(t4)}, {s(SRD_B2, 4)}, 0 offen")
    b("\n".join(dma(SRD_B1, vL16, PB1, 0)))
    b("\n".join(dma(SRD_B2, vL16, PB2, 0)))
    b.stamp(4)
    b("s_waitcnt vmcnt(22)")
    for j in range(6):
        for t in range(3):
            for q in range(4):
                b(f"ds_read_u16 {a(aA + (3 * j + t) * 4 + q)}, {v(vTA)} offset:{(16 * t + q) * 48 + 8 * j}")
    b.stamp(5)

    def w1dma(pair, i):
        return [f"s_add_u32 {s(sT0)}, {s(sM0B)}, {pair * 12288 + i * 1024}",
                f"s_mov_b32 m0, {s(sT0)}",
                f"s_add_u32 {s(sT1)}, {s(sSOF)}, {pair * 128 + i * 6144}",
                f"buffer_load_dwordx4 {v(vD1)}, {s(SRD_W1, 4)}, {s(sT1)} offen lds"]

    def w2dma(lds0, g0, i):
        return [f"s_add_u32 {s(sT0)}, {s(sT2)}, {lds0 + i * 1024}",
                f"s_mov_b32 m0, {s(sT0)}",
                f"s_add_u32 {s(sT1)}, {s(sT3)}, {g0 + i * 1024}",
                f"buffer_load_dwordx4 {v(vL16)}, {s(SRD_W2, 4)}, {s(sT1)} offen lds"]
    b(f"""
    s_mul_i32 {s(sM0B)}, {s(sW)}, 3072
    s_mul_i32 {s(sSOF)}, {s(sW)}, {3 * 6144}
    s_mul_i32 {s(sT3)}, {s(sW)}, 6144
    s_sub_u32 {s(sT2)}, {W2TOP - 6144}, {s(sT3)}
    """)
    early = [w1dma(p, i) for p in range(4) for i in range(3)] + [w2dma(0, 0, i) for i in range(6)]

    def stage(r, outstanding):
        b(f"s_waitcnt vmcnt({outstanding})")
        b(f"ds_write_b64 {v(vXW)}, {a(aSTG + 4 * r, 2)} offset:{160 * r}")
        b(f"ds_write_b64 {v(vXW)}, {a(aSTG + 4 * r + 2, 2)} offset:{XPL + 160 * r}")
    ndma = 0
    for r in range(12):
        b("s_mov_b32 exec_hi, 0xffffff")
        stage(r, 17 - r + 4 + ndma)
        b("s_mov_b32 exec_hi, -1")
        b("\n".join(early[ndma]))
        ndma += 1
    b("s_waitcnt lgkmcnt(0)")
    b("s_barrier")
    b.stamp(6)

    S = TMP
    SP = TMP + 8

    def conv(ph):
        def reads(j):
            return [f"ds_read_b128 {a(aRB[j % 3] + 4 * r, 4)}, {v(vXB)} offset:{(j >> 1) * XG + (j & 1) * XPL + (8 * ph + r) * 160}"
                    for r in range(6)]

        def acc(sx, j):
            return CV + ((2 * ph + sx) * 6 + j) * 4

        def stats(j):
            o = []
            for sx in range(2):
                s1, s2 = S + 4 * ph + 2 * sx, S + 4 * ph + 2 * sx + 1
                d = acc(sx, j)
                if j == 0:
                    o += [f"v_add_f32 {v(s1)}, {v(d)}, {v(d + 1)}", f"v_mul_f32 {v(s2)}, {v(d)}, {v(d)}",
                          f"v_fmac_f32 {v(s2)}, {v(d + 1)}, {v(d + 1)}"]
                    ks = (2, 3)
                else:
                    ks = (0, 1, 2, 3)
                for k in ks:
                    o += [f"v_add_f32 {v(s1)}, {v(s1)}, {v(d + k)}", f"v_fmac_f32 {v(s2)}, {v(d + k)}, {v(d + k)}"]
            return o
        b("\n".join(reads(0) + reads(1)))
        for j in range(6):
            b(f"s_waitcnt lgkmcnt({6 if j < 5 else 0})")
            rd = reads(j + 2) if j < 4 else []
            st = stats(j - 1) if j > 0 else []
            n = 0
            for t in range(3):
                for sx in range(2):
                    b(f"v_smfmac_f32_16x16x64_bf16 {v(acc(sx, j), 4)}, {a(aA + (3 * j + t) * 4, 4)}, {a(aRB[j % 3] + 4 * (sx + 2 * t), 8)}, {v(vIDX)}")
                    if rd:
                        b(rd.pop(0))
                    elif n == 0:
                        b("s_nop 0")
                    k = 2 if n < 2 else 3
                    if j == 1:
                        k = 0 if n == 0 else 3
                    b("\n".join(st[:k]))
                    st = st[k:]
                    n += 1
            assert not st
        return stats(5)
    tail = conv(0)
    b("s_nop 3")
    b("\n".join(tail))
    vSW = TMP + 28
    b(f"""
    s_lshl_b32 {s(sK)}, {s(sW)}, 10
    s_add_u32 {s(sK)}, {s(sK)}, {ST}
    v_add_u32 {v(vSW)}, {s(sK)}, {v(vL16)}
    ds_write_b128 {v(vSW)}, {v(S, 4)}
    """)
    b.stamp(7)
    for r in range(12, 18):
        b("s_mov_b32 exec_hi, 0xffffff")
        stage(r, 17 - r + 4 + ndma)
        b("s_mov_b32 exec_hi, -1")
        b("\n".join(early[ndma]))
        ndma += 1
    g0, g1 = TMP + 12, TMP + 14
    b(f"""
    s_waitcnt vmcnt(20)
    v_lshlrev_b32 {v(g0)}, 16, {v(vG)}
    v_and_b32 {v(g0 + 1)}, 0xffff0000, {v(vG)}
    v_lshlrev_b32 {v(g1)}, 16, {v(vB2)}
    v_and_b32 {v(g1 + 1)}, 0xffff0000, {v(vB2)}
    v_lshlrev_b32 {v(TMP + 16)}, 3, {v(vL)}
    {pk("mul", g1, v(g1, 2), v(g0, 2))}
    {pk("mul", g0, v(g0, 2), s(sIA, 2))}
    v_add_u32 {v(TMP + 16)}, {PG}, {v(TMP + 16)}
    s_mov_b32 exec_hi, 0xffff
    ds_write_b64 {v(TMP + 16)}, {v(g0, 2)}
    ds_write_b64 {v(TMP + 16)}, {v(g1, 2)} offset:{PGB - PG}
    s_mov_b32 exec_hi, -1
    s_waitcnt lgkmcnt(0)
    s_barrier
    """)
    b.stamp(8)
    tail = conv(1)
    b("s_nop 3")
    b("\n".join(tail))
    b(f"""
    ds_write_b128 {v(vSW)}, {v(S + 4, 4)} offset:4096
    v_add_u32 {v(vSW)}, {ST}, {v(vL16)}
    s_waitcnt lgkmcnt(0)
    s_barrier
    """)
    b.stamp(9)

    Q = TMP + 32
    for ph in range(2):
        for w in range(4):
            b(f"ds_read_b128 {v(Q + 16 * ph + 4 * w, 4)}, {v(vSW)} offset:{4096 * ph + 1024 * w}")
    for ph in range(2):
        q = Q + 16 * ph
        b(f"s_waitcnt lgkmcnt({4 - 4 * ph})")
        for o in (0, 2):
            b(pk("add", q + o, v(q + o, 2), v(q + 4 + o, 2)))
            b(pk("add", q + 8 + o, v(q + 8 + o, 2), v(q + 12 + o, 2)))
        for o in (0, 2):
            b(pk("add", q + o, v(q + o, 2), v(q + 8 + o, 2)))
        for o in (0, 2):
            b(pk("mul", q + o, v(q + o, 2), s(sINV, 2)))
    sets = [Q, Q + 2, Q + 16, Q + 18]
    for q in sets:
        b(f"v_fma_f32 {v(q + 1)}, -{v(q)}, {v(q)}, {v(q + 1)}")
    for q in sets:
        b(f"v_max_f32 {v(q + 1)}, 0, {v(q + 1)}")
    for q in sets:
        b(f"v_add_f32 {v(q + 1)}, {s(sEPS)}, {v(q + 1)}")
    for q in sets:
        b(f"v_rsq_f32 {v(q + 1)}, {v(q + 1)}")
    for q in sets:
        b(f"v_mul_f32 {v(q + 1)}, {s(sALPHA)}, {v(q + 1)}")
    for q in sets:
        b(f"v_mul_f32 {v(q)}, -{v(q)}, {v(q + 1)}")
    for k, q in enumerate(sets):
        base = CV + 24 * k
        for i in range(0, 24, 2):
            b(pk("fma", base + i, v(base + i, 2), v(q, 2), v(q, 2), " op_sel:[0,1,0] op_sel_hi:[1,1,0]"))
        for i in range(12):
            b(f"v_cvt_pk_bf16_f32 {v(base + i)}, {v(base + 2 * i)}, {v(base + 2 * i + 1)}")
        ph, sx = k >> 1, k & 1
        for jj in range(3):
            b(f"ds_write_b128 {v(vAW)}, {v(base + 4 * jj, 4)} offset:{(8 * ph + sx) * 14 * AP + 16 * jj}")
    b(f"""
    v_add_u32 {v(vW1A)}, {o1(1)}, {v(vW1L)}
    v_add_u32 {v(vW1B)}, {o1(2)}, {v(vW1L)}
    v_add_u32 {v(vW1C)}, {o1(3)}, {v(vW1L)}
    s_waitcnt vmcnt(0) lgkmcnt(0)
    s_barrier
    """)
    b.stamp(10)

    LO, HI = 0, 17
    bi = TMP
    b("\n".join([f"ds_read_b128 {a(aB + 4 * k, 4)}, {v(vBF)} offset:{32 * k}" for k in range(6)]
                + r_b1(vB1L, 0) + r_w1(vW1L)))
    for i in range(0, 8, 2):
        b(f"v_mov_b64 {v(bi + i, 2)}, 0")
    rest = [f"ds_read_u16 {v(bi + 2 * t)}, {v(r)}" for t, r in enumerate((vB20, vB21, vB22))]
    rest += [f"ds_read_b128 {a(aBH + 4 * k, 4)}, {v(vBH)} offset:{32 * k}" for k in range(6)]
    rest += [f"ds_read_b128 {a(aBR + 4 * k, 4)}, {v(vBR)} offset:{64 * k}" for k in range(3)]
    b("s_waitcnt lgkmcnt(0)")
    M = m_fc1(X[0]) + [f"v_mfma_f32_32x32x16_bf16 {v(ACC + 16 * t, 16)}, {v(bi + 2 * t, 4)}, {a(aC32, 4)}, 0" for t in range(3)]
    w1r = r_b1(vB1L, 64) + r_w1(vW1A)
    late = [w1dma(p, i) for p in (4, 5) for i in range(3)] + [w2dma(-6144 * uu, 6144 * uu, i) for uu in range(2) for i in range(6)]
    G = [rest[:6], rest[6:] + w1r[:1], w1r[1:3], w1r[3:5],
         ["s_waitcnt lgkmcnt(5)", "s_barrier",
          f"s_mul_i32 {s(sT3)}, {s(sW)}, 12288",
          f"s_sub_u32 {s(sT2)}, {W2TOP - 5 * 6144}, {s(sT3)}",
          f"s_add_u32 {s(sT3)}, {s(sT3)}, {4 * 6144}"] + w1r[5:7],
         w1r[7:9] + late[0], w1r[9:13] + late[1], late[2] + late[3], late[4] + late[5], late[6] + late[7]]
    b("\n".join(interleave(M, G, [])))
    b.stamp(11)
    b("\n".join(P(0, LO, HI)))
    t0run = T(0, LO, HI, w1reg=vW1B, b1=(vB1L, 128), extra=late[8] + late[9] + late[10])
    b("\n".join(t0run))
    b("\n".join(x for l in late[11:14] for x in l))
    b("\n".join(P(1, LO, HI, True)))
    b("\n".join(T(1, LO, HI, w1reg=vW1C, b1=(vB1L, 192), extra=late[14] + late[15] + late[16])))
    b("\n".join(late[17]))
    b("\n".join(P(2, LO, HI, True)))

    def addr_update(blk, k):
        def unit(j):
            return (j, False) if j < 12 else ((j - 12, True) if j < 18 else (0, False))
        for reg, j in ((vW1A, 3 * k + 4), (vW1B, 3 * k + 5), (vW1C, 3 * k + 6)):
            U, par = unit(j)
            if par:
                blk(f"s_mul_i32 {s(sT0)}, {s(sPAR)}, 36864")
                blk(f"s_add_u32 {s(sT0)}, {s(sT0)}, {o1(U)}")
                blk(f"v_add_u32 {v(reg)}, {s(sT0)}, {v(vW1L)}")
            else:
                blk(f"v_add_u32 {v(reg)}, {o1(U)}, {v(vW1L)}")
        for reg, j in ((vB1C, 3 * k + 3), (vB1N, 3 * k + 6)):
            U, par = unit(j)
            if par:
                blk(f"s_mul_i32 {s(sT0)}, {s(sPAR)}, 384")
                blk(f"s_add_u32 {s(sT0)}, {s(sT0)}, {64 * U}")
                blk(f"v_add_u32 {v(reg)}, {s(sT0)}, {v(vB1L)}")
            else:
                blk(f"v_add_u32 {v(reg)}, {64 * U}, {v(vB1L)}")
        if k in (1, 2, 3, 5):
            for t in range(3):
                blk(f"v_subrev_u32 {v(vW2[t])}, 18432, {v(vW2[t])}")
        elif k == 4:
            blk(f"s_mul_i32 {s(sT0)}, {s(sPAR)}, 36864")
            blk(f"s_sub_u32 {s(sT0)}, {3 * 18432}, {s(sT0)}")
            for t in range(3):
                blk(f"v_add_u32 {v(vW2[t])}, {s(sT0)}, {v(vW2[t])}")
        if k < 5:
            blk(f"s_mov_b32 {s(sK)}, {k}")
    addr_update(b, 0)
    b.stamp(12)

    b = B["loop"] = Block()
    b.append(".p2align 6")
    b.append("L_loop:")
    b("\n".join(T(5, LO, HI, w1reg=vW1A, b1=(vB1C, 64), w2u=0)))
    b("\n".join(P(6, LO, HI)))
    b("\n".join(T(6, LO, HI, w1reg=vW1B, b1=(vB1C, 128), w2u=1)))
    b("\n".join(P(7, LO, HI)))
    b("\n".join(T(7, LO, HI, w1reg=vW1C, b1=(vB1N, 0), w2u=2)))
    b("\n".join(P(8, LO, HI)))
    B["disp"] = [[f"s_cmp_eq_u32 {s(sK)}, {k}", f"s_cbranch_scc1 L_svc{k + 1}"] for k in range(4)]

    b = B["final"] = Block()
    od = (2, 1, 0)
    GA, HX, PX = TMP, TMP + 24, TMP + 36
    for t in range(3):
        b(f"v_subrev_u32 {v(vW2[t])}, 18432, {v(vW2[t])}")
    b.stamp(17)
    b("s_waitcnt lgkmcnt(0)")
    b("s_barrier")
    b("\n".join(r_w2(0, od)))
    w2n = r_w2(1, od)
    tr = T(17, LO, HI, order=od)
    b("\n".join(post_reads(tr, w2n)))
    b("\n".join(P(18, LO, HI)))
    tr = T(18, LO, HI, order=od)
    b("\n".join(post_reads(tr, r_w2(2, od))))
    b("\n".join(P(19, LO, HI)))
    gr = [f"ds_read_b128 {v(GA + 8 * u + 4 * k, 4)}, {v(vGA)} offset:{64 * u + 16 * k}" for u in range(3) for k in range(2)]
    V = t_cvt(H, R)
    unp = []
    for u in range(3):
        for i in range(4):
            unp += [f"v_lshlrev_b32 {v(Z + 8 * u + 2 * i)}, 16, {v(HX + 4 * u + i)}",
                    f"v_and_b32 {v(Z + 8 * u + 2 * i + 1)}, 0xffff0000, {v(HX + 4 * u + i)}"]
    M = m_fc2(od)
    G = [gr[:2], gr[2:4], gr[4:6], [], [], []]
    vXW_, vXR_ = TMP + 60, TMP + 61
    pre = [f"s_mul_i32 {s(sT0)}, {s(sW)}, 6144", f"s_xor_b32 {s(sT1)}, {s(sW)}, 1", f"s_mul_i32 {s(sT1)}, {s(sT1)}, 6144"]
    V2 = V[4:] + [f"v_add_u32 {v(vXW_)}, {s(sT0)}, {v(vL16)}", f"v_add_u32 {v(vXR_)}, {s(sT1)}, {v(vL16)}"] + unp
    b("\n".join(V[:4] + pre + ["s_waitcnt vmcnt(6) lgkmcnt(0)"] + interleave(M, G, V2, tail=24)))
    b.stamp(18)
    b("s_nop 1")
    for i in (2, 3, 4, 5, 0, 1):
        b(f"ds_write_b128 {v(vXW_)}, {v(ACC + 24 + 4 * i, 4)} offset:{XCH + 1024 * i}")
    b("s_waitcnt lgkmcnt(0)")
    b("s_barrier")
    for i in range(6):
        b(f"ds_read_b128 {v(PX + 4 * i, 4)}, {v(vXR_)} offset:{XCH + 1024 * i}")
    for u in range(3):
        b(f"s_waitcnt lgkmcnt({4 - 2 * u})")
        for i in range(0, 8, 2):
            b(pk("add", ACC + 8 * u + i, v(ACC + 8 * u + i, 2), v(PX + 8 * u + i, 2)))
        for i in range(0, 8, 2):
            b(pk("fma", Z + 8 * u + i, v(ACC + 8 * u + i, 2), v(GA + 8 * u + i, 2), v(Z + 8 * u + i, 2)))
        for i in range(4):
            b(f"v_cvt_pk_bf16_f32 {v(HX + 4 * u + i)}, {v(Z + 8 * u + 2 * i)}, {v(Z + 8 * u + 2 * i + 1)}")
        b(f"buffer_store_dwordx4 {v(HX + 4 * u, 4)}, {v(vOH)}, {s(SRD_O, 4)}, 0 offen offset:{32 * u}")
    if OPT["stamps"]:
        b("s_waitcnt vmcnt(0)")
        b.stamp(19)
        emit_stamps(b)
    b("s_endpgm")

    b = B["svc1"] = Block()
    b.append("L_svc1:")
    b.stamp(13)
    addr_update(b, 1)
    b("s_waitcnt vmcnt(0)")
    b("s_barrier")
    b("s_branch L_loop")

    b = B["svc2"] = Block()
    b.append("L_svc2:")
    b.stamp(14)
    addr_update(b, 2)
    D, WK, HR = TMP, TMP + 24, TMP + 48
    r1 = (TMP + 60, TMP + 61, TMP + 62)
    r2, rb, rw, RX = TMP + 63, TMP + 64, TMP + 65, TMP + 68
    u0, u1, u2 = TMP + 66, TMP + 67, H
    b(f"""
    buffer_load_dwordx4 {v(RX, 4)}, {v(vOR)}, {s(SRD_X, 4)}, 0 offen
    v_lshrrev_b32 {v(u0)}, 4, {v(vL)}
    v_bfe_u32 {v(u1)}, {v(vL)}, 2, 2
    v_and_b32 {v(u2)}, 3, {v(vL)}
    v_lshlrev_b32 {v(r2)}, 10, {v(u0)}
    v_lshl_add_u32 {v(r2)}, {v(u1)}, 6, {v(r2)}
    v_lshl_add_u32 {v(r2)}, {v(u2)}, 3, {v(r2)}
    s_mul_i32 {s(sT2)}, {s(sW)}, 3
    """)
    for u in range(3):
        b(f"""
        s_add_u32 {s(sT0)}, {s(sT2)}, {u}
        s_lshr_b32 {s(sT1)}, {s(sT0)}, 1
        s_mul_i32 {s(sT1)}, {s(sT1)}, 12288
        s_and_b32 {s(sT0)}, {s(sT0)}, 1
        s_lshl_b32 {s(sT0)}, {s(sT0)}, 9
        s_add_u32 {s(sT0)}, {s(sT0)}, {s(sT1)}
        v_add_u32 {v(r1[u])}, {s(sT0)}, {v(r2)}
        """)
    b(f"""
    v_and_b32 {v(rb)}, 15, {v(vL)}
    s_mul_i32 {s(sT0)}, {s(sW)}, 192
    s_add_u32 {s(sT0)}, {s(sT0)}, {PB1}
    v_lshl_add_u32 {v(rb)}, {v(rb)}, 1, {s(sT0)}
    v_lshl_add_u32 {v(r2)}, {v(u0)}, 2, {v(u1)}
    v_mul_u32_u24 {v(r2)}, 192, {v(r2)}
    s_mul_i32 {s(sT0)}, {s(sW)}, 18432
    s_sub_u32 {s(sT0)}, {w2base(0)}, {s(sT0)}
    v_lshl_add_u32 {v(r2)}, {v(u2)}, 3, {v(r2)}
    v_add_u32 {v(r2)}, {s(sT0)}, {v(r2)}
    v_mul_u32_u24 {v(rw)}, 384, {v(u2)}
    s_mul_i32 {s(sT0)}, {s(sW)}, 1536
    s_add_u32 {s(sT0)}, {s(sT0)}, {RBUF}
    v_lshl_add_u32 {v(rw)}, {v(u0)}, 4, {v(rw)}
    v_add_u32 {v(rw)}, {s(sT0)}, {v(rw)}
    """)

    def rw1(i):
        u, mh = i >> 1, i & 1
        return [f"ds_read_b64_tr_b16 {a(aRF + 12 * i + 4 * k + 2 * jj, 2)}, {v(r1[u])} offset:{4096 * k + 256 * jj + 32 * mh}"
                for k in range(3) for jj in range(2)]

    def rw2(u):
        return [f"ds_read_b64_tr_b16 {a(aRF + 24 * u + 4 * c + 2 * jj, 2)}, {v(r2)} offset:{(2 - u) * 6144 + 3072 * jj + 32 * c}"
                for c in range(6) for jj in range(2)]
    b("\n".join([f"ds_read_u16 {a(aRBIAS + 2 * i)}, {v(rb)} offset:{32 * i}" for i in range(6)] + rw1(0) + rw1(1)))
    for i in range(6):
        b(f"s_waitcnt lgkmcnt({6 if i < 5 else 6})")
        rd = rw1(i + 2) if i < 4 else rw2(0)[6 * (i - 4):6 * (i - 4) + 6]
        M = [f"v_mfma_f32_16x16x32_bf16 {v(D + 4 * i, 4)}, {a(aRBIAS + 2 * i, 4)}, {a(aC16, 4)}, 0"]
        M += [f"v_mfma_f32_16x16x32_bf16 {v(D + 4 * i, 4)}, {a(aRF + 12 * i + 4 * k, 4)}, {a(aBR + 4 * k, 4)}, {v(D + 4 * i, 4)}" for k in range(3)]
        b("\n".join(interleave(M, [rd[0:2], rd[2:3], rd[3:5], rd[5:6]], [])))
    b("\n".join(rw2(1)))
    t, z = p_tz(D, WK, 24)
    b("\n".join(t + z + t_exp(WK, WK, 24) + p_add(WK, 24) + t_rcp(WK, WK, 24) + p_mul(WK, D, 24) + t_cvt(HR, WK, 24)))
    for u in range(3):
        b(f"s_waitcnt lgkmcnt({0 if u != 1 else 0})")
        rd = rw2(2) if u == 0 else []
        M = [f"v_mfma_f32_16x16x32_bf16 {a(aRACC + 4 * c, 4)}, {a(aRF + 24 * u + 4 * c, 4)}, {v(HR + 4 * u, 4)}, {'0' if u == 0 else a(aRACC + 4 * c, 4)}"
             for c in range(6)]
        b("\n".join(interleave(M, [rd[2 * c:2 * c + 2] for c in range(6)], [])))
    b(f"""
    s_mov_b32 exec_lo, 0x000f000f
    s_mov_b32 exec_hi, 0x000f000f
    s_nop 1
    """)
    for c in range(6):
        if c == 5:
            b("s_nop 0")
        b(f"ds_write_b128 {v(rw)}, {a(aRACC + 4 * c, 4)} offset:{64 * c}")
    b("s_mov_b64 exec, -1")
    b("s_branch L_loop")

    b = B["svc3"] = Block()
    b.append("L_svc3:")
    b.stamp(15)
    addr_update(b, 3)
    PP, PGm, PBm, ra, rg = TMP, TMP + 32, TMP + 40, H, H + 1
    FX = TMP + 48
    b(f"""
    v_min_u32 {v(rg)}, 11, {v(vL)}
    v_lshlrev_b32 {v(rg)}, 5, {v(rg)}
    s_mul_i32 {s(sT0)}, {s(sW)}, 384
    s_add_u32 {s(sT0)}, {s(sT0)}, {RBUF}
    v_add_u32 {v(ra)}, {s(sT0)}, {v(rg)}
    v_add_u32 {v(rg)}, {PG}, {v(rg)}
    s_waitcnt lgkmcnt(0)
    s_barrier
    """)
    for w in range(4):
        for k in range(2):
            b(f"ds_read_b128 {v(PP + 8 * w + 4 * k, 4)}, {v(ra)} offset:{1536 * w + 16 * k}")
    for k in range(2):
        b(f"ds_read_b128 {v(PGm + 4 * k, 4)}, {v(rg)} offset:{16 * k}")
        b(f"ds_read_b128 {v(PBm + 4 * k, 4)}, {v(rg)} offset:{PGB - PG + 16 * k}")
    for i in range(24):
        b(f"v_accvgpr_mov_b32 {a(aB + i)}, {a(aBH + i)}")
    b("s_waitcnt vmcnt(0) lgkmcnt(0)")
    for i in range(4):
        b(f"v_lshlrev_b32 {v(H + 2 * i)}, 16, {v(RX + i)}")
        b(f"v_and_b32 {v(H + 2 * i + 1)}, 0xffff0000, {v(RX + i)}")
    for u in range(6):
        reg, o = (vOFA, 32 * u) if u < 3 else (vOFB, 32 * (u - 3))
        b(f"buffer_load_dwordx4 {v(FX + 4 * u, 4)}, {v(reg)}, {s(SRD_X, 4)}, 0 offen offset:{o}")
    for i in range(0, 8, 2):
        b(pk("add", PP + i, v(PP + i, 2), v(PP + 8 + i, 2)))
        b(pk("add", PP + 16 + i, v(PP + 16 + i, 2), v(PP + 24 + i, 2)))
        b(pk("add", H + i, v(H + i, 2), v(PBm + i, 2)))
    for i in range(0, 8, 2):
        b(pk("add", PP + i, v(PP + i, 2), v(PP + 16 + i, 2)))
    for i in range(0, 8, 2):
        b(pk("fma", H + i, v(PP + i, 2), v(PGm + i, 2), v(H + i, 2)))
    for i in range(4):
        b(f"v_cvt_pk_bf16_f32 {v(PP + i)}, {v(H + 2 * i)}, {v(H + 2 * i + 1)}")
    b(f"buffer_store_dwordx4 {v(PP, 4)}, {v(vOR)}, {s(SRD_O, 4)}, 0 offen")
    b("s_branch L_loop")

    b = B["svc4"] = Block()
    b.append("L_svc4:")
    b.stamp(16)
    addr_update(b, 4)

    def gread(reg):
        return [f"ds_read_b128 {v(GA + 8 * u + 4 * k, 4)}, {v(reg)} offset:{64 * u + 16 * k}" for u in range(3) for k in range(2)]
    bz = TMP + 36
    b(f"""
    v_bfe_u32 {v(bz + 8)}, {v(vL)}, 4, 1
    v_mov_b32 {v(bz + 9)}, {ZERO}
    v_cmp_eq_u32 vcc, 0, {v(bz + 8)}
    v_mov_b64 {v(bz, 2)}, 0
    v_mov_b64 {v(bz + 2, 2)}, 0
    v_cndmask_b32 {v(bz + 9)}, {v(bz + 9)}, {v(vB21)}, vcc
    v_mov_b64 {v(bz + 4, 2)}, 0
    v_mov_b64 {v(bz + 6, 2)}, 0
    """)
    b("\n".join(gread(vGA)))
    b(f"ds_read_u16 {v(bz)}, {v(vB20)}")
    b(f"ds_read_u16 {v(bz + 2)}, {v(bz + 9)}")
    b("s_waitcnt vmcnt(1)")
    for u in range(3):
        b(f"buffer_load_dwordx4 {v(HX + 4 * u, 4)}, {v(vOH)}, {s(SRD_X, 4)}, 0 offen offset:{32 * u}")
    for u in range(6):
        for i in range(4):
            b(f"v_lshlrev_b32 {v(H + 2 * i)}, 16, {v(FX + 4 * u + i)}")
            b(f"v_and_b32 {v(H + 2 * i + 1)}, 0xffff0000, {v(FX + 4 * u + i)}")
        if u == 0 or u == 3:
            b("s_waitcnt lgkmcnt(0)")
        for i in range(0, 8, 2):
            b(pk("fma", H + i, v(ACC + 8 * u + i, 2), v(GA + 8 * (u % 3) + i, 2), v(H + i, 2)))
        if u == 2:
            b("\n".join(gread(vGB)))
        for i in range(4):
            b(f"v_cvt_pk_bf16_f32 {v(FX + 4 * u + i)}, {v(H + 2 * i)}, {v(H + 2 * i + 1)}")
        reg, o = (vOFA, 32 * u) if u < 3 else (vOFB, 32 * (u - 3))
        b(f"buffer_store_dwordx4 {v(FX + 4 * u, 4)}, {v(reg)}, {s(SRD_O, 4)}, 0 offen offset:{o}")
    for t in range(3):
        b(f"v_mfma_f32_32x32x16_bf16 {v(ACC + 16 * t, 16)}, {v(bz + 2 * t, 4)}, {a(aC32, 4)}, 0")
    b("s_branch L_loop")
    return B


def post_reads(tr, reads):
    out = []
    n = 0
    for x in tr:
        out.append(x)
        if x.startswith("v_mfma"):
            out += reads[2 * n:2 * n + 2]
            n += 1
    return out


def emit_stamps(b):
    b(f"""
    s_load_dwordx2 s[4:5], s[0:1], 72
    s_waitcnt lgkmcnt(0)
    s_lshl_b32 s6, s2, 2
    s_add_u32 s6, s6, {s(sW)}
    s_lshl_b32 s6, s6, 7
    v_mov_b32 v0, s6
    s_mov_b32 s6, 0x100000
    s_mov_b32 s7, 0x20000
    s_mov_b64 exec, 1
    """)
    for k in range(1, 20):
        b(f"s_sub_u32 {s(sSTAMP + k)}, {s(sSTAMP + k)}, {s(sSTAMP)}")
        b(f"v_mov_b32 v2, {s(sSTAMP + k)}")
        b(f"buffer_store_dword v2, v0, s[4:7], 0 offen offset:{4 * k}")
    b("s_waitcnt vmcnt(0)")


def build():
    B = gen()
    disp_all = [x for d in B["disp"] for x in d]
    layout = B["entry"] + B["loop"] + disp_all + B["final"] + B["svc1"] + B["svc2"] + B["svc3"] + B["svc4"]
    trace = list(B["entry"])
    for k in range(4):
        trace += B["loop"] + [x for d in B["disp"][:k + 1] for x in d] + B[f"svc{k + 1}"]
    trace += B["loop"] + disp_all + B["final"]
    trace = [t for t in trace if not t.endswith(":") and not t.startswith(".")]
    errs = check(trace)
    hdr = open("standalone__modern_conv_block_convnext__vision.s.ref").read().split("\n")
    head = [l for l in hdr if l.startswith(";") and "@launch" not in l and "Override" not in l and "grid=ceil" not in l]
    out = head + [f"; @launch grid=(256,1,1) block=(256,1,1) lds={LDS_BYTES}",
                  '.amdgcn_target "amdgcn-amd-amdhsa--gfx950"', ".text", f".globl {KNAME}", ".p2align 8",
                  f".type {KNAME},@function", f"{KNAME}:"]
    for t in layout:
        out.append(t if t.endswith(":") or t.startswith(".") else "    " + t)
    out += ["L_end:", "    s_endpgm", '.section .rodata,"a"', ".p2align 6", f".amdhsa_kernel {KNAME}",
            "  .amdhsa_next_free_vgpr 512", "  .amdhsa_next_free_sgpr 102", "  .amdhsa_accum_offset 256",
            "  .amdhsa_group_segment_fixed_size 0", "  .amdhsa_kernarg_size 80", "  .amdhsa_user_sgpr_count 2",
            "  .amdhsa_user_sgpr_kernarg_segment_ptr 1", "  .amdhsa_system_sgpr_workgroup_id_x 1",
            ".end_amdhsa_kernel", ""]
    return "\n".join(out), errs, trace


if __name__ == "__main__":
    path = sys.argv[1]
    for kv in sys.argv[2:]:
        k, val = kv.split("=")
        OPT[k] = {"0": False, "1": True}.get(val, val)
    text, errs, trace = build()
    for e in errs:
        print("HAZARD", e)
    open(path, "w").write(text)
    print(f"wrote {path}: {len(trace)} executed instructions, {len(errs)} lint findings")
```

```python
import re

from asmlint import Ins

TRANS = ("v_exp_f32", "v_rcp_f32", "v_rsq_f32")


def vcost(t):
    op = t.split()[0]
    if op.replace("_e64", "") in TRANS or op.startswith("v_permlane"):
        return 8
    return 4


def fcost(t):
    op = t.split()[0]
    if op.startswith("buffer_"):
        return 14
    if op.startswith("ds_write_b128"):
        return 26
    return 4


def pipe(m):
    return 32 if "32x32" in m else 16


def trun(M, F, V, need=None, head=None, tail=12):
    n = len(M)
    need = need or {}
    G = [[] for _ in range(n)]
    load = [0] * n
    for lo, hi, grp in F:
        lo, hi = max(0, min(lo, n - 1)), min(hi, n - 1)
        cand = range(lo, hi + 1)
        best = min(cand, key=lambda g: (load[g] - (pipe(M[g]) - 16) / 16.0, g))
        G[best] += grp
        load[best] += sum(fcost(x) for x in grp)
    extra = [max(0, load[g] - 4) for g in range(n)]
    total = sum(extra) + sum(vcost(x) for x in V) + 8 * n
    ptot = sum(pipe(m) for m in M) + tail
    lam = total / ptot
    out = list(head or [])
    vi = 0
    acc = 0.0
    pcum = 0.0
    for i in range(n):
        while vi < need.get(i, 0):
            acc += vcost(V[vi])
            out.append(V[vi])
            vi += 1
        out.append(M[i])
        out += G[i]
        acc += 8 + extra[i]
        pcum += pipe(M[i])
        if i == n - 1:
            out += V[vi:]
            vi = len(V)
        else:
            while vi < len(V) and acc + vcost(V[vi]) / 2 <= lam * pcum:
                acc += vcost(V[vi])
                out.append(V[vi])
                vi += 1
    return out


def autowait(lines, verbose=False):
    out = []
    vm, lg = [], []
    pend = {}
    added = 0

    def drain(q, n):
        while len(q) > n:
            e = q.pop(0)
            for r in e[1]:
                if pend.get(r) is e:
                    del pend[r]

    def emit(nv, nl):
        parts = []
        if nv is not None:
            parts.append(f"vmcnt({min(nv, 63)})")
            drain(vm, nv)
        if nl is not None:
            parts.append(f"lgkmcnt({min(nl, 15)})")
            drain(lg, min(nl, 15))
        if out and out[-1].startswith("s_waitcnt"):
            prev = out.pop()
            have = dict(re.findall(r"(\w+)\((\d+)\)", prev))
            for k, val in re.findall(r"(\w+)\((\d+)\)", " ".join(parts)):
                have[k] = str(min(int(val), int(have.get(k, 99))))
            parts = [f"{k}({have[k]})" for k in ("vmcnt", "lgkmcnt") if k in have]
        out.append("s_waitcnt " + " ".join(parts))

    def younger(q, tag):
        idx = [k for k, e in enumerate(q) if e[2] == tag]
        return None if not idx else len(q) - 1 - idx[-1]

    for ln in lines:
        if ln.endswith(":") or ln.startswith("."):
            out.append(ln)
            continue
        if ln.startswith("@"):
            kind, tag = ln[1:].split()
            q = vm if kind == "vm" else lg
            n = 0 if tag == "all" else younger(q, tag)
            if n is not None and (q and len(q) > n):
                emit(n, None) if kind == "vm" else emit(None, n)
            continue
        tag = None
        if ";@" in ln:
            ln, tag = ln.split(";@")
            ln = ln.rstrip()
        i = Ins(ln)
        if i.kind == "wait":
            m = re.search(r"vmcnt\((\d+)\)", ln)
            m2 = re.search(r"lgkmcnt\((\d+)\)", ln)
            emit(int(m.group(1)) if m else None, int(m2.group(1)) if m2 else None)
            continue
        nv = nl = None
        for r in set(i.r + i.w):
            e = pend.get(r)
            if e is None:
                continue
            if e in vm:
                c = len(vm) - 1 - vm.index(e)
                nv = c if nv is None else min(nv, c)
            else:
                c = 0 if any(x[3] for x in lg) else len(lg) - 1 - lg.index(e)
                nl = c if nl is None else min(nl, c)
        if nv is not None or nl is not None:
            added += 1
            if verbose:
                print(f"  auto wait vm={nv} lg={nl} before: {ln}")
            emit(nv, nl)
        out.append(ln)
        if i.kind == "vmem":
            e = [len(out), list(i.w), tag, False]
            vm.append(e)
            for r in i.w:
                pend[r] = e
        elif i.kind in ("lds", "smem"):
            e = [len(out), list(i.w), tag, i.kind == "smem"]
            lg.append(e)
            for r in i.w:
                pend[r] = e
    return out, added


INLINE_INT = set(range(-16, 65))
VOP3_ONLY = ("v_fma_f32", "v_mad_", "v_lshl_add", "v_lshl_or", "v_add3", "v_mul_lo", "v_mul_hi", "v_bfe", "v_perm_",
             "v_pk_", "v_mfma", "v_smfmac", "v_cvt_pk_bf16", "v_lshrrev_b64", "v_accvgpr_write", "v_accvgpr_read",
             "v_and_or", "v_readlane")


def is_literal(p):
    p = p.strip()
    if re.fullmatch(r"-?(0\.5|1\.0|2\.0|4\.0)", p):
        return False
    if re.fullmatch(r"-?(0x[0-9a-fA-F]+|\d+)", p):
        return int(p, 0) not in INLINE_INT
    return bool(re.match(r"L_\w+-", p))


def isize(t):
    t = t.split(";")[0].strip()
    op = t.split()[0]
    i = Ins(t)
    if op.startswith(("ds_", "buffer_", "global_", "s_load", "s_memtime")):
        return 8
    if op.startswith("v_"):
        if op.endswith("_e64") or op.startswith(VOP3_ONLY):
            return 8
        if op.startswith("v_cmp") and not i.parts[0] == "vcc":
            return 8
        if op.startswith("v_cndmask") and i.parts[-1] != "vcc":
            return 8
        if any(p.startswith("-v") or p.startswith("-s") for p in i.parts):
            return 8
        if len(i.parts) == 3 and not op.startswith(("v_readfirstlane", "v_cmp")) and not i.parts[2].startswith("v"):
            return 8
        return 8 if any(is_literal(p) for p in i.parts[1:]) else 4
    if op.startswith(("s_waitcnt", "s_nop", "s_barrier", "s_branch", "s_cbranch", "s_endpgm", "s_movk", "s_setprio", "s_getpc")):
        return 4
    return 8 if any(is_literal(p) for p in i.parts) else 4


WIDENABLE = ("v_exp_f32", "v_rcp_f32", "v_rsq_f32", "v_add_f32", "v_mul_f32", "v_lshlrev_b32", "v_mov_b32", "v_fmac_f32",
             "v_max_f32", "v_add_u32", "v_and_b32", "v_lshrrev_b32", "v_sub_u32", "v_mov_b64")


def fix_align(lines):
    out = []
    off = 0
    run = []
    bad = 0
    for n, t in enumerate(lines):
        if t.endswith(":"):
            out.append(t)
            continue
        if t.startswith(".p2align"):
            out.append(t)
            off = 0
            run = []
            continue
        sz = isize(t)
        if sz == 8:
            if off % 8 == 4:
                c = [k for k in run if out[k].split()[0] in WIDENABLE]
                ahead = 0
                while n + ahead < len(lines) and not lines[n + ahead].endswith(":") and not lines[n + ahead].startswith(".") \
                        and isize(lines[n + ahead]) == 8:
                    ahead += 1
                if c:
                    k = c[-1]
                    op = out[k].split()[0]
                    out[k] = out[k].replace(op, op + "_e64", 1)
                    off += 4
                elif ahead >= 6:
                    out.append("s_nop 0")
                    off += 4
                else:
                    bad += 1
            run = []
        else:
            run.append(len(out))
        out.append(t)
        off += sz
    return out, bad
```

```python
import math
import struct
import sys

from asmlint import check
from sched import trun, autowait, fix_align, isize

KNAME = "standalone__modern_conv_block_convnext__vision_kernel"
OPT = dict(nt="nt", stamps=False, verbose=False, align=True, st_h="", st_f="", hops=False, nt2="")


def f32bits(x):
    return struct.unpack("<I", struct.pack("<f", x))[0]


def bf16_rne(x):
    u = f32bits(x)
    return (u + 0x7FFF + ((u >> 16) & 1)) >> 16


def bf16_val(h):
    return struct.unpack("<f", struct.pack("<I", h << 16))[0]


C1 = 2.0 * math.sqrt(2.0 / math.pi) * math.log2(math.e)
ALPHA = (C1 * 0.044715) ** (1.0 / 3.0)
CP = C1 / ALPHA
A_HI = bf16_rne(ALPHA)
A_LO = bf16_rne(ALPHA - bf16_val(A_HI))

W2L, W2E = 73728, 110592
XP, XG, XPL = 36864, 5776, 2880
ACT, AP = 36864, 208
TBL = 147456
ST = TBL
RBUF, XCH = 0, 24576
PB1, PB2, PG, PGB = 159744, 160768, 161792, 162176
ZERO = PB2 + 512
LDS_BYTES = 162560
ROWB = 43008
XBYTES = 9633792

SRD_X, SRD_DW, SRD_W1, SRD_W2, SRD_B1, SRD_B2, SRD_G, SRD_O = 20, 24, 28, 32, 36, 40, 44, 48
sW, sPAR, sX0, sY0, sNP = 54, 55, 56, 57, 58
sT0, sT1, sT2, sT3 = 59, 60, 61, 62
sTB = 63
sCP, sONE, sINV, sLUT, sIA, sAL, sEPS, sMASK = 64, 66, 68, 70, 72, 74, 76, 78
sLO, sHI, sM1, sM2 = 4, 5, 6, 7
sS = (8, 9, 10)
sSTAMP = 80

vB2F, vL = 0, 1
vA, vB, vW2A, vW2B, vBA, vBB = 2, 3, 4, 5, 6, 7
vOFA, vOFB, vOH, vOR, vGA, vGB, vL16 = 8, 9, 10, 11, 12, 13, 14
vR1, vR2A, vR2B, vRB, vRW = 15, 16, 17, 18, 19
ACC = {"F": 20, "H": 68}
X = (116, 132, 148)
Z, E, R, H, TMP = 164, 180, 196, 212, 220
CV, AF = 116, 20
vIDX, vTA, vXB, vXW, vXO, vAW, vBF, vBH, vBR, vPF, vB2H, vG, vB2V, vSW = range(92, 106)
vD1 = TMP + 35

aSTG = 0
aRB = (72, 100, 128)
aW1, aW2 = 0, (24, 48)
aBt = {"F": 72, "H": 96}
aBR, aRF, aRACC = 120, 132, 156
aBIAS, aC32, aC16, aRBIAS = 180, 184, 188, 192


def v(i, n=1):
    return f"v{i}" if n == 1 else f"v[{i}:{i+n-1}]"


def a(i, n=1):
    return f"a{i}" if n == 1 else f"a[{i}:{i+n-1}]"


def s(i, n=1):
    return f"s{i}" if n == 1 else f"s[{i}:{i+n-1}]"


def L(t):
    return [x.strip() for x in t.strip("\n").split("\n") if x.strip()]


class Block(list):
    def __call__(self, t):
        self.extend(L(t) if isinstance(t, str) else t)

    def stamp(self, k):
        if OPT["stamps"]:
            self(f"s_memtime s[100:101]\ns_waitcnt lgkmcnt(0)\ns_mov_b32 {s(sSTAMP + k)}, s100")


def pk(op, d, x, y, z=None, mod=""):
    t = f"v_pk_{op}_f32 {v(d, 2)}, {x}, {y}"
    if z is not None:
        t += f", {z}"
    return t + mod


def p_t(xb, zb, n=16):
    return [pk("fma", zb + i, v(xb + i, 2), v(xb + i, 2), s(sCP, 2)) for i in range(0, n, 2)]


def p_z(xb, zb, n=16):
    return [pk("mul", zb + i, v(zb + i, 2), v(xb + i, 2), mod=" neg_lo:[1,0] neg_hi:[1,0]") for i in range(0, n, 2)]


def p_add(eb, n=16):
    return [pk("add", eb + i, v(eb + i, 2), s(sONE, 2)) for i in range(0, n, 2)]


def p_mul(rb, xb, n=16):
    return [pk("mul", rb + i, v(rb + i, 2), v(xb + i, 2)) for i in range(0, n, 2)]


def t_cvt(hb, rb, n=16):
    return [f"v_cvt_pk_bf16_f32 {v(hb + i // 2)}, {v(rb + i)}, {v(rb + i + 1)}" for i in range(0, n, 2)]


def t_rcp(rb, eb, n=16):
    return [f"v_rcp_f32 {v(rb + i)}, {v(eb + i)}" for i in range(n)]


def t_exp(eb, zb, n=16):
    return [f"v_exp_f32 {v(eb + i)}, {v(zb + i)}" for i in range(n)]


def unpack(dst, src, n):
    o = []
    for i in range(n):
        o += [f"v_lshlrev_b32 {v(dst + 2 * i)}, 16, {v(src + i)}", f"v_and_b32 {v(dst + 2 * i + 1)}, {s(sHI)}, {v(src + i)}"]
    return o


M32 = "v_mfma_f32_32x32x16_bf16"
M16 = "v_mfma_f32_16x16x32_bf16"

SLOTS = ([(t, "a", i, 0) for i in range(3) for t in "FH"] + [("F", "b", i, 0) for i in range(3)]
         + [(t, "a", i, 1) for i in range(3) for t in "HF"] + [("F", "b", i, 1) for i in range(3)])
NS = len(SLOTS)


def neww(j):
    return j == 0 or SLOTS[j][1:] != SLOTS[j - 1][1:]


UNITNO = []
for _j in range(NS):
    UNITNO.append((UNITNO[-1] if UNITNO else -1) + (1 if neww(_j) else 0))


def m_fc1(j):
    xb, bb = X[j % 3], aBt[SLOTS[j][0]]
    o = [f"{M32} {v(xb, 16)}, {a(aBIAS, 4)}, {a(aC32, 4)}, 0"]
    return o + [f"{M32} {v(xb, 16)}, {a(aW1 + 4 * k, 4)}, {a(bb + 4 * k, 4)}, {v(xb, 16)}" for k in range(6)]


def m_fc2(j):
    acc, wb = ACC[SLOTS[j][0]], aW2[UNITNO[j] % 2]
    return [f"{M32} {v(acc + 16 * t, 16)}, {a(wb + 4 * (3 * k + t), 4)}, {v(H + 4 * k, 4)}, "
            + ("0" if (j == 0 and k == 0) else v(acc + 16 * t, 16)) for k in range(2) for t in range(3)]


def r_w1(j):
    _, g, i, late = SLOTS[j]
    off = 12288 * i
    o = [f"ds_read_u16 {a(aBIAS)}, {v(vBA if g == 'a' else vBB)} offset:{128 * i + 384 * late}"]
    return o + [f"ds_read_b64_tr_b16 {a(aW1 + 4 * k + 2 * jj, 2)}, {v(vA if g == 'a' else vB)} offset:{off + 2048 * k + 256 * jj}"
                for k in range(6) for jj in range(2)]


def r_w2(j):
    _, g, i, late = SLOTS[j]
    wb = aW2[UNITNO[j] % 2]
    return [f"ds_read_b64_tr_b16 {a(wb + 4 * (3 * k + t) + 2 * jj, 2)}, {v(vW2A if g == 'a' else vW2B)} "
            f"offset:{12288 * i + 3072 * k + 1536 * jj + 64 * t}" for k in range(2) for t in range(3) for jj in range(2)]


def has(j):
    return 0 <= j < NS


def P(j, pre=(), post=(), late_x=False):
    t = p_t(X[j % 3], Z) if has(j) else []
    z = p_z(X[j % 3], Z) if has(j) else []
    m = p_mul(R, X[(j - 2) % 3]) if has(j - 2) else []
    d = p_add(E) if has(j - 1) else []
    core = m + d + t + z if late_x else t + m + z + d
    return list(pre) + core + list(post)


def T(j, xM=(), xF=(), xVpre=(), xV=(), xneed=None, tail=12, head=("@lg all",)):
    f1 = m_fc1(j + 1) if has(j + 1) else []
    f2 = m_fc2(j - 2) if has(j - 2) else []
    M = f1 + f2 + list(xM)
    n = len(M)
    cv = t_cvt(H, R) if has(j - 2) else []
    V = cv + list(xVpre) + (t_rcp(R, E) if has(j - 1) else []) + (t_exp(E, Z) if has(j) else []) + list(xV)
    need = dict(xneed or {})
    if f2:
        need[len(f1)] = max(need.get(len(f1), 0), 6)
        need[len(f1) + 3] = max(need.get(len(f1) + 3, 0), 10 if len(V) >= 10 else len(V))
    F = list(xF)
    nm = len(f1) + len(f2)
    if has(j - 1) and neww(j - 1):
        F += [(0, nm - 1, [x]) for x in r_w2(j - 1)]
    if has(j + 2) and neww(j + 2):
        w = r_w1(j + 2)
        F += [(0, nm - 1, w[:1])] + [(1 + k, nm - 1, [w[1 + 2 * k + jj]]) for k in range(5, -1, -1) for jj in range(2)]
    return trun(M, F, V, need, list(head), tail)


def gen():
    b = Block()
    nt = OPT["nt"]
    t0, t1, t2, t3, t4, t5 = range(TMP, TMP + 6)

    b.stamp(0)
    b(f"""
    s_cmp_ge_u32 s2, 256
    s_cbranch_scc1 L_end
    s_load_dwordx16 s[4:19], s[0:1], 0
    s_getpc_b64 s[52:53]
    L_pc:
    v_lshlrev_b32 {v(t0)}, 7, v0
    v_min_u32 {v(t0)}, L_end-L_pc, {v(t0)}
    global_load_dword {v(vPF)}, {v(t0)}, s[52:53] ;@pf
    v_lshrrev_b32 {v(t1)}, 6, v0
    v_and_b32 {v(vL)}, 63, v0
    v_readfirstlane_b32 {s(sW)}, {v(t1)}
    s_and_b32 {s(sT0)}, s2, 1
    s_lshl_b32 {s(sT0)}, {s(sT0)}, 3
    s_bfe_u32 {s(sT1)}, s2, 0x30003
    s_add_u32 {s(sT0)}, {s(sT0)}, {s(sT1)}
    s_mul_i32 {s(sX0)}, {s(sT0)}, 14
    s_bfe_u32 {s(sT0)}, s2, 0x20001
    s_lshl_b32 {s(sT0)}, {s(sT0)}, 2
    s_lshr_b32 {s(sT1)}, s2, 6
    s_add_u32 {s(sT0)}, {s(sT0)}, {s(sT1)}
    s_mul_i32 {s(sY0)}, {s(sT0)}, 14
    v_mul_u32_u24 {v(t0)}, 43, {v(vL)}
    v_lshrrev_b32 {v(t0)}, 7, {v(t0)}
    v_mul_u32_u24 {v(t1)}, 3, {v(t0)}
    v_sub_u32 {v(t1)}, {v(vL)}, {v(t1)}
    v_and_b32 {v(t2)}, 7, {v(t0)}
    v_lshrrev_b32 {v(t0)}, 3, {v(t0)}
    v_mad_u32_u24 {v(t0)}, {v(t0)}, 5, {v(t2)}
    v_cmp_le_u32 vcc, 3, {v(t2)}
    v_mul_u32_u24 {v(t0)}, 192, {v(t0)}
    s_mul_i32 {s(sT0)}, {s(sW)}, 48
    s_sub_u32 {s(sT0)}, {s(sT0)}, 576
    v_lshl_add_u32 {v(t0)}, {v(t1)}, 4, {v(t0)}
    v_add_u32 {v(t0)}, {s(sT0)}, {v(t0)}
    v_bfrev_b32 {v(t5)}, 1
    v_cndmask_b32 {v(t0)}, {v(t5)}, {v(t0)}, vcc
    s_mul_i32 {s(sT1)}, {s(sW)}, 56
    v_add_u32 {v(t1)}, {s(sT1)}, {v(vL)}
    v_mul_u32_u24 {v(t2)}, 171, {v(t1)}
    v_lshrrev_b32 {v(t2)}, 11, {v(t2)}
    s_sub_u32 {s(sT2)}, {s(sX0)}, 2
    v_add_u32 {v(t3)}, {s(sT2)}, {v(t2)}
    v_cmp_gt_u32 vcc, 224, {v(t3)}
    v_cmp_gt_u32 {s(sMASK, 2)}, 18, {v(t2)}
    s_mul_i32 {s(sT3)}, {s(sY0)}, {ROWB}
    s_mul_i32 {s(sT2)}, {s(sT2)}, 192
    s_add_u32 {s(sT3)}, {s(sT3)}, {s(sT2)}
    s_sub_u32 {s(sT3)}, {s(sT3)}, {2 * ROWB}
    s_and_b64 vcc, vcc, {s(sMASK, 2)}
    s_and_b32 vcc_hi, vcc_hi, 0xffffff
    v_lshl_add_u32 {v(vXO)}, {v(t1)}, 4, {s(sT3)}
    s_mul_i32 {s(sTB)}, {s(sW)}, 3072
    v_cndmask_b32 {v(vXO)}, {v(t5)}, {v(vXO)}, vcc
    s_add_u32 {s(sTB)}, {s(sTB)}, {TBL}
    s_mov_b32 m0, {s(sTB)}
    s_mov_b32 exec_hi, 0xffff
    s_waitcnt lgkmcnt(0)
    """)
    b.stamp(1)

    def srd(dst, src, nbytes):
        return L(f"""
        s_mov_b32 {s(dst)}, {s(src)}
        s_mov_b32 {s(dst + 1)}, {s(src + 1)}
        s_mov_b32 {s(dst + 2)}, {nbytes}
        s_mov_b32 {s(dst + 3)}, 0x20000
        """)
    b(srd(SRD_DW, 6, 4800))
    sx = srd(SRD_X, 4, XBYTES)
    for d in range(4):
        b(f"buffer_load_dwordx4 {v(t0)}, {s(SRD_DW, 4)}, 0 offen lds ;@tbl")
        if d < 3:
            b(f"s_add_u32 m0, m0, 768\nv_add_u32 {v(t0)}, 1920, {v(t0)}")
        b(sx[d:d + 1])
    b("s_mov_b32 exec_hi, -1")

    def xload(r):
        o = [f"buffer_load_dwordx4 {a(aSTG + 4 * r, 4)}, {v(vXO)}, {s(SRD_X, 4)}, 0 offen {nt} ;@x{r}"]
        if r < 17:
            o.append(f"v_add_u32 {v(vXO)}, {ROWB}, {v(vXO)}")
        return o

    u = Block()
    for dst, src, n in ((SRD_W1, 8, 73728), (SRD_B1, 10, 768), (SRD_W2, 12, 73728), (SRD_B2, 14, 192),
                        (SRD_G, 16, 192), (SRD_O, 18, XBYTES)):
        u(srd(dst, src, n))
    lut = 0
    for cp, col in enumerate([0, 4, 8, 12, 1, 5, 9, 13, 2, 6, 10, 3, 7, 11]):
        lut |= col << (4 * cp)
    lg, lxg, lrp, lh, lq, lr, l31, lh16 = range(TMP + 8, TMP + 16)
    u(f"""
    s_mov_b32 {s(sLO)}, 0xffff
    s_mov_b32 {s(sHI)}, 0xffff0000
    s_and_b32 {s(sPAR)}, {s(sW)}, 1
    s_xor_b32 {s(sNP)}, {s(sPAR)}, 1
    s_mul_i32 {s(sM1)}, {s(sW)}, 3072
    s_mul_i32 {s(sM2)}, {s(sW)}, 9216
    s_mul_i32 {s(sS[0])}, {s(sW)}, 18432
    s_add_u32 {s(sS[1])}, {s(sS[0])}, 5120
    s_add_u32 {s(sS[2])}, {s(sS[0])}, 10240
    v_mul_u32_u24 {v(t3)}, 12, {v(t2)}
    v_sub_u32 {v(t3)}, {v(t1)}, {v(t3)}
    v_subrev_u32 {v(t4)}, 56, {v(vL)}
    v_cmp_gt_u32 vcc, 56, {v(vL)}
    v_mov_b32 {v(t0)}, 18
    v_lshrrev_b32 {v(lg)}, 4, {v(vL)}
    v_cndmask_b32 {v(t3)}, {v(t4)}, {v(t3)}, vcc
    v_cndmask_b32 {v(t2)}, {v(t0)}, {v(t2)}, vcc
    v_mul_u32_u24 {v(t3)}, {XG}, {v(t3)}
    v_lshl_add_u32 {v(t3)}, {v(t2)}, 3, {v(t3)}
    v_add_u32 {v(vXW)}, {XP}, {v(t3)}
    v_and_b32 {v(lxg)}, 3, {v(vL)}
    v_bfe_u32 {v(lr)}, {v(vL)}, 2, 2
    v_lshrrev_b32 {v(t0)}, 1, {v(lr)}
    v_xor_b32 {v(lrp)}, {v(lr)}, {v(t0)}
    v_lshrrev_b32 {v(lh)}, 5, {v(vL)}
    v_and_b32 {v(lq)}, 1, {v(lg)}
    v_and_b32 {v(l31)}, 31, {v(vL)}
    v_lshlrev_b32 {v(vL16)}, 4, {v(vL)}
    v_lshlrev_b32 {v(lh16)}, 4, {v(lh)}
    v_mul_u32_u24 {v(vIDX)}, 0x5555, {v(lxg)}
    v_lshl_add_u32 {v(t0)}, {v(lg)}, 2, {v(lr)}
    v_sub_u32 {v(t1)}, {v(t0)}, {v(lxg)}
    v_mul_u32_u24 {v(t1)}, 48, {v(t1)}
    s_add_u32 {s(sT0)}, {s(sTB)}, 144
    v_add_u32 {v(vTA)}, {s(sT0)}, {v(t1)}
    v_mul_u32_u24 {v(t0)}, 192, {v(t0)}
    v_lshl_add_u32 {v(t0)}, {v(lxg)}, 3, {v(t0)}
    s_mul_i32 {s(sT0)}, {s(sW)}, 6144
    s_add_u32 {s(sT1)}, {s(sT0)}, {W2L + 2 * 6144}
    v_add_u32 {v(vR2A)}, {s(sT1)}, {v(t0)}
    s_add_u32 {s(sT1)}, {s(sT0)}, {W2E + 4 * 6144}
    s_add_u32 {s(sT2)}, {s(sT0)}, {W2L - 2 * 6144}
    s_cmp_lt_u32 {s(sW)}, 2
    s_cselect_b32 {s(sT1)}, {s(sT1)}, {s(sT2)}
    v_add_u32 {v(vR2B)}, {s(sT1)}, {v(t0)}
    v_add_u32 {v(vRW)}, {s(sT0)}, {v(vL16)}
    v_lshlrev_b32 {v(t0)}, 1, {v(lxg)}
    v_add_u32 {v(t0)}, {v(t0)}, {v(lg)}
    v_min_u32 {v(t0)}, 8, {v(t0)}
    v_mul_u32_u24 {v(t1)}, 320, {v(lrp)}
    s_mul_i32 {s(sT0)}, {s(sW)}, {3 * XG}
    s_add_u32 {s(sT0)}, {s(sT0)}, {XP}
    v_lshl_add_u32 {v(t0)}, {v(t0)}, 4, {v(t1)}
    v_add_u32 {v(vXB)}, {s(sT0)}, {v(t0)}
    v_lshrrev_b32 {v(t0)}, 2, {v(l31)}
    v_mul_u32_u24 {v(t0)}, 768, {v(t0)}
    v_lshl_add_u32 {v(t0)}, {v(lh)}, 6, {v(t0)}
    v_lshl_add_u32 {v(vD1)}, {v(lxg)}, 4, {v(t0)}
    """)
    for rb in aRB:
        for k in range(4):
            u(f"v_accvgpr_write_b32 {a(rb + 24 + k)}, 0")
    for i in range(0, 96, 2):
        u(f"v_mov_b64 {v(CV + i, 2)}, 0")
    n_urgent = len(u)
    pF, pH, pR = TMP + 16, TMP + 17, TMP + 18
    u(f"""
    s_mov_b32 {s(sCP)}, {f32bits(CP):#x}
    s_mov_b32 {s(sCP + 1)}, {f32bits(CP):#x}
    s_mov_b32 {s(sONE)}, 1.0
    s_mov_b32 {s(sONE + 1)}, 1.0
    s_mov_b32 {s(sINV)}, {f32bits(1 / 96):#x}
    s_mov_b32 {s(sINV + 1)}, {f32bits(1 / 96):#x}
    s_mov_b32 {s(sIA)}, {f32bits(1 / ALPHA):#x}
    s_mov_b32 {s(sIA + 1)}, {f32bits(1 / ALPHA):#x}
    s_mov_b32 {s(sAL)}, {f32bits(ALPHA):#x}
    s_mov_b32 {s(sAL + 1)}, {f32bits(ALPHA):#x}
    s_mov_b32 {s(sEPS)}, {f32bits(1e-5):#x}
    s_mov_b32 {s(sEPS + 1)}, {f32bits(1e-5):#x}
    s_mov_b32 {s(sLUT)}, {lut & 0xffffffff:#x}
    s_mov_b32 {s(sLUT + 1)}, {lut >> 32:#x}
    v_lshrrev_b32 {v(t0)}, 1, {v(lg)}
    v_and_b32 {v(t0)}, {v(t0)}, {v(lg)}
    v_lshl_add_u32 {v(t1)}, {v(lg)}, 2, {v(lxg)}
    v_sub_u32 {v(t1)}, {v(t1)}, {v(t0)}
    v_mad_u32_u24 {v(t1)}, {v(lrp)}, 28, {v(t1)}
    v_lshl_add_u32 {v(t2)}, {v(lxg)}, 2, {v(lg)}
    v_cmp_gt_u32 vcc, 14, {v(t2)}
    v_mul_u32_u24 {v(t1)}, {AP}, {v(t1)}
    s_mul_i32 {s(sT0)}, {s(sW)}, 48
    s_add_u32 {s(sT0)}, {s(sT0)}, {ACT}
    v_add_u32 {v(t1)}, {s(sT0)}, {v(t1)}
    v_add_u32 {v(t2)}, {ACT + 196 * AP}, {v(vL16)}
    v_cndmask_b32 {v(vAW)}, {v(t2)}, {v(t1)}, vcc
    s_lshl_b32 {s(sT0)}, {s(sW)}, 5
    v_add_u32 {v(pF)}, {s(sT0)}, {v(l31)}
    s_lshr_b32 {s(sT0)}, {s(sW)}, 1
    s_lshl_b32 {s(sT0)}, {s(sT0)}, 5
    s_add_u32 {s(sT0)}, {s(sT0)}, 128
    v_add_u32 {v(pH)}, {s(sT0)}, {v(l31)}
    v_add_u32 {v(t1)}, {ACT}, {v(lh16)}
    s_movk_i32 {s(sT1)}, {AP}
    v_mad_u32_u24 {v(vBF)}, {v(pF)}, {s(sT1)}, {v(t1)}
    v_mad_u32_u24 {v(vBH)}, {v(pH)}, {s(sT1)}, {v(t1)}
    v_lshlrev_b32 {v(t1)}, 4, {v(lg)}
    v_add_u32 {v(t1)}, {ACT + 192 * AP}, {v(t1)}
    v_mad_u32_u24 {v(vBR)}, {v(lxg)}, {s(sT1)}, {v(t1)}
    s_mul_i32 {s(sT2)}, {s(sY0)}, 224
    s_add_u32 {s(sT2)}, {s(sT2)}, {s(sX0)}
    s_movk_i32 {s(sT3)}, 224
    """)
    for p, dst in ((pF, vOFA), (pH, vOH)):
        u(f"""
        v_mul_u32_u24 {v(t1)}, 2341, {v(p)}
        v_lshrrev_b32 {v(t1)}, 15, {v(t1)}
        v_mul_u32_u24 {v(t2)}, 14, {v(t1)}
        v_sub_u32 {v(t2)}, {v(p)}, {v(t2)}
        v_lshlrev_b32 {v(t2)}, 2, {v(t2)}
        v_lshrrev_b64 {v(t4, 2)}, {v(t2)}, {s(sLUT, 2)}
        v_and_b32 {v(t4)}, 15, {v(t4)}
        v_mad_u32_u24 {v(t1)}, {v(t1)}, {s(sT3)}, {v(t4)}
        v_add_u32 {v(t1)}, {s(sT2)}, {v(t1)}
        v_mul_u32_u24 {v(dst)}, 192, {v(t1)}
        """)
    u(f"""
    s_lshl_b32 {s(sT0)}, {s(sW)}, 2
    s_lshr_b32 {s(sT0)}, 0xb73a, {s(sT0)}
    s_and_b32 {s(sT0)}, {s(sT0)}, 15
    s_add_u32 {s(sT0)}, {s(sT0)}, {s(sT2)}
    s_add_u32 {s(sT0)}, {s(sT0)}, {13 * 224}
    s_mul_i32 {s(sT0)}, {s(sT0)}, 192
    v_lshl_add_u32 {v(t1)}, {v(vL)}, 3, {s(sT0)}
    v_cmp_gt_u32 vcc, 24, {v(vL)}
    v_bfrev_b32 {v(t5)}, 1
    s_lshl_b32 {s(sT0)}, {s(sPAR)}, 5
    s_lshl_b32 {s(sT1)}, {s(sNP)}, 5
    v_cndmask_b32 {v(vOR)}, {v(t5)}, {v(t1)}, vcc
    v_add3_u32 {v(vOFB)}, {v(vOFA)}, {v(lh16)}, {s(sT1)}
    v_add3_u32 {v(vOFA)}, {v(vOFA)}, {v(lh16)}, {s(sT0)}
    v_add3_u32 {v(vOH)}, {v(vOH)}, {v(lh16)}, {s(sT0)}
    v_lshlrev_b32 {v(t1)}, 5, {v(lh)}
    v_add_u32 {v(t1)}, {PG}, {v(t1)}
    s_lshl_b32 {s(sT0)}, {s(sPAR)}, 6
    s_lshl_b32 {s(sT1)}, {s(sNP)}, 6
    v_add_u32 {v(vGA)}, {s(sT0)}, {v(t1)}
    v_add_u32 {v(vGB)}, {s(sT1)}, {v(t1)}
    v_lshlrev_b32 {v(t1)}, 1, {v(l31)}
    v_add_u32 {v(t1)}, {PB1}, {v(t1)}
    v_add_u32 {v(vBA)}, {s(sT0)}, {v(t1)}
    v_add_u32 {v(vBB)}, {s(sT1)}, {v(t1)}
    v_lshlrev_b32 {v(t0)}, 6, {v(lr)}
    v_lshl_add_u32 {v(t0)}, {v(lxg)}, 3, {v(t0)}
    v_lshl_add_u32 {v(t1)}, {v(lg)}, 10, {v(t0)}
    s_lshr_b32 {s(sT2)}, {s(sW)}, 1
    s_mul_i32 {s(sT2)}, {s(sT2)}, 12288
    s_lshl_b32 {s(sT0)}, {s(sPAR)}, 9
    s_lshl_b32 {s(sT1)}, {s(sNP)}, 9
    s_add_u32 {s(sT2)}, {s(sT2)}, {s(sT0)}
    v_add_u32 {v(vR1)}, {s(sT2)}, {v(t1)}
    v_lshl_add_u32 {v(t0)}, {v(lh)}, 10, {v(t0)}
    v_lshl_add_u32 {v(t0)}, {v(lq)}, 5, {v(t0)}
    v_add_u32 {v(vA)}, {s(sT0)}, {v(t0)}
    v_add_u32 {v(vB)}, {s(sT1)}, {v(t0)}
    v_and_b32 {v(t0)}, 15, {v(vL)}
    s_lshl_b32 {s(sT0)}, {s(sW)}, 6
    s_add_u32 {s(sT0)}, {s(sT0)}, {PB1}
    v_lshl_add_u32 {v(vRB)}, {v(t0)}, 1, {s(sT0)}
    v_xor_b32 {v(t3)}, {s(sPAR)}, {v(lq)}
    v_lshl_add_u32 {v(t0)}, {v(lh)}, 2, {v(lr)}
    v_mul_u32_u24 {v(t0)}, 192, {v(t0)}
    v_and_b32 {v(t1)}, 1, {v(lxg)}
    v_lshrrev_b32 {v(t2)}, 1, {v(lxg)}
    v_lshl_add_u32 {v(t1)}, {v(t1)}, 1, {v(t2)}
    v_lshl_add_u32 {v(t0)}, {v(t1)}, 3, {v(t0)}
    v_lshl_add_u32 {v(t0)}, {v(t3)}, 5, {v(t0)}
    s_mul_i32 {s(sT0)}, {s(sPAR)}, 6144
    s_add_u32 {s(sT0)}, {s(sT0)}, {W2E}
    s_mul_i32 {s(sT1)}, {s(sNP)}, 6144
    s_add_u32 {s(sT1)}, {s(sT1)}, {W2E}
    v_add_u32 {v(vW2A)}, {s(sT0)}, {v(t0)}
    v_add_u32 {v(vW2B)}, {s(sT1)}, {v(t0)}
    v_and_b32 {v(t1)}, 1, {v(lr)}
    v_lshrrev_b32 {v(t2)}, 1, {v(lr)}
    v_lshlrev_b32 {v(t2)}, 2, {v(t2)}
    v_lshl_add_u32 {v(t1)}, {v(t1)}, 3, {v(t2)}
    v_add_u32 {v(t1)}, {v(t1)}, {v(lxg)}
    v_lshl_add_u32 {v(t1)}, {v(t3)}, 4, {v(t1)}
    v_lshlrev_b32 {v(t1)}, 1, {v(t1)}
    v_add_u32 {v(vB2F)}, {PB2}, {v(t1)}
    v_cmp_eq_u32 vcc, 0, {v(lq)}
    v_mov_b32 {v(t2)}, {ZERO}
    v_mov_b32 {v(t0)}, {A_HI:#x}
    v_cndmask_b32 {v(vB2H)}, {v(t2)}, {v(vB2F)}, vcc
    v_mov_b32 {v(t1)}, {A_LO:#x}
    v_cmp_eq_u32 vcc, 0, {v(lh)}
    v_cmp_eq_u32 {s(sMASK, 2)}, 0, {v(lg)}
    v_mov_b32 {v(t3)}, 0
    v_cndmask_b32 {v(t2)}, {v(t1)}, {v(t0)}, vcc
    v_accvgpr_write_b32 {a(aC32)}, {v(t2)}
    v_cndmask_b32 {v(t2)}, {v(t1)}, {v(t0)}, {s(sMASK, 2)}
    v_cndmask_b32 {v(t2)}, {v(t3)}, {v(t2)}, vcc
    v_accvgpr_write_b32 {a(aC16)}, {v(t2)}
    s_lshl_b32 {s(sT0)}, {s(sW)}, 10
    s_add_u32 {s(sT0)}, {s(sT0)}, {ST}
    v_add_u32 {v(vSW)}, {s(sT0)}, {v(vL16)}
    v_lshlrev_b32 {v(t4)}, 2, {v(vL)}
    """)
    for r in [aBIAS + k for k in (1, 2, 3)] + [aC32 + k for k in (1, 2, 3)] + [aC16 + k for k in (1, 2, 3)] \
            + [aRBIAS + k for k in (1, 3, 5, 6, 7)]:
        u(f"v_accvgpr_write_b32 {a(r)}, 0")
    for r in range(12):
        b(xload(r))
    b.stamp(18)
    b(u)
    b.stamp(2)

    if OPT["hops"]:
        b("@vm pf")
        b(f"""
        s_mov_b64 exec, 0
        s_cmp_eq_u32 {s(sW)}, 1
        s_cbranch_scc1 L_pad3
        s_cmp_eq_u32 {s(sW)}, 2
        s_cbranch_scc1 L_pad5
        s_cmp_eq_u32 {s(sW)}, 3
        s_cbranch_scc1 L_pad7
        s_branch L_pad1
        .p2align 12
        L_body:
        s_mov_b64 exec, -1
        """)
    b("@vm tbl")
    ard = [f"ds_read_b64_tr_b16 {v(AF + (3 * j + t) * 4 + 2, 2)}, {v(vTA)} offset:{768 * t + 8 * j}" for j in range(6) for t in range(3)]
    for r in range(12, 18):
        b(ard[3 * (r - 12):3 * (r - 11)])
        b(xload(r))
    b(f"""
    buffer_load_dword {v(vG)}, {v(t4)}, {s(SRD_G, 4)}, 0 offen
    buffer_load_dword {v(vB2V)}, {v(t4)}, {s(SRD_B2, 4)}, 0 offen ;@gb
    s_mov_b32 m0, {PB1}
    s_nop 0
    buffer_load_dwordx4 {v(vL16)}, {s(SRD_B1, 4)}, 0 offen lds
    s_mov_b32 m0, {PB2}
    s_nop 0
    buffer_load_dwordx4 {v(vL16)}, {s(SRD_B2, 4)}, 0 offen lds
    """)
    b.stamp(3)
    aexp = []
    for g in range(18):
        q = AF + 4 * g
        aexp += [f"v_and_b32 {v(q)}, {s(sLO)}, {v(q + 2)}", f"v_and_b32 {v(q + 1)}, {s(sHI)}, {v(q + 2)}",
                 f"v_and_b32 {v(q + 2)}, {s(sLO)}, {v(q + 3)}", f"v_and_b32 {v(q + 3)}, {s(sHI)}, {v(q + 3)}"]

    def w1dma(p, tag):
        o = []
        for i in range(3):
            pre = [f"s_add_u32 m0, {s(sM1)}, {12288 * p}", "s_nop 0"] if i == 0 else []
            o.append(pre + [f"buffer_load_dwordx4 {v(vD1)}, {s(SRD_W1, 4)}, {s(sS[i])} offen offset:{1024 * i} lds ;@{tag}"])
        return o

    def w2dma(late, tag):
        o = []
        for c in range(9):
            g = c >> 2
            pre = [f"s_add_u32 m0, {s(sM2)}, {(W2L if late else W2E) + 4096 * g}",
                   f"s_add_u32 {s(sT3)}, {s(sM2)}, {36864 * late + 4096 * g}"] if c % 4 == 0 else []
            o.append(pre + [f"buffer_load_dwordx4 {v(vL16)}, {s(SRD_W2, 4)}, {s(sT3)} offen offset:{1024 * (c & 3)} lds ;@{tag}"])
        return o
    bump = f"v_add_u32 {v(vD1)}, 128, {v(vD1)}"
    early = w1dma(0, "we") + w1dma(1, "we") + w1dma(2, "we") + w2dma(0, "we")

    def stage(r):
        return [f"@vm x{r}", f"ds_write_b64 {v(vXW)}, {a(aSTG + 4 * r, 2)} offset:{160 * r}",
                f"ds_write_b64 {v(vXW)}, {a(aSTG + 4 * r + 2, 2)} offset:{XPL + 160 * r}"]
    b("@lg all")
    for r in range(12):
        b(aexp[6 * r:6 * r + 6])
        b(early[r])
        b(stage(r))
        if r in (2, 5, 8):
            b(bump)
    b("@lg all\ns_barrier")
    b.stamp(4)

    S, TP, TU, S2 = TMP, TMP + 8, TMP + 20, TMP + 22

    def acc(ph, sx, j):
        return CV + ((2 * ph + sx) * 6 + j) * 4

    def conv(ph):
        def reads(j):
            return [f"ds_read_b128 {a(aRB[j % 3] + 4 * r, 4)}, {v(vXB)} offset:{(j >> 1) * XG + (j & 1) * XPL + (8 * ph + r) * 160} ;@q{j}"
                    for r in range(6)]

        def part(j):
            d0, d1 = acc(ph, 0, j), acc(ph, 1, j)
            return [f"v_add_f32 {v(TP + 2 * j)}, {v(d0)}, {v(d0 + 1)}", f"v_add_f32 {v(TU)}, {v(d0 + 2)}, {v(d0 + 3)}",
                    f"v_add_f32 {v(TP + 2 * j + 1)}, {v(d1)}, {v(d1 + 1)}", f"v_add_f32 {v(TU + 1)}, {v(d1 + 2)}, {v(d1 + 3)}",
                    f"v_add_f32 {v(TP + 2 * j)}, {v(TP + 2 * j)}, {v(TU)}",
                    f"v_add_f32 {v(TP + 2 * j + 1)}, {v(TP + 2 * j + 1)}, {v(TU + 1)}"]
        b(reads(0) + reads(1))
        pend = []
        for j in range(6):
            b(f"@lg q{j}")
            rd = reads(j + 2) if j < 4 else []
            for n in range(6):
                t, sx = n >> 1, n & 1
                b(f"v_smfmac_f32_16x16x64_bf16 {v(acc(ph, sx, j), 4)}, {v(AF + (3 * j + t) * 4, 4)}, {a(aRB[j % 3] + 4 * (sx + 2 * t), 8)}, {v(vIDX)}")
                if rd:
                    b(rd.pop(0))
                if n == 2 and j > 0:
                    pend += part(j - 1)
                if pend:
                    b(pend.pop(0))
        o = list(pend)
        for i in range(0, 24, 2):
            for sx in range(2):
                d = acc(ph, sx, 0) + i
                o.append(pk("mul", S2 + 2 * sx, v(d, 2), v(d, 2)) if i == 0 else
                         pk("fma", S2 + 2 * sx, v(d, 2), v(d, 2), v(S2 + 2 * sx, 2)))
            if i == 8:
                o += part(5)
        o += [pk("add", TP + 4 * k, v(TP + 4 * k, 2), v(TP + 4 * k + 2, 2)) for k in range(3)]
        o += [f"v_add_f32 {v(S + 4 * ph + 2)}, {v(S2)}, {v(S2 + 1)}", pk("add", TP, v(TP, 2), v(TP + 4, 2)),
              f"v_add_f32 {v(S + 4 * ph + 3)}, {v(S2 + 2)}, {v(S2 + 3)}", pk("add", S + 4 * ph, v(TP, 2), v(TP + 8, 2))]
        return o
    st = conv(0)
    b.stamp(5)
    g0, g1, ga = TMP + 26, TMP + 28, TMP + 30
    per = (len(st) + 5) // 6
    for r in range(12, 18):
        b(st[per * (r - 12):per * (r - 11)])
        b(early[r])
        b(stage(r))
    b(f"""
    ds_write_b128 {v(vSW)}, {v(S, 4)}
    @vm gb
    v_lshlrev_b32 {v(g0)}, 16, {v(vG)}
    v_and_b32 {v(g0 + 1)}, {s(sHI)}, {v(vG)}
    v_lshlrev_b32 {v(g1)}, 16, {v(vB2V)}
    v_and_b32 {v(g1 + 1)}, {s(sHI)}, {v(vB2V)}
    v_lshlrev_b32 {v(ga)}, 3, {v(vL)}
    {pk("mul", g1, v(g1, 2), v(g0, 2))}
    {pk("mul", g0, v(g0, 2), s(sIA, 2))}
    v_add_u32 {v(ga)}, {PG}, {v(ga)}
    s_mov_b32 exec_hi, 0xffff
    ds_write_b64 {v(ga)}, {v(g0, 2)}
    ds_write_b64 {v(ga)}, {v(g1, 2)} offset:{PGB - PG}
    s_mov_b32 exec_hi, -1
    @lg all
    s_barrier
    """)
    b.stamp(6)
    b(conv(1))
    b(f"""
    ds_write_b128 {v(vSW)}, {v(S + 4, 4)} offset:4096
    v_add_u32 {v(vSW)}, {ST}, {v(vL16)}
    @vm all
    @lg all
    s_barrier
    """)
    b.stamp(7)

    Q = TMP
    for ph in range(2):
        for w in range(4):
            b(f"ds_read_b128 {v(Q + 16 * ph + 4 * w, 4)}, {v(vSW)} offset:{4096 * ph + 1024 * w} ;@s{ph}")
    b(r_w1(0))
    b([f"ds_read_u16 {a(aRBIAS + 2 * t)}, {v(vB2H)} offset:{64 * t}" for t in range(3)])
    qs = (Q, Q + 16)
    for ph, q in enumerate(qs):
        b(f"@lg s{ph}")
        for o in (0, 2):
            b(pk("add", q + o, v(q + o, 2), v(q + 4 + o, 2)))
            b(pk("add", q + 8 + o, v(q + 8 + o, 2), v(q + 12 + o, 2)))
    for o in (0, 2):
        for q in qs:
            b(pk("add", q + o, v(q + o, 2), v(q + 8 + o, 2)))
    for o in (0, 2):
        for q in qs:
            b(pk("mul", q + o, v(q + o, 2), s(sINV, 2)))
    for q in qs:
        b(pk("fma", q + 2, v(q, 2), v(q, 2), v(q + 2, 2), " neg_lo:[1,0,0] neg_hi:[1,0,0]"))
    for q in qs:
        b(f"v_max_f32 {v(q + 2)}, 0, {v(q + 2)}\nv_max_f32 {v(q + 3)}, 0, {v(q + 3)}")
    for q in qs:
        b(pk("add", q + 2, v(q + 2, 2), s(sEPS, 2)))
    for q in qs:
        b(f"v_rsq_f32 {v(q + 2)}, {v(q + 2)}\nv_rsq_f32 {v(q + 3)}, {v(q + 3)}")
    for q in qs:
        b(pk("mul", q + 2, v(q + 2, 2), s(sAL, 2)))
    for q in qs:
        b(pk("mul", q, v(q, 2), v(q + 2, 2), mod=" neg_lo:[1,0] neg_hi:[1,0]"))
    wr = []
    for k in range(4):
        ph, sx = k >> 1, k & 1
        base, q = CV + 24 * k, qs[ph]
        for jj in range(3):
            for i in range(8 * jj, 8 * jj + 8, 2):
                b(pk("fma", base + i, v(base + i, 2), v(q + 2, 2), v(q, 2), f" op_sel:[0,{sx},{sx}] op_sel_hi:[1,{sx},{sx}]"))
            for i in range(4 * jj, 4 * jj + 4):
                b(f"v_cvt_pk_bf16_f32 {v(base + 4 * jj + i)}, {v(base + 2 * i)}, {v(base + 2 * i + 1)}")
            b(f"ds_write_b128 {v(vAW)}, {v(base + 8 * jj, 4)} offset:{(8 * ph + sx) * 14 * AP + 16 * jj}")
    b("@lg all\ns_barrier")
    b.stamp(8)

    b([f"ds_read_b128 {a(aBt['F'] + 4 * k, 4)}, {v(vBF)} offset:{32 * k} ;@bf" for k in range(6)])
    b([f"ds_read_b128 {a(aBt['H'] + 4 * k, 4)}, {v(vBH)} offset:{32 * k}" for k in range(6)])
    b([f"ds_read_b128 {a(aBR + 4 * k, 4)}, {v(vBR)} offset:{64 * k}" for k in range(3)])
    late = w1dma(3, "wl") + w1dma(4, "wl") + w1dma(5, "wl") + w2dma(1, "wl")
    M = m_fc1(0)
    F = [(0, 0, ["@lg bf"]), (3, 3, ["@lg all", "s_barrier"]), (4, 4, late[0]), (5, 5, late[1]), (6, 6, late[2])]
    b(trun(M, F, [bump], need={}, tail=1000))
    b(late[3] + late[4])
    b("s_nop 5")
    b.stamp(9)
    b(P(0))
    b(T(0, xF=[(0, 0, late[5])], xV=[bump]))
    b(P(1, late_x=True))
    hinit = [f"{M32} {v(ACC['H'] + 16 * t, 16)}, {a(aRBIAS + 2 * t, 4)}, {a(aC32, 4)}, 0" for t in range(3)]
    b(T(1, xM=hinit, xF=[(1 + 2 * k, 1 + 2 * k, late[6 + k]) for k in range(4)]))
    b(P(2))
    b(T(2, xF=[(1 + 3 * k, 1 + 3 * k, late[10 + k]) for k in range(4)]))
    b(P(3))
    b(T(3, xF=[(1 + 3 * k, 1 + 3 * k, late[14 + k]) for k in range(4)]))
    b.stamp(10)

    XR, WK, HR = (TMP, TMP + 16), (TMP + 8, TMP + 24), TMP + 32

    def r_fc1(m):
        x = XR[m % 2]
        rd = [f"ds_read_u16 {a(aRBIAS + 2 * mh)}, {v(vRB)} offset:{256 * m + 32 * mh}" for mh in range(2)]
        rd += [f"ds_read_b64_tr_b16 {a(aRF + 12 * mh + 4 * k + 2 * jj, 2)}, {v(vR1)} offset:{24576 * m + 4096 * k + 256 * jj + 32 * mh} ;@rf"
               for k in range(3) for mh in range(2) for jj in range(2)]
        M = [f"{M16} {v(x + 4 * mh, 4)}, {a(aRBIAS + 2 * mh, 4)}, {a(aC16, 4)}, 0" for mh in range(2)]
        M += [f"{M16} {v(x + 4 * mh, 4)}, {a(aRF + 12 * mh + 4 * k, 4)}, {a(aBR + 4 * k, 4)}, {v(x + 4 * mh, 4)}"
              for k in range(3) for mh in range(2)]
        return M, [(0, 8, [x_]) for x_ in rd] + [(12, 12, ["@lg rf"])]

    def r_fc2(m):
        reg, off = ((vR2A, 24576), (vR2B, 0), (vR2A, 0))[m]
        rd = [f"ds_read_b64_tr_b16 {a(aRF + 4 * c + 2 * jj, 2)}, {v(reg)} offset:{off + 3072 * jj + 32 * c} ;@rf"
              for c in range(6) for jj in range(2)]
        M = [f"{M16} {a(aRACC + 4 * c, 4)}, {a(aRF + 4 * c, 4)}, {v(HR, 4)}, {'0' if m == 0 else a(aRACC + 4 * c, 4)}" for c in range(6)]
        return M, [(0, 8, [x_]) for x_ in rd] + [(12, 12, ["@lg rf"])]

    def rp1(m):
        return p_t(XR[m % 2], WK[m % 2], 8) + p_z(XR[m % 2], WK[m % 2], 8)

    def radd(m):
        return p_add(WK[m % 2], 8)

    def rmul(m):
        return p_mul(WK[m % 2], XR[m % 2], 8)

    def rexp(m):
        return t_exp(WK[m % 2], WK[m % 2], 8)

    def rrcp(m):
        return t_rcp(WK[m % 2], WK[m % 2], 8)

    def rcvt(m):
        return t_cvt(HR, WK[m % 2], 8)

    b(P(4))
    b(T(4))
    b(P(5))
    M_, F_ = r_fc1(0)
    b(T(5, xM=M_, xF=F_, tail=4))
    b(P(6, post=rp1(0)))
    b(T(6, xV=rexp(0) + [f"v_subrev_u32 {v(vW2A)}, 36864, {v(vW2A)}", f"v_add_u32 {v(vA)}, 36864, {v(vA)}"]))
    b(P(7, post=radd(0)))
    b.stamp(11)
    b("@vm wl\ns_barrier")
    M_, F_ = r_fc1(1)
    b(T(7, xM=M_, xF=F_, xV=rrcp(0), tail=4))
    b(P(8, post=rmul(0) + rp1(1)))
    M_, F_ = r_fc2(0)
    b(T(8, xM=M_, xF=F_, xVpre=rcvt(0), xV=rexp(1), tail=4))
    b(P(9, post=radd(1)))
    M_, F_ = r_fc1(2)
    b(T(9, xM=M_, xF=F_, xV=rrcp(1), tail=4))
    b(P(10, post=rmul(1) + rp1(2)))
    M_, F_ = r_fc2(1)
    b(T(10, xM=M_, xF=F_, xVpre=rcvt(1), xV=rexp(2), tail=4))
    b(P(11, post=radd(2)))
    b(T(11, xV=rrcp(2) + [f"v_subrev_u32 {v(vW2B)}, 36864, {v(vW2B)}", f"v_add_u32 {v(vB)}, 36864, {v(vB)}"]))
    b(P(12, post=rmul(2)))
    M_, F_ = r_fc2(2)
    b(T(12, xM=M_, xF=F_, xVpre=rcvt(2), tail=4))
    b.stamp(12)
    PP, PGm, PBm, RU, RX, ra, rg = TMP, TMP + 16, TMP + 20, TMP + 24, TMP + 28, TMP + 30, TMP + 31
    b(P(13))
    F_ = [(2 * c + 1, 2 * c + 1, [f"ds_write_b128 {v(vRW)}, {a(aRACC + 4 * c, 4)} offset:{RBUF + 1024 * c}"]) for c in range(6)]
    F_ += [(0, 0, [f"buffer_load_dwordx2 {v(RX, 2)}, {v(vOR)}, {s(SRD_X, 4)}, 0 offen", f"s_lshl_b32 {s(sT0)}, {s(sW)}, 4"])]
    V_ = L(f"""
    v_min_u32 {v(rg)}, 23, {v(vL)}
    v_lshrrev_b32 {v(ra)}, 2, {v(rg)}
    v_and_b32 {v(RU)}, 3, {v(rg)}
    v_lshlrev_b32 {v(ra)}, 10, {v(ra)}
    v_lshl_add_u32 {v(ra)}, {v(RU)}, 8, {v(ra)}
    v_lshlrev_b32 {v(rg)}, 4, {v(rg)}
    v_add_u32 {v(ra)}, {s(sT0)}, {v(ra)}
    v_add_u32 {v(rg)}, {PG}, {v(rg)}
    """)
    b(T(13, xF=F_, xV=V_))
    b(P(14))
    b("@lg all\ns_barrier")
    F_ = [(0, 12, [f"ds_read_b128 {v(PP + 4 * w, 4)}, {v(ra)} offset:{RBUF + 6144 * w}"]) for w in range(4)]
    F_ += [(0, 12, [f"ds_read_b128 {v(PGm, 4)}, {v(rg)}"]), (0, 12, [f"ds_read_b128 {v(PBm, 4)}, {v(rg)} offset:{PGB - PG}"])]
    b(T(14, xF=F_, xV=unpack(RU, RX, 2), head=()))
    post = [pk("add", PP + i, v(PP + i, 2), v(PP + 4 + i, 2)) for i in (0, 2)]
    post += [pk("add", PP + 8 + i, v(PP + 8 + i, 2), v(PP + 12 + i, 2)) for i in (0, 2)]
    post += [pk("add", RU + i, v(RU + i, 2), v(PBm + i, 2)) for i in (0, 2)]
    post += [pk("add", PP + i, v(PP + i, 2), v(PP + 8 + i, 2)) for i in (0, 2)]
    post += [pk("fma", RU + i, v(PP + i, 2), v(PGm + i, 2), v(RU + i, 2)) for i in (0, 2)]
    b(P(15, post=post))
    HX, FX = TMP, TMP + 12
    nt2 = OPT["nt2"]
    hx = [f"buffer_load_dwordx4 {v(HX + 4 * t, 4)}, {v(vOH)}, {s(SRD_X, 4)}, 0 offen offset:{64 * t} {nt2} ;@hx" for t in range(3)]
    fx = [f"buffer_load_dwordx4 {v(FX + 4 * c, 4)}, {v(vOFB if c & 1 else vOFA)}, {s(SRD_X, 4)}, 0 offen offset:{64 * (c >> 1)} {nt2}"
          for c in range(6)]
    F_ = [(4, 4, [f"buffer_store_dwordx2 {v(RX, 2)}, {v(vOR)}, {s(SRD_O, 4)}, 0 offen {OPT['st_h']}"])]
    F_ += [(6 + 2 * t, 6 + 2 * t, [hx[t]]) for t in range(3)]
    b(T(15, xF=F_, xVpre=t_cvt(RX, RU, 4), xneed={4: 10}))
    b(P(16))
    vXR_ = vRB
    F_ = [(2 * c, 2 * c, [f"ds_write_b128 {v(vRW)}, {v(ACC['H'] + 16 * (c >> 1) + 8 + 4 * (c & 1), 4)} offset:{XCH + 1024 * c}"])
          for c in range(6)]
    F_ += [(2 * c + 1, 2 * c + 1, [fx[c]]) for c in range(6)]
    F_ += [(12, 12, [f"ds_read_u16 {a(aRBIAS + 2 * t)}, {v(vB2F)} offset:{64 * t}" for t in range(3)])]
    F_ += [(0, 0, [f"s_xor_b32 {s(sT0)}, {s(sW)}, 1", f"s_mul_i32 {s(sT0)}, {s(sT0)}, 6144"])]
    b(T(16, xF=F_, xV=[f"v_add_u32 {v(vXR_)}, {s(sT0)}, {v(vL16)}"]))
    b(P(17))
    b.stamp(13)
    b("@lg all\ns_barrier")
    finit = [f"{M32} {v(ACC['F'] + 16 * t, 16)}, {a(aRBIAS + 2 * t, 4)}, {a(aC32, 4)}, {v(ACC['F'] + 16 * t, 16)}" for t in range(3)]
    F_ = [(0, 8, [f"ds_read_b128 {v(ACC['H'] + 16 * (c >> 1) + 8 + 4 * (c & 1), 4)}, {v(vXR_)} offset:{XCH + 1024 * c}"]) for c in range(6)]
    b(T(17, xM=finit, xF=F_, head=()))
    AH, AFc = ACC["H"], ACC["F"]
    post = [pk("add", AH + 16 * t + i, v(AH + 16 * t + i, 2), v(AH + 16 * t + 8 + i, 2)) for t in range(3) for i in range(0, 8, 2)]
    b("@lg all")
    b(P(18, post=post))
    GE = (X[0], X[0] + 8, Z)
    GO = (Z + 8, R, R + 8)
    F_ = [(0, 5, [f"ds_read_b128 {v(GE[t] + 4 * k, 4)}, {v(vGA)} offset:{128 * t + 16 * k}"]) for t in range(3) for k in range(2)]
    V_ = [x for t in range(3) for x in unpack(AH + 16 * t + 8, HX + 4 * t, 4)]
    V_ += ["s_nop 0", f"v_permlane16_swap_b32 {v(vOFA)}, {v(vOFB)}"]
    b(T(18, xF=F_, xV=V_, head=("@vm hx",)))
    post = [pk("fma", AH + 16 * t + 8 + i, v(AH + 16 * t + i, 2), v(GE[t] + i, 2), v(AH + 16 * t + 8 + i, 2))
            for t in range(3) for i in range(0, 8, 2)]
    b("@lg all")
    b(P(19, post=post))
    b.stamp(14)
    UF = (X[1], X[1] + 8, X[2], X[2] + 8, E, E + 8)
    hc = [x for t in range(3) for x in t_cvt(HX + 4 * t, AH + 16 * t + 8, 8)]
    hs = [f"buffer_store_dwordx4 {v(HX + 4 * t, 4)}, {v(vOH)}, {s(SRD_O, 4)}, 0 offen offset:{64 * t} {OPT['st_h']}" for t in range(3)]
    gr = [f"ds_read_b128 {v(GO[t] + 4 * k, 4)}, {v(vGB)} offset:{128 * t + 16 * k}" for t in range(3) for k in range(2)]
    V_ = hc + [x for c in range(6) for x in unpack(UF[c], FX + 4 * c, 4)]
    F_ = [(0, 0, gr[:2]), (2, 2, gr[2:4]), (3, 3, gr[4:6] + hs[:1]), (4, 4, hs[1:2]), (5, 5, hs[2:3])]
    b(T(19, xF=F_, xV=V_, head=("@vm all",), xneed={2: 8, 3: 14, 4: 18, 5: 22}, tail=150))
    b.stamp(15)
    b("@lg all")
    for t in range(3):
        for c, g in ((2 * t, GE[t]), (2 * t + 1, GO[t])):
            for i in range(0, 8, 2):
                b(pk("fma", UF[c] + i, v(AFc + 8 * c + i, 2), v(g + i, 2), v(UF[c] + i, 2)))
        for c in (2 * t, 2 * t + 1):
            b(t_cvt(FX + 4 * c, UF[c], 8))
        for i in range(4):
            b(f"v_permlane16_swap_b32 {v(FX + 8 * t + i)}, {v(FX + 8 * t + 4 + i)}")
        b(f"buffer_store_dwordx4 {v(FX + 8 * t, 4)}, {v(vOFA)}, {s(SRD_O, 4)}, 0 offen offset:{64 * t} {OPT['st_f']}")
        b(f"buffer_store_dwordx4 {v(FX + 8 * t + 4, 4)}, {v(vOFB)}, {s(SRD_O, 4)}, 0 offen offset:{64 * t} {OPT['st_f']}")
    b.stamp(16)
    if OPT["stamps"]:
        b("@vm all")
        b.stamp(17)
        b(f"""
        s_load_dwordx2 s[4:5], s[0:1], 72
        s_waitcnt lgkmcnt(0)
        s_lshl_b32 s6, s2, 2
        s_add_u32 s6, s6, {s(sW)}
        s_lshl_b32 s6, s6, 7
        v_mov_b32 v0, s6
        s_mov_b32 s6, 0x100000
        s_mov_b32 s7, 0x20000
        s_mov_b64 exec, 1
        """)
        for k in range(1, 20):
            kk = k if k != 19 else 17
            b(f"s_sub_u32 s8, {s(sSTAMP + kk)}, {s(sSTAMP)}")
            b("v_mov_b32 v2, s8")
            b(f"buffer_store_dword v2, v0, s[4:7], 0 offen offset:{4 * k}")
        b("@vm all")
    return b


def add_pads(lines):
    out = []
    off = None
    n = 0
    for t in lines:
        if t == "L_body:":
            off = 0
        if off is not None and not t.endswith(":") and not t.startswith("."):
            sz = isize(t)
            if off + sz > 4096 * (n + 1):
                while off < 4096 * (n + 1):
                    out.append("s_nop 0")
                    off += 4
                n += 1
                out.append(f"L_pad{n}:")
                out.append(f"s_cbranch_execz {'L_pad%d' % (n + 1) if n % 2 else 'L_body'}")
                out.append("s_nop 0")
                off += 8
            off += sz
        out.append(t)
    return out, n


def build():
    b = gen()
    lines, added = autowait(b, OPT["verbose"])
    bad = 0
    if OPT["align"]:
        lines, bad = fix_align(lines)
    npad = 0
    if OPT["hops"]:
        lines, npad = add_pads(lines)
        for k in range(npad + 1, 9):
            lines = [t.replace(f"L_pad{k}", "L_body") if not t.endswith(":") else t for t in lines]
    trace = [t for t in lines if not t.endswith(":") and not t.startswith(".")]
    errs = check(trace)
    hdr = open("standalone__modern_conv_block_convnext__vision.s.ref").read().split("\n")
    head = [l for l in hdr if l.startswith(";") and "@launch" not in l and "Override" not in l and "grid=ceil" not in l]
    out = head + [f"; @launch grid=(256,1,1) block=(256,1,1) lds={LDS_BYTES}",
                  '.amdgcn_target "amdgcn-amd-amdhsa--gfx950"', ".text", f".globl {KNAME}", ".p2align 8",
                  f".type {KNAME},@function", f"{KNAME}:"]
    for t in lines:
        out.append(t if t.endswith(":") or t.startswith(".") else "    " + t)
    out += ["L_end:", "    s_endpgm", '.section .rodata,"a"', ".p2align 6", f".amdhsa_kernel {KNAME}",
            "  .amdhsa_next_free_vgpr 464", "  .amdhsa_next_free_sgpr 102", "  .amdhsa_accum_offset 256",
            "  .amdhsa_group_segment_fixed_size 0", "  .amdhsa_kernarg_size 80", "  .amdhsa_user_sgpr_count 2",
            "  .amdhsa_user_sgpr_kernarg_segment_ptr 1", "  .amdhsa_system_sgpr_workgroup_id_x 1",
            ".end_amdhsa_kernel", ""]
    info = f"{len(trace)} instrs, {sum(isize(t) for t in trace)} bytes, {added} auto waits, {bad} misaligned, {npad} pads, {len(errs)} lint findings"
    return "\n".join(out), errs, info


if __name__ == "__main__":
    path = sys.argv[1]
    for kv in sys.argv[2:]:
        k, val = kv.split("=")
        OPT[k] = {"0": False, "1": True}.get(val, val.replace("+", " "))
    text, errs, info = build()
    for e in errs:
        print("HAZARD", e)
    open(path, "w").write(text)
    print(f"wrote {path}: {info}")
```

```python
import math
import struct
import sys

from asmlint import check
from sched import trun, autowait, fix_align, isize

KNAME = "standalone__modern_conv_block_convnext__vision_kernel"
OPT = dict(nt="nt", stamps=False, verbose=False, align=True, st_h="", st_f="", hops=False, nt2="", probe=None, probewg=None)


def f32bits(x):
    return struct.unpack("<I", struct.pack("<f", x))[0]


def bf16_rne(x):
    u = f32bits(x)
    return (u + 0x7FFF + ((u >> 16) & 1)) >> 16


def bf16_val(h):
    return struct.unpack("<f", struct.pack("<I", h << 16))[0]


C1 = 2.0 * math.sqrt(2.0 / math.pi) * math.log2(math.e)
ALPHA = (C1 * 0.044715) ** (1.0 / 3.0)
CP = C1 / ALPHA
A_HI = bf16_rne(ALPHA)
A_LO = bf16_rne(ALPHA - bf16_val(A_HI))

W2L, W2E = 73728, 110592
XP, XG, XPL = 36864, 5776, 2880
ACT, AP = 36864, 208
TBL = 147456
ST = TBL
RBUF, XCH = 0, 24576
PB1, PB2, PG, PGB = 159744, 160768, 161792, 162176
ZERO = PB2 + 512
LDS_BYTES = 162560
ROWB = 43008
XBYTES = 9633792

SRD_X, SRD_DW, SRD_W1, SRD_W2, SRD_B1, SRD_B2, SRD_G, SRD_O = 20, 24, 28, 32, 36, 40, 44, 48
sW, sPAR, sX0, sY0, sNP = 54, 55, 56, 57, 58
sT0, sT1, sT2, sT3 = 59, 60, 61, 62
sTB = 63
sCP, sONE, sINV, sLUT, sIA, sAL, sEPS, sMASK = 64, 66, 68, 70, 72, 74, 76, 78
sLO, sHI, sM1, sM2 = 4, 5, 6, 7
sS = (8, 9, 10)
sSTAMP = 80

vB2F, vL = 0, 1
vA, vB, vW2A, vW2B, vBA, vBB = 2, 3, 4, 5, 6, 7
vOFA, vOFB, vOH, vOR, vGA, vGB, vL16 = 8, 9, 10, 11, 12, 13, 14
vR1, vR2A, vR2B, vRB, vRW = 15, 16, 17, 18, 19
ACC = {"F": 20, "H": 68}
X = (116, 132, 148)
Z, E, R, H, TMP = 164, 180, 196, 212, 220
CV, AF = 116, 20
vIDX, vTA, vXB, vXW, vXO, vAW, vBF, vBH, vBR, vPF, vB2H, vG, vB2V, vSW = range(92, 106)
vD1 = TMP + 35

aSTG = 0
aRB = (72, 100, 128)
aW1, aW2 = 0, (24, 48)
aBt = {"F": 72, "H": 96}
aBR, aRF, aRACC = 120, 132, 156
aBIAS, aC32, aC16, aRBIAS = 180, 184, 188, 192


def v(i, n=1):
    return f"v{i}" if n == 1 else f"v[{i}:{i+n-1}]"


def a(i, n=1):
    return f"a{i}" if n == 1 else f"a[{i}:{i+n-1}]"


def s(i, n=1):
    return f"s{i}" if n == 1 else f"s[{i}:{i+n-1}]"


def L(t):
    return [x.strip() for x in t.strip("\n").split("\n") if x.strip()]


class Block(list):
    def __call__(self, t):
        self.extend(L(t) if isinstance(t, str) else t)

    def stamp(self, k):
        if OPT["probe"] is not None and k == 0:
            self("s_memtime s[96:97]")
        elif OPT["stamps"] or (OPT["probe"] is not None and int(OPT["probe"]) == k):
            self(f"s_memtime s[100:101]\ns_waitcnt lgkmcnt(0)\ns_mov_b32 {s(sSTAMP + k)}, s100")


def pk(op, d, x, y, z=None, mod=""):
    t = f"v_pk_{op}_f32 {v(d, 2)}, {x}, {y}"
    if z is not None:
        t += f", {z}"
    return t + mod


def p_t(xb, zb, n=16):
    return [pk("fma", zb + i, v(xb + i, 2), v(xb + i, 2), s(sCP, 2)) for i in range(0, n, 2)]


def p_z(xb, zb, n=16):
    return [pk("mul", zb + i, v(zb + i, 2), v(xb + i, 2), mod=" neg_lo:[1,0] neg_hi:[1,0]") for i in range(0, n, 2)]


def p_add(eb, n=16):
    return [pk("add", eb + i, v(eb + i, 2), s(sONE, 2)) for i in range(0, n, 2)]


def p_mul(rb, xb, n=16):
    return [pk("mul", rb + i, v(rb + i, 2), v(xb + i, 2)) for i in range(0, n, 2)]


def t_cvt(hb, rb, n=16):
    return [f"v_cvt_pk_bf16_f32 {v(hb + i // 2)}, {v(rb + i)}, {v(rb + i + 1)}" for i in range(0, n, 2)]


def t_rcp(rb, eb, n=16):
    return [f"v_rcp_f32 {v(rb + i)}, {v(eb + i)}" for i in range(n)]


def t_exp(eb, zb, n=16):
    return [f"v_exp_f32 {v(eb + i)}, {v(zb + i)}" for i in range(n)]


def unpack(dst, src, n):
    o = []
    for i in range(n):
        o += [f"v_lshlrev_b32 {v(dst + 2 * i)}, 16, {v(src + i)}", f"v_and_b32 {v(dst + 2 * i + 1)}, {s(sHI)}, {v(src + i)}"]
    return o


M32 = "v_mfma_f32_32x32x16_bf16"
M16 = "v_mfma_f32_16x16x32_bf16"

SLOTS = ([(t, "a", i, 0) for i in range(3) for t in "FH"] + [("F", "b", i, 0) for i in range(3)]
         + [(t, "a", i, 1) for i in range(3) for t in "HF"] + [("F", "b", i, 1) for i in range(3)])
NS = len(SLOTS)


def neww(j):
    return j == 0 or SLOTS[j][1:] != SLOTS[j - 1][1:]


UNITNO = []
for _j in range(NS):
    UNITNO.append((UNITNO[-1] if UNITNO else -1) + (1 if neww(_j) else 0))


def m_fc1(j):
    xb, bb = X[j % 3], aBt[SLOTS[j][0]]
    o = [f"{M32} {v(xb, 16)}, {a(aBIAS, 4)}, {a(aC32, 4)}, 0"]
    return o + [f"{M32} {v(xb, 16)}, {a(aW1 + 4 * k, 4)}, {a(bb + 4 * k, 4)}, {v(xb, 16)}" for k in range(6)]


def m_fc2(j):
    acc, wb = ACC[SLOTS[j][0]], aW2[UNITNO[j] % 2]
    return [f"{M32} {v(acc + 16 * t, 16)}, {a(wb + 4 * (3 * k + t), 4)}, {v(H + 4 * k, 4)}, "
            + ("0" if (j == 0 and k == 0) else v(acc + 16 * t, 16)) for k in range(2) for t in range(3)]


def r_w1(j):
    _, g, i, late = SLOTS[j]
    off = 12288 * i
    o = [f"ds_read_u16 {a(aBIAS)}, {v(vBA if g == 'a' else vBB)} offset:{128 * i + 384 * late}"]
    return o + [f"ds_read_b64_tr_b16 {a(aW1 + 4 * k + 2 * jj, 2)}, {v(vA if g == 'a' else vB)} offset:{off + 2048 * k + 256 * jj}"
                for k in range(6) for jj in range(2)]


def r_w2(j):
    _, g, i, late = SLOTS[j]
    wb = aW2[UNITNO[j] % 2]
    return [f"ds_read_b64_tr_b16 {a(wb + 4 * (3 * k + t) + 2 * jj, 2)}, {v(vW2A if g == 'a' else vW2B)} "
            f"offset:{12288 * i + 3072 * k + 1536 * jj + 64 * t}" for k in range(2) for t in range(3) for jj in range(2)]


def has(j):
    return 0 <= j < NS


def P(j, pre=(), post=(), late_x=False):
    t = p_t(X[j % 3], Z) if has(j) else []
    z = p_z(X[j % 3], Z) if has(j) else []
    m = p_mul(R, X[(j - 2) % 3]) if has(j - 2) else []
    d = p_add(E) if has(j - 1) else []
    core = m + d + t + z if late_x else t + m + z + d
    return list(pre) + core + list(post)


def T(j, xM=(), xF=(), xVpre=(), xV=(), xneed=None, tail=12, head=("@lg all",)):
    f1 = m_fc1(j + 1) if has(j + 1) else []
    f2 = m_fc2(j - 2) if has(j - 2) else []
    M = f1 + f2 + list(xM)
    n = len(M)
    cv = t_cvt(H, R) if has(j - 2) else []
    V = cv + list(xVpre) + (t_rcp(R, E) if has(j - 1) else []) + (t_exp(E, Z) if has(j) else []) + list(xV)
    need = dict(xneed or {})
    if f2:
        need[len(f1)] = max(need.get(len(f1), 0), 6)
        need[len(f1) + 3] = max(need.get(len(f1) + 3, 0), 10 if len(V) >= 10 else len(V))
    F = list(xF)
    nm = len(f1) + len(f2)
    if has(j - 1) and neww(j - 1):
        F += [(0, nm - 1, [x]) for x in r_w2(j - 1)]
    if has(j + 2) and neww(j + 2):
        w = r_w1(j + 2)
        F += [(0, nm - 1, w[:1])] + [(1 + k, nm - 1, [w[1 + 2 * k + jj]]) for k in range(5, -1, -1) for jj in range(2)]
    return trun(M, F, V, need, list(head), tail)


def gen():
    b = Block()
    nt = OPT["nt"]
    t0, t1, t2, t3, t4, t5 = range(TMP, TMP + 6)

    b.stamp(0)
    b(f"""
    s_cmp_ge_u32 s2, 256
    s_cbranch_scc1 L_end
    s_load_dwordx16 s[4:19], s[0:1], 0
    s_getpc_b64 s[52:53]
    L_pc:
    v_lshlrev_b32 {v(t0)}, 7, v0
    v_min_u32 {v(t0)}, L_end-L_pc, {v(t0)}
    global_load_dword {v(vPF)}, {v(t0)}, s[52:53] ;@pf
    v_lshrrev_b32 {v(t1)}, 6, v0
    v_and_b32 {v(vL)}, 63, v0
    v_readfirstlane_b32 {s(sW)}, {v(t1)}
    s_and_b32 {s(sT0)}, s2, 1
    s_lshl_b32 {s(sT0)}, {s(sT0)}, 3
    s_bfe_u32 {s(sT1)}, s2, 0x30003
    s_add_u32 {s(sT0)}, {s(sT0)}, {s(sT1)}
    s_mul_i32 {s(sX0)}, {s(sT0)}, 14
    s_bfe_u32 {s(sT0)}, s2, 0x20001
    s_lshl_b32 {s(sT0)}, {s(sT0)}, 2
    s_lshr_b32 {s(sT1)}, s2, 6
    s_add_u32 {s(sT0)}, {s(sT0)}, {s(sT1)}
    s_mul_i32 {s(sY0)}, {s(sT0)}, 14
    v_mul_u32_u24 {v(t0)}, 43, {v(vL)}
    v_lshrrev_b32 {v(t0)}, 7, {v(t0)}
    v_mul_u32_u24 {v(t1)}, 3, {v(t0)}
    v_sub_u32 {v(t1)}, {v(vL)}, {v(t1)}
    v_and_b32 {v(t2)}, 7, {v(t0)}
    v_lshrrev_b32 {v(t0)}, 3, {v(t0)}
    v_mad_u32_u24 {v(t0)}, {v(t0)}, 5, {v(t2)}
    v_cmp_le_u32 vcc, 3, {v(t2)}
    v_mul_u32_u24 {v(t0)}, 192, {v(t0)}
    s_mul_i32 {s(sT0)}, {s(sW)}, 48
    s_sub_u32 {s(sT0)}, {s(sT0)}, 576
    v_lshl_add_u32 {v(t0)}, {v(t1)}, 4, {v(t0)}
    v_add_u32 {v(t0)}, {s(sT0)}, {v(t0)}
    v_bfrev_b32 {v(t5)}, 1
    v_cndmask_b32 {v(t0)}, {v(t5)}, {v(t0)}, vcc
    s_mul_i32 {s(sT1)}, {s(sW)}, 56
    v_add_u32 {v(t1)}, {s(sT1)}, {v(vL)}
    v_mul_u32_u24 {v(t2)}, 171, {v(t1)}
    v_lshrrev_b32 {v(t2)}, 11, {v(t2)}
    s_sub_u32 {s(sT2)}, {s(sX0)}, 2
    v_add_u32 {v(t3)}, {s(sT2)}, {v(t2)}
    v_cmp_gt_u32 vcc, 224, {v(t3)}
    v_cmp_gt_u32 {s(sMASK, 2)}, 18, {v(t2)}
    s_mul_i32 {s(sT3)}, {s(sY0)}, {ROWB}
    s_mul_i32 {s(sT2)}, {s(sT2)}, 192
    s_add_u32 {s(sT3)}, {s(sT3)}, {s(sT2)}
    s_sub_u32 {s(sT3)}, {s(sT3)}, {2 * ROWB}
    s_and_b64 vcc, vcc, {s(sMASK, 2)}
    s_and_b32 vcc_hi, vcc_hi, 0xffffff
    v_lshl_add_u32 {v(vXO)}, {v(t1)}, 4, {s(sT3)}
    s_mul_i32 {s(sTB)}, {s(sW)}, 3072
    v_cndmask_b32 {v(vXO)}, {v(t5)}, {v(vXO)}, vcc
    s_add_u32 {s(sTB)}, {s(sTB)}, {TBL}
    s_mov_b32 m0, {s(sTB)}
    s_mov_b32 exec_hi, 0xffff
    s_waitcnt lgkmcnt(0)
    """)
    b.stamp(1)

    def srd(dst, src, nbytes):
        return L(f"""
        s_mov_b32 {s(dst)}, {s(src)}
        s_mov_b32 {s(dst + 1)}, {s(src + 1)}
        s_mov_b32 {s(dst + 2)}, {nbytes}
        s_mov_b32 {s(dst + 3)}, 0x20000
        """)
    b(srd(SRD_DW, 6, 4800))
    sx = srd(SRD_X, 4, XBYTES)
    for d in range(4):
        b(f"buffer_load_dwordx4 {v(t0)}, {s(SRD_DW, 4)}, 0 offen lds ;@tbl")
        if d < 3:
            b(f"s_add_u32 m0, m0, 768\nv_add_u32 {v(t0)}, 1920, {v(t0)}")
        b(sx[d:d + 1])
    b("s_mov_b32 exec_hi, -1")

    def xload(r):
        o = [f"buffer_load_dwordx4 {a(aSTG + 4 * r, 4)}, {v(vXO)}, {s(SRD_X, 4)}, 0 offen {nt} ;@x{r}"]
        if r < 17:
            o.append(f"v_add_u32 {v(vXO)}, {ROWB}, {v(vXO)}")
        return o

    u = Block()
    for dst, src, n in ((SRD_W1, 8, 73728), (SRD_B1, 10, 768), (SRD_W2, 12, 73728), (SRD_B2, 14, 192),
                        (SRD_G, 16, 192), (SRD_O, 18, XBYTES)):
        u(srd(dst, src, n))
    lut = 0
    for cp, col in enumerate([0, 4, 8, 12, 1, 5, 9, 13, 2, 6, 10, 3, 7, 11]):
        lut |= col << (4 * cp)
    lg, lxg, lrp, lh, lq, lr, l31, lh16 = range(TMP + 8, TMP + 16)
    u(f"""
    s_mov_b32 {s(sLO)}, 0xffff
    s_mov_b32 {s(sHI)}, 0xffff0000
    s_and_b32 {s(sPAR)}, {s(sW)}, 1
    s_xor_b32 {s(sNP)}, {s(sPAR)}, 1
    s_mul_i32 {s(sM1)}, {s(sW)}, 3072
    s_mul_i32 {s(sM2)}, {s(sW)}, 9216
    s_mul_i32 {s(sS[0])}, {s(sW)}, 18432
    s_add_u32 {s(sS[1])}, {s(sS[0])}, 5120
    s_add_u32 {s(sS[2])}, {s(sS[0])}, 10240
    v_mul_u32_u24 {v(t3)}, 12, {v(t2)}
    v_sub_u32 {v(t3)}, {v(t1)}, {v(t3)}
    v_subrev_u32 {v(t4)}, 56, {v(vL)}
    v_cmp_gt_u32 vcc, 56, {v(vL)}
    v_mov_b32 {v(t0)}, 18
    v_lshrrev_b32 {v(lg)}, 4, {v(vL)}
    v_cndmask_b32 {v(t3)}, {v(t4)}, {v(t3)}, vcc
    v_cndmask_b32 {v(t2)}, {v(t0)}, {v(t2)}, vcc
    v_mul_u32_u24 {v(t3)}, {XG}, {v(t3)}
    v_lshl_add_u32 {v(t3)}, {v(t2)}, 3, {v(t3)}
    v_add_u32 {v(vXW)}, {XP}, {v(t3)}
    v_and_b32 {v(lxg)}, 3, {v(vL)}
    v_bfe_u32 {v(lr)}, {v(vL)}, 2, 2
    v_lshrrev_b32 {v(t0)}, 1, {v(lr)}
    v_xor_b32 {v(lrp)}, {v(lr)}, {v(t0)}
    v_lshrrev_b32 {v(lh)}, 5, {v(vL)}
    v_and_b32 {v(lq)}, 1, {v(lg)}
    v_and_b32 {v(l31)}, 31, {v(vL)}
    v_lshlrev_b32 {v(vL16)}, 4, {v(vL)}
    v_lshlrev_b32 {v(lh16)}, 4, {v(lh)}
    v_mul_u32_u24 {v(vIDX)}, 0x5555, {v(lxg)}
    v_lshl_add_u32 {v(t0)}, {v(lg)}, 2, {v(lr)}
    v_sub_u32 {v(t1)}, {v(t0)}, {v(lxg)}
    v_mul_u32_u24 {v(t1)}, 48, {v(t1)}
    s_add_u32 {s(sT0)}, {s(sTB)}, 144
    v_add_u32 {v(vTA)}, {s(sT0)}, {v(t1)}
    v_mul_u32_u24 {v(t0)}, 192, {v(t0)}
    v_lshl_add_u32 {v(t0)}, {v(lxg)}, 3, {v(t0)}
    s_mul_i32 {s(sT0)}, {s(sW)}, 6144
    s_add_u32 {s(sT1)}, {s(sT0)}, {W2L + 2 * 6144}
    v_add_u32 {v(vR2A)}, {s(sT1)}, {v(t0)}
    s_add_u32 {s(sT1)}, {s(sT0)}, {W2E + 4 * 6144}
    s_add_u32 {s(sT2)}, {s(sT0)}, {W2L - 2 * 6144}
    s_cmp_lt_u32 {s(sW)}, 2
    s_cselect_b32 {s(sT1)}, {s(sT1)}, {s(sT2)}
    v_add_u32 {v(vR2B)}, {s(sT1)}, {v(t0)}
    v_add_u32 {v(vRW)}, {s(sT0)}, {v(vL16)}
    v_lshlrev_b32 {v(t0)}, 1, {v(lxg)}
    v_add_u32 {v(t0)}, {v(t0)}, {v(lg)}
    v_min_u32 {v(t0)}, 8, {v(t0)}
    v_mul_u32_u24 {v(t1)}, 320, {v(lrp)}
    s_mul_i32 {s(sT0)}, {s(sW)}, {3 * XG}
    s_add_u32 {s(sT0)}, {s(sT0)}, {XP}
    v_lshl_add_u32 {v(t0)}, {v(t0)}, 4, {v(t1)}
    v_add_u32 {v(vXB)}, {s(sT0)}, {v(t0)}
    v_lshrrev_b32 {v(t0)}, 2, {v(l31)}
    v_mul_u32_u24 {v(t0)}, 768, {v(t0)}
    v_lshl_add_u32 {v(t0)}, {v(lh)}, 6, {v(t0)}
    v_lshl_add_u32 {v(vD1)}, {v(lxg)}, 4, {v(t0)}
    """)
    for rb in aRB:
        for k in range(4):
            u(f"v_accvgpr_write_b32 {a(rb + 24 + k)}, 0")
    for i in range(0, 96, 2):
        u(f"v_mov_b64 {v(CV + i, 2)}, 0")
    n_urgent = len(u)
    pF, pH, pR = TMP + 16, TMP + 17, TMP + 18
    u(f"""
    s_mov_b32 {s(sCP)}, {f32bits(CP):#x}
    s_mov_b32 {s(sCP + 1)}, {f32bits(CP):#x}
    s_mov_b32 {s(sONE)}, 1.0
    s_mov_b32 {s(sONE + 1)}, 1.0
    s_mov_b32 {s(sINV)}, {f32bits(1 / 96):#x}
    s_mov_b32 {s(sINV + 1)}, {f32bits(1 / 96):#x}
    s_mov_b32 {s(sIA)}, {f32bits(1 / ALPHA):#x}
    s_mov_b32 {s(sIA + 1)}, {f32bits(1 / ALPHA):#x}
    s_mov_b32 {s(sAL)}, {f32bits(ALPHA):#x}
    s_mov_b32 {s(sAL + 1)}, {f32bits(ALPHA):#x}
    s_mov_b32 {s(sEPS)}, {f32bits(1e-5):#x}
    s_mov_b32 {s(sEPS + 1)}, {f32bits(1e-5):#x}
    s_mov_b32 {s(sLUT)}, {lut & 0xffffffff:#x}
    s_mov_b32 {s(sLUT + 1)}, {lut >> 32:#x}
    v_lshrrev_b32 {v(t0)}, 1, {v(lg)}
    v_and_b32 {v(t0)}, {v(t0)}, {v(lg)}
    v_lshl_add_u32 {v(t1)}, {v(lg)}, 2, {v(lxg)}
    v_sub_u32 {v(t1)}, {v(t1)}, {v(t0)}
    v_mad_u32_u24 {v(t1)}, {v(lrp)}, 28, {v(t1)}
    v_lshl_add_u32 {v(t2)}, {v(lxg)}, 2, {v(lg)}
    v_cmp_gt_u32 vcc, 14, {v(t2)}
    v_mul_u32_u24 {v(t1)}, {AP}, {v(t1)}
    s_mul_i32 {s(sT0)}, {s(sW)}, 48
    s_add_u32 {s(sT0)}, {s(sT0)}, {ACT}
    v_add_u32 {v(t1)}, {s(sT0)}, {v(t1)}
    v_add_u32 {v(t2)}, {ACT + 196 * AP}, {v(vL16)}
    v_cndmask_b32 {v(vAW)}, {v(t2)}, {v(t1)}, vcc
    s_lshl_b32 {s(sT0)}, {s(sW)}, 5
    v_add_u32 {v(pF)}, {s(sT0)}, {v(l31)}
    s_lshr_b32 {s(sT0)}, {s(sW)}, 1
    s_lshl_b32 {s(sT0)}, {s(sT0)}, 5
    s_add_u32 {s(sT0)}, {s(sT0)}, 128
    v_add_u32 {v(pH)}, {s(sT0)}, {v(l31)}
    v_add_u32 {v(t1)}, {ACT}, {v(lh16)}
    s_movk_i32 {s(sT1)}, {AP}
    v_mad_u32_u24 {v(vBF)}, {v(pF)}, {s(sT1)}, {v(t1)}
    v_mad_u32_u24 {v(vBH)}, {v(pH)}, {s(sT1)}, {v(t1)}
    v_lshlrev_b32 {v(t1)}, 4, {v(lg)}
    v_add_u32 {v(t1)}, {ACT + 192 * AP}, {v(t1)}
    v_mad_u32_u24 {v(vBR)}, {v(lxg)}, {s(sT1)}, {v(t1)}
    s_mul_i32 {s(sT2)}, {s(sY0)}, 224
    s_add_u32 {s(sT2)}, {s(sT2)}, {s(sX0)}
    s_movk_i32 {s(sT3)}, 224
    """)
    for p, dst in ((pF, vOFA), (pH, vOH)):
        u(f"""
        v_mul_u32_u24 {v(t1)}, 2341, {v(p)}
        v_lshrrev_b32 {v(t1)}, 15, {v(t1)}
        v_mul_u32_u24 {v(t2)}, 14, {v(t1)}
        v_sub_u32 {v(t2)}, {v(p)}, {v(t2)}
        v_lshlrev_b32 {v(t2)}, 2, {v(t2)}
        v_lshrrev_b64 {v(t4, 2)}, {v(t2)}, {s(sLUT, 2)}
        v_and_b32 {v(t4)}, 15, {v(t4)}
        v_mad_u32_u24 {v(t1)}, {v(t1)}, {s(sT3)}, {v(t4)}
        v_add_u32 {v(t1)}, {s(sT2)}, {v(t1)}
        v_mul_u32_u24 {v(dst)}, 192, {v(t1)}
        """)
    u(f"""
    s_lshl_b32 {s(sT0)}, {s(sW)}, 2
    s_lshr_b32 {s(sT0)}, 0xb73a, {s(sT0)}
    s_and_b32 {s(sT0)}, {s(sT0)}, 15
    s_add_u32 {s(sT0)}, {s(sT0)}, {s(sT2)}
    s_add_u32 {s(sT0)}, {s(sT0)}, {13 * 224}
    s_mul_i32 {s(sT0)}, {s(sT0)}, 192
    v_lshl_add_u32 {v(t1)}, {v(vL)}, 3, {s(sT0)}
    v_cmp_gt_u32 vcc, 24, {v(vL)}
    v_bfrev_b32 {v(t5)}, 1
    s_lshl_b32 {s(sT0)}, {s(sPAR)}, 5
    s_lshl_b32 {s(sT1)}, {s(sNP)}, 5
    v_cndmask_b32 {v(vOR)}, {v(t5)}, {v(t1)}, vcc
    v_add3_u32 {v(vOFB)}, {v(vOFA)}, {v(lh16)}, {s(sT1)}
    v_add3_u32 {v(vOFA)}, {v(vOFA)}, {v(lh16)}, {s(sT0)}
    v_add3_u32 {v(vOH)}, {v(vOH)}, {v(lh16)}, {s(sT0)}
    v_lshlrev_b32 {v(t1)}, 5, {v(lh)}
    v_add_u32 {v(t1)}, {PG}, {v(t1)}
    s_lshl_b32 {s(sT0)}, {s(sPAR)}, 6
    s_lshl_b32 {s(sT1)}, {s(sNP)}, 6
    v_add_u32 {v(vGA)}, {s(sT0)}, {v(t1)}
    v_add_u32 {v(vGB)}, {s(sT1)}, {v(t1)}
    v_lshlrev_b32 {v(t1)}, 1, {v(l31)}
    v_add_u32 {v(t1)}, {PB1}, {v(t1)}
    v_add_u32 {v(vBA)}, {s(sT0)}, {v(t1)}
    v_add_u32 {v(vBB)}, {s(sT1)}, {v(t1)}
    v_lshlrev_b32 {v(t0)}, 6, {v(lr)}
    v_lshl_add_u32 {v(t0)}, {v(lxg)}, 3, {v(t0)}
    v_lshl_add_u32 {v(t1)}, {v(lg)}, 10, {v(t0)}
    s_lshr_b32 {s(sT2)}, {s(sW)}, 1
    s_mul_i32 {s(sT2)}, {s(sT2)}, 12288
    s_lshl_b32 {s(sT0)}, {s(sPAR)}, 9
    s_lshl_b32 {s(sT1)}, {s(sNP)}, 9
    s_add_u32 {s(sT2)}, {s(sT2)}, {s(sT0)}
    v_add_u32 {v(vR1)}, {s(sT2)}, {v(t1)}
    v_lshl_add_u32 {v(t0)}, {v(lh)}, 10, {v(t0)}
    v_lshl_add_u32 {v(t0)}, {v(lq)}, 5, {v(t0)}
    v_add_u32 {v(vA)}, {s(sT0)}, {v(t0)}
    v_add_u32 {v(vB)}, {s(sT1)}, {v(t0)}
    v_and_b32 {v(t0)}, 15, {v(vL)}
    s_lshl_b32 {s(sT0)}, {s(sW)}, 6
    s_add_u32 {s(sT0)}, {s(sT0)}, {PB1}
    v_lshl_add_u32 {v(vRB)}, {v(t0)}, 1, {s(sT0)}
    v_xor_b32 {v(t3)}, {s(sPAR)}, {v(lq)}
    v_lshl_add_u32 {v(t0)}, {v(lh)}, 2, {v(lr)}
    v_mul_u32_u24 {v(t0)}, 192, {v(t0)}
    v_and_b32 {v(t1)}, 1, {v(lxg)}
    v_lshrrev_b32 {v(t2)}, 1, {v(lxg)}
    v_lshl_add_u32 {v(t1)}, {v(t1)}, 1, {v(t2)}
    v_lshl_add_u32 {v(t0)}, {v(t1)}, 3, {v(t0)}
    v_lshl_add_u32 {v(t0)}, {v(t3)}, 5, {v(t0)}
    s_mul_i32 {s(sT0)}, {s(sPAR)}, 6144
    s_add_u32 {s(sT0)}, {s(sT0)}, {W2E}
    s_mul_i32 {s(sT1)}, {s(sNP)}, 6144
    s_add_u32 {s(sT1)}, {s(sT1)}, {W2E}
    v_add_u32 {v(vW2A)}, {s(sT0)}, {v(t0)}
    v_add_u32 {v(vW2B)}, {s(sT1)}, {v(t0)}
    v_and_b32 {v(t1)}, 1, {v(lr)}
    v_lshrrev_b32 {v(t2)}, 1, {v(lr)}
    v_lshlrev_b32 {v(t2)}, 2, {v(t2)}
    v_lshl_add_u32 {v(t1)}, {v(t1)}, 3, {v(t2)}
    v_add_u32 {v(t1)}, {v(t1)}, {v(lxg)}
    v_lshl_add_u32 {v(t1)}, {v(t3)}, 4, {v(t1)}
    v_lshlrev_b32 {v(t1)}, 1, {v(t1)}
    v_add_u32 {v(vB2F)}, {PB2}, {v(t1)}
    v_cmp_eq_u32 vcc, 0, {v(lq)}
    v_mov_b32 {v(t2)}, {ZERO}
    v_mov_b32 {v(t0)}, {A_HI:#x}
    v_cndmask_b32 {v(vB2H)}, {v(t2)}, {v(vB2F)}, vcc
    v_mov_b32 {v(t1)}, {A_LO:#x}
    v_cmp_eq_u32 vcc, 0, {v(lh)}
    v_cmp_eq_u32 {s(sMASK, 2)}, 0, {v(lg)}
    v_mov_b32 {v(t3)}, 0
    v_cndmask_b32 {v(t2)}, {v(t1)}, {v(t0)}, vcc
    v_accvgpr_write_b32 {a(aC32)}, {v(t2)}
    v_cndmask_b32 {v(t2)}, {v(t1)}, {v(t0)}, {s(sMASK, 2)}
    v_cndmask_b32 {v(t2)}, {v(t3)}, {v(t2)}, vcc
    v_accvgpr_write_b32 {a(aC16)}, {v(t2)}
    s_lshl_b32 {s(sT0)}, {s(sW)}, 10
    s_add_u32 {s(sT0)}, {s(sT0)}, {ST}
    v_add_u32 {v(vSW)}, {s(sT0)}, {v(vL16)}
    v_lshlrev_b32 {v(t4)}, 2, {v(vL)}
    """)
    for r in [aBIAS + k for k in (1, 2, 3)] + [aC32 + k for k in (1, 2, 3)] + [aC16 + k for k in (1, 2, 3)] \
            + [aRBIAS + k for k in (1, 3, 5, 6, 7)]:
        u(f"v_accvgpr_write_b32 {a(r)}, 0")
    for r in range(12):
        b(xload(r))
    b.stamp(18)
    b(u)
    b.stamp(2)

    if OPT["hops"]:
        b("@vm pf")
        b(f"""
        s_mov_b64 exec, 0
        s_cmp_eq_u32 {s(sW)}, 1
        s_cbranch_scc1 L_pad3
        s_cmp_eq_u32 {s(sW)}, 2
        s_cbranch_scc1 L_pad5
        s_cmp_eq_u32 {s(sW)}, 3
        s_cbranch_scc1 L_pad7
        s_branch L_pad1
        .p2align 12
        L_body:
        s_mov_b64 exec, -1
        """)
    b("@vm tbl")
    ard = [f"ds_read_b64_tr_b16 {v(AF + (3 * j + t) * 4 + 2, 2)}, {v(vTA)} offset:{768 * t + 8 * j}" for j in range(6) for t in range(3)]
    for r in range(12, 18):
        b(ard[3 * (r - 12):3 * (r - 11)])
        b(xload(r))
    b(f"""
    buffer_load_dword {v(vG)}, {v(t4)}, {s(SRD_G, 4)}, 0 offen
    buffer_load_dword {v(vB2V)}, {v(t4)}, {s(SRD_B2, 4)}, 0 offen ;@gb
    s_mov_b32 m0, {PB1}
    s_nop 0
    buffer_load_dwordx4 {v(vL16)}, {s(SRD_B1, 4)}, 0 offen lds
    s_mov_b32 m0, {PB2}
    s_nop 0
    buffer_load_dwordx4 {v(vL16)}, {s(SRD_B2, 4)}, 0 offen lds
    """)
    b.stamp(3)
    aexp = []
    for g in range(18):
        q = AF + 4 * g
        aexp += [f"v_and_b32 {v(q)}, {s(sLO)}, {v(q + 2)}", f"v_and_b32 {v(q + 1)}, {s(sHI)}, {v(q + 2)}",
                 f"v_and_b32 {v(q + 2)}, {s(sLO)}, {v(q + 3)}", f"v_and_b32 {v(q + 3)}, {s(sHI)}, {v(q + 3)}"]

    def w1dma(p, tag):
        o = []
        for i in range(3):
            pre = [f"s_add_u32 m0, {s(sM1)}, {12288 * p}", "s_nop 0"] if i == 0 else []
            o.append(pre + [f"buffer_load_dwordx4 {v(vD1)}, {s(SRD_W1, 4)}, {s(sS[i])} offen offset:{1024 * i} lds ;@{tag}"])
        return o

    def w2dma(late, tag):
        o = []
        for c in range(9):
            g = c >> 2
            pre = [f"s_add_u32 m0, {s(sM2)}, {(W2L if late else W2E) + 4096 * g}",
                   f"s_add_u32 {s(sT3)}, {s(sM2)}, {36864 * late + 4096 * g}"] if c % 4 == 0 else []
            o.append(pre + [f"buffer_load_dwordx4 {v(vL16)}, {s(SRD_W2, 4)}, {s(sT3)} offen offset:{1024 * (c & 3)} lds ;@{tag}"])
        return o
    bump = f"v_add_u32 {v(vD1)}, 128, {v(vD1)}"
    early = w1dma(0, "we") + w1dma(1, "we") + w1dma(2, "we") + w2dma(0, "we")

    def stage(r):
        return [f"@vm x{r}", f"ds_write_b64 {v(vXW)}, {a(aSTG + 4 * r, 2)} offset:{160 * r}",
                f"ds_write_b64 {v(vXW)}, {a(aSTG + 4 * r + 2, 2)} offset:{XPL + 160 * r}"]
    b("@lg all")
    for r in range(12):
        b(aexp[6 * r:6 * r + 6])
        b(early[r])
        b(stage(r))
        if r in (2, 5, 8):
            b(bump)
    b("@lg all\ns_barrier")
    b.stamp(4)

    S, TP, TU, S2 = TMP, TMP + 8, TMP + 20, TMP + 22

    def acc(ph, sx, j):
        return CV + ((2 * ph + sx) * 6 + j) * 4

    def conv(ph):
        def reads(j):
            return [f"ds_read_b128 {a(aRB[j % 3] + 4 * r, 4)}, {v(vXB)} offset:{(j >> 1) * XG + (j & 1) * XPL + (8 * ph + r) * 160} ;@q{j}"
                    for r in range(6)]

        def part(j):
            d0, d1 = acc(ph, 0, j), acc(ph, 1, j)
            return [f"v_add_f32 {v(TP + 2 * j)}, {v(d0)}, {v(d0 + 1)}", f"v_add_f32 {v(TU)}, {v(d0 + 2)}, {v(d0 + 3)}",
                    f"v_add_f32 {v(TP + 2 * j + 1)}, {v(d1)}, {v(d1 + 1)}", f"v_add_f32 {v(TU + 1)}, {v(d1 + 2)}, {v(d1 + 3)}",
                    f"v_add_f32 {v(TP + 2 * j)}, {v(TP + 2 * j)}, {v(TU)}",
                    f"v_add_f32 {v(TP + 2 * j + 1)}, {v(TP + 2 * j + 1)}, {v(TU + 1)}"]
        b(reads(0) + reads(1))
        pend = []
        for j in range(6):
            b(f"@lg q{j}")
            rd = reads(j + 2) if j < 4 else []
            for n in range(6):
                t, sx = n >> 1, n & 1
                b(f"v_smfmac_f32_16x16x64_bf16 {v(acc(ph, sx, j), 4)}, {v(AF + (3 * j + t) * 4, 4)}, {a(aRB[j % 3] + 4 * (sx + 2 * t), 8)}, {v(vIDX)}")
                if rd:
                    b(rd.pop(0))
                if n == 2 and j > 0:
                    pend += part(j - 1)
                if pend:
                    b(pend.pop(0))
        o = list(pend)
        for i in range(0, 24, 2):
            for sx in range(2):
                d = acc(ph, sx, 0) + i
                o.append(pk("mul", S2 + 2 * sx, v(d, 2), v(d, 2)) if i == 0 else
                         pk("fma", S2 + 2 * sx, v(d, 2), v(d, 2), v(S2 + 2 * sx, 2)))
            if i == 8:
                o += part(5)
        o += [pk("add", TP + 4 * k, v(TP + 4 * k, 2), v(TP + 4 * k + 2, 2)) for k in range(3)]
        o += [f"v_add_f32 {v(S + 4 * ph + 2)}, {v(S2)}, {v(S2 + 1)}", pk("add", TP, v(TP, 2), v(TP + 4, 2)),
              f"v_add_f32 {v(S + 4 * ph + 3)}, {v(S2 + 2)}, {v(S2 + 3)}", pk("add", S + 4 * ph, v(TP, 2), v(TP + 8, 2))]
        return o
    st = conv(0)
    b.stamp(5)
    g0, g1, ga = TMP + 26, TMP + 28, TMP + 30
    per = (len(st) + 5) // 6
    for r in range(12, 18):
        b(st[per * (r - 12):per * (r - 11)])
        b(early[r])
        b(stage(r))
    b(f"""
    ds_write_b128 {v(vSW)}, {v(S, 4)}
    @vm gb
    v_lshlrev_b32 {v(g0)}, 16, {v(vG)}
    v_and_b32 {v(g0 + 1)}, {s(sHI)}, {v(vG)}
    v_lshlrev_b32 {v(g1)}, 16, {v(vB2V)}
    v_and_b32 {v(g1 + 1)}, {s(sHI)}, {v(vB2V)}
    v_lshlrev_b32 {v(ga)}, 3, {v(vL)}
    {pk("mul", g1, v(g1, 2), v(g0, 2))}
    {pk("mul", g0, v(g0, 2), s(sIA, 2))}
    v_add_u32 {v(ga)}, {PG}, {v(ga)}
    s_mov_b32 exec_hi, 0xffff
    ds_write_b64 {v(ga)}, {v(g0, 2)}
    ds_write_b64 {v(ga)}, {v(g1, 2)} offset:{PGB - PG}
    s_mov_b32 exec_hi, -1
    @lg all
    s_barrier
    """)
    b.stamp(6)
    b(conv(1))
    b(f"""
    ds_write_b128 {v(vSW)}, {v(S + 4, 4)} offset:4096
    v_add_u32 {v(vSW)}, {ST}, {v(vL16)}
    @vm all
    @lg all
    s_barrier
    """)
    b.stamp(7)

    Q = TMP
    for ph in range(2):
        for w in range(4):
            b(f"ds_read_b128 {v(Q + 16 * ph + 4 * w, 4)}, {v(vSW)} offset:{4096 * ph + 1024 * w} ;@s{ph}")
    b(r_w1(0))
    b([f"ds_read_u16 {a(aRBIAS + 2 * t)}, {v(vB2H)} offset:{64 * t}" for t in range(3)])
    qs = (Q, Q + 16)
    for ph, q in enumerate(qs):
        b(f"@lg s{ph}")
        for o in (0, 2):
            b(pk("add", q + o, v(q + o, 2), v(q + 4 + o, 2)))
            b(pk("add", q + 8 + o, v(q + 8 + o, 2), v(q + 12 + o, 2)))
    for o in (0, 2):
        for q in qs:
            b(pk("add", q + o, v(q + o, 2), v(q + 8 + o, 2)))
    for o in (0, 2):
        for q in qs:
            b(pk("mul", q + o, v(q + o, 2), s(sINV, 2)))
    for q in qs:
        b(pk("fma", q + 2, v(q, 2), v(q, 2), v(q + 2, 2), " neg_lo:[1,0,0] neg_hi:[1,0,0]"))
    for q in qs:
        b(f"v_max_f32 {v(q + 2)}, 0, {v(q + 2)}\nv_max_f32 {v(q + 3)}, 0, {v(q + 3)}")
    for q in qs:
        b(pk("add", q + 2, v(q + 2, 2), s(sEPS, 2)))
    for q in qs:
        b(f"v_rsq_f32 {v(q + 2)}, {v(q + 2)}\nv_rsq_f32 {v(q + 3)}, {v(q + 3)}")
    for q in qs:
        b(pk("mul", q + 2, v(q + 2, 2), s(sAL, 2)))
    for q in qs:
        b(pk("mul", q, v(q, 2), v(q + 2, 2), mod=" neg_lo:[1,0] neg_hi:[1,0]"))
    wr = []
    for k in range(4):
        ph, sx = k >> 1, k & 1
        base, q = CV + 24 * k, qs[ph]
        for jj in range(3):
            for i in range(8 * jj, 8 * jj + 8, 2):
                b(pk("fma", base + i, v(base + i, 2), v(q + 2, 2), v(q, 2), f" op_sel:[0,{sx},{sx}] op_sel_hi:[1,{sx},{sx}]"))
            for i in range(4 * jj, 4 * jj + 4):
                b(f"v_cvt_pk_bf16_f32 {v(base + 4 * jj + i)}, {v(base + 2 * i)}, {v(base + 2 * i + 1)}")
            b(f"ds_write_b128 {v(vAW)}, {v(base + 8 * jj, 4)} offset:{(8 * ph + sx) * 14 * AP + 16 * jj}")
    b("@lg all\ns_barrier")
    b.stamp(8)

    b([f"ds_read_b128 {a(aBt['F'] + 4 * k, 4)}, {v(vBF)} offset:{32 * k} ;@bf" for k in range(6)])
    b([f"ds_read_b128 {a(aBt['H'] + 4 * k, 4)}, {v(vBH)} offset:{32 * k}" for k in range(6)])
    b([f"ds_read_b128 {a(aBR + 4 * k, 4)}, {v(vBR)} offset:{64 * k}" for k in range(3)])
    late = w1dma(3, "wl") + w1dma(4, "wl") + w1dma(5, "wl") + w2dma(1, "wl")
    M = m_fc1(0)
    F = [(0, 0, ["@lg bf"]), (3, 3, ["@lg all", "s_barrier"]), (4, 4, late[0]), (5, 5, late[1]), (6, 6, late[2])]
    b(trun(M, F, [bump], need={}, tail=1000))
    b(late[3] + late[4])
    b("s_nop 5")
    b.stamp(9)
    b(P(0))
    b(T(0, xF=[(0, 0, late[5])], xV=[bump]))
    b(P(1, late_x=True))
    hinit = [f"{M32} {v(ACC['H'] + 16 * t, 16)}, {a(aRBIAS + 2 * t, 4)}, {a(aC32, 4)}, 0" for t in range(3)]
    b(T(1, xM=hinit, xF=[(1 + 2 * k, 1 + 2 * k, late[6 + k]) for k in range(4)]))
    b(P(2))
    b(T(2, xF=[(1 + 3 * k, 1 + 3 * k, late[10 + k]) for k in range(4)]))
    b(P(3))
    b(T(3, xF=[(1 + 3 * k, 1 + 3 * k, late[14 + k]) for k in range(4)]))
    b.stamp(10)

    XR, WK, HR = (TMP, TMP + 16), (TMP + 8, TMP + 24), TMP + 32

    def r_fc1(m):
        x = XR[m % 2]
        rd = [f"ds_read_u16 {a(aRBIAS + 2 * mh)}, {v(vRB)} offset:{256 * m + 32 * mh}" for mh in range(2)]
        rd += [f"ds_read_b64_tr_b16 {a(aRF + 12 * mh + 4 * k + 2 * jj, 2)}, {v(vR1)} offset:{24576 * m + 4096 * k + 256 * jj + 32 * mh} ;@rf"
               for k in range(3) for mh in range(2) for jj in range(2)]
        M = [f"{M16} {v(x + 4 * mh, 4)}, {a(aRBIAS + 2 * mh, 4)}, {a(aC16, 4)}, 0" for mh in range(2)]
        M += [f"{M16} {v(x + 4 * mh, 4)}, {a(aRF + 12 * mh + 4 * k, 4)}, {a(aBR + 4 * k, 4)}, {v(x + 4 * mh, 4)}"
              for k in range(3) for mh in range(2)]
        return M, [(0, 8, [x_]) for x_ in rd] + [(12, 12, ["@lg rf"])]

    def r_fc2(m):
        reg, off = ((vR2A, 24576), (vR2B, 0), (vR2A, 0))[m]
        rd = [f"ds_read_b64_tr_b16 {a(aRF + 4 * c + 2 * jj, 2)}, {v(reg)} offset:{off + 3072 * jj + 32 * c} ;@rf"
              for c in range(6) for jj in range(2)]
        M = [f"{M16} {a(aRACC + 4 * c, 4)}, {a(aRF + 4 * c, 4)}, {v(HR, 4)}, {'0' if m == 0 else a(aRACC + 4 * c, 4)}" for c in range(6)]
        return M, [(0, 8, [x_]) for x_ in rd] + [(12, 12, ["@lg rf"])]

    def rp1(m):
        return p_t(XR[m % 2], WK[m % 2], 8) + p_z(XR[m % 2], WK[m % 2], 8)

    def radd(m):
        return p_add(WK[m % 2], 8)

    def rmul(m):
        return p_mul(WK[m % 2], XR[m % 2], 8)

    def rexp(m):
        return t_exp(WK[m % 2], WK[m % 2], 8)

    def rrcp(m):
        return t_rcp(WK[m % 2], WK[m % 2], 8)

    def rcvt(m):
        return t_cvt(HR, WK[m % 2], 8)

    b(P(4))
    b(T(4))
    b(P(5))
    M_, F_ = r_fc1(0)
    b(T(5, xM=M_, xF=F_, tail=4))
    b(P(6, post=rp1(0)))
    b(T(6, xV=rexp(0) + [f"v_subrev_u32 {v(vW2A)}, 36864, {v(vW2A)}", f"v_add_u32 {v(vA)}, 36864, {v(vA)}"]))
    b(P(7, post=radd(0)))
    b.stamp(11)
    b("@vm wl\ns_barrier")
    M_, F_ = r_fc1(1)
    b(T(7, xM=M_, xF=F_, xV=rrcp(0), tail=4))
    b(P(8, post=rmul(0) + rp1(1)))
    M_, F_ = r_fc2(0)
    b(T(8, xM=M_, xF=F_, xVpre=rcvt(0), xV=rexp(1), tail=4))
    b(P(9, post=radd(1)))
    M_, F_ = r_fc1(2)
    b(T(9, xM=M_, xF=F_, xV=rrcp(1), tail=4))
    b(P(10, post=rmul(1) + rp1(2)))
    M_, F_ = r_fc2(1)
    b(T(10, xM=M_, xF=F_, xVpre=rcvt(1), xV=rexp(2), tail=4))
    b(P(11, post=radd(2)))
    b(T(11, xV=rrcp(2) + [f"v_subrev_u32 {v(vW2B)}, 36864, {v(vW2B)}", f"v_add_u32 {v(vB)}, 36864, {v(vB)}"]))
    b(P(12, post=rmul(2)))
    M_, F_ = r_fc2(2)
    b(T(12, xM=M_, xF=F_, xVpre=rcvt(2), tail=4))
    b.stamp(12)
    PP, PGm, PBm, RU, RX, ra, rg = TMP, TMP + 16, TMP + 20, TMP + 24, TMP + 28, TMP + 30, TMP + 31
    b(P(13))
    F_ = [(2 * c + 1, 2 * c + 1, [f"ds_write_b128 {v(vRW)}, {a(aRACC + 4 * c, 4)} offset:{RBUF + 1024 * c}"]) for c in range(6)]
    F_ += [(0, 0, [f"buffer_load_dwordx2 {v(RX, 2)}, {v(vOR)}, {s(SRD_X, 4)}, 0 offen", f"s_lshl_b32 {s(sT0)}, {s(sW)}, 4"])]
    V_ = L(f"""
    v_min_u32 {v(rg)}, 23, {v(vL)}
    v_lshrrev_b32 {v(ra)}, 2, {v(rg)}
    v_and_b32 {v(RU)}, 3, {v(rg)}
    v_lshlrev_b32 {v(ra)}, 10, {v(ra)}
    v_lshl_add_u32 {v(ra)}, {v(RU)}, 8, {v(ra)}
    v_lshlrev_b32 {v(rg)}, 4, {v(rg)}
    v_add_u32 {v(ra)}, {s(sT0)}, {v(ra)}
    v_add_u32 {v(rg)}, {PG}, {v(rg)}
    """)
    b(T(13, xF=F_, xV=V_))
    b(P(14))
    b("@lg all\ns_barrier")
    F_ = [(0, 12, [f"ds_read_b128 {v(PP + 4 * w, 4)}, {v(ra)} offset:{RBUF + 6144 * w}"]) for w in range(4)]
    F_ += [(0, 12, [f"ds_read_b128 {v(PGm, 4)}, {v(rg)}"]), (0, 12, [f"ds_read_b128 {v(PBm, 4)}, {v(rg)} offset:{PGB - PG}"])]
    b(T(14, xF=F_, xV=unpack(RU, RX, 2), head=()))
    post = [pk("add", PP + i, v(PP + i, 2), v(PP + 4 + i, 2)) for i in (0, 2)]
    post += [pk("add", PP + 8 + i, v(PP + 8 + i, 2), v(PP + 12 + i, 2)) for i in (0, 2)]
    post += [pk("add", RU + i, v(RU + i, 2), v(PBm + i, 2)) for i in (0, 2)]
    post += [pk("add", PP + i, v(PP + i, 2), v(PP + 8 + i, 2)) for i in (0, 2)]
    post += [pk("fma", RU + i, v(PP + i, 2), v(PGm + i, 2), v(RU + i, 2)) for i in (0, 2)]
    b(P(15, post=post))
    HX, FX = TMP, TMP + 12
    nt2 = OPT["nt2"]
    hx = [f"buffer_load_dwordx4 {v(HX + 4 * t, 4)}, {v(vOH)}, {s(SRD_X, 4)}, 0 offen offset:{64 * t} {nt2} ;@hx" for t in range(3)]
    fx = [f"buffer_load_dwordx4 {v(FX + 4 * c, 4)}, {v(vOFB if c & 1 else vOFA)}, {s(SRD_X, 4)}, 0 offen offset:{64 * (c >> 1)} {nt2}"
          for c in range(6)]
    F_ = [(4, 4, [f"buffer_store_dwordx2 {v(RX, 2)}, {v(vOR)}, {s(SRD_O, 4)}, 0 offen {OPT['st_h']}"])]
    F_ += [(6 + 2 * t, 6 + 2 * t, [hx[t]]) for t in range(3)]
    b(T(15, xF=F_, xVpre=t_cvt(RX, RU, 4), xneed={4: 10}))
    b(P(16))
    vXR_ = vRB
    F_ = [(2 * c, 2 * c, [f"ds_write_b128 {v(vRW)}, {v(ACC['H'] + 16 * (c >> 1) + 8 + 4 * (c & 1), 4)} offset:{XCH + 1024 * c}"])
          for c in range(6)]
    F_ += [(2 * c + 1, 2 * c + 1, [fx[c]]) for c in range(6)]
    F_ += [(12, 12, [f"ds_read_u16 {a(aRBIAS + 2 * t)}, {v(vB2F)} offset:{64 * t}" for t in range(3)])]
    F_ += [(0, 0, [f"s_xor_b32 {s(sT0)}, {s(sW)}, 1", f"s_mul_i32 {s(sT0)}, {s(sT0)}, 6144"])]
    b(T(16, xF=F_, xV=[f"v_add_u32 {v(vXR_)}, {s(sT0)}, {v(vL16)}"]))
    b(P(17))
    b.stamp(13)
    b("@lg all\ns_barrier")
    finit = [f"{M32} {v(ACC['F'] + 16 * t, 16)}, {a(aRBIAS + 2 * t, 4)}, {a(aC32, 4)}, {v(ACC['F'] + 16 * t, 16)}" for t in range(3)]
    F_ = [(0, 8, [f"ds_read_b128 {v(ACC['H'] + 16 * (c >> 1) + 8 + 4 * (c & 1), 4)}, {v(vXR_)} offset:{XCH + 1024 * c}"]) for c in range(6)]
    b(T(17, xM=finit, xF=F_, head=()))
    AH, AFc = ACC["H"], ACC["F"]
    post = [pk("add", AH + 16 * t + i, v(AH + 16 * t + i, 2), v(AH + 16 * t + 8 + i, 2)) for t in range(3) for i in range(0, 8, 2)]
    b("@lg all")
    b(P(18, post=post))
    GE = (X[0], X[0] + 8, Z)
    GO = (Z + 8, R, R + 8)
    F_ = [(0, 5, [f"ds_read_b128 {v(GE[t] + 4 * k, 4)}, {v(vGA)} offset:{128 * t + 16 * k}"]) for t in range(3) for k in range(2)]
    V_ = [x for t in range(3) for x in unpack(AH + 16 * t + 8, HX + 4 * t, 4)]
    V_ += ["s_nop 0", f"v_permlane16_swap_b32 {v(vOFA)}, {v(vOFB)}"]
    b(T(18, xF=F_, xV=V_, head=("@vm hx",)))
    post = [pk("fma", AH + 16 * t + 8 + i, v(AH + 16 * t + i, 2), v(GE[t] + i, 2), v(AH + 16 * t + 8 + i, 2))
            for t in range(3) for i in range(0, 8, 2)]
    b("@lg all")
    b(P(19, post=post))
    b.stamp(14)
    UF = (X[1], X[1] + 8, X[2], X[2] + 8, E, E + 8)
    hc = [x for t in range(3) for x in t_cvt(HX + 4 * t, AH + 16 * t + 8, 8)]
    hs = [f"buffer_store_dwordx4 {v(HX + 4 * t, 4)}, {v(vOH)}, {s(SRD_O, 4)}, 0 offen offset:{64 * t} {OPT['st_h']}" for t in range(3)]
    gr = [f"ds_read_b128 {v(GO[t] + 4 * k, 4)}, {v(vGB)} offset:{128 * t + 16 * k}" for t in range(3) for k in range(2)]
    V_ = hc + [x for c in range(6) for x in unpack(UF[c], FX + 4 * c, 4)]
    F_ = [(0, 0, gr[:2]), (2, 2, gr[2:4]), (3, 3, gr[4:6] + hs[:1]), (4, 4, hs[1:2]), (5, 5, hs[2:3])]
    b(T(19, xF=F_, xV=V_, head=("@vm all",), xneed={2: 8, 3: 14, 4: 18, 5: 22}, tail=150))
    b.stamp(15)
    b("@lg all")
    for t in range(3):
        for c, g in ((2 * t, GE[t]), (2 * t + 1, GO[t])):
            for i in range(0, 8, 2):
                b(pk("fma", UF[c] + i, v(AFc + 8 * c + i, 2), v(g + i, 2), v(UF[c] + i, 2)))
        for c in (2 * t, 2 * t + 1):
            b(t_cvt(FX + 4 * c, UF[c], 8))
        for i in range(4):
            b(f"v_permlane16_swap_b32 {v(FX + 8 * t + i)}, {v(FX + 8 * t + 4 + i)}")
        b(f"buffer_store_dwordx4 {v(FX + 8 * t, 4)}, {v(vOFA)}, {s(SRD_O, 4)}, 0 offen offset:{64 * t} {OPT['st_f']}")
        b(f"buffer_store_dwordx4 {v(FX + 8 * t + 4, 4)}, {v(vOFB)}, {s(SRD_O, 4)}, 0 offen offset:{64 * t} {OPT['st_f']}")
    b.stamp(16)
    if OPT["probe"] is not None:
        k = int(OPT["probe"])
        b("@vm all")
        b.stamp(17)
        b(f"s_sub_u32 s98, {s(sSTAMP + k)}, s96" if k else "s_mov_b32 s98, 0")
        if OPT["probewg"] is not None:
            b(f"s_cmp_eq_u32 s2, {OPT['probewg']}\ns_cselect_b32 s98, s98, 0")
        b("""
        s_lshl_b32 s98, s98, 2
        s_add_u32 s98, s98, 40000
        L_diag:
        s_memtime s[100:101]
        s_waitcnt lgkmcnt(0)
        s_sub_u32 s100, s100, s96
        s_cmp_lt_u32 s100, s98
        s_cbranch_scc1 L_diag
        """)
    elif OPT["stamps"]:
        b("@vm all")
        b.stamp(17)
        b(f"""
        s_load_dwordx2 s[4:5], s[0:1], 72
        s_waitcnt lgkmcnt(0)
        s_lshl_b32 s6, s2, 2
        s_add_u32 s6, s6, {s(sW)}
        s_lshl_b32 s6, s6, 7
        v_mov_b32 v0, s6
        s_mov_b32 s6, 0x100000
        s_mov_b32 s7, 0x20000
        s_mov_b64 exec, 1
        """)
        for k in range(1, 20):
            kk = k if k != 19 else 17
            b(f"s_sub_u32 s8, {s(sSTAMP + kk)}, {s(sSTAMP)}")
            b("v_mov_b32 v2, s8")
            b(f"buffer_store_dword v2, v0, s[4:7], 0 offen offset:{4 * k}")
        b("@vm all")
    return b


def add_pads(lines):
    out = []
    off = None
    n = 0
    for t in lines:
        if t == "L_body:":
            off = 0
        if off is not None and not t.endswith(":") and not t.startswith("."):
            sz = isize(t)
            if off + sz > 4096 * (n + 1):
                while off < 4096 * (n + 1):
                    out.append("s_nop 0")
                    off += 4
                n += 1
                out.append(f"L_pad{n}:")
                out.append(f"s_cbranch_execz {'L_pad%d' % (n + 1) if n % 2 else 'L_body'}")
                out.append("s_nop 0")
                off += 8
            off += sz
        out.append(t)
    return out, n


def build():
    b = gen()
    lines, added = autowait(b, OPT["verbose"])
    bad = 0
    if OPT["align"]:
        lines, bad = fix_align(lines)
    npad = 0
    if OPT["hops"]:
        lines, npad = add_pads(lines)
        for k in range(npad + 1, 9):
            lines = [t.replace(f"L_pad{k}", "L_body") if not t.endswith(":") else t for t in lines]
    trace = [t for t in lines if not t.endswith(":") and not t.startswith(".")]
    errs = check(trace)
    hdr = open("standalone__modern_conv_block_convnext__vision.s.ref").read().split("\n")
    head = [l for l in hdr if l.startswith(";") and "@launch" not in l and "Override" not in l and "grid=ceil" not in l]
    out = head + [f"; @launch grid=(256,1,1) block=(256,1,1) lds={LDS_BYTES}",
                  '.amdgcn_target "amdgcn-amd-amdhsa--gfx950"', ".text", f".globl {KNAME}", ".p2align 8",
                  f".type {KNAME},@function", f"{KNAME}:"]
    for t in lines:
        out.append(t if t.endswith(":") or t.startswith(".") else "    " + t)
    out += ["L_end:", "    s_endpgm", '.section .rodata,"a"', ".p2align 6", f".amdhsa_kernel {KNAME}",
            "  .amdhsa_next_free_vgpr 464", "  .amdhsa_next_free_sgpr 102", "  .amdhsa_accum_offset 256",
            "  .amdhsa_group_segment_fixed_size 0", "  .amdhsa_kernarg_size 80", "  .amdhsa_user_sgpr_count 2",
            "  .amdhsa_user_sgpr_kernarg_segment_ptr 1", "  .amdhsa_system_sgpr_workgroup_id_x 1",
            ".end_amdhsa_kernel", ""]
    info = f"{len(trace)} instrs, {sum(isize(t) for t in trace)} bytes, {added} auto waits, {bad} misaligned, {npad} pads, {len(errs)} lint findings"
    return "\n".join(out), errs, info


if __name__ == "__main__":
    path = sys.argv[1]
    for kv in sys.argv[2:]:
        k, val = kv.split("=")
        OPT[k] = val if k.startswith("probe") else {"0": False, "1": True}.get(val, val.replace("+", " "))
    text, errs, info = build()
    for e in errs:
        print("HAZARD", e)
    open(path, "w").write(text)
    print(f"wrote {path}: {info}")
```

```python
import math
import struct
import sys

from asmlint import check
from sched import trun, autowait, fix_align, isize

KNAME = "standalone__modern_conv_block_convnext__vision_kernel"
OPT = dict(nt="nt", stamps=False, verbose=False, align=True, st_h="", st_f="", hops=False, nt2="")


def f32bits(x):
    return struct.unpack("<I", struct.pack("<f", x))[0]


def bf16_rne(x):
    u = f32bits(x)
    return (u + 0x7FFF + ((u >> 16) & 1)) >> 16


def bf16_val(h):
    return struct.unpack("<f", struct.pack("<I", h << 16))[0]


C1 = 2.0 * math.sqrt(2.0 / math.pi) * math.log2(math.e)
ALPHA = (C1 * 0.044715) ** (1.0 / 3.0)
CP = C1 / ALPHA
A_HI = bf16_rne(ALPHA)
A_LO = bf16_rne(ALPHA - bf16_val(A_HI))

W2L, W2E = 73728, 110592
XP, XG, XPL = 36864, 5776, 2880
ACT, AP = 36864, 208
TBL = 147456
ST = TBL
RBUF, XCH = 0, 24576
PB1, PB2, PG, PGB = 159744, 160768, 161792, 162176
ZERO = PB2 + 512
LDS_BYTES = 162560
ROWB = 43008
XBYTES = 9633792

SRD_X, SRD_DW, SRD_W1, SRD_W2, SRD_B1, SRD_B2, SRD_G, SRD_O = 20, 24, 28, 32, 36, 40, 44, 48
sW, sPAR, sX0, sY0, sNP = 54, 55, 56, 57, 58
sT0, sT1, sT2, sT3 = 59, 60, 61, 62
sTB = 63
sCP, sONE, sINV, sLUT, sIA, sAL, sEPS, sMASK = 64, 66, 68, 70, 72, 74, 76, 78
sLO, sHI, sM1, sM2 = 4, 5, 6, 7
sS = (8, 9, 10)
sSTAMP = 80

vB2F, vL = 0, 1
vA, vB, vW2A, vW2B, vBA, vBB = 2, 3, 4, 5, 6, 7
vOFA, vOFB, vOH, vOR, vGA, vGB, vL16 = 8, 9, 10, 11, 12, 13, 14
vR1, vR2A, vR2B, vRB, vRW = 15, 16, 17, 18, 19
ACC = {"F": 20, "H": 68}
X = (116, 132, 148)
Z, E, R, H, TMP = 164, 180, 196, 212, 220
CV, AF = 116, 20
vIDX, vTA, vXB, vXW, vXO, vAW, vBF, vBH, vBR, vPF, vB2H, vG, vB2V, vSW = range(92, 106)
vD1 = TMP + 35

aSTG = 0
aRB = (72, 100, 128)
aW1, aW2 = 0, (24, 48)
aBt = {"F": 72, "H": 96}
aBR, aRF, aRACC = 120, 132, 156
aBIAS, aC32, aC16, aRBIAS = 180, 184, 188, 192


def v(i, n=1):
    return f"v{i}" if n == 1 else f"v[{i}:{i+n-1}]"


def a(i, n=1):
    return f"a{i}" if n == 1 else f"a[{i}:{i+n-1}]"


def s(i, n=1):
    return f"s{i}" if n == 1 else f"s[{i}:{i+n-1}]"


def L(t):
    return [x.strip() for x in t.strip("\n").split("\n") if x.strip()]


class Block(list):
    def __call__(self, t):
        self.extend(L(t) if isinstance(t, str) else t)

    def stamp(self, k):
        if OPT["stamps"]:
            self(f"s_memtime s[100:101]\ns_waitcnt lgkmcnt(0)\ns_mov_b32 {s(sSTAMP + k)}, s100")


def pk(op, d, x, y, z=None, mod=""):
    t = f"v_pk_{op}_f32 {v(d, 2)}, {x}, {y}"
    if z is not None:
        t += f", {z}"
    return t + mod


def p_t(xb, zb, n=16):
    return [pk("fma", zb + i, v(xb + i, 2), v(xb + i, 2), s(sCP, 2)) for i in range(0, n, 2)]


def p_z(xb, zb, n=16):
    return [pk("mul", zb + i, v(zb + i, 2), v(xb + i, 2), mod=" neg_lo:[1,0] neg_hi:[1,0]") for i in range(0, n, 2)]


def p_add(eb, n=16):
    return [pk("add", eb + i, v(eb + i, 2), s(sONE, 2)) for i in range(0, n, 2)]


def p_mul(rb, xb, n=16):
    return [pk("mul", rb + i, v(rb + i, 2), v(xb + i, 2)) for i in range(0, n, 2)]


def t_cvt(hb, rb, n=16):
    return [f"v_cvt_pk_bf16_f32 {v(hb + i // 2)}, {v(rb + i)}, {v(rb + i + 1)}" for i in range(0, n, 2)]


def t_rcp(rb, eb, n=16):
    return [f"v_rcp_f32 {v(rb + i)}, {v(eb + i)}" for i in range(n)]


def t_exp(eb, zb, n=16):
    return [f"v_exp_f32 {v(eb + i)}, {v(zb + i)}" for i in range(n)]


def unpack(dst, src, n):
    o = []
    for i in range(n):
        o += [f"v_lshlrev_b32 {v(dst + 2 * i)}, 16, {v(src + i)}", f"v_and_b32 {v(dst + 2 * i + 1)}, {s(sHI)}, {v(src + i)}"]
    return o


M32 = "v_mfma_f32_32x32x16_bf16"
M16 = "v_mfma_f32_16x16x32_bf16"

SLOTS = ([(t, "a", i, 0) for i in range(3) for t in "FH"] + [("F", "b", i, 0) for i in range(3)]
         + [(t, "a", i, 1) for i in range(3) for t in "HF"] + [("F", "b", i, 1) for i in range(3)])
NS = len(SLOTS)


def neww(j):
    return j == 0 or SLOTS[j][1:] != SLOTS[j - 1][1:]


UNITNO = []
for _j in range(NS):
    UNITNO.append((UNITNO[-1] if UNITNO else -1) + (1 if neww(_j) else 0))


def m_fc1(j):
    xb, bb = X[j % 3], aBt[SLOTS[j][0]]
    o = [f"{M32} {v(xb, 16)}, {a(aBIAS, 4)}, {a(aC32, 4)}, 0"]
    return o + [f"{M32} {v(xb, 16)}, {a(aW1 + 4 * k, 4)}, {a(bb + 4 * k, 4)}, {v(xb, 16)}" for k in range(6)]


def m_fc2(j):
    acc, wb = ACC[SLOTS[j][0]], aW2[UNITNO[j] % 2]
    return [f"{M32} {v(acc + 16 * t, 16)}, {a(wb + 4 * (3 * k + t), 4)}, {v(H + 4 * k, 4)}, "
            + ("0" if (j == 0 and k == 0) else v(acc + 16 * t, 16)) for k in range(2) for t in range(3)]


def r_w1(j):
    _, g, i, late = SLOTS[j]
    off = 12288 * i
    o = [f"ds_read_u16 {a(aBIAS)}, {v(vBA if g == 'a' else vBB)} offset:{128 * i + 384 * late}"]
    return o + [f"ds_read_b64_tr_b16 {a(aW1 + 4 * k + 2 * jj, 2)}, {v(vA if g == 'a' else vB)} offset:{off + 2048 * k + 256 * jj}"
                for k in range(6) for jj in range(2)]


def r_w2(j):
    _, g, i, late = SLOTS[j]
    wb = aW2[UNITNO[j] % 2]
    return [f"ds_read_b64_tr_b16 {a(wb + 4 * (3 * k + t) + 2 * jj, 2)}, {v(vW2A if g == 'a' else vW2B)} "
            f"offset:{12288 * i + 3072 * k + 1536 * jj + 64 * t}" for k in range(2) for t in range(3) for jj in range(2)]


def has(j):
    return 0 <= j < NS


def P(j, pre=(), post=(), late_x=False):
    t = p_t(X[j % 3], Z) if has(j) else []
    z = p_z(X[j % 3], Z) if has(j) else []
    m = p_mul(R, X[(j - 2) % 3]) if has(j - 2) else []
    d = p_add(E) if has(j - 1) else []
    core = m + d + t + z if late_x else t + m + z + d
    return list(pre) + core + list(post)


def T(j, xM=(), xF=(), xVpre=(), xV=(), xneed=None, tail=12, head=("@lg all",)):
    f1 = m_fc1(j + 1) if has(j + 1) else []
    f2 = m_fc2(j - 2) if has(j - 2) else []
    M = f1 + f2 + list(xM)
    n = len(M)
    cv = t_cvt(H, R) if has(j - 2) else []
    V = cv + list(xVpre) + (t_rcp(R, E) if has(j - 1) else []) + (t_exp(E, Z) if has(j) else []) + list(xV)
    need = dict(xneed or {})
    if f2:
        need[len(f1)] = max(need.get(len(f1), 0), 6)
        need[len(f1) + 3] = max(need.get(len(f1) + 3, 0), 10 if len(V) >= 10 else len(V))
    F = list(xF)
    nm = len(f1) + len(f2)
    if has(j - 1) and neww(j - 1):
        F += [(0, nm - 1, [x]) for x in r_w2(j - 1)]
    if has(j + 2) and neww(j + 2):
        w = r_w1(j + 2)
        F += [(0, nm - 1, w[:1])] + [(1 + k, nm - 1, [w[1 + 2 * k + jj]]) for k in range(5, -1, -1) for jj in range(2)]
    return trun(M, F, V, need, list(head), tail)


def gen():
    b = Block()
    nt = OPT["nt"]
    t0, t1, t2, t3, t4, t5 = range(TMP, TMP + 6)

    b.stamp(0)
    b(f"""
    s_cmp_ge_u32 s2, 256
    s_cbranch_scc1 L_end
    s_load_dwordx16 s[4:19], s[0:1], 0
    s_getpc_b64 s[52:53]
    L_pc:
    v_lshlrev_b32 {v(t0)}, 7, v0
    v_min_u32 {v(t0)}, L_end-L_pc, {v(t0)}
    global_load_dword {v(vPF)}, {v(t0)}, s[52:53] ;@pf
    v_lshrrev_b32 {v(t1)}, 6, v0
    v_and_b32 {v(vL)}, 63, v0
    v_readfirstlane_b32 {s(sW)}, {v(t1)}
    s_and_b32 {s(sT0)}, s2, 1
    s_lshl_b32 {s(sT0)}, {s(sT0)}, 3
    s_bfe_u32 {s(sT1)}, s2, 0x30003
    s_add_u32 {s(sT0)}, {s(sT0)}, {s(sT1)}
    s_mul_i32 {s(sX0)}, {s(sT0)}, 14
    s_bfe_u32 {s(sT0)}, s2, 0x20001
    s_lshl_b32 {s(sT0)}, {s(sT0)}, 2
    s_lshr_b32 {s(sT1)}, s2, 6
    s_add_u32 {s(sT0)}, {s(sT0)}, {s(sT1)}
    s_mul_i32 {s(sY0)}, {s(sT0)}, 14
    v_mul_u32_u24 {v(t0)}, 43, {v(vL)}
    v_lshrrev_b32 {v(t0)}, 7, {v(t0)}
    v_mul_u32_u24 {v(t1)}, 3, {v(t0)}
    v_sub_u32 {v(t1)}, {v(vL)}, {v(t1)}
    v_and_b32 {v(t2)}, 7, {v(t0)}
    v_lshrrev_b32 {v(t0)}, 3, {v(t0)}
    v_mad_u32_u24 {v(t0)}, {v(t0)}, 5, {v(t2)}
    v_cmp_le_u32 vcc, 3, {v(t2)}
    v_mul_u32_u24 {v(t0)}, 192, {v(t0)}
    s_mul_i32 {s(sT0)}, {s(sW)}, 48
    s_sub_u32 {s(sT0)}, {s(sT0)}, 576
    v_lshl_add_u32 {v(t0)}, {v(t1)}, 4, {v(t0)}
    v_add_u32 {v(t0)}, {s(sT0)}, {v(t0)}
    v_bfrev_b32 {v(t5)}, 1
    v_cndmask_b32 {v(t0)}, {v(t5)}, {v(t0)}, vcc
    s_mul_i32 {s(sT1)}, {s(sW)}, 56
    v_add_u32 {v(t1)}, {s(sT1)}, {v(vL)}
    v_mul_u32_u24 {v(t2)}, 171, {v(t1)}
    v_lshrrev_b32 {v(t2)}, 11, {v(t2)}
    s_sub_u32 {s(sT2)}, {s(sX0)}, 2
    v_add_u32 {v(t3)}, {s(sT2)}, {v(t2)}
    v_cmp_gt_u32 vcc, 224, {v(t3)}
    v_cmp_gt_u32 {s(sMASK, 2)}, 18, {v(t2)}
    s_mul_i32 {s(sT3)}, {s(sY0)}, {ROWB}
    s_mul_i32 {s(sT2)}, {s(sT2)}, 192
    s_add_u32 {s(sT3)}, {s(sT3)}, {s(sT2)}
    s_sub_u32 {s(sT3)}, {s(sT3)}, {2 * ROWB}
    s_and_b64 vcc, vcc, {s(sMASK, 2)}
    s_and_b32 vcc_hi, vcc_hi, 0xffffff
    v_lshl_add_u32 {v(vXO)}, {v(t1)}, 4, {s(sT3)}
    s_mul_i32 {s(sTB)}, {s(sW)}, 3072
    v_cndmask_b32 {v(vXO)}, {v(t5)}, {v(vXO)}, vcc
    s_add_u32 {s(sTB)}, {s(sTB)}, {TBL}
    s_mov_b32 m0, {s(sTB)}
    s_mov_b32 exec_hi, 0xffff
    s_waitcnt lgkmcnt(0)
    """)
    b.stamp(1)

    def srd(dst, src, nbytes):
        return L(f"""
        s_mov_b32 {s(dst)}, {s(src)}
        s_mov_b32 {s(dst + 1)}, {s(src + 1)}
        s_mov_b32 {s(dst + 2)}, {nbytes}
        s_mov_b32 {s(dst + 3)}, 0x20000
        """)
    b(srd(SRD_DW, 6, 4800))
    sx = srd(SRD_X, 4, XBYTES)
    for d in range(4):
        b(f"buffer_load_dwordx4 {v(t0)}, {s(SRD_DW, 4)}, 0 offen lds ;@tbl")
        if d < 3:
            b(f"s_add_u32 m0, m0, 768\nv_add_u32 {v(t0)}, 1920, {v(t0)}")
        b(sx[d:d + 1])
    b("s_mov_b32 exec_hi, -1")

    def xload(r):
        o = [f"buffer_load_dwordx4 {a(aSTG + 4 * r, 4)}, {v(vXO)}, {s(SRD_X, 4)}, 0 offen {nt} ;@x{r}"]
        if r < 17:
            o.append(f"v_add_u32 {v(vXO)}, {ROWB}, {v(vXO)}")
        return o

    u = Block()
    for dst, src, n in ((SRD_W1, 8, 73728), (SRD_B1, 10, 768), (SRD_W2, 12, 73728), (SRD_B2, 14, 192),
                        (SRD_G, 16, 192), (SRD_O, 18, XBYTES)):
        u(srd(dst, src, n))
    lut = 0
    for cp, col in enumerate([0, 4, 8, 12, 1, 5, 9, 13, 2, 6, 10, 3, 7, 11]):
        lut |= col << (4 * cp)
    lg, lxg, lrp, lh, lq, lr, l31, lh16 = range(TMP + 8, TMP + 16)
    u(f"""
    s_mov_b32 {s(sLO)}, 0xffff
    s_mov_b32 {s(sHI)}, 0xffff0000
    s_and_b32 {s(sPAR)}, {s(sW)}, 1
    s_xor_b32 {s(sNP)}, {s(sPAR)}, 1
    s_mul_i32 {s(sM1)}, {s(sW)}, 3072
    s_mul_i32 {s(sM2)}, {s(sW)}, 9216
    s_mul_i32 {s(sS[0])}, {s(sW)}, 18432
    s_add_u32 {s(sS[1])}, {s(sS[0])}, 5120
    s_add_u32 {s(sS[2])}, {s(sS[0])}, 10240
    v_mul_u32_u24 {v(t3)}, 12, {v(t2)}
    v_sub_u32 {v(t3)}, {v(t1)}, {v(t3)}
    v_subrev_u32 {v(t4)}, 56, {v(vL)}
    v_cmp_gt_u32 vcc, 56, {v(vL)}
    v_mov_b32 {v(t0)}, 18
    v_lshrrev_b32 {v(lg)}, 4, {v(vL)}
    v_cndmask_b32 {v(t3)}, {v(t4)}, {v(t3)}, vcc
    v_cndmask_b32 {v(t2)}, {v(t0)}, {v(t2)}, vcc
    v_mul_u32_u24 {v(t3)}, {XG}, {v(t3)}
    v_lshl_add_u32 {v(t3)}, {v(t2)}, 3, {v(t3)}
    v_add_u32 {v(vXW)}, {XP}, {v(t3)}
    v_and_b32 {v(lxg)}, 3, {v(vL)}
    v_bfe_u32 {v(lr)}, {v(vL)}, 2, 2
    v_lshrrev_b32 {v(t0)}, 1, {v(lr)}
    v_xor_b32 {v(lrp)}, {v(lr)}, {v(t0)}
    v_lshrrev_b32 {v(lh)}, 5, {v(vL)}
    v_and_b32 {v(lq)}, 1, {v(lg)}
    v_and_b32 {v(l31)}, 31, {v(vL)}
    v_lshlrev_b32 {v(vL16)}, 4, {v(vL)}
    v_lshlrev_b32 {v(lh16)}, 4, {v(lh)}
    v_mul_u32_u24 {v(vIDX)}, 0x5555, {v(lxg)}
    v_lshl_add_u32 {v(t0)}, {v(lg)}, 2, {v(lr)}
    v_sub_u32 {v(t1)}, {v(t0)}, {v(lxg)}
    v_mul_u32_u24 {v(t1)}, 48, {v(t1)}
    s_add_u32 {s(sT0)}, {s(sTB)}, 144
    v_add_u32 {v(vTA)}, {s(sT0)}, {v(t1)}
    v_mul_u32_u24 {v(t0)}, 192, {v(t0)}
    v_lshl_add_u32 {v(t0)}, {v(lxg)}, 3, {v(t0)}
    s_mul_i32 {s(sT0)}, {s(sW)}, 6144
    s_add_u32 {s(sT1)}, {s(sT0)}, {W2L + 2 * 6144}
    v_add_u32 {v(vR2A)}, {s(sT1)}, {v(t0)}
    s_add_u32 {s(sT1)}, {s(sT0)}, {W2E + 4 * 6144}
    s_add_u32 {s(sT2)}, {s(sT0)}, {W2L - 2 * 6144}
    s_cmp_lt_u32 {s(sW)}, 2
    s_cselect_b32 {s(sT1)}, {s(sT1)}, {s(sT2)}
    v_add_u32 {v(vR2B)}, {s(sT1)}, {v(t0)}
    v_add_u32 {v(vRW)}, {s(sT0)}, {v(vL16)}
    v_lshlrev_b32 {v(t0)}, 1, {v(lxg)}
    v_add_u32 {v(t0)}, {v(t0)}, {v(lg)}
    v_min_u32 {v(t0)}, 8, {v(t0)}
    v_mul_u32_u24 {v(t1)}, 320, {v(lrp)}
    s_mul_i32 {s(sT0)}, {s(sW)}, {3 * XG}
    s_add_u32 {s(sT0)}, {s(sT0)}, {XP}
    v_lshl_add_u32 {v(t0)}, {v(t0)}, 4, {v(t1)}
    v_add_u32 {v(vXB)}, {s(sT0)}, {v(t0)}
    v_lshrrev_b32 {v(t0)}, 2, {v(l31)}
    v_mul_u32_u24 {v(t0)}, 768, {v(t0)}
    v_lshl_add_u32 {v(t0)}, {v(lh)}, 6, {v(t0)}
    v_lshl_add_u32 {v(vD1)}, {v(lxg)}, 4, {v(t0)}
    """)
    for rb in aRB:
        for k in range(4):
            u(f"v_accvgpr_write_b32 {a(rb + 24 + k)}, 0")
    for i in range(0, 96, 2):
        u(f"v_mov_b64 {v(CV + i, 2)}, 0")
    n_urgent = len(u)
    pF, pH, pR = TMP + 16, TMP + 17, TMP + 18
    u(f"""
    s_mov_b32 {s(sCP)}, {f32bits(CP):#x}
    s_mov_b32 {s(sCP + 1)}, {f32bits(CP):#x}
    s_mov_b32 {s(sONE)}, 1.0
    s_mov_b32 {s(sONE + 1)}, 1.0
    s_mov_b32 {s(sINV)}, {f32bits(1 / 96):#x}
    s_mov_b32 {s(sINV + 1)}, {f32bits(1 / 96):#x}
    s_mov_b32 {s(sIA)}, {f32bits(1 / ALPHA):#x}
    s_mov_b32 {s(sIA + 1)}, {f32bits(1 / ALPHA):#x}
    s_mov_b32 {s(sAL)}, {f32bits(ALPHA):#x}
    s_mov_b32 {s(sAL + 1)}, {f32bits(ALPHA):#x}
    s_mov_b32 {s(sEPS)}, {f32bits(1e-5):#x}
    s_mov_b32 {s(sEPS + 1)}, {f32bits(1e-5):#x}
    s_mov_b32 {s(sLUT)}, {lut & 0xffffffff:#x}
    s_mov_b32 {s(sLUT + 1)}, {lut >> 32:#x}
    v_lshrrev_b32 {v(t0)}, 1, {v(lg)}
    v_and_b32 {v(t0)}, {v(t0)}, {v(lg)}
    v_lshl_add_u32 {v(t1)}, {v(lg)}, 2, {v(lxg)}
    v_sub_u32 {v(t1)}, {v(t1)}, {v(t0)}
    v_mad_u32_u24 {v(t1)}, {v(lrp)}, 28, {v(t1)}
    v_lshl_add_u32 {v(t2)}, {v(lxg)}, 2, {v(lg)}
    v_cmp_gt_u32 vcc, 14, {v(t2)}
    v_mul_u32_u24 {v(t1)}, {AP}, {v(t1)}
    s_mul_i32 {s(sT0)}, {s(sW)}, 48
    s_add_u32 {s(sT0)}, {s(sT0)}, {ACT}
    v_add_u32 {v(t1)}, {s(sT0)}, {v(t1)}
    v_add_u32 {v(t2)}, {ACT + 196 * AP}, {v(vL16)}
    v_cndmask_b32 {v(vAW)}, {v(t2)}, {v(t1)}, vcc
    s_lshl_b32 {s(sT0)}, {s(sW)}, 5
    v_add_u32 {v(pF)}, {s(sT0)}, {v(l31)}
    s_lshr_b32 {s(sT0)}, {s(sW)}, 1
    s_lshl_b32 {s(sT0)}, {s(sT0)}, 5
    s_add_u32 {s(sT0)}, {s(sT0)}, 128
    v_add_u32 {v(pH)}, {s(sT0)}, {v(l31)}
    v_add_u32 {v(t1)}, {ACT}, {v(lh16)}
    s_movk_i32 {s(sT1)}, {AP}
    v_mad_u32_u24 {v(vBF)}, {v(pF)}, {s(sT1)}, {v(t1)}
    v_mad_u32_u24 {v(vBH)}, {v(pH)}, {s(sT1)}, {v(t1)}
    v_lshlrev_b32 {v(t1)}, 4, {v(lg)}
    v_add_u32 {v(t1)}, {ACT + 192 * AP}, {v(t1)}
    v_mad_u32_u24 {v(vBR)}, {v(lxg)}, {s(sT1)}, {v(t1)}
    s_mul_i32 {s(sT2)}, {s(sY0)}, 224
    s_add_u32 {s(sT2)}, {s(sT2)}, {s(sX0)}
    s_movk_i32 {s(sT3)}, 224
    """)
    for p, dst in ((pF, vOFA), (pH, vOH)):
        u(f"""
        v_mul_u32_u24 {v(t1)}, 2341, {v(p)}
        v_lshrrev_b32 {v(t1)}, 15, {v(t1)}
        v_mul_u32_u24 {v(t2)}, 14, {v(t1)}
        v_sub_u32 {v(t2)}, {v(p)}, {v(t2)}
        v_lshlrev_b32 {v(t2)}, 2, {v(t2)}
        v_lshrrev_b64 {v(t4, 2)}, {v(t2)}, {s(sLUT, 2)}
        v_and_b32 {v(t4)}, 15, {v(t4)}
        v_mad_u32_u24 {v(t1)}, {v(t1)}, {s(sT3)}, {v(t4)}
        v_add_u32 {v(t1)}, {s(sT2)}, {v(t1)}
        v_mul_u32_u24 {v(dst)}, 192, {v(t1)}
        """)
    u(f"""
    s_lshl_b32 {s(sT0)}, {s(sW)}, 2
    s_lshr_b32 {s(sT0)}, 0xb73a, {s(sT0)}
    s_and_b32 {s(sT0)}, {s(sT0)}, 15
    s_add_u32 {s(sT0)}, {s(sT0)}, {s(sT2)}
    s_add_u32 {s(sT0)}, {s(sT0)}, {13 * 224}
    s_mul_i32 {s(sT0)}, {s(sT0)}, 192
    v_lshl_add_u32 {v(t1)}, {v(vL)}, 3, {s(sT0)}
    v_cmp_gt_u32 vcc, 24, {v(vL)}
    v_bfrev_b32 {v(t5)}, 1
    s_lshl_b32 {s(sT0)}, {s(sPAR)}, 5
    s_lshl_b32 {s(sT1)}, {s(sNP)}, 5
    v_cndmask_b32 {v(vOR)}, {v(t5)}, {v(t1)}, vcc
    v_add3_u32 {v(vOFB)}, {v(vOFA)}, {v(lh16)}, {s(sT1)}
    v_add3_u32 {v(vOFA)}, {v(vOFA)}, {v(lh16)}, {s(sT0)}
    v_add3_u32 {v(vOH)}, {v(vOH)}, {v(lh16)}, {s(sT0)}
    v_lshlrev_b32 {v(t1)}, 5, {v(lh)}
    v_add_u32 {v(t1)}, {PG}, {v(t1)}
    s_lshl_b32 {s(sT0)}, {s(sPAR)}, 6
    s_lshl_b32 {s(sT1)}, {s(sNP)}, 6
    v_add_u32 {v(vGA)}, {s(sT0)}, {v(t1)}
    v_add_u32 {v(vGB)}, {s(sT1)}, {v(t1)}
    v_lshlrev_b32 {v(t1)}, 1, {v(l31)}
    v_add_u32 {v(t1)}, {PB1}, {v(t1)}
    v_add_u32 {v(vBA)}, {s(sT0)}, {v(t1)}
    v_add_u32 {v(vBB)}, {s(sT1)}, {v(t1)}
    v_lshlrev_b32 {v(t0)}, 6, {v(lr)}
    v_lshl_add_u32 {v(t0)}, {v(lxg)}, 3, {v(t0)}
    v_lshl_add_u32 {v(t1)}, {v(lg)}, 10, {v(t0)}
    s_lshr_b32 {s(sT2)}, {s(sW)}, 1
    s_mul_i32 {s(sT2)}, {s(sT2)}, 12288
    s_lshl_b32 {s(sT0)}, {s(sPAR)}, 9
    s_lshl_b32 {s(sT1)}, {s(sNP)}, 9
    s_add_u32 {s(sT2)}, {s(sT2)}, {s(sT0)}
    v_add_u32 {v(vR1)}, {s(sT2)}, {v(t1)}
    v_lshl_add_u32 {v(t0)}, {v(lh)}, 10, {v(t0)}
    v_lshl_add_u32 {v(t0)}, {v(lq)}, 5, {v(t0)}
    v_add_u32 {v(vA)}, {s(sT0)}, {v(t0)}
    v_add_u32 {v(vB)}, {s(sT1)}, {v(t0)}
    v_and_b32 {v(t0)}, 15, {v(vL)}
    s_lshl_b32 {s(sT0)}, {s(sW)}, 6
    s_add_u32 {s(sT0)}, {s(sT0)}, {PB1}
    v_lshl_add_u32 {v(vRB)}, {v(t0)}, 1, {s(sT0)}
    v_xor_b32 {v(t3)}, {s(sPAR)}, {v(lq)}
    v_lshl_add_u32 {v(t0)}, {v(lh)}, 2, {v(lr)}
    v_mul_u32_u24 {v(t0)}, 192, {v(t0)}
    v_and_b32 {v(t1)}, 1, {v(lxg)}
    v_lshrrev_b32 {v(t2)}, 1, {v(lxg)}
    v_lshl_add_u32 {v(t1)}, {v(t1)}, 1, {v(t2)}
    v_lshl_add_u32 {v(t0)}, {v(t1)}, 3, {v(t0)}
    v_lshl_add_u32 {v(t0)}, {v(t3)}, 5, {v(t0)}
    s_mul_i32 {s(sT0)}, {s(sPAR)}, 6144
    s_add_u32 {s(sT0)}, {s(sT0)}, {W2E}
    s_mul_i32 {s(sT1)}, {s(sNP)}, 6144
    s_add_u32 {s(sT1)}, {s(sT1)}, {W2E}
    v_add_u32 {v(vW2A)}, {s(sT0)}, {v(t0)}
    v_add_u32 {v(vW2B)}, {s(sT1)}, {v(t0)}
    v_and_b32 {v(t1)}, 1, {v(lr)}
    v_lshrrev_b32 {v(t2)}, 1, {v(lr)}
    v_lshlrev_b32 {v(t2)}, 2, {v(t2)}
    v_lshl_add_u32 {v(t1)}, {v(t1)}, 3, {v(t2)}
    v_add_u32 {v(t1)}, {v(t1)}, {v(lxg)}
    v_lshl_add_u32 {v(t1)}, {v(t3)}, 4, {v(t1)}
    v_lshlrev_b32 {v(t1)}, 1, {v(t1)}
    v_add_u32 {v(vB2F)}, {PB2}, {v(t1)}
    v_cmp_eq_u32 vcc, 0, {v(lq)}
    v_mov_b32 {v(t2)}, {ZERO}
    v_mov_b32 {v(t0)}, {A_HI:#x}
    v_cndmask_b32 {v(vB2H)}, {v(t2)}, {v(vB2F)}, vcc
    v_mov_b32 {v(t1)}, {A_LO:#x}
    v_cmp_eq_u32 vcc, 0, {v(lh)}
    v_cmp_eq_u32 {s(sMASK, 2)}, 0, {v(lg)}
    v_mov_b32 {v(t3)}, 0
    v_cndmask_b32 {v(t2)}, {v(t1)}, {v(t0)}, vcc
    v_accvgpr_write_b32 {a(aC32)}, {v(t2)}
    v_cndmask_b32 {v(t2)}, {v(t1)}, {v(t0)}, {s(sMASK, 2)}
    v_cndmask_b32 {v(t2)}, {v(t3)}, {v(t2)}, vcc
    v_accvgpr_write_b32 {a(aC16)}, {v(t2)}
    s_lshl_b32 {s(sT0)}, {s(sW)}, 10
    s_add_u32 {s(sT0)}, {s(sT0)}, {ST}
    v_add_u32 {v(vSW)}, {s(sT0)}, {v(vL16)}
    v_lshlrev_b32 {v(t4)}, 2, {v(vL)}
    """)
    for r in [aBIAS + k for k in (1, 2, 3)] + [aC32 + k for k in (1, 2, 3)] + [aC16 + k for k in (1, 2, 3)] \
            + [aRBIAS + k for k in (1, 3, 5, 6, 7)]:
        u(f"v_accvgpr_write_b32 {a(r)}, 0")
    per = (len(u) + 11) // 12
    for r in range(12):
        b(xload(r))
        b(u[per * r:per * (r + 1)])
    b.stamp(2)

    if OPT["hops"]:
        b("@vm pf")
        b(f"""
        s_mov_b64 exec, 0
        s_cmp_eq_u32 {s(sW)}, 1
        s_cbranch_scc1 L_pad3
        s_cmp_eq_u32 {s(sW)}, 2
        s_cbranch_scc1 L_pad5
        s_cmp_eq_u32 {s(sW)}, 3
        s_cbranch_scc1 L_pad7
        s_branch L_pad1
        .p2align 12
        L_body:
        s_mov_b64 exec, -1
        """)
    b("@vm tbl")
    ard = [f"ds_read_b64_tr_b16 {v(AF + (3 * j + t) * 4 + 2, 2)}, {v(vTA)} offset:{768 * t + 8 * j}" for j in range(6) for t in range(3)]
    for r in range(12, 18):
        b(ard[3 * (r - 12):3 * (r - 11)])
        b(xload(r))
    b(f"""
    buffer_load_dword {v(vG)}, {v(t4)}, {s(SRD_G, 4)}, 0 offen
    buffer_load_dword {v(vB2V)}, {v(t4)}, {s(SRD_B2, 4)}, 0 offen ;@gb
    s_mov_b32 m0, {PB1}
    s_nop 0
    buffer_load_dwordx4 {v(vL16)}, {s(SRD_B1, 4)}, 0 offen lds
    s_mov_b32 m0, {PB2}
    s_nop 0
    buffer_load_dwordx4 {v(vL16)}, {s(SRD_B2, 4)}, 0 offen lds
    """)
    b.stamp(3)
    aexp = []
    for g in range(18):
        q = AF + 4 * g
        aexp += [f"v_and_b32 {v(q)}, {s(sLO)}, {v(q + 2)}", f"v_and_b32 {v(q + 1)}, {s(sHI)}, {v(q + 2)}",
                 f"v_and_b32 {v(q + 2)}, {s(sLO)}, {v(q + 3)}", f"v_and_b32 {v(q + 3)}, {s(sHI)}, {v(q + 3)}"]

    def w1dma(p, tag):
        o = []
        for i in range(3):
            pre = [f"s_add_u32 m0, {s(sM1)}, {12288 * p}", "s_nop 0"] if i == 0 else []
            o.append(pre + [f"buffer_load_dwordx4 {v(vD1)}, {s(SRD_W1, 4)}, {s(sS[i])} offen offset:{1024 * i} lds ;@{tag}"])
        return o

    def w2dma(late, tag):
        o = []
        for c in range(9):
            g = c >> 2
            pre = [f"s_add_u32 m0, {s(sM2)}, {(W2L if late else W2E) + 4096 * g}",
                   f"s_add_u32 {s(sT3)}, {s(sM2)}, {36864 * late + 4096 * g}"] if c % 4 == 0 else []
            o.append(pre + [f"buffer_load_dwordx4 {v(vL16)}, {s(SRD_W2, 4)}, {s(sT3)} offen offset:{1024 * (c & 3)} lds ;@{tag}"])
        return o
    bump = f"v_add_u32 {v(vD1)}, 128, {v(vD1)}"
    early = w1dma(0, "we") + w1dma(1, "we") + w1dma(2, "we") + w2dma(0, "we")

    def stage(r):
        return [f"@vm x{r}", f"ds_write_b64 {v(vXW)}, {a(aSTG + 4 * r, 2)} offset:{160 * r}",
                f"ds_write_b64 {v(vXW)}, {a(aSTG + 4 * r + 2, 2)} offset:{XPL + 160 * r}"]
    b("@lg all")
    for r in range(12):
        b(aexp[6 * r:6 * r + 6])
        b(early[r])
        b(stage(r))
        if r in (2, 5, 8):
            b(bump)
    b("@lg all\ns_barrier")
    b.stamp(4)

    S, TP, TU, S2 = TMP, TMP + 8, TMP + 20, TMP + 22

    def acc(ph, sx, j):
        return CV + ((2 * ph + sx) * 6 + j) * 4

    def conv(ph):
        def reads(j):
            return [f"ds_read_b128 {a(aRB[j % 3] + 4 * r, 4)}, {v(vXB)} offset:{(j >> 1) * XG + (j & 1) * XPL + (8 * ph + r) * 160} ;@q{j}"
                    for r in range(6)]

        def part(j):
            d0, d1 = acc(ph, 0, j), acc(ph, 1, j)
            return [f"v_add_f32 {v(TP + 2 * j)}, {v(d0)}, {v(d0 + 1)}", f"v_add_f32 {v(TU)}, {v(d0 + 2)}, {v(d0 + 3)}",
                    f"v_add_f32 {v(TP + 2 * j + 1)}, {v(d1)}, {v(d1 + 1)}", f"v_add_f32 {v(TU + 1)}, {v(d1 + 2)}, {v(d1 + 3)}",
                    f"v_add_f32 {v(TP + 2 * j)}, {v(TP + 2 * j)}, {v(TU)}",
                    f"v_add_f32 {v(TP + 2 * j + 1)}, {v(TP + 2 * j + 1)}, {v(TU + 1)}"]
        b(reads(0) + reads(1))
        pend = []
        for j in range(6):
            b(f"@lg q{j}")
            rd = reads(j + 2) if j < 4 else []
            for n in range(6):
                t, sx = n >> 1, n & 1
                b(f"v_smfmac_f32_16x16x64_bf16 {v(acc(ph, sx, j), 4)}, {v(AF + (3 * j + t) * 4, 4)}, {a(aRB[j % 3] + 4 * (sx + 2 * t), 8)}, {v(vIDX)}")
                if rd:
                    b(rd.pop(0))
                if n == 2 and j > 0:
                    pend += part(j - 1)
                if pend:
                    b(pend.pop(0))
        o = list(pend)
        for i in range(0, 24, 2):
            for sx in range(2):
                d = acc(ph, sx, 0) + i
                o.append(pk("mul", S2 + 2 * sx, v(d, 2), v(d, 2)) if i == 0 else
                         pk("fma", S2 + 2 * sx, v(d, 2), v(d, 2), v(S2 + 2 * sx, 2)))
            if i == 8:
                o += part(5)
        o += [pk("add", TP + 4 * k, v(TP + 4 * k, 2), v(TP + 4 * k + 2, 2)) for k in range(3)]
        o += [f"v_add_f32 {v(S + 4 * ph + 2)}, {v(S2)}, {v(S2 + 1)}", pk("add", TP, v(TP, 2), v(TP + 4, 2)),
              f"v_add_f32 {v(S + 4 * ph + 3)}, {v(S2 + 2)}, {v(S2 + 3)}", pk("add", S + 4 * ph, v(TP, 2), v(TP + 8, 2))]
        return o
    st = conv(0)
    b.stamp(5)
    g0, g1, ga = TMP + 26, TMP + 28, TMP + 30
    per = (len(st) + 5) // 6
    for r in range(12, 18):
        b(st[per * (r - 12):per * (r - 11)])
        b(early[r])
        b(stage(r))
    b(f"""
    ds_write_b128 {v(vSW)}, {v(S, 4)}
    @vm gb
    v_lshlrev_b32 {v(g0)}, 16, {v(vG)}
    v_and_b32 {v(g0 + 1)}, {s(sHI)}, {v(vG)}
    v_lshlrev_b32 {v(g1)}, 16, {v(vB2V)}
    v_and_b32 {v(g1 + 1)}, {s(sHI)}, {v(vB2V)}
    v_lshlrev_b32 {v(ga)}, 3, {v(vL)}
    {pk("mul", g1, v(g1, 2), v(g0, 2))}
    {pk("mul", g0, v(g0, 2), s(sIA, 2))}
    v_add_u32 {v(ga)}, {PG}, {v(ga)}
    s_mov_b32 exec_hi, 0xffff
    ds_write_b64 {v(ga)}, {v(g0, 2)}
    ds_write_b64 {v(ga)}, {v(g1, 2)} offset:{PGB - PG}
    s_mov_b32 exec_hi, -1
    @lg all
    s_barrier
    """)
    b.stamp(6)
    b(conv(1))
    b(f"""
    ds_write_b128 {v(vSW)}, {v(S + 4, 4)} offset:4096
    v_add_u32 {v(vSW)}, {ST}, {v(vL16)}
    @vm all
    @lg all
    s_barrier
    """)
    b.stamp(7)

    Q = TMP
    for ph in range(2):
        for w in range(4):
            b(f"ds_read_b128 {v(Q + 16 * ph + 4 * w, 4)}, {v(vSW)} offset:{4096 * ph + 1024 * w} ;@s{ph}")
    b(r_w1(0))
    b([f"ds_read_u16 {a(aRBIAS + 2 * t)}, {v(vB2H)} offset:{64 * t}" for t in range(3)])
    qs = (Q, Q + 16)
    for ph, q in enumerate(qs):
        b(f"@lg s{ph}")
        for o in (0, 2):
            b(pk("add", q + o, v(q + o, 2), v(q + 4 + o, 2)))
            b(pk("add", q + 8 + o, v(q + 8 + o, 2), v(q + 12 + o, 2)))
    for o in (0, 2):
        for q in qs:
            b(pk("add", q + o, v(q + o, 2), v(q + 8 + o, 2)))
    for o in (0, 2):
        for q in qs:
            b(pk("mul", q + o, v(q + o, 2), s(sINV, 2)))
    for q in qs:
        b(pk("fma", q + 2, v(q, 2), v(q, 2), v(q + 2, 2), " neg_lo:[1,0,0] neg_hi:[1,0,0]"))
    for q in qs:
        b(f"v_max_f32 {v(q + 2)}, 0, {v(q + 2)}\nv_max_f32 {v(q + 3)}, 0, {v(q + 3)}")
    for q in qs:
        b(pk("add", q + 2, v(q + 2, 2), s(sEPS, 2)))
    for q in qs:
        b(f"v_rsq_f32 {v(q + 2)}, {v(q + 2)}\nv_rsq_f32 {v(q + 3)}, {v(q + 3)}")
    for q in qs:
        b(pk("mul", q + 2, v(q + 2, 2), s(sAL, 2)))
    for q in qs:
        b(pk("mul", q, v(q, 2), v(q + 2, 2), mod=" neg_lo:[1,0] neg_hi:[1,0]"))
    wr = []
    for k in range(4):
        ph, sx = k >> 1, k & 1
        base, q = CV + 24 * k, qs[ph]
        for jj in range(3):
            for i in range(8 * jj, 8 * jj + 8, 2):
                b(pk("fma", base + i, v(base + i, 2), v(q + 2, 2), v(q, 2), f" op_sel:[0,{sx},{sx}] op_sel_hi:[1,{sx},{sx}]"))
            for i in range(4 * jj, 4 * jj + 4):
                b(f"v_cvt_pk_bf16_f32 {v(base + 4 * jj + i)}, {v(base + 2 * i)}, {v(base + 2 * i + 1)}")
            b(f"ds_write_b128 {v(vAW)}, {v(base + 8 * jj, 4)} offset:{(8 * ph + sx) * 14 * AP + 16 * jj}")
    b("@lg all\ns_barrier")
    b.stamp(8)

    b([f"ds_read_b128 {a(aBt['F'] + 4 * k, 4)}, {v(vBF)} offset:{32 * k} ;@bf" for k in range(6)])
    b([f"ds_read_b128 {a(aBt['H'] + 4 * k, 4)}, {v(vBH)} offset:{32 * k}" for k in range(6)])
    b([f"ds_read_b128 {a(aBR + 4 * k, 4)}, {v(vBR)} offset:{64 * k}" for k in range(3)])
    late = w1dma(3, "wl") + w1dma(4, "wl") + w1dma(5, "wl") + w2dma(1, "wl")
    M = m_fc1(0)
    F = [(0, 0, ["@lg bf"]), (3, 3, ["@lg all", "s_barrier"]), (4, 4, late[0]), (5, 5, late[1]), (6, 6, late[2])]
    b(trun(M, F, [bump], need={}, tail=1000))
    b(late[3] + late[4])
    b("s_nop 5")
    b.stamp(9)
    b(P(0))
    b(T(0, xF=[(0, 0, late[5])], xV=[bump]))
    b(P(1, late_x=True))
    hinit = [f"{M32} {v(ACC['H'] + 16 * t, 16)}, {a(aRBIAS + 2 * t, 4)}, {a(aC32, 4)}, 0" for t in range(3)]
    b(T(1, xM=hinit, xF=[(1 + 2 * k, 1 + 2 * k, late[6 + k]) for k in range(4)]))
    b(P(2))
    b(T(2, xF=[(1 + 3 * k, 1 + 3 * k, late[10 + k]) for k in range(4)]))
    b(P(3))
    b(T(3, xF=[(1 + 3 * k, 1 + 3 * k, late[14 + k]) for k in range(4)]))
    b.stamp(10)

    XR, WK, HR = (TMP, TMP + 16), (TMP + 8, TMP + 24), TMP + 32

    def r_fc1(m):
        x = XR[m % 2]
        rd = [f"ds_read_u16 {a(aRBIAS + 2 * mh)}, {v(vRB)} offset:{256 * m + 32 * mh}" for mh in range(2)]
        rd += [f"ds_read_b64_tr_b16 {a(aRF + 12 * mh + 4 * k + 2 * jj, 2)}, {v(vR1)} offset:{24576 * m + 4096 * k + 256 * jj + 32 * mh} ;@rf"
               for k in range(3) for mh in range(2) for jj in range(2)]
        M = [f"{M16} {v(x + 4 * mh, 4)}, {a(aRBIAS + 2 * mh, 4)}, {a(aC16, 4)}, 0" for mh in range(2)]
        M += [f"{M16} {v(x + 4 * mh, 4)}, {a(aRF + 12 * mh + 4 * k, 4)}, {a(aBR + 4 * k, 4)}, {v(x + 4 * mh, 4)}"
              for k in range(3) for mh in range(2)]
        return M, [(0, 8, [x_]) for x_ in rd] + [(12, 12, ["@lg rf"])]

    def r_fc2(m):
        reg, off = ((vR2A, 24576), (vR2B, 0), (vR2A, 0))[m]
        rd = [f"ds_read_b64_tr_b16 {a(aRF + 4 * c + 2 * jj, 2)}, {v(reg)} offset:{off + 3072 * jj + 32 * c} ;@rf"
              for c in range(6) for jj in range(2)]
        M = [f"{M16} {a(aRACC + 4 * c, 4)}, {a(aRF + 4 * c, 4)}, {v(HR, 4)}, {'0' if m == 0 else a(aRACC + 4 * c, 4)}" for c in range(6)]
        return M, [(0, 8, [x_]) for x_ in rd] + [(12, 12, ["@lg rf"])]

    def rp1(m):
        return p_t(XR[m % 2], WK[m % 2], 8) + p_z(XR[m % 2], WK[m % 2], 8)

    def radd(m):
        return p_add(WK[m % 2], 8)

    def rmul(m):
        return p_mul(WK[m % 2], XR[m % 2], 8)

    def rexp(m):
        return t_exp(WK[m % 2], WK[m % 2], 8)

    def rrcp(m):
        return t_rcp(WK[m % 2], WK[m % 2], 8)

    def rcvt(m):
        return t_cvt(HR, WK[m % 2], 8)

    b(P(4))
    b(T(4))
    b(P(5))
    M_, F_ = r_fc1(0)
    b(T(5, xM=M_, xF=F_, tail=4))
    b(P(6, post=rp1(0)))
    b(T(6, xV=rexp(0) + [f"v_subrev_u32 {v(vW2A)}, 36864, {v(vW2A)}", f"v_add_u32 {v(vA)}, 36864, {v(vA)}"]))
    b(P(7, post=radd(0)))
    b.stamp(11)
    b("@vm wl\ns_barrier")
    M_, F_ = r_fc1(1)
    b(T(7, xM=M_, xF=F_, xV=rrcp(0), tail=4))
    b(P(8, post=rmul(0) + rp1(1)))
    M_, F_ = r_fc2(0)
    b(T(8, xM=M_, xF=F_, xVpre=rcvt(0), xV=rexp(1), tail=4))
    b(P(9, post=radd(1)))
    M_, F_ = r_fc1(2)
    b(T(9, xM=M_, xF=F_, xV=rrcp(1), tail=4))
    b(P(10, post=rmul(1) + rp1(2)))
    M_, F_ = r_fc2(1)
    b(T(10, xM=M_, xF=F_, xVpre=rcvt(1), xV=rexp(2), tail=4))
    b(P(11, post=radd(2)))
    b(T(11, xV=rrcp(2) + [f"v_subrev_u32 {v(vW2B)}, 36864, {v(vW2B)}", f"v_add_u32 {v(vB)}, 36864, {v(vB)}"]))
    b(P(12, post=rmul(2)))
    M_, F_ = r_fc2(2)
    b(T(12, xM=M_, xF=F_, xVpre=rcvt(2), tail=4))
    b.stamp(12)
    PP, PGm, PBm, RU, RX, ra, rg = TMP, TMP + 16, TMP + 20, TMP + 24, TMP + 28, TMP + 30, TMP + 31
    b(P(13))
    F_ = [(2 * c + 1, 2 * c + 1, [f"ds_write_b128 {v(vRW)}, {a(aRACC + 4 * c, 4)} offset:{RBUF + 1024 * c}"]) for c in range(6)]
    F_ += [(0, 0, [f"buffer_load_dwordx2 {v(RX, 2)}, {v(vOR)}, {s(SRD_X, 4)}, 0 offen", f"s_lshl_b32 {s(sT0)}, {s(sW)}, 4"])]
    V_ = L(f"""
    v_min_u32 {v(rg)}, 23, {v(vL)}
    v_lshrrev_b32 {v(ra)}, 2, {v(rg)}
    v_and_b32 {v(RU)}, 3, {v(rg)}
    v_lshlrev_b32 {v(ra)}, 10, {v(ra)}
    v_lshl_add_u32 {v(ra)}, {v(RU)}, 8, {v(ra)}
    v_lshlrev_b32 {v(rg)}, 4, {v(rg)}
    v_add_u32 {v(ra)}, {s(sT0)}, {v(ra)}
    v_add_u32 {v(rg)}, {PG}, {v(rg)}
    """)
    b(T(13, xF=F_, xV=V_))
    b(P(14))
    b("@lg all\ns_barrier")
    F_ = [(0, 12, [f"ds_read_b128 {v(PP + 4 * w, 4)}, {v(ra)} offset:{RBUF + 6144 * w}"]) for w in range(4)]
    F_ += [(0, 12, [f"ds_read_b128 {v(PGm, 4)}, {v(rg)}"]), (0, 12, [f"ds_read_b128 {v(PBm, 4)}, {v(rg)} offset:{PGB - PG}"])]
    b(T(14, xF=F_, xV=unpack(RU, RX, 2), head=()))
    post = [pk("add", PP + i, v(PP + i, 2), v(PP + 4 + i, 2)) for i in (0, 2)]
    post += [pk("add", PP + 8 + i, v(PP + 8 + i, 2), v(PP + 12 + i, 2)) for i in (0, 2)]
    post += [pk("add", RU + i, v(RU + i, 2), v(PBm + i, 2)) for i in (0, 2)]
    post += [pk("add", PP + i, v(PP + i, 2), v(PP + 8 + i, 2)) for i in (0, 2)]
    post += [pk("fma", RU + i, v(PP + i, 2), v(PGm + i, 2), v(RU + i, 2)) for i in (0, 2)]
    b(P(15, post=post))
    HX, FX = TMP, TMP + 12
    nt2 = OPT["nt2"]
    hx = [f"buffer_load_dwordx4 {v(HX + 4 * t, 4)}, {v(vOH)}, {s(SRD_X, 4)}, 0 offen offset:{64 * t} {nt2} ;@hx" for t in range(3)]
    fx = [f"buffer_load_dwordx4 {v(FX + 4 * c, 4)}, {v(vOFB if c & 1 else vOFA)}, {s(SRD_X, 4)}, 0 offen offset:{64 * (c >> 1)} {nt2}"
          for c in range(6)]
    F_ = [(4, 4, [f"buffer_store_dwordx2 {v(RX, 2)}, {v(vOR)}, {s(SRD_O, 4)}, 0 offen {OPT['st_h']}"])]
    F_ += [(6 + 2 * t, 6 + 2 * t, [hx[t]]) for t in range(3)]
    b(T(15, xF=F_, xVpre=t_cvt(RX, RU, 4), xneed={4: 10}))
    b(P(16))
    vXR_ = vRB
    F_ = [(2 * c, 2 * c, [f"ds_write_b128 {v(vRW)}, {v(ACC['H'] + 16 * (c >> 1) + 8 + 4 * (c & 1), 4)} offset:{XCH + 1024 * c}"])
          for c in range(6)]
    F_ += [(2 * c + 1, 2 * c + 1, [fx[c]]) for c in range(6)]
    F_ += [(12, 12, [f"ds_read_u16 {a(aRBIAS + 2 * t)}, {v(vB2F)} offset:{64 * t}" for t in range(3)])]
    F_ += [(0, 0, [f"s_xor_b32 {s(sT0)}, {s(sW)}, 1", f"s_mul_i32 {s(sT0)}, {s(sT0)}, 6144"])]
    b(T(16, xF=F_, xV=[f"v_add_u32 {v(vXR_)}, {s(sT0)}, {v(vL16)}"]))
    b(P(17))
    b.stamp(13)
    b("@lg all\ns_barrier")
    finit = [f"{M32} {v(ACC['F'] + 16 * t, 16)}, {a(aRBIAS + 2 * t, 4)}, {a(aC32, 4)}, {v(ACC['F'] + 16 * t, 16)}" for t in range(3)]
    F_ = [(0, 8, [f"ds_read_b128 {v(ACC['H'] + 16 * (c >> 1) + 8 + 4 * (c & 1), 4)}, {v(vXR_)} offset:{XCH + 1024 * c}"]) for c in range(6)]
    b(T(17, xM=finit, xF=F_, head=()))
    AH, AFc = ACC["H"], ACC["F"]
    post = [pk("add", AH + 16 * t + i, v(AH + 16 * t + i, 2), v(AH + 16 * t + 8 + i, 2)) for t in range(3) for i in range(0, 8, 2)]
    b("@lg all")
    b(P(18, post=post))
    GE = (X[0], X[0] + 8, Z)
    GO = (Z + 8, R, R + 8)
    F_ = [(0, 5, [f"ds_read_b128 {v(GE[t] + 4 * k, 4)}, {v(vGA)} offset:{128 * t + 16 * k}"]) for t in range(3) for k in range(2)]
    V_ = [x for t in range(3) for x in unpack(AH + 16 * t + 8, HX + 4 * t, 4)]
    V_ += ["s_nop 0", f"v_permlane16_swap_b32 {v(vOFA)}, {v(vOFB)}"]
    b(T(18, xF=F_, xV=V_, head=("@vm hx",)))
    post = [pk("fma", AH + 16 * t + 8 + i, v(AH + 16 * t + i, 2), v(GE[t] + i, 2), v(AH + 16 * t + 8 + i, 2))
            for t in range(3) for i in range(0, 8, 2)]
    b("@lg all")
    b(P(19, post=post))
    b.stamp(14)
    UF = (X[1], X[1] + 8, X[2], X[2] + 8, E, E + 8)
    hc = [x for t in range(3) for x in t_cvt(HX + 4 * t, AH + 16 * t + 8, 8)]
    hs = [f"buffer_store_dwordx4 {v(HX + 4 * t, 4)}, {v(vOH)}, {s(SRD_O, 4)}, 0 offen offset:{64 * t} {OPT['st_h']}" for t in range(3)]
    gr = [f"ds_read_b128 {v(GO[t] + 4 * k, 4)}, {v(vGB)} offset:{128 * t + 16 * k}" for t in range(3) for k in range(2)]
    V_ = hc + [x for c in range(6) for x in unpack(UF[c], FX + 4 * c, 4)]
    F_ = [(0, 0, gr[:2]), (2, 2, gr[2:4]), (3, 3, gr[4:6] + hs[:1]), (4, 4, hs[1:2]), (5, 5, hs[2:3])]
    b(T(19, xF=F_, xV=V_, head=("@vm all",), xneed={2: 8, 3: 14, 4: 18, 5: 22}, tail=150))
    b.stamp(15)
    b("@lg all")
    for t in range(3):
        for c, g in ((2 * t, GE[t]), (2 * t + 1, GO[t])):
            for i in range(0, 8, 2):
                b(pk("fma", UF[c] + i, v(AFc + 8 * c + i, 2), v(g + i, 2), v(UF[c] + i, 2)))
        for c in (2 * t, 2 * t + 1):
            b(t_cvt(FX + 4 * c, UF[c], 8))
        for i in range(4):
            if i == 3:
                b("s_nop 0")
            b(f"v_permlane16_swap_b32 {v(FX + 8 * t + i)}, {v(FX + 8 * t + 4 + i)}")
        b(f"buffer_store_dwordx4 {v(FX + 8 * t, 4)}, {v(vOFA)}, {s(SRD_O, 4)}, 0 offen offset:{64 * t} {OPT['st_f']}")
        b(f"buffer_store_dwordx4 {v(FX + 8 * t + 4, 4)}, {v(vOFB)}, {s(SRD_O, 4)}, 0 offen offset:{64 * t} {OPT['st_f']}")
    b.stamp(16)
    if OPT["stamps"]:
        b("@vm all")
        b.stamp(17)
        b(f"""
        s_load_dwordx2 s[4:5], s[0:1], 72
        s_waitcnt lgkmcnt(0)
        s_lshl_b32 s6, s2, 2
        s_add_u32 s6, s6, {s(sW)}
        s_lshl_b32 s6, s6, 7
        v_mov_b32 v0, s6
        s_mov_b32 s6, 0x100000
        s_mov_b32 s7, 0x20000
        s_mov_b64 exec, 1
        """)
        for k in range(1, 20):
            kk = min(k, 17)
            b(f"s_sub_u32 s8, {s(sSTAMP + kk)}, {s(sSTAMP)}")
            b("v_mov_b32 v2, s8")
            b(f"buffer_store_dword v2, v0, s[4:7], 0 offen offset:{4 * k}")
        b("@vm all")
    return b


def add_pads(lines):
    out = []
    off = None
    n = 0
    for t in lines:
        if t == "L_body:":
            off = 0
        if off is not None and not t.endswith(":") and not t.startswith("."):
            sz = isize(t)
            if off + sz > 4096 * (n + 1):
                while off < 4096 * (n + 1):
                    out.append("s_nop 0")
                    off += 4
                n += 1
                out.append(f"L_pad{n}:")
                out.append(f"s_cbranch_execz {'L_pad%d' % (n + 1) if n % 2 else 'L_body'}")
                out.append("s_nop 0")
                off += 8
            off += sz
        out.append(t)
    return out, n


def build():
    b = gen()
    lines, added = autowait(b, OPT["verbose"])
    bad = 0
    if OPT["align"]:
        lines, bad = fix_align(lines)
    npad = 0
    if OPT["hops"]:
        lines, npad = add_pads(lines)
        for k in range(npad + 1, 9):
            lines = [t.replace(f"L_pad{k}", "L_body") if not t.endswith(":") else t for t in lines]
    trace = [t for t in lines if not t.endswith(":") and not t.startswith(".")]
    errs = check(trace)
    hdr = open("standalone__modern_conv_block_convnext__vision.s.ref").read().split("\n")
    head = [l for l in hdr if l.startswith(";") and "@launch" not in l and "Override" not in l and "grid=ceil" not in l]
    out = head + [f"; @launch grid=(256,1,1) block=(256,1,1) lds={LDS_BYTES}",
                  '.amdgcn_target "amdgcn-amd-amdhsa--gfx950"', ".text", f".globl {KNAME}", ".p2align 8",
                  f".type {KNAME},@function", f"{KNAME}:"]
    for t in lines:
        out.append(t if t.endswith(":") or t.startswith(".") else "    " + t)
    out += ["L_end:", "    s_endpgm", '.section .rodata,"a"', ".p2align 6", f".amdhsa_kernel {KNAME}",
            "  .amdhsa_next_free_vgpr 464", "  .amdhsa_next_free_sgpr 102", "  .amdhsa_accum_offset 256",
            "  .amdhsa_group_segment_fixed_size 0", "  .amdhsa_kernarg_size 80", "  .amdhsa_user_sgpr_count 2",
            "  .amdhsa_user_sgpr_kernarg_segment_ptr 1", "  .amdhsa_system_sgpr_workgroup_id_x 1",
            ".end_amdhsa_kernel", ""]
    info = f"{len(trace)} instrs, {sum(isize(t) for t in trace)} bytes, {added} auto waits, {bad} misaligned, {npad} pads, {len(errs)} lint findings"
    return "\n".join(out), errs, info


if __name__ == "__main__":
    path = sys.argv[1]
    for kv in sys.argv[2:]:
        k, val = kv.split("=")
        OPT[k] = {"0": False, "1": True}.get(val, val.replace("+", " "))
    text, errs, info = build()
    for e in errs:
        print("HAZARD", e)
    open(path, "w").write(text)
    print(f"wrote {path}: {info}")
```

```python
import re

from asmlint import Ins

TRANS = ("v_exp_f32", "v_rcp_f32", "v_rsq_f32")


def vcost(t):
    op = t.split()[0]
    if op.startswith("@"):
        return 4
    if op.replace("_e64", "") in TRANS or op.startswith("v_permlane"):
        return 8
    return 4


def fcost(t):
    op = t.split()[0]
    if op.startswith("buffer_"):
        return 14
    if op.startswith("ds_write_b128"):
        return 26
    return 4


def pipe(m):
    return 32 if "32x32" in m else 16


def trun(M, F, V, need=None, head=None, tail=12):
    n = len(M)
    need = need or {}
    G = [[] for _ in range(n)]
    load = [0] * n
    for lo, hi, grp in F:
        lo, hi = max(0, min(lo, n - 1)), min(hi, n - 1)
        cand = range(lo, hi + 1)
        best = min(cand, key=lambda g: (load[g] - (pipe(M[g]) - 16) / 16.0, g))
        G[best] += grp
        load[best] += sum(fcost(x) for x in grp)
    extra = [max(0, load[g] - 4) for g in range(n)]
    total = sum(extra) + sum(vcost(x) for x in V) + 8 * n
    ptot = sum(pipe(m) for m in M) + tail
    lam = total / ptot
    out = list(head or [])
    vi = 0
    acc = 0.0
    pcum = 0.0
    for i in range(n):
        while vi < need.get(i, 0):
            acc += vcost(V[vi])
            out.append(V[vi])
            vi += 1
        out.append(M[i])
        out += G[i]
        acc += 8 + extra[i]
        pcum += pipe(M[i])
        if i == n - 1:
            out += V[vi:]
            vi = len(V)
        else:
            while vi < len(V) and acc + vcost(V[vi]) / 2 <= lam * pcum:
                acc += vcost(V[vi])
                out.append(V[vi])
                vi += 1
    return out


def autowait(lines, verbose=False):
    out = []
    vm, lg = [], []
    pend = {}
    added = 0

    def drain(q, n):
        while len(q) > n:
            e = q.pop(0)
            for r in e[1]:
                if pend.get(r) is e:
                    del pend[r]

    def emit(nv, nl):
        parts = []
        if nv is not None:
            parts.append(f"vmcnt({min(nv, 63)})")
            drain(vm, nv)
        if nl is not None:
            parts.append(f"lgkmcnt({min(nl, 15)})")
            drain(lg, min(nl, 15))
        if out and out[-1].startswith("s_waitcnt"):
            prev = out.pop()
            have = dict(re.findall(r"(\w+)\((\d+)\)", prev))
            for k, val in re.findall(r"(\w+)\((\d+)\)", " ".join(parts)):
                have[k] = str(min(int(val), int(have.get(k, 99))))
            parts = [f"{k}({have[k]})" for k in ("vmcnt", "lgkmcnt") if k in have]
        out.append("s_waitcnt " + " ".join(parts))

    def younger(q, tag):
        idx = [k for k, e in enumerate(q) if e[2] == tag]
        return None if not idx else len(q) - 1 - idx[-1]

    for ln in lines:
        if ln.endswith(":") or ln.startswith("."):
            out.append(ln)
            continue
        if ln.startswith("@"):
            kind, tag = ln[1:].split()
            q = vm if kind == "vm" else lg
            n = 0 if tag == "all" else younger(q, tag)
            if n is not None and (q and len(q) > n):
                emit(n, None) if kind == "vm" else emit(None, n)
            continue
        tag = None
        if ";@" in ln:
            ln, tag = ln.split(";@")
            ln = ln.rstrip()
        i = Ins(ln)
        if i.kind == "wait":
            m = re.search(r"vmcnt\((\d+)\)", ln)
            m2 = re.search(r"lgkmcnt\((\d+)\)", ln)
            emit(int(m.group(1)) if m else None, int(m2.group(1)) if m2 else None)
            continue
        nv = nl = None
        for r in set(i.r + i.w):
            e = pend.get(r)
            if e is None:
                continue
            if e in vm:
                c = len(vm) - 1 - vm.index(e)
                nv = c if nv is None else min(nv, c)
            else:
                c = 0 if any(x[3] for x in lg) else len(lg) - 1 - lg.index(e)
                nl = c if nl is None else min(nl, c)
        if nv is not None or nl is not None:
            added += 1
            if verbose:
                print(f"  auto wait vm={nv} lg={nl} before: {ln}")
            emit(nv, nl)
        out.append(ln)
        if i.kind == "vmem":
            e = [len(out), list(i.w), tag, False]
            vm.append(e)
            for r in i.w:
                pend[r] = e
        elif i.kind in ("lds", "smem"):
            e = [len(out), list(i.w), tag, i.kind == "smem"]
            lg.append(e)
            for r in i.w:
                pend[r] = e
    return out, added


INLINE_INT = set(range(-16, 65))
VOP3_ONLY = ("v_fma_f32", "v_mad_", "v_lshl_add", "v_lshl_or", "v_add3", "v_mul_lo", "v_mul_hi", "v_bfe", "v_perm_",
             "v_pk_", "v_mfma", "v_smfmac", "v_cvt_pk_bf16", "v_lshrrev_b64", "v_accvgpr_write", "v_accvgpr_read",
             "v_and_or", "v_readlane")


def is_literal(p):
    p = p.strip()
    if re.fullmatch(r"-?(0\.5|1\.0|2\.0|4\.0)", p):
        return False
    if re.fullmatch(r"-?(0x[0-9a-fA-F]+|\d+)", p):
        return int(p, 0) not in INLINE_INT
    return bool(re.match(r"L_\w+-", p))


def isize(t):
    t = t.split(";")[0].strip()
    op = t.split()[0]
    i = Ins(t)
    if op.startswith(("ds_", "buffer_", "global_", "s_load", "s_memtime")):
        return 8
    if op.startswith("v_"):
        if op.endswith("_e64") or op.startswith(VOP3_ONLY):
            return 8
        if op.startswith("v_cmp") and not i.parts[0] == "vcc":
            return 8
        if op.startswith("v_cndmask") and i.parts[-1] != "vcc":
            return 8
        if any(p.startswith("-v") or p.startswith("-s") for p in i.parts):
            return 8
        if len(i.parts) == 3 and not op.startswith(("v_readfirstlane", "v_cmp")) and not i.parts[2].startswith("v"):
            return 8
        return 8 if any(is_literal(p) for p in i.parts[1:]) else 4
    if op.startswith(("s_waitcnt", "s_nop", "s_barrier", "s_branch", "s_cbranch", "s_endpgm", "s_movk", "s_setprio", "s_getpc")):
        return 4
    return 8 if any(is_literal(p) for p in i.parts) else 4


WIDENABLE = ("v_exp_f32", "v_rcp_f32", "v_rsq_f32", "v_add_f32", "v_mul_f32", "v_lshlrev_b32", "v_mov_b32", "v_fmac_f32",
             "v_max_f32", "v_add_u32", "v_and_b32", "v_lshrrev_b32", "v_sub_u32", "v_mov_b64")


def fix_align(lines):
    out = []
    off = 0
    run = []
    bad = 0
    for n, t in enumerate(lines):
        if t.endswith(":"):
            out.append(t)
            continue
        if t.startswith(".p2align"):
            out.append(t)
            off = 0
            run = []
            continue
        sz = isize(t)
        if sz == 8:
            if off % 8 == 4:
                c = [k for k in run if out[k].split()[0] in WIDENABLE]
                ahead = 0
                while n + ahead < len(lines) and not lines[n + ahead].endswith(":") and not lines[n + ahead].startswith(".") \
                        and isize(lines[n + ahead]) == 8:
                    ahead += 1
                if c:
                    k = c[-1]
                    op = out[k].split()[0]
                    out[k] = out[k].replace(op, op + "_e64", 1)
                    off += 4
                elif ahead >= 6:
                    out.append("s_nop 0")
                    off += 4
                else:
                    bad += 1
            run = []
        else:
            run.append(len(out))
        out.append(t)
        off += sz
    return out, bad


def trun2(M, F, V, need=None, head=None, steal=(), drain=45, maxsteal=99):
    n = len(M)
    need = need or {}
    G = [[] for _ in range(n)]
    load = [0] * n
    for lo, hi, grp in F:
        lo, hi = max(0, min(lo, n - 1)), min(hi, n - 1)
        best = min(range(lo, hi + 1), key=lambda g: (load[g] - (pipe(M[g]) - 16) / 16.0, g))
        G[best] += grp
        load[best] += sum(fcost(x) for x in grp if not x.startswith("@")) + 4 * any(x.startswith("@") for x in grp)
    extra = [max(0, load[g] - 4) for g in range(n)]
    room = [max(0, pipe(M[g]) - 8 - extra[g]) for g in range(n - 1)] + [max(0, drain - 8 - extra[-1])]
    lead = sum(vcost(x) for x in V[:need.get(0, 0)])
    have = sum(vcost(x) for x in V) - lead
    ns = 0
    while ns < min(len(steal), maxsteal) and have + 8 * ns + 4 <= sum(room):
        ns += 1
    surplus = max(0, have + 8 * ns - sum(room))
    q4 = [(x, k) for k in range(ns) for x in steal[k][1]]
    out = list(head or [])
    vi = 0
    owed = 0.0
    for i in range(n):
        while vi < need.get(i, 0):
            out.append(V[vi])
            vi += 1
        out.append(M[i])
        out += G[i]
        if i == n - 1:
            break
        owed += room[i] + surplus / n
        while True:
            if vi < len(V) and vcost(V[vi]) <= owed + 0.01:
                owed -= vcost(V[vi])
                out.append(V[vi])
                vi += 1
            elif q4 and owed >= 3.99 and vi > steal[q4[0][1]][2] + 1:
                owed -= 4
                out.append(q4.pop(0)[0])
            else:
                break
        if owed >= 3.99 and vi < len(V) and vcost(V[vi]) == 8:
            owed -= 8
            out.append(V[vi])
            vi += 1
    out += V[vi:] + [x for x, _ in q4]
    return out, ns
```

```python
import math
import struct
import sys

from asmlint import check
from sched import trun, trun2, autowait, fix_align, isize

KNAME = "standalone__modern_conv_block_convnext__vision_kernel"
OPT = dict(nt="nt", stamps=False, verbose=False, align=True, st_h="", st_f="", hops=False, nt2="", probe=None, probewg=None, only=None, cut=120, steal=8, drain=45, seg=None, drop=None, pfslice=True, nstage=6)


def f32bits(x):
    return struct.unpack("<I", struct.pack("<f", x))[0]


def bf16_rne(x):
    u = f32bits(x)
    return (u + 0x7FFF + ((u >> 16) & 1)) >> 16


def bf16_val(h):
    return struct.unpack("<f", struct.pack("<I", h << 16))[0]


C1 = 2.0 * math.sqrt(2.0 / math.pi) * math.log2(math.e)
ALPHA = (C1 * 0.044715) ** (1.0 / 3.0)
CP = C1 / ALPHA
A_HI = bf16_rne(ALPHA)
A_LO = bf16_rne(ALPHA - bf16_val(A_HI))

W2L, W2E = 73728, 110592
XP, XG, XPL = 36864, 5776, 2880
ACT, AP = 36864, 208
TBL = 147456
ST = TBL
RBUF, XCH = 0, 24576
PB1, PB2, PGR, PG, PGB = 159744, 160768, 161792, 162816, 163200
ZERO = PB2 + 512
LDS_BYTES = 163584
ROWB = 43008
XBYTES = 9633792

SRD_X, SRD_DW, SRD_W1, SRD_W2, SRD_A, SRD_B, SRD_O = 20, 24, 28, 32, 36, 40, 48
sROW, sMA, sLUT2 = 44, 45, 46
sW, sPAR, sX0, sY0, sNP = 54, 55, 56, 57, 58
sT0, sT1, sT2, sT3 = 59, 60, 61, 62
sTB = 63
sCP, sONE, sINV, sLUT, sIA, sAL, sEPS, sMASK = 64, 66, 68, 70, 72, 74, 76, 78
sLO, sHI, sM1, sM2 = 4, 5, 6, 7
sS = (8, 9, 10)
sSTAMP = 80

vB2F, vL = 0, 1
vA, vB, vW2A, vW2B, vBA, vBB = 2, 3, 4, 5, 6, 7
vOFA, vOFB, vOH, vOR, vGA, vGB, vL16 = 8, 9, 10, 11, 12, 13, 14
vR1, vR2A, vR2B, vRB, vRW = 15, 16, 17, 18, 19
ACC = {"F": 20, "H": 68}
X = (116, 132, 148)
Z, E, R, H, TMP = 164, 180, 196, 212, 220
CV, AF = 116, 20
vIDX, vTA, vXB, vXW, vXO, vAW, vBF, vBH, vBR, vPF, vB2H, vG, vB2V, vSW = range(92, 106)
vD1 = TMP + 35

aSTG = 0
aRB = (72, 108, 144)
aW1, aW2 = 0, (24, 48)
aBt = {"F": 72, "H": 96}
aBR, aRF, aRACC = 120, 132, 156
aBIAS, aC32, aC16, aRBIAS = 180, 184, 188, 192


def v(i, n=1):
    return f"v{i}" if n == 1 else f"v[{i}:{i+n-1}]"


def a(i, n=1):
    return f"a{i}" if n == 1 else f"a[{i}:{i+n-1}]"


def s(i, n=1):
    return f"s{i}" if n == 1 else f"s[{i}:{i+n-1}]"


def L(t):
    return [x.strip() for x in t.strip("\n").split("\n") if x.strip()]


class Block(list):
    def __call__(self, t):
        self.extend(L(t) if isinstance(t, str) else t)

    def stamp(self, k):
        k = str(k)
        if OPT["seg"]:
            self.append(f"MARK_{k}:")
            return
        if OPT["probe"] is not None and k == "0":
            self("s_memtime s[96:97]")
            return
        if OPT["probe"] is not None:
            names = [OPT["probe"]]
        elif OPT["stamps"]:
            names = ["0"] + (OPT["only"] or DEFAULT_STAMPS).split(",") + ["end"]
        else:
            return
        if k in names:
            self(f"s_memtime s[100:101]\ns_waitcnt lgkmcnt(0)\ns_mov_b32 {s(sSTAMP + names.index(k))}, s100")


DEFAULT_STAMPS = "1,18,2,3,4,5,7,8,9,T3,P7,T12,P17,P19,T19,16"


def pk(op, d, x, y, z=None, mod=""):
    t = f"v_pk_{op}_f32 {v(d, 2)}, {x}, {y}"
    if z is not None:
        t += f", {z}"
    return t + mod


def p_t(xb, zb, n=16):
    return [pk("fma", zb + i, v(xb + i, 2), v(xb + i, 2), s(sCP, 2)) for i in range(0, n, 2)]


def p_z(xb, zb, n=16):
    return [pk("mul", zb + i, v(zb + i, 2), v(xb + i, 2), mod=" neg_lo:[1,0] neg_hi:[1,0]") for i in range(0, n, 2)]


def p_add(eb, n=16):
    return [pk("add", eb + i, v(eb + i, 2), s(sONE, 2)) for i in range(0, n, 2)]


def p_mul(rb, xb, n=16):
    return [pk("mul", rb + i, v(rb + i, 2), v(xb + i, 2)) for i in range(0, n, 2)]


def t_cvt(hb, rb, n=16):
    return [f"v_cvt_pk_bf16_f32 {v(hb + i // 2)}, {v(rb + i)}, {v(rb + i + 1)}" for i in range(0, n, 2)]


def t_rcp(rb, eb, n=16):
    return [f"v_rcp_f32 {v(rb + i)}, {v(eb + i)}" for i in range(n)]


def t_exp(eb, zb, n=16):
    return [f"v_exp_f32 {v(eb + i)}, {v(zb + i)}" for i in range(n)]


def unpack(dst, src, n):
    o = []
    for i in range(n):
        o += [f"v_lshlrev_b32 {v(dst + 2 * i)}, 16, {v(src + i)}", f"v_and_b32 {v(dst + 2 * i + 1)}, {s(sHI)}, {v(src + i)}"]
    return o


M32 = "v_mfma_f32_32x32x16_bf16"
M16 = "v_mfma_f32_16x16x32_bf16"

SLOTS = ([(t, "a", i, 0) for i in range(3) for t in "FH"] + [("F", "b", i, 0) for i in range(3)]
         + [(t, "a", i, 1) for i in range(3) for t in "HF"] + [("F", "b", i, 1) for i in range(3)])
NS = len(SLOTS)


def neww(j):
    return j == 0 or SLOTS[j][1:] != SLOTS[j - 1][1:]


UNITNO = []
for _j in range(NS):
    UNITNO.append((UNITNO[-1] if UNITNO else -1) + (1 if neww(_j) else 0))


def m_fc1(j):
    xb, bb = X[j % 3], aBt[SLOTS[j][0]]
    o = [f"{M32} {v(xb, 16)}, {a(aBIAS, 4)}, {a(aC32, 4)}, 0"]
    return o + [f"{M32} {v(xb, 16)}, {a(aW1 + 4 * k, 4)}, {a(bb + 4 * k, 4)}, {v(xb, 16)}" for k in range(6)]


def m_fc2(j):
    acc, wb = ACC[SLOTS[j][0]], aW2[UNITNO[j] % 2]
    return [f"{M32} {v(acc + 16 * t, 16)}, {a(wb + 4 * (3 * k + t), 4)}, {v(H + 4 * k, 4)}, "
            + ("0" if (j == 0 and k == 0) else v(acc + 16 * t, 16)) for k in range(2) for t in range(3)]


def r_w1(j):
    _, g, i, late = SLOTS[j]
    off = 12288 * i
    o = [f"ds_read_u16 {a(aBIAS)}, {v(vBA if g == 'a' else vBB)} offset:{128 * i + 384 * late}"]
    return o + [f"ds_read_b64_tr_b16 {a(aW1 + 4 * k + 2 * jj, 2)}, {v(vA if g == 'a' else vB)} offset:{off + 2048 * k + 256 * jj}"
                for k in range(6) for jj in range(2)]


def r_w2(j):
    _, g, i, late = SLOTS[j]
    wb = aW2[UNITNO[j] % 2]
    return [f"ds_read_b64_tr_b16 {a(wb + 4 * (3 * k + t) + 2 * jj, 2)}, {v(vW2A if g == 'a' else vW2B)} "
            f"offset:{12288 * i + 3072 * k + 1536 * jj + 64 * t}" for k in range(2) for t in range(3) for jj in range(2)]


def has(j):
    return 0 <= j < NS


STOLEN = {}


def P(j, pre=(), post=(), late_x=False):
    t = p_t(X[j % 3], Z) if has(j) else []
    z = p_z(X[j % 3], Z) if has(j) else []
    m = p_mul(R, X[(j - 2) % 3])[STOLEN.get(j, 0):] if has(j - 2) else []
    d = p_add(E) if has(j - 1) else []
    core = m + d + t + z if late_x else t + m + z + d
    o = Block(list(pre) + core + list(post))
    o.stamp(f"P{j}")
    return o


def T(j, xM=(), xF=(), xVpre=(), xV=(), xneed=None, tail=12, head=("@lg all",), tmajor=False):
    f1 = m_fc1(j + 1) if has(j + 1) else []
    f2 = m_fc2(j - 2) if has(j - 2) else []
    if tmajor:
        f2 = [f2[3 * k + t] for t in range(3) for k in range(2)]
    M = f1 + f2 + list(xM)
    n = len(M)
    cv = t_cvt(H, R) if has(j - 2) else []
    V = cv + list(xVpre) + (t_rcp(R, E) if has(j - 1) else []) + (t_exp(E, Z) if has(j) else []) + list(xV)
    need = dict(xneed or {})
    if f2:
        need[len(f1)] = max(need.get(len(f1), 0), 6)
        k1 = len(f1) + (1 if tmajor else 3)
        need[k1] = max(need.get(k1, 0), 10 if len(V) >= 10 else len(V))
    F = list(xF)
    nm = len(f1) + len(f2) + sum("32x32" in m for m in xM)
    if has(j - 1) and neww(j - 1):
        F += [(0, nm - 1, [x]) for x in r_w2(j - 1)]
    if has(j + 2) and neww(j + 2):
        w = r_w1(j + 2)
        F += [(0, nm - 1, w[:1])] + [(1 + k, nm - 1, [w[1 + 2 * k + jj]]) for k in range(5, -1, -1) for jj in range(2)]
    steal = []
    if has(j - 1):
        base = len(cv) + len(xVpre)
        xb = X[(j - 1) % 3]
        steal = [(None, [f"v_mul_f32 {v(R + i + k)}, {v(R + i + k)}, {v(xb + i + k)}" for k in range(2)], base + i + 1)
                 for i in range(0, 16, 2)]
    o, STOLEN[j + 1] = trun2(M, F, V, need, list(head), steal, int(OPT["drain"]), int(OPT["steal"]))
    o = Block(o)
    o.stamp(f"T{j}")
    return o


def gen():
    b = Block()
    nt = OPT["nt"]
    t0, t1, t2, t3, t4, t5 = range(TMP, TMP + 6)

    if OPT["pfslice"]:
        pfcalc = f"s_lshr_b32 s3, s2, 3\ns_lshl_b32 s3, s3, 10\nv_and_b32 {v(t0)}, 7, v0\nv_lshl_add_u32 {v(t0)}, {v(t0)}, 7, s3"
    else:
        pfcalc = f"v_lshlrev_b32 {v(t0)}, 7, v0"
    b.stamp(0)
    b(f"""
    s_cmp_ge_u32 s2, 256
    s_cbranch_scc1 L_end
    s_load_dwordx16 s[4:19], s[0:1], 0
    s_getpc_b64 s[52:53]
    L_pc:
    {pfcalc}
    v_min_u32 {v(t0)}, L_end-L_pc, {v(t0)}
    global_load_dword {v(vPF)}, {v(t0)}, s[52:53] ;@pf
    v_lshrrev_b32 {v(t1)}, 6, v0
    v_and_b32 {v(vL)}, 63, v0
    v_readfirstlane_b32 {s(sW)}, {v(t1)}
    s_and_b32 {s(sT0)}, s2, 1
    s_lshl_b32 {s(sT0)}, {s(sT0)}, 3
    s_bfe_u32 {s(sT1)}, s2, 0x30003
    s_add_u32 {s(sT0)}, {s(sT0)}, {s(sT1)}
    s_mul_i32 {s(sX0)}, {s(sT0)}, 14
    s_bfe_u32 {s(sT0)}, s2, 0x20001
    s_lshl_b32 {s(sT0)}, {s(sT0)}, 2
    s_lshr_b32 {s(sT1)}, s2, 6
    s_add_u32 {s(sT0)}, {s(sT0)}, {s(sT1)}
    s_mul_i32 {s(sY0)}, {s(sT0)}, 14
    v_mul_u32_u24 {v(t0)}, 43, {v(vL)}
    v_lshrrev_b32 {v(t0)}, 7, {v(t0)}
    v_mul_u32_u24 {v(t1)}, 3, {v(t0)}
    v_sub_u32 {v(t1)}, {v(vL)}, {v(t1)}
    v_and_b32 {v(t2)}, 7, {v(t0)}
    v_lshrrev_b32 {v(t0)}, 3, {v(t0)}
    v_mad_u32_u24 {v(t0)}, {v(t0)}, 5, {v(t2)}
    v_cmp_le_u32 vcc, 3, {v(t2)}
    v_mul_u32_u24 {v(t0)}, 192, {v(t0)}
    s_mul_i32 {s(sT0)}, {s(sW)}, 48
    s_sub_u32 {s(sT0)}, {s(sT0)}, 576
    v_lshl_add_u32 {v(t0)}, {v(t1)}, 4, {v(t0)}
    v_add_u32 {v(t0)}, {s(sT0)}, {v(t0)}
    v_bfrev_b32 {v(t5)}, 1
    v_cndmask_b32 {v(t0)}, {v(t5)}, {v(t0)}, vcc
    s_mul_i32 {s(sT1)}, {s(sW)}, 56
    v_add_u32 {v(t1)}, {s(sT1)}, {v(vL)}
    v_mul_u32_u24 {v(t2)}, 171, {v(t1)}
    v_lshrrev_b32 {v(t2)}, 11, {v(t2)}
    s_sub_u32 {s(sT2)}, {s(sX0)}, 2
    v_add_u32 {v(t3)}, {s(sT2)}, {v(t2)}
    v_cmp_gt_u32 vcc, 224, {v(t3)}
    v_cmp_gt_u32 {s(sMASK, 2)}, 18, {v(t2)}
    s_mul_i32 {s(sT3)}, {s(sY0)}, {ROWB}
    s_mul_i32 {s(sT2)}, {s(sT2)}, 192
    s_add_u32 {s(sT3)}, {s(sT3)}, {s(sT2)}
    s_sub_u32 {s(sT3)}, {s(sT3)}, {2 * ROWB}
    s_and_b64 vcc, vcc, {s(sMASK, 2)}
    s_and_b32 vcc_hi, vcc_hi, 0xffffff
    v_lshl_add_u32 {v(vXO)}, {v(t1)}, 4, {s(sT3)}
    s_mul_i32 {s(sTB)}, {s(sW)}, 3072
    v_cndmask_b32 {v(vXO)}, {v(t5)}, {v(vXO)}, vcc
    s_add_u32 {s(sTB)}, {s(sTB)}, {TBL}
    s_mov_b32 m0, {s(sTB)}
    s_mov_b32 {s(SRD_X + 2)}, {XBYTES}
    s_mov_b32 {s(SRD_X + 3)}, 0x20000
    s_movk_i32 {s(SRD_DW + 2)}, 4800
    s_mov_b32 {s(SRD_DW + 3)}, 0x20000
    s_mov_b32 {s(sROW)}, {ROWB}
    s_waitcnt lgkmcnt(0)
    """)
    b.stamp(1)

    def srd(dst, src, nbytes):
        return L(f"""
        s_mov_b32 {s(dst)}, {s(src)}
        s_mov_b32 {s(dst + 1)}, {s(src + 1)}
        s_mov_b32 {s(dst + 2)}, {nbytes}
        s_mov_b32 {s(dst + 3)}, 0x20000
        """)
    def xload(r):
        o = [f"buffer_load_dwordx4 {a(aSTG + 4 * r, 4)}, {v(vXO)}, {s(SRD_X, 4)}, 0 offen {nt} ;@x{r}"]
        if r < 17:
            o.append(f"v_add_u32 {v(vXO)}, {s(sROW)}, {v(vXO)}")
        return o
    b(f"s_mov_b32 {s(SRD_X)}, s4\ns_mov_b32 {s(SRD_X + 1)}, s5")
    b(xload(0))
    b(f"s_mov_b32 {s(SRD_DW)}, s6\ns_mov_b32 {s(SRD_DW + 1)}, s7\ns_mov_b32 exec_hi, 0xffff")
    for d in range(4):
        b(f"buffer_load_dwordx4 {v(t0)}, {s(SRD_DW, 4)}, 0 offen lds ;@tbl")
        if d < 3:
            b(f"s_add_u32 m0, m0, 768\nv_add_u32 {v(t0)}, 1920, {v(t0)}")
    b("s_mov_b32 exec_hi, -1")

    u = Block()
    u(f"""
    s_lshl_b32 {s(sT0)}, {s(sW)}, 3
    s_lshr_b32 {s(sT1)}, 0x30302818, {s(sT0)}
    s_and_b32 {s(sT1)}, {s(sT1)}, 0xff
    s_load_dwordx2 {s(SRD_A, 2)}, s[0:1], {s(sT1)}
    s_lshr_b32 {s(sT1)}, 0x38382010, {s(sT0)}
    s_and_b32 {s(sT1)}, {s(sT1)}, 0xff
    s_load_dwordx2 {s(SRD_B, 2)}, s[0:1], {s(sT1)}
    s_cmp_eq_u32 {s(sW)}, 0
    s_movk_i32 {s(sT1)}, 192
    s_cselect_b32 {s(SRD_A + 2)}, 768, {s(sT1)}
    s_mov_b32 {s(SRD_A + 3)}, 0x20000
    s_min_u32 {s(sMA)}, {s(sW)}, 2
    s_lshl_b32 {s(sMA)}, {s(sMA)}, 10
    s_add_u32 {s(sMA)}, {s(sMA)}, {PB1}
    s_mov_b32 {s(SRD_B + 3)}, 0x20000
    """)
    for dst, src, n in ((SRD_W1, 8, 73728), (SRD_W2, 12, 73728), (SRD_O, 18, XBYTES)):
        u(srd(dst, src, n))
    lut = 0
    for cp, col in enumerate([0, 4, 8, 12, 1, 5, 9, 13, 2, 6, 10, 3, 7, 11]):
        lut |= col << (4 * cp)
    lut2 = 0
    for rho in range(14):
        lut2 |= (4 * ((rho & 7) >> 1) + 2 * (rho >> 3) + (rho & 1)) << (4 * rho)
    lg, lxg, lrp, lh, lq, lr, l31, lh16 = range(TMP + 8, TMP + 16)
    u(f"""
    s_mov_b32 {s(sLO)}, 0xffff
    s_mov_b32 {s(sHI)}, 0xffff0000
    s_and_b32 {s(sPAR)}, {s(sW)}, 1
    s_xor_b32 {s(sNP)}, {s(sPAR)}, 1
    s_mul_i32 {s(sM1)}, {s(sW)}, 3072
    s_mul_i32 {s(sM2)}, {s(sW)}, 9216
    s_mul_i32 {s(sS[0])}, {s(sW)}, 18432
    s_add_u32 {s(sS[1])}, {s(sS[0])}, 5120
    s_add_u32 {s(sS[2])}, {s(sS[0])}, 10240
    v_mul_u32_u24 {v(t3)}, 12, {v(t2)}
    v_sub_u32 {v(t3)}, {v(t1)}, {v(t3)}
    v_subrev_u32 {v(t4)}, 56, {v(vL)}
    v_cmp_gt_u32 vcc, 56, {v(vL)}
    v_mov_b32 {v(t0)}, 18
    v_lshrrev_b32 {v(lg)}, 4, {v(vL)}
    v_cndmask_b32 {v(t3)}, {v(t4)}, {v(t3)}, vcc
    v_cndmask_b32 {v(t2)}, {v(t0)}, {v(t2)}, vcc
    v_mul_u32_u24 {v(t3)}, {XG}, {v(t3)}
    v_lshl_add_u32 {v(t3)}, {v(t2)}, 3, {v(t3)}
    v_add_u32 {v(vXW)}, {XP}, {v(t3)}
    v_and_b32 {v(lxg)}, 3, {v(vL)}
    v_bfe_u32 {v(lr)}, {v(vL)}, 2, 2
    v_lshrrev_b32 {v(lh)}, 5, {v(vL)}
    v_and_b32 {v(lq)}, 1, {v(lg)}
    v_and_b32 {v(l31)}, 31, {v(vL)}
    v_lshlrev_b32 {v(vL16)}, 4, {v(vL)}
    v_lshlrev_b32 {v(lh16)}, 4, {v(lh)}
    v_mul_u32_u24 {v(vIDX)}, 0x5555, {v(lxg)}
    v_lshl_add_u32 {v(t0)}, {v(lg)}, 2, {v(lr)}
    v_sub_u32 {v(t1)}, {v(t0)}, {v(lxg)}
    v_mul_u32_u24 {v(t1)}, 48, {v(t1)}
    s_add_u32 {s(sT0)}, {s(sTB)}, 144
    v_add_u32 {v(vTA)}, {s(sT0)}, {v(t1)}
    v_mul_u32_u24 {v(t0)}, 192, {v(t0)}
    v_lshl_add_u32 {v(t0)}, {v(lxg)}, 3, {v(t0)}
    s_mul_i32 {s(sT0)}, {s(sW)}, 6144
    s_add_u32 {s(sT1)}, {s(sT0)}, {W2L + 2 * 6144}
    v_add_u32 {v(vR2A)}, {s(sT1)}, {v(t0)}
    s_add_u32 {s(sT1)}, {s(sT0)}, {W2E + 4 * 6144}
    s_add_u32 {s(sT2)}, {s(sT0)}, {W2L - 2 * 6144}
    s_cmp_lt_u32 {s(sW)}, 2
    s_cselect_b32 {s(sT1)}, {s(sT1)}, {s(sT2)}
    v_add_u32 {v(vR2B)}, {s(sT1)}, {v(t0)}
    v_add_u32 {v(vRW)}, {s(sT0)}, {v(vL16)}
    v_lshlrev_b32 {v(t0)}, 1, {v(lxg)}
    v_add_u32 {v(t0)}, {v(t0)}, {v(lg)}
    v_min_u32 {v(t0)}, 8, {v(t0)}
    v_mul_u32_u24 {v(t1)}, 640, {v(lr)}
    s_mul_i32 {s(sT0)}, {s(sW)}, {3 * XG}
    s_add_u32 {s(sT0)}, {s(sT0)}, {XP}
    v_lshl_add_u32 {v(t0)}, {v(t0)}, 4, {v(t1)}
    v_add_u32 {v(vXB)}, {s(sT0)}, {v(t0)}
    v_lshrrev_b32 {v(t0)}, 2, {v(l31)}
    v_mul_u32_u24 {v(t0)}, 768, {v(t0)}
    v_lshl_add_u32 {v(t0)}, {v(lh)}, 6, {v(t0)}
    v_lshl_add_u32 {v(vD1)}, {v(lxg)}, 4, {v(t0)}
    v_min_u32 {v(t0)}, 11, {v(vL)}
    v_mul_u32_u24 {v(t0)}, {XG - 16}, {v(t0)}
    v_min_u32 {v(t1)}, 31, {v(vL)}
    v_lshl_add_u32 {v(t0)}, {v(t1)}, 4, {v(t0)}
    v_add_u32 {v(t0)}, {XP + 2 * XPL}, {v(t0)}
    """)
    for i in range(0, 96, 2):
        u(f"v_mov_b64 {v(CV + i, 2)}, 0")
        if i == 2:
            u(f"ds_write_b128 {v(t0)}, {v(CV, 4)}")
    for rb in aRB:
        for k in range(4):
            u(f"v_accvgpr_write_b32 {a(rb + 32 + k)}, 0")
    pF, pH, pR = TMP + 16, TMP + 17, TMP + 18
    u(f"""
    s_mov_b32 {s(sCP)}, {f32bits(CP):#x}
    s_mov_b32 {s(sCP + 1)}, {f32bits(CP):#x}
    s_mov_b32 {s(sONE)}, 1.0
    s_mov_b32 {s(sONE + 1)}, 1.0
    s_mov_b32 {s(sINV)}, {f32bits(1 / 96):#x}
    s_mov_b32 {s(sINV + 1)}, {f32bits(1 / 96):#x}
    s_mov_b32 {s(sIA)}, {f32bits(1 / ALPHA):#x}
    s_mov_b32 {s(sIA + 1)}, {f32bits(1 / ALPHA):#x}
    s_mov_b32 {s(sAL)}, {f32bits(ALPHA):#x}
    s_mov_b32 {s(sAL + 1)}, {f32bits(ALPHA):#x}
    s_mov_b32 {s(sEPS)}, {f32bits(1e-5):#x}
    s_mov_b32 {s(sEPS + 1)}, {f32bits(1e-5):#x}
    s_mov_b32 {s(sLUT)}, {lut & 0xffffffff:#x}
    s_mov_b32 {s(sLUT + 1)}, {lut >> 32:#x}
    s_mov_b32 {s(sLUT2)}, {lut2 & 0xffffffff:#x}
    s_mov_b32 {s(sLUT2 + 1)}, {lut2 >> 32:#x}
    v_lshrrev_b32 {v(t0)}, 1, {v(lg)}
    v_and_b32 {v(t0)}, {v(t0)}, {v(lg)}
    v_lshl_add_u32 {v(t1)}, {v(lg)}, 2, {v(lxg)}
    v_sub_u32 {v(t1)}, {v(t1)}, {v(t0)}
    v_mad_u32_u24 {v(t1)}, {v(lr)}, 28, {v(t1)}
    v_lshl_add_u32 {v(t2)}, {v(lxg)}, 2, {v(lg)}
    v_cmp_gt_u32 vcc, 14, {v(t2)}
    v_mul_u32_u24 {v(t1)}, {AP}, {v(t1)}
    s_mul_i32 {s(sT0)}, {s(sW)}, 48
    s_add_u32 {s(sT0)}, {s(sT0)}, {ACT}
    v_add_u32 {v(t1)}, {s(sT0)}, {v(t1)}
    v_add_u32 {v(t2)}, {ACT + 196 * AP}, {v(vL16)}
    v_cndmask_b32 {v(vAW)}, {v(t2)}, {v(t1)}, vcc
    s_lshl_b32 {s(sT0)}, {s(sW)}, 5
    v_add_u32 {v(pF)}, {s(sT0)}, {v(l31)}
    s_lshr_b32 {s(sT0)}, {s(sW)}, 1
    s_lshl_b32 {s(sT0)}, {s(sT0)}, 5
    s_add_u32 {s(sT0)}, {s(sT0)}, 128
    v_add_u32 {v(pH)}, {s(sT0)}, {v(l31)}
    v_add_u32 {v(t1)}, {ACT}, {v(lh16)}
    s_movk_i32 {s(sT1)}, {AP}
    v_mad_u32_u24 {v(vBF)}, {v(pF)}, {s(sT1)}, {v(t1)}
    v_mad_u32_u24 {v(vBH)}, {v(pH)}, {s(sT1)}, {v(t1)}
    v_lshlrev_b32 {v(t1)}, 4, {v(lg)}
    v_add_u32 {v(t1)}, {ACT + 192 * AP}, {v(t1)}
    v_mad_u32_u24 {v(vBR)}, {v(lxg)}, {s(sT1)}, {v(t1)}
    s_mul_i32 {s(sT2)}, {s(sY0)}, 224
    s_add_u32 {s(sT2)}, {s(sT2)}, {s(sX0)}
    s_movk_i32 {s(sT3)}, 224
    """)
    for p, dst in ((pF, vOFA), (pH, vOH)):
        u(f"""
        v_mul_u32_u24 {v(t1)}, 2341, {v(p)}
        v_lshrrev_b32 {v(t1)}, 15, {v(t1)}
        v_mul_u32_u24 {v(t2)}, 14, {v(t1)}
        v_sub_u32 {v(t2)}, {v(p)}, {v(t2)}
        v_lshlrev_b32 {v(t2)}, 2, {v(t2)}
        v_lshrrev_b64 {v(t4, 2)}, {v(t2)}, {s(sLUT, 2)}
        v_and_b32 {v(t2)}, 15, {v(t4)}
        v_lshlrev_b32 {v(t1)}, 2, {v(t1)}
        v_lshrrev_b64 {v(t4, 2)}, {v(t1)}, {s(sLUT2, 2)}
        v_and_b32 {v(t1)}, 15, {v(t4)}
        v_mad_u32_u24 {v(t1)}, {v(t1)}, {s(sT3)}, {v(t2)}
        v_add_u32 {v(t1)}, {s(sT2)}, {v(t1)}
        v_mul_u32_u24 {v(dst)}, 192, {v(t1)}
        """)
    u(f"""
    s_lshl_b32 {s(sT0)}, {s(sW)}, 2
    s_lshr_b32 {s(sT0)}, 0xb73a, {s(sT0)}
    s_and_b32 {s(sT0)}, {s(sT0)}, 15
    s_add_u32 {s(sT0)}, {s(sT0)}, {s(sT2)}
    s_add_u32 {s(sT0)}, {s(sT0)}, {11 * 224}
    s_mul_i32 {s(sT0)}, {s(sT0)}, 192
    v_lshl_add_u32 {v(t1)}, {v(vL)}, 3, {s(sT0)}
    v_cmp_gt_u32 vcc, 24, {v(vL)}
    v_bfrev_b32 {v(t5)}, 1
    s_lshl_b32 {s(sT0)}, {s(sPAR)}, 5
    s_lshl_b32 {s(sT1)}, {s(sNP)}, 5
    v_cndmask_b32 {v(vOR)}, {v(t5)}, {v(t1)}, vcc
    v_add3_u32 {v(vOFB)}, {v(vOFA)}, {v(lh16)}, {s(sT1)}
    v_add3_u32 {v(vOFA)}, {v(vOFA)}, {v(lh16)}, {s(sT0)}
    v_add3_u32 {v(vOH)}, {v(vOH)}, {v(lh16)}, {s(sT0)}
    v_lshlrev_b32 {v(t1)}, 5, {v(lh)}
    v_add_u32 {v(t1)}, {PG}, {v(t1)}
    s_lshl_b32 {s(sT0)}, {s(sPAR)}, 6
    s_lshl_b32 {s(sT1)}, {s(sNP)}, 6
    v_add_u32 {v(vGA)}, {s(sT0)}, {v(t1)}
    v_add_u32 {v(vGB)}, {s(sT1)}, {v(t1)}
    v_lshlrev_b32 {v(t1)}, 1, {v(l31)}
    v_add_u32 {v(t1)}, {PB1}, {v(t1)}
    v_add_u32 {v(vBA)}, {s(sT0)}, {v(t1)}
    v_add_u32 {v(vBB)}, {s(sT1)}, {v(t1)}
    v_lshlrev_b32 {v(t0)}, 6, {v(lr)}
    v_lshl_add_u32 {v(t0)}, {v(lxg)}, 3, {v(t0)}
    v_lshl_add_u32 {v(t1)}, {v(lg)}, 10, {v(t0)}
    s_lshr_b32 {s(sT2)}, {s(sW)}, 1
    s_mul_i32 {s(sT2)}, {s(sT2)}, 12288
    s_lshl_b32 {s(sT0)}, {s(sPAR)}, 9
    s_lshl_b32 {s(sT1)}, {s(sNP)}, 9
    s_add_u32 {s(sT2)}, {s(sT2)}, {s(sT0)}
    v_add_u32 {v(vR1)}, {s(sT2)}, {v(t1)}
    v_lshl_add_u32 {v(t0)}, {v(lh)}, 10, {v(t0)}
    v_lshl_add_u32 {v(t0)}, {v(lq)}, 5, {v(t0)}
    v_add_u32 {v(vA)}, {s(sT0)}, {v(t0)}
    v_add_u32 {v(vB)}, {s(sT1)}, {v(t0)}
    v_and_b32 {v(t0)}, 15, {v(vL)}
    s_lshl_b32 {s(sT0)}, {s(sW)}, 6
    s_add_u32 {s(sT0)}, {s(sT0)}, {PB1}
    v_lshl_add_u32 {v(vRB)}, {v(t0)}, 1, {s(sT0)}
    v_xor_b32 {v(t3)}, {s(sPAR)}, {v(lq)}
    v_lshl_add_u32 {v(t0)}, {v(lh)}, 2, {v(lr)}
    v_mul_u32_u24 {v(t0)}, 192, {v(t0)}
    v_and_b32 {v(t1)}, 1, {v(lxg)}
    v_lshrrev_b32 {v(t2)}, 1, {v(lxg)}
    v_lshl_add_u32 {v(t1)}, {v(t1)}, 1, {v(t2)}
    v_lshl_add_u32 {v(t0)}, {v(t1)}, 3, {v(t0)}
    v_lshl_add_u32 {v(t0)}, {v(t3)}, 5, {v(t0)}
    s_mul_i32 {s(sT0)}, {s(sPAR)}, 6144
    s_add_u32 {s(sT0)}, {s(sT0)}, {W2E}
    s_mul_i32 {s(sT1)}, {s(sNP)}, 6144
    s_add_u32 {s(sT1)}, {s(sT1)}, {W2E}
    v_add_u32 {v(vW2A)}, {s(sT0)}, {v(t0)}
    v_add_u32 {v(vW2B)}, {s(sT1)}, {v(t0)}
    v_and_b32 {v(t1)}, 1, {v(lr)}
    v_lshrrev_b32 {v(t2)}, 1, {v(lr)}
    v_lshlrev_b32 {v(t2)}, 2, {v(t2)}
    v_lshl_add_u32 {v(t1)}, {v(t1)}, 3, {v(t2)}
    v_add_u32 {v(t1)}, {v(t1)}, {v(lxg)}
    v_lshl_add_u32 {v(t1)}, {v(t3)}, 4, {v(t1)}
    v_lshlrev_b32 {v(t1)}, 1, {v(t1)}
    v_add_u32 {v(vB2F)}, {PB2}, {v(t1)}
    v_cmp_eq_u32 vcc, 0, {v(lq)}
    v_mov_b32 {v(t2)}, {ZERO}
    v_mov_b32 {v(t0)}, {A_HI:#x}
    v_cndmask_b32 {v(vB2H)}, {v(t2)}, {v(vB2F)}, vcc
    v_mov_b32 {v(t1)}, {A_LO:#x}
    v_cmp_eq_u32 vcc, 0, {v(lh)}
    v_cmp_eq_u32 {s(sMASK, 2)}, 0, {v(lg)}
    v_mov_b32 {v(t3)}, 0
    v_cndmask_b32 {v(t2)}, {v(t1)}, {v(t0)}, vcc
    v_accvgpr_write_b32 {a(aC32)}, {v(t2)}
    v_cndmask_b32 {v(t2)}, {v(t1)}, {v(t0)}, {s(sMASK, 2)}
    v_cndmask_b32 {v(t2)}, {v(t3)}, {v(t2)}, vcc
    v_accvgpr_write_b32 {a(aC16)}, {v(t2)}
    s_lshl_b32 {s(sT0)}, {s(sW)}, 10
    s_add_u32 {s(sT0)}, {s(sT0)}, {ST}
    v_add_u32 {v(vSW)}, {s(sT0)}, {v(vL16)}
    s_lshr_b32 {s(sT0)}, s2, 3
    s_mul_i32 {s(sT0)}, {s(sT0)}, 2304
    s_mul_i32 {s(sT1)}, {s(sPAR)}, 13
    s_add_u32 {s(sT1)}, {s(sT1)}, {s(sY0)}
    s_mul_i32 {s(sT1)}, {s(sT1)}, {ROWB}
    s_mul_i32 {s(sT2)}, {s(sX0)}, 192
    s_add_u32 {s(sT1)}, {s(sT1)}, {s(sT2)}
    s_cmp_lt_u32 {s(sW)}, 2
    s_cselect_b32 {s(sT0)}, {s(sT0)}, {s(sT1)}
    s_cselect_b32 {s(sT1)}, 18, 1
    s_cselect_b32 {s(SRD_B + 2)}, {s(SRD_W1 + 2)}, {s(SRD_O + 2)}
    v_lshl_add_u32 {v(t4)}, {v(vL)}, 7, {s(sT0)}
    v_cmp_gt_u32 vcc, {s(sT1)}, {v(vL)}
    s_nop 1
    v_cndmask_b32 {v(t4)}, {v(t5)}, {v(t4)}, vcc
    """)
    for r in [aBIAS + k for k in (1, 2, 3)] + [aC32 + k for k in (1, 2, 3)] + [aC16 + k for k in (1, 2, 3)] \
            + [aRBIAS + k for k in (1, 3, 5, 6, 7)]:
        u(f"v_accvgpr_write_b32 {a(r)}, 0")
    ncut = int(OPT["cut"])
    b(u[:ncut])
    b.stamp(18)
    for r in range(1, 12):
        b(xload(r))
    b(u[ncut:])
    b.stamp(2)

    if OPT["hops"]:
        b("@vm pf")
        b(f"""
        s_mov_b64 exec, 0
        s_cmp_eq_u32 {s(sW)}, 1
        s_cbranch_scc1 L_pad3
        s_cmp_eq_u32 {s(sW)}, 2
        s_cbranch_scc1 L_pad5
        s_cmp_eq_u32 {s(sW)}, 3
        s_cbranch_scc1 L_pad7
        s_branch L_pad1
        .p2align 12
        L_body:
        s_mov_b64 exec, -1
        """)
    for r in range(12, 18):
        b(xload(r))
    b(f"""
    @lg all
    s_mov_b32 m0, {s(sMA)}
    buffer_load_dword {v(vB2V)}, {v(t4)}, {s(SRD_B, 4)}, 0 offen
    buffer_load_dwordx4 {v(vL16)}, {s(SRD_A, 4)}, 0 offen lds ;@par
    @vm tbl
    """)
    b([f"ds_read_b64_tr_b16 {v(AF + (3 * j + t) * 4 + 2, 2)}, {v(vTA)} offset:{768 * t + 8 * j}" for j in range(6) for t in range(3)])
    b.stamp(3)
    aexp = []
    for g in range(18):
        q = AF + 4 * g
        aexp += [f"v_and_b32 {v(q)}, {s(sLO)}, {v(q + 2)}", f"v_and_b32 {v(q + 1)}, {s(sHI)}, {v(q + 2)}",
                 f"v_and_b32 {v(q + 2)}, {s(sLO)}, {v(q + 3)}", f"v_and_b32 {v(q + 3)}, {s(sHI)}, {v(q + 3)}"]

    def w1dma(p, tag):
        o = []
        for i in range(3):
            pre = [f"s_add_u32 m0, {s(sM1)}, {12288 * p - 128 * p}", "s_nop 0"] if i == 0 else []
            o.append(pre + [f"buffer_load_dwordx4 {v(vD1)}, {s(SRD_W1, 4)}, {s(sS[i])} offen offset:{1024 * i + 128 * p} lds ;@{tag}"])
        return o

    def w2dma(late, tag):
        o = []
        for c in range(9):
            g = c >> 2
            pre = [f"s_add_u32 m0, {s(sM2)}, {(W2L if late else W2E) + 4096 * g}",
                   f"s_add_u32 {s(sT3)}, {s(sM2)}, {36864 * late + 4096 * g}"] if c % 4 == 0 else []
            o.append(pre + [f"buffer_load_dwordx4 {v(vL16)}, {s(SRD_W2, 4)}, {s(sT3)} offen offset:{1024 * (c & 3)} lds ;@{tag}"])
        return o
    early = (w1dma(0, "w1e") + w1dma(1, "w1e") + w1dma(2, "w1e"), w2dma(0, "w2e"))

    def stage(r):
        return [f"@vm x{r}", f"ds_write_b64 {v(vXW)}, {a(aSTG + 4 * r, 2)} offset:{160 * r}",
                f"ds_write_b64 {v(vXW)}, {a(aSTG + 4 * r + 2, 2)} offset:{XPL + 160 * r}"]
    b(stage(0))
    b("@lg all")
    dmas = early[0] + early[1]
    nst = int(OPT["nstage"])
    for r in range(1, 18):
        b(aexp[4 * r - 4:4 * r])
        b(stage(r))
        if r >= 18 - nst:
            b(dmas.pop(0))
    b(aexp[68:])
    b("@lg all\ns_barrier")
    b.stamp(4)

    S, TP, TU, S2 = TMP, TMP + 8, H, H

    def acc(k, j):
        return CV + (k * 6 + j) * 4

    def reads(j):
        return [f"ds_read_b128 {a(aRB[j % 3] + 4 * r, 4)}, {v(vXB)} offset:{(j >> 1) * XG + (j & 1) * XPL + r * 160} ;@q{j}_{r}"
                for r in range(8)]

    def part(j):
        o = []
        for k in range(4):
            d = acc(k, j)
            o += [f"v_add_f32 {v(TP + 4 * j + k)}, {v(d)}, {v(d + 1)}", f"v_add_f32 {v(TU + k)}, {v(d + 2)}, {v(d + 3)}"]
        return o + [f"v_add_f32 {v(TP + 4 * j + k)}, {v(TP + 4 * j + k)}, {v(TU + k)}" for k in range(4)]
    b(reads(0))
    ncv = len(dmas)
    where = {(72 * q + 36) // ncv: q for q in range(ncv)}
    pend = []
    rd = reads(1)
    for j in range(6):
        if j:
            b(f"@lg q{j}_7")
        rd += reads(j + 2) if j < 4 else []
        for n in range(12):
            t, k = n >> 2, n & 3
            if j == 0 and n in (0, 2, 4, 6):
                b(f"@lg q0_{(2, 4, 5, 7)[n // 2]}")
            b(f"v_smfmac_f32_16x16x64_bf16 {v(acc(k, j), 4)}, {v(AF + (3 * j + t) * 4, 4)}, {a(aRB[j % 3] + 4 * (k + 2 * t), 8)}, {v(vIDX)}")
            m = 12 * j + n
            if m in where:
                b(dmas[where[m]][-1:])
                continue
            pre = [x for x in dmas[where[m + 2]][:-1] if x != "s_nop 0"] if m + 2 in where else []
            b(pre)
            if rd and (not pre or j == 0):
                b(rd.pop(0))
                if j == 0 and rd and n < 9:
                    b(rd.pop(0))
            if n == 4 and 0 < j < 5:
                pend += part(j - 1)
            if pend:
                b(pend.pop(0))
        assert len(rd) == 0, (j, rd)
    b.stamp(5)
    b(pend)
    U = AF + 8
    for i in range(0, 24, 2):
        for k in range(4):
            d = acc(k, 0) + i
            b(pk("mul", AF + 2 * k, v(d, 2), v(d, 2)) if i == 0 else pk("fma", AF + 2 * k, v(d, 2), v(d, 2), v(AF + 2 * k, 2)))
    for k in range(4):
        b(pk("add", U + 2 * k, v(acc(k, 4), 2), v(acc(k, 4) + 2, 2)))
    for o in (0, 2):
        b(pk("add", TP + o, v(TP + o, 2), v(TP + 4 + o, 2)))
        b(pk("add", TP + 8 + o, v(TP + 8 + o, 2), v(TP + 12 + o, 2)))
    for i in (0, 2):
        for k in range(4):
            b(pk("add", U + 2 * k, v(U + 2 * k, 2), v(acc(k, 5) + i, 2)))
    for o in (0, 2):
        b(pk("add", TP + o, v(TP + o, 2), v(TP + 8 + o, 2)))
    for k in range(4):
        b(f"v_add_f32 {v(S + 4 * (k >> 1) + 2 + (k & 1))}, {v(AF + 2 * k)}, {v(AF + 2 * k + 1)}")
        b(f"v_add_f32 {v(TP + 4 + k)}, {v(U + 2 * k)}, {v(U + 2 * k + 1)}")
    for o in (0, 2):
        b(pk("add", S + 2 * o, v(TP + o, 2), v(TP + 4 + o, 2)))
    b(f"""
    ds_write_b128 {v(vSW)}, {v(S, 4)}
    ds_write_b128 {v(vSW)}, {v(S + 4, 4)} offset:4096
    v_add_u32 {v(vSW)}, {ST}, {v(vL16)}
    @vm w1e
    @lg all
    s_barrier
    """)
    b.stamp(7)

    Q = TMP
    for ph in range(2):
        for w in range(4):
            b(f"ds_read_b128 {v(Q + 16 * ph + 4 * w, 4)}, {v(vSW)} offset:{4096 * ph + 1024 * w} ;@s{ph}")
    pre = r_w1(0) + [f"ds_read_u16 {a(aRBIAS + 2 * t)}, {v(vB2H)} offset:{64 * t}" for t in range(3)]
    b(pre[:7])
    qs = (Q, Q + 16)
    for ph, q in enumerate(qs):
        b(f"@lg s{ph}")
        if ph:
            b(pre[7:])
        for o in (0, 2):
            b(pk("add", q + o, v(q + o, 2), v(q + 4 + o, 2)))
            b(pk("add", q + 8 + o, v(q + 8 + o, 2), v(q + 12 + o, 2)))
    for o in (0, 2):
        for q in qs:
            b(pk("add", q + o, v(q + o, 2), v(q + 8 + o, 2)))
    for o in (0, 2):
        for q in qs:
            b(pk("mul", q + o, v(q + o, 2), s(sINV, 2)))
    for q in qs:
        b(pk("fma", q + 2, v(q, 2), v(q, 2), v(q + 2, 2), " neg_lo:[1,0,0] neg_hi:[1,0,0]"))
    for q in qs:
        b(f"v_max_f32 {v(q + 2)}, 0, {v(q + 2)}\nv_max_f32 {v(q + 3)}, 0, {v(q + 3)}")
    for q in qs:
        b(pk("add", q + 2, v(q + 2, 2), s(sEPS, 2)))
    for q in qs:
        b(f"v_rsq_f32 {v(q + 2)}, {v(q + 2)}\nv_rsq_f32 {v(q + 3)}, {v(q + 3)}")
    for q in qs:
        b(pk("mul", q + 2, v(q + 2, 2), s(sAL, 2)))
    for q in qs:
        b(pk("mul", q, v(q, 2), v(q + 2, 2), mod=" neg_lo:[1,0] neg_hi:[1,0]"))
    wr = []
    for k in range(4):
        ph, sx = k >> 1, k & 1
        base, q = CV + 24 * k, qs[ph]
        for jj in range(3):
            for i in range(8 * jj, 8 * jj + 8, 2):
                b(pk("fma", base + i, v(base + i, 2), v(q + 2, 2), v(q, 2), f" op_sel:[0,{sx},{sx}] op_sel_hi:[1,{sx},{sx}]"))
            for i in range(4 * jj, 4 * jj + 4):
                b(f"v_cvt_pk_bf16_f32 {v(base + 4 * jj + i)}, {v(base + 2 * i)}, {v(base + 2 * i + 1)}")
            b(f"ds_write_b128 {v(vAW)}, {v(base + 8 * jj, 4)} offset:{(8 * ph + sx) * 14 * AP + 16 * jj}")
    b("@lg all\ns_barrier")
    b.stamp(8)

    b([f"ds_read_b128 {a(aBt['F'] + 4 * k, 4)}, {v(vBF)} offset:{32 * k} ;@bf" for k in range(6)])
    b([f"ds_read_b128 {a(aBt['H'] + 4 * k, 4)}, {v(vBH)} offset:{32 * k}" for k in range(6)])
    b([f"ds_read_b128 {a(aBR + 4 * k, 4)}, {v(vBR)} offset:{64 * k}" for k in range(3)])
    late = w1dma(3, "wl") + w1dma(4, "wl") + w1dma(5, "wl") + w2dma(1, "wl")
    M = m_fc1(0)
    F = [(0, 0, ["@lg bf"]), (3, 3, ["@vm w2e", "@lg all", "s_barrier"]), (4, 4, late[0]), (5, 5, late[1]), (6, 6, late[2])]
    b(trun(M, F, [], need={}, tail=1000))
    b(late[3] + late[4])
    b("s_nop 6")
    b.stamp(9)
    b(P(0))
    b(T(0, xF=[(0, 0, late[5])]))
    b(P(1, late_x=True))
    hinit = [f"{M32} {v(ACC['H'] + 16 * t, 16)}, {a(aRBIAS + 2 * t, 4)}, {a(aC32, 4)}, 0" for t in range(3)]
    b(T(1, xM=hinit, xF=[(1 + 2 * k, 1 + 2 * k, late[6 + k]) for k in range(4)]))
    g0, g1, ga = TMP, TMP + 2, TMP + 4
    b(P(2, post=[f"v_lshlrev_b32 {v(ga)}, 2, {v(vL)}", f"v_add_u32 {v(ga)}, {PB2}, {v(ga)}"]))
    F_ = [(2, 2, [f"ds_read_b32 {v(g0 + 1)}, {v(ga)} offset:{PGR - PB2}"]), (3, 3, [f"ds_read_b32 {v(g1 + 1)}, {v(ga)}"])]
    b(T(2, xF=F_ + [(1 + 3 * k, 1 + 3 * k, late[10 + k]) for k in range(4)]))
    b(P(3, post=["@lg all"] + unpack(g0, g0 + 1, 1) + unpack(g1, g1 + 1, 1) + L(f"""
    v_lshlrev_b32 {v(ga)}, 3, {v(vL)}
    {pk("mul", g1, v(g1, 2), v(g0, 2))}
    {pk("mul", g0, v(g0, 2), s(sIA, 2))}
    v_add_u32 {v(ga)}, {PG}, {v(ga)}
    """)))
    F_ = [(0, 0, L(f"""
    s_mov_b32 exec_hi, 0xffff
    ds_write_b64 {v(ga)}, {v(g0, 2)}
    ds_write_b64 {v(ga)}, {v(g1, 2)} offset:{PGB - PG}
    s_mov_b32 exec_hi, -1
    """))]
    b(T(3, xF=F_ + [(1 + 3 * k, 1 + 3 * k, late[14 + k]) for k in range(4)]))

    XR, WK, HR = (TMP, TMP + 16), (TMP + 8, TMP + 24), TMP + 32

    def r_fc1(m):
        x = XR[m % 2]
        rd = [f"ds_read_u16 {a(aRBIAS + 2 * mh)}, {v(vRB)} offset:{256 * m + 32 * mh}" for mh in range(2)]
        rd += [f"ds_read_b64_tr_b16 {a(aRF + 12 * mh + 4 * k + 2 * jj, 2)}, {v(vR1)} offset:{24576 * m + 4096 * k + 256 * jj + 32 * mh} ;@rf"
               for k in range(3) for mh in range(2) for jj in range(2)]
        M = [f"{M16} {v(x + 4 * mh, 4)}, {a(aRBIAS + 2 * mh, 4)}, {a(aC16, 4)}, 0" for mh in range(2)]
        M += [f"{M16} {v(x + 4 * mh, 4)}, {a(aRF + 12 * mh + 4 * k, 4)}, {a(aBR + 4 * k, 4)}, {v(x + 4 * mh, 4)}"
              for k in range(3) for mh in range(2)]
        return M, [(0, 8, [x_]) for x_ in rd] + [(12, 12, ["@lg rf"])]

    def r_fc2(m):
        reg, off = ((vR2A, 24576), (vR2B, 0), (vR2A, 0))[m]
        rd = [f"ds_read_b64_tr_b16 {a(aRF + 4 * c + 2 * jj, 2)}, {v(reg)} offset:{off + 3072 * jj + 32 * c} ;@rf"
              for c in range(6) for jj in range(2)]
        M = [f"{M16} {a(aRACC + 4 * c, 4)}, {a(aRF + 4 * c, 4)}, {v(HR, 4)}, {'0' if m == 0 else a(aRACC + 4 * c, 4)}" for c in range(6)]
        return M, [(0, 8, [x_]) for x_ in rd] + [(12, 12, ["@lg rf"])]

    def rp1(m):
        return p_t(XR[m % 2], WK[m % 2], 8) + p_z(XR[m % 2], WK[m % 2], 8)

    def radd(m):
        return p_add(WK[m % 2], 8)

    def rmul(m):
        return p_mul(WK[m % 2], XR[m % 2], 8)

    def rexp(m):
        return t_exp(WK[m % 2], WK[m % 2], 8)

    def rrcp(m):
        return t_rcp(WK[m % 2], WK[m % 2], 8)

    def rcvt(m):
        return t_cvt(HR, WK[m % 2], 8)

    aPFX = 206
    b(P(4, post=[f"v_lshrrev_b32 {v(TMP)}, 5, {v(vL)}", f"v_lshlrev_b32 {v(TMP)}, 7, {v(TMP)}",
                 f"v_add_u32 {v(TMP + 1)}, {v(vOFA)}, {v(TMP)}", f"v_add_u32 {v(TMP)}, {v(vOH)}, {v(TMP)}"]))
    b(T(4, xF=[(2, 2, [f"buffer_load_dword {a(aPFX)}, {v(TMP + 1)}, {s(SRD_X, 4)}, 0 offen"]),
               (6, 6, [f"buffer_load_dword {a(aPFX + 1)}, {v(TMP)}, {s(SRD_X, 4)}, 0 offen"]),
               (10, 10, [f"buffer_load_dwordx2 {a(aPFX + 2, 2)}, {v(vOR)}, {s(SRD_X, 4)}, 0 offen"])]))
    b(P(5))
    M_, F_ = r_fc1(0)
    b(T(5, xM=M_, xF=F_, tail=4))
    b(P(6, post=rp1(0)))
    b(T(6, xV=rexp(0) + [f"v_subrev_u32 {v(vW2A)}, 36864, {v(vW2A)}", f"v_add_u32 {v(vA)}, 36864, {v(vA)}"]))
    b(P(7, post=radd(0)))
    b("@vm wl\ns_barrier")
    M_, F_ = r_fc1(1)
    b(T(7, xM=M_, xF=F_, xV=rrcp(0), tail=4))
    b(P(8, post=rmul(0) + rp1(1)))
    M_, F_ = r_fc2(0)
    b(T(8, xM=M_, xF=F_, xVpre=rcvt(0), xV=rexp(1), tail=4))
    b(P(9, post=radd(1)))
    M_, F_ = r_fc1(2)
    b(T(9, xM=M_, xF=F_, xV=rrcp(1), tail=4))
    b(P(10, post=rmul(1) + rp1(2)))
    M_, F_ = r_fc2(1)
    b(T(10, xM=M_, xF=F_, xVpre=rcvt(1), xV=rexp(2), tail=4))
    b(P(11, post=radd(2)))
    b(T(11, xV=rrcp(2) + [f"v_subrev_u32 {v(vW2B)}, 36864, {v(vW2B)}", f"v_add_u32 {v(vB)}, 36864, {v(vB)}"]))
    b(P(12, post=rmul(2)))
    M_, F_ = r_fc2(2)
    rwa = vR1
    V_ = L(f"""
    v_and_b32 {v(vR2B)}, 15, {v(vL)}
    v_lshrrev_b32 {v(rwa)}, 4, {v(vL)}
    v_cmp_gt_u32 vcc, 4, {v(vR2B)}
    v_lshl_add_u32 {v(vR2B)}, {v(rwa)}, 2, {v(vR2B)}
    v_lshlrev_b32 {v(rwa)}, 8, {v(rwa)}
    v_add_u32 {v(rwa)}, 1664, {v(rwa)}
    v_cndmask_b32_e64 {v(rwa)}, {v(rwa)}, 0, vcc
    v_lshl_add_u32 {v(rwa)}, {v(vR2B)}, 4, {v(rwa)}
    v_add_u32 {v(rwa)}, {s(sT0)}, {v(rwa)}
    """)
    F_ += [(0, 0, [f"s_mul_i32 {s(sT0)}, {s(sW)}, 4608"])]
    b(T(12, xM=M_, xF=F_, xVpre=rcvt(2), xV=V_, tail=4))
    PP, PGm, PBm, RU, RX, ra, rg = TMP, TMP + 16, TMP + 20, TMP + 24, TMP + 28, TMP + 30, TMP + 31
    b(P(13))
    F_ = [(2 * c + 1, 2 * c + 1, [f"ds_write_b128 {v(rwa)}, {a(aRACC + 4 * c, 4)} offset:{RBUF + 272 * c}"]) for c in range(6)]
    F_ += [(0, 0, [f"buffer_load_dwordx2 {v(RX, 2)}, {v(vOR)}, {s(SRD_X, 4)}, 0 offen", f"s_lshl_b32 {s(sT0)}, {s(sW)}, 4"])]
    V_ = L(f"""
    v_min_u32 {v(rg)}, 23, {v(vL)}
    v_lshrrev_b32 {v(ra)}, 2, {v(rg)}
    v_lshlrev_b32 {v(rg)}, 4, {v(rg)}
    v_lshlrev_b32 {v(RU)}, 2, {v(rg)}
    v_lshl_add_u32 {v(ra)}, {v(ra)}, 4, {v(RU)}
    v_add_u32 {v(ra)}, {s(sT0)}, {v(ra)}
    v_add_u32 {v(rg)}, {PG}, {v(rg)}
    """)
    b(T(13, xF=F_, xV=V_))
    b(P(14))
    b("@lg all\ns_barrier")
    F_ = [(0, 12, [f"ds_read_b128 {v(PP + 4 * w, 4)}, {v(ra)} offset:{RBUF + 4608 * w}"]) for w in range(4)]
    F_ += [(0, 12, [f"ds_read_b128 {v(PGm, 4)}, {v(rg)}"]), (0, 12, [f"ds_read_b128 {v(PBm, 4)}, {v(rg)} offset:{PGB - PG}"])]
    b(T(14, xF=F_, xV=unpack(RU, RX, 2), head=()))
    post = [pk("add", PP + i, v(PP + i, 2), v(PP + 4 + i, 2)) for i in (0, 2)]
    post += [pk("add", PP + 8 + i, v(PP + 8 + i, 2), v(PP + 12 + i, 2)) for i in (0, 2)]
    post += [pk("add", RU + i, v(RU + i, 2), v(PBm + i, 2)) for i in (0, 2)]
    post += [pk("add", PP + i, v(PP + i, 2), v(PP + 8 + i, 2)) for i in (0, 2)]
    post += [pk("fma", RU + i, v(PP + i, 2), v(PGm + i, 2), v(RU + i, 2)) for i in (0, 2)]
    b(P(15, post=post))
    HX, FX = TMP, TMP + 12
    nt2 = OPT["nt2"]
    hx = [f"buffer_load_dwordx4 {v(HX + 4 * t, 4)}, {v(vOH)}, {s(SRD_X, 4)}, 0 offen offset:{64 * t} {nt2} ;@hx" for t in range(3)]
    fx = [f"buffer_load_dwordx4 {v(FX + 4 * c, 4)}, {v(vOFB if c & 1 else vOFA)}, {s(SRD_X, 4)}, 0 offen offset:{64 * (c >> 1)} {nt2} ;@fx"
          for c in range(6)]
    F_ = [(4, 4, [f"buffer_store_dwordx2 {v(RX, 2)}, {v(vOR)}, {s(SRD_O, 4)}, 0 offen {OPT['st_h']}"])]
    F_ += [(6 + 2 * t, 6 + 2 * t, [hx[t]]) for t in range(3)]
    F_ += [(0, 0, [f"s_xor_b32 {s(sT0)}, {s(sW)}, 1", f"s_mul_i32 {s(sT0)}, {s(sT0)}, 6144"])]
    b(T(15, xF=F_, xVpre=t_cvt(RX, RU, 4), xV=[f"v_add_u32 {v(vRB)}, {s(sT0)}, {v(vL16)}"], xneed={4: 10}))
    b(P(16))
    vXR_ = vRB
    AH, AFc = ACC["H"], ACC["F"]
    odd = lambda c: AH + 16 * (c >> 1) + 8 + 4 * (c & 1)
    F_ = [(c, c, [f"ds_write_b128 {v(vRW)}, {v(odd(c), 4)} offset:{XCH + 1024 * c} ;@xw"]) for c in range(6)]
    F_ += [(7, 7, ["@lg xw", "s_barrier"])]
    F_ += [(8 + c // 2, 8 + c // 2, [f"ds_read_b128 {v(odd(c), 4)}, {v(vXR_)} offset:{XCH + 1024 * c}"]) for c in range(6)]
    F_ += [(12, 12, [f"ds_read_u16 {a(aRBIAS + 2 * t)}, {v(vB2F)} offset:{64 * t}" for t in range(3)])]
    b(T(16, xF=F_))
    post = [pk("add", AH + 16 * t + i, v(AH + 16 * t + i, 2), v(AH + 16 * t + 8 + i, 2)) for t in range(3) for i in range(0, 8, 2)]
    b(P(17, post=["@lg all"] + post))
    finit = [f"{M32} {v(AFc + 16 * t, 16)}, {a(aRBIAS + 2 * t, 4)}, {a(aC32, 4)}, {v(AFc + 16 * t, 16)}" for t in range(3)]
    GE = (X[0], X[0] + 8, Z)
    GO = (Z + 8, R, R + 8)
    ge = [f"ds_read_b128 {v(GE[t] + 4 * k, 4)}, {v(vGA)} offset:{128 * t + 16 * k}" for t in range(3) for k in range(2)]
    go = [f"ds_read_b128 {v(GO[t] + 4 * k, 4)}, {v(vGB)} offset:{128 * t + 16 * k}" for t in range(3) for k in range(2)]
    F_ = [(0, 8, [x]) for x in ge[:4]] + [(c, c, [fx[c]]) for c in range(6)]
    V_ = [x for t in range(3) for x in unpack(AH + 16 * t + 8, HX + 4 * t, 4)]
    b(T(17, xM=finit, xF=F_, xV=V_, head=("@vm hx",)))
    hf = lambda t: [pk("fma", AH + 16 * t + 8 + i, v(AH + 16 * t + i, 2), v(GE[t] + i, 2), v(AH + 16 * t + 8 + i, 2)) for i in range(0, 8, 2)]
    hc = lambda t: t_cvt(HX + 4 * t, AH + 16 * t + 8, 8)
    hs = [f"buffer_store_dwordx4 {v(HX + 4 * t, 4)}, {v(vOH)}, {s(SRD_O, 4)}, 0 offen offset:{64 * t} {OPT['st_h']}" for t in range(3)]
    b(P(18, post=["@lg all"] + hf(0) + hf(1)))
    UF = (X[1], X[1] + 8, X[2], X[2] + 8, E, E + 8)
    F_ = [(0, 5, [x]) for x in ge[4:] + go[:2]] + [(3, 3, hs[:1]), (5, 5, hs[1:2])]
    V_ = ["@vm fx"] + unpack(UF[0], FX, 4) + unpack(UF[1], FX + 4, 4) + [f"v_permlane16_swap_b32 {v(vOFA)}, {v(vOFB)}"]
    b(T(18, xF=F_, xVpre=hc(0) + hc(1), xV=V_, head=(), xneed={3: 12, 5: 16}))
    b(P(19, post=["@lg all"] + hf(2)))

    def ftail(t, plain):
        o = []
        for c, g in ((2 * t, GE[t]), (2 * t + 1, GO[t])):
            if plain:
                o += [f"v_fma_f32 {v(UF[c] + i)}, {v(AFc + 8 * c + i)}, {v(g + i)}, {v(UF[c] + i)}" for i in range(8)]
            else:
                o += [pk("fma", UF[c] + i, v(AFc + 8 * c + i, 2), v(g + i, 2), v(UF[c] + i, 2)) for i in range(0, 8, 2)]
        for c in (2 * t, 2 * t + 1):
            o += t_cvt(FX + 4 * c, UF[c], 8)
        o += [f"v_permlane16_swap_b32 {v(FX + 8 * t + i)}, {v(FX + 8 * t + 4 + i)}" for i in range(4)]
        return o

    def fst(t):
        return [f"buffer_store_dwordx4 {v(FX + 8 * t + 4 * k, 4)}, {v((vOFA, vOFB)[k])}, {s(SRD_O, 4)}, 0 offen offset:{64 * t} {OPT['st_f']}"
                for k in range(2)]
    V_ = hc(2) + [x for c in range(2, 6) for x in unpack(UF[c], FX + 4 * c, 4)][:20] + ftail(0, True)
    F_ = [(1, 1, go[2:4]), (2, 2, go[4:6] + hs[2:3])]
    b(T(19, xF=F_, xV=V_, head=(), xneed={2: 12}, tmajor=True))
    b(fst(0))
    b([x for c in range(2, 6) for x in unpack(UF[c], FX + 4 * c, 4)][20:])
    b("@lg all")
    for t in (1, 2):
        b(ftail(t, False))
        b(fst(t))
    b.stamp(16)
    if OPT["probe"] is not None:
        b("@vm all")
        b.stamp("end")
        b(f"s_sub_u32 s98, {s(sSTAMP)}, s96" if OPT["probe"] != "0" else "s_mov_b32 s98, 0")
        if OPT["probewg"] is not None:
            b(f"s_cmp_eq_u32 s2, {OPT['probewg']}\ns_cselect_b32 s98, s98, 0")
        b("""
        s_lshl_b32 s98, s98, 2
        s_add_u32 s98, s98, 40000
        L_diag:
        s_memtime s[100:101]
        s_waitcnt lgkmcnt(0)
        s_sub_u32 s100, s100, s96
        s_cmp_lt_u32 s100, s98
        s_cbranch_scc1 L_diag
        """)
    elif OPT["stamps"]:
        b("@vm all")
        b.stamp("end")
        b(f"""
        s_load_dwordx2 s[4:5], s[0:1], 72
        s_waitcnt lgkmcnt(0)
        s_lshl_b32 s6, s2, 2
        s_add_u32 s6, s6, {s(sW)}
        s_lshl_b32 s6, s6, 7
        v_mov_b32 v0, s6
        s_mov_b32 s6, 0x100000
        s_mov_b32 s7, 0x20000
        s_mov_b64 exec, 1
        """)
        for k in range(1, 20):
            kk = min(k, len((OPT["only"] or DEFAULT_STAMPS).split(",")) + 1)
            b(f"s_sub_u32 s8, {s(sSTAMP + kk)}, {s(sSTAMP)}")
            b("v_mov_b32 v2, s8")
            b(f"buffer_store_dword v2, v0, s[4:7], 0 offen offset:{4 * k}")
        b("@vm all")
    return b


def add_pads(lines):
    out = []
    off = None
    n = 0
    for t in lines:
        if t == "L_body:":
            off = 0
        if off is not None and not t.endswith(":") and not t.startswith("."):
            sz = isize(t)
            if off + sz > 4096 * (n + 1):
                while off < 4096 * (n + 1):
                    out.append("s_nop 0")
                    off += 4
                n += 1
                out.append(f"L_pad{n}:")
                out.append(f"s_cbranch_execz {'L_pad%d' % (n + 1) if n % 2 else 'L_body'}")
                out.append("s_nop 0")
                off += 8
            off += sz
        out.append(t)
    return out, n


def loop_segment(b):
    import re
    m0, m1 = OPT["seg"].split(",")
    i0, i1 = b.index(f"MARK_{m0}:"), b.index(f"MARK_{m1}:")
    body = [x for x in b[i0:i1] if not x.startswith("MARK_")]
    if OPT["drop"]:
        body = [x for x in body if not re.search(OPT["drop"], x)]
    o = Block([x for x in b[:i0] if not x.startswith("MARK_")])
    o("@vm all\n@lg all\ns_barrier\ns_mov_b32 s99, 0\ns_memtime s[96:97]\ns_waitcnt lgkmcnt(0)\n.p2align 6\nL_seg:")
    o(body * 5)
    o("""
    s_add_u32 s99, s99, 1
    s_cmp_lt_u32 s99, 10
    s_cbranch_scc1 L_seg
    @vm all
    s_memtime s[100:101]
    s_load_dwordx2 s[4:5], s[0:1], 72
    s_waitcnt lgkmcnt(0)
    s_sub_u32 s8, s100, s96
    s_lshl_b32 s6, s2, 2
    """ + f"s_add_u32 s6, s6, {s(sW)}" + """
    s_lshl_b32 s6, s6, 7
    v_mov_b32 v0, s6
    s_mov_b32 s6, 0x100000
    s_mov_b32 s7, 0x20000
    s_mov_b64 exec, 1
    v_mov_b32 v2, s8
    buffer_store_dword v2, v0, s[4:7], 0 offen offset:4
    @vm all
    """)
    return o


def build():
    b = gen()
    if OPT["seg"]:
        b = loop_segment(b)
    lines, added = autowait(b, OPT["verbose"])
    bad = 0
    if OPT["align"]:
        lines, bad = fix_align(lines)
    npad = 0
    if OPT["hops"]:
        lines, npad = add_pads(lines)
        for k in range(npad + 1, 9):
            lines = [t.replace(f"L_pad{k}", "L_body") if not t.endswith(":") else t for t in lines]
    trace = [t for t in lines if not t.endswith(":") and not t.startswith(".")]
    errs = check(trace)
    hdr = open("standalone__modern_conv_block_convnext__vision.s.ref").read().split("\n")
    head = [l for l in hdr if l.startswith(";") and "@launch" not in l and "Override" not in l and "grid=ceil" not in l]
    out = head + [f"; @launch grid=(256,1,1) block=(256,1,1) lds={LDS_BYTES}",
                  '.amdgcn_target "amdgcn-amd-amdhsa--gfx950"', ".text", f".globl {KNAME}", ".p2align 12", ".p2align 8",
                  f".type {KNAME},@function", f"{KNAME}:"]
    for t in lines:
        out.append(t if t.endswith(":") or t.startswith(".") else "    " + t)
    out += ["L_end:", "    s_endpgm", '.section .rodata,"a"', ".p2align 6", f".amdhsa_kernel {KNAME}",
            "  .amdhsa_next_free_vgpr 512", "  .amdhsa_next_free_sgpr 102", "  .amdhsa_accum_offset 256",
            "  .amdhsa_group_segment_fixed_size 0", "  .amdhsa_kernarg_size 80", "  .amdhsa_user_sgpr_count 2",
            "  .amdhsa_user_sgpr_kernarg_segment_ptr 1", "  .amdhsa_system_sgpr_workgroup_id_x 1",
            ".end_amdhsa_kernel", ""]
    info = f"{len(trace)} instrs, {sum(isize(t) for t in trace)} bytes, {added} auto waits, {bad} misaligned, {npad} pads, {len(errs)} lint findings"
    return "\n".join(out), errs, info


if __name__ == "__main__":
    path = sys.argv[1]
    for kv in sys.argv[2:]:
        k, val = kv.split("=")
        OPT[k] = val if k.startswith(("probe", "only", "seg", "drop")) else {"0": False, "1": True}.get(val, val.replace("+", " "))
    text, errs, info = build()
    for e in errs:
        print("HAZARD", e)
    open(path, "w").write(text)
    print(f"wrote {path}: {info}")
```

```python
import re

from asmlint import Ins

TRANS = ("v_exp_f32", "v_rcp_f32", "v_rsq_f32")


def vcost(t):
    op = t.split()[0]
    if op.startswith("@"):
        return 4
    if op.startswith("ds_write_b128"):
        return 28
    if op.replace("_e64", "") in TRANS or op.startswith("v_permlane"):
        return 8
    return 4


def fcost(t):
    op = t.split()[0]
    if op.startswith("buffer_"):
        return 14
    if op.startswith("ds_write_b128"):
        return 26
    return 4


def pipe(m):
    return 32 if "32x32" in m else 16


def trun(M, F, V, need=None, head=None, tail=12):
    n = len(M)
    need = need or {}
    G = [[] for _ in range(n)]
    load = [0] * n
    for lo, hi, grp in F:
        lo, hi = max(0, min(lo, n - 1)), min(hi, n - 1)
        cand = range(lo, hi + 1)
        best = min(cand, key=lambda g: (load[g] - (pipe(M[g]) - 16) / 16.0, g))
        G[best] += grp
        load[best] += sum(fcost(x) for x in grp)
    extra = [max(0, load[g] - 4) for g in range(n)]
    total = sum(extra) + sum(vcost(x) for x in V) + 8 * n
    ptot = sum(pipe(m) for m in M) + tail
    lam = total / ptot
    out = list(head or [])
    vi = 0
    acc = 0.0
    pcum = 0.0
    for i in range(n):
        while vi < need.get(i, 0):
            acc += vcost(V[vi])
            out.append(V[vi])
            vi += 1
        out.append(M[i])
        out += G[i]
        acc += 8 + extra[i]
        pcum += pipe(M[i])
        if i == n - 1:
            out += V[vi:]
            vi = len(V)
        else:
            while vi < len(V) and acc + vcost(V[vi]) / 2 <= lam * pcum:
                acc += vcost(V[vi])
                out.append(V[vi])
                vi += 1
    return out


def autowait(lines, verbose=False):
    out = []
    vm, lg = [], []
    pend = {}
    added = 0

    def drain(q, n):
        while len(q) > n:
            e = q.pop(0)
            for r in e[1]:
                if pend.get(r) is e:
                    del pend[r]

    def emit(nv, nl):
        parts = []
        if nv is not None:
            parts.append(f"vmcnt({min(nv, 63)})")
            drain(vm, nv)
        if nl is not None:
            parts.append(f"lgkmcnt({min(nl, 15)})")
            drain(lg, min(nl, 15))
        if out and out[-1].startswith("s_waitcnt"):
            prev = out.pop()
            have = dict(re.findall(r"(\w+)\((\d+)\)", prev))
            for k, val in re.findall(r"(\w+)\((\d+)\)", " ".join(parts)):
                have[k] = str(min(int(val), int(have.get(k, 99))))
            parts = [f"{k}({have[k]})" for k in ("vmcnt", "lgkmcnt") if k in have]
        out.append("s_waitcnt " + " ".join(parts))

    def younger(q, tag):
        idx = [k for k, e in enumerate(q) if e[2] == tag]
        return None if not idx else len(q) - 1 - idx[-1]

    for ln in lines:
        if ln.endswith(":") or ln.startswith("."):
            out.append(ln)
            continue
        if ln.startswith("@"):
            kind, tag = ln[1:].split()
            q = vm if kind == "vm" else lg
            n = 0 if tag == "all" else younger(q, tag)
            if n is not None and (q and len(q) > n):
                emit(n, None) if kind == "vm" else emit(None, n)
            continue
        tag = None
        if ";@" in ln:
            ln, tag = ln.split(";@")
            ln = ln.rstrip()
        i = Ins(ln)
        if i.kind == "wait":
            m = re.search(r"vmcnt\((\d+)\)", ln)
            m2 = re.search(r"lgkmcnt\((\d+)\)", ln)
            emit(int(m.group(1)) if m else None, int(m2.group(1)) if m2 else None)
            continue
        nv = nl = None
        for r in set(i.r + i.w):
            e = pend.get(r)
            if e is None:
                continue
            if e in vm:
                c = len(vm) - 1 - vm.index(e)
                nv = c if nv is None else min(nv, c)
            else:
                c = 0 if any(x[3] for x in lg) else len(lg) - 1 - lg.index(e)
                nl = c if nl is None else min(nl, c)
        if nv is not None or nl is not None:
            added += 1
            if verbose:
                print(f"  auto wait vm={nv} lg={nl} before: {ln}")
            emit(nv, nl)
        out.append(ln)
        if i.kind == "vmem":
            e = [len(out), list(i.w), tag, False]
            vm.append(e)
            for r in i.w:
                pend[r] = e
        elif i.kind in ("lds", "smem"):
            e = [len(out), list(i.w), tag, i.kind == "smem"]
            lg.append(e)
            for r in i.w:
                pend[r] = e
    return out, added


INLINE_INT = set(range(-16, 65))
VOP3_ONLY = ("v_fma_f32", "v_mad_", "v_lshl_add", "v_lshl_or", "v_add3", "v_mul_lo", "v_mul_hi", "v_bfe", "v_perm_",
             "v_pk_", "v_mfma", "v_smfmac", "v_cvt_pk_bf16", "v_lshrrev_b64", "v_accvgpr_write", "v_accvgpr_read",
             "v_and_or", "v_readlane")


def is_literal(p):
    p = p.strip()
    if re.fullmatch(r"-?(0\.5|1\.0|2\.0|4\.0)", p):
        return False
    if re.fullmatch(r"-?(0x[0-9a-fA-F]+|\d+)", p):
        return int(p, 0) not in INLINE_INT
    return bool(re.match(r"L_\w+-", p))


def isize(t):
    t = t.split(";")[0].strip()
    op = t.split()[0]
    i = Ins(t)
    if op.startswith(("ds_", "buffer_", "global_", "s_load", "s_memtime", "s_memreal")) or op.endswith("_dpp"):
        return 8
    if op.startswith("v_"):
        if op.endswith("_e64") or op.startswith(VOP3_ONLY):
            return 8
        if op.startswith("v_cmp") and not i.parts[0] == "vcc":
            return 8
        if op.startswith("v_cndmask") and i.parts[-1] != "vcc":
            return 8
        if any(p.startswith("-v") or p.startswith("-s") for p in i.parts):
            return 8
        if len(i.parts) == 3 and not op.startswith(("v_readfirstlane", "v_cmp")) and not i.parts[2].startswith("v"):
            return 8
        return 8 if any(is_literal(p) for p in i.parts[1:]) else 4
    if op.startswith(("s_waitcnt", "s_nop", "s_barrier", "s_branch", "s_cbranch", "s_endpgm", "s_movk", "s_setprio", "s_getpc", "s_getreg")):
        return 4
    return 8 if any(is_literal(p) for p in i.parts) else 4


WIDENABLE = ("v_exp_f32", "v_rcp_f32", "v_rsq_f32", "v_add_f32", "v_mul_f32", "v_lshlrev_b32", "v_mov_b32", "v_fmac_f32",
             "v_max_f32", "v_add_u32", "v_and_b32", "v_lshrrev_b32", "v_sub_u32", "v_mov_b64")


def fix_align(lines):
    out = []
    off = 0
    run = []
    bad = 0
    for n, t in enumerate(lines):
        if t.endswith(":"):
            out.append(t)
            continue
        if t.startswith(".p2align"):
            out.append(t)
            off = 0
            run = []
            continue
        sz = isize(t)
        if sz == 8:
            if off % 8 == 4:
                c = [k for k in run if out[k].split()[0] in WIDENABLE]
                ahead = 0
                while n + ahead < len(lines) and not lines[n + ahead].endswith(":") and not lines[n + ahead].startswith(".") \
                        and isize(lines[n + ahead]) == 8:
                    ahead += 1
                if c:
                    k = c[-1]
                    op = out[k].split()[0]
                    out[k] = out[k].replace(op, op + "_e64", 1)
                    off += 4
                elif ahead >= 6:
                    out.append("s_nop 0")
                    off += 4
                else:
                    bad += 1
            run = []
        else:
            run.append(len(out))
        out.append(t)
        off += sz
    return out, bad


def gcost(grp):
    sal = [x for x in grp if x.startswith(("@", "s_"))]
    c = 4 * max(0, len(sal) - 1)
    for x in grp:
        if x.startswith("ds_write_b128"):
            c += 20
        elif x.startswith("ds_write"):
            c += 10
        elif not x.startswith(("@", "s_")):
            c += 4
    return c


def trun2(M, F, V, need=None, head=None, steal=(), drain=45, maxsteal=99):
    n = len(M)
    need = need or {}
    G = [[] for _ in range(n)]
    for lo, hi, grp in F:
        lo, hi = max(0, min(lo, n - 1)), min(hi, n - 1)
        best = min(range(lo, hi + 1), key=lambda g: (gcost(G[g] + grp) - (pipe(M[g]) - 16) / 2.0, g))
        if len(grp) == 1 and grp[0].startswith("@"):
            G[best] = grp + G[best]
        else:
            G[best] += grp
    extra = [gcost(g) for g in G]
    room = [max(0, pipe(M[g]) - 8 - extra[g]) for g in range(n - 1)] + [max(0, drain - 8 - extra[-1])]
    lead = sum(vcost(x) for x in V[:need.get(0, 0)])
    have = sum(vcost(x) for x in V) - lead
    ns = 0
    while ns < min(len(steal), maxsteal) and have + 8 * ns + 4 <= sum(room):
        ns += 1
    surplus = max(0, have + 8 * ns - sum(room))
    q4 = [(x, k) for k in range(ns) for x in steal[k][1]]
    out = list(head or [])
    vi = 0
    owed = 0.0
    for i in range(n):
        while vi < need.get(i, 0):
            out.append(V[vi])
            vi += 1
        out.append(M[i])
        out += G[i]
        if i == n - 1:
            break
        owed += room[i] + surplus / n
        while True:
            if vi < len(V) and vcost(V[vi]) <= owed + 0.01:
                owed -= vcost(V[vi])
                out.append(V[vi])
                vi += 1
            elif q4 and owed >= 3.99 and vi > steal[q4[0][1]][2] + 1:
                owed -= 4
                out.append(q4.pop(0)[0])
            else:
                break
        if owed >= 3.99 and vi < len(V) and vcost(V[vi]) == 8:
            owed -= 8
            out.append(V[vi])
            vi += 1
    out += V[vi:] + [x for x, _ in q4]
    return out, ns
```

```python
import math
import struct
import sys

from asmlint import check
from sched import trun, trun2, autowait, fix_align, isize

KNAME = "standalone__modern_conv_block_convnext__vision_kernel"
OPT = dict(nt="", stamps=False, verbose=False, align=True, st_h="sc1", st_f="sc1", st_r="", hops=True, margin=16, nt2="", probe=None, probewg=None, only=None, cut0=0, cut=40, cut2=120, steal=8, drain=45, seg=None, tmaj=0, nop=None, real=False, drop=None, pfslice=True, nstage=0, nstat=0, hide=3, early=6, ilv=12, hoprow=3, rpf=0, rpos=1, xch=1)


def f32bits(x):
    return struct.unpack("<I", struct.pack("<f", x))[0]


def bf16_rne(x):
    u = f32bits(x)
    return (u + 0x7FFF + ((u >> 16) & 1)) >> 16


def bf16_val(h):
    return struct.unpack("<f", struct.pack("<I", h << 16))[0]


C1 = 2.0 * math.sqrt(2.0 / math.pi) * math.log2(math.e)
ALPHA = (C1 * 0.044715) ** (1.0 / 3.0)
CP = C1 / ALPHA
A_HI = bf16_rne(ALPHA)
A_LO = bf16_rne(ALPHA - bf16_val(A_HI))

W2L, W2E = 73728, 110592
XP, XG, XPL = 36864, 5776, 2880
ACT, AP = 36864, 208
TBL = 147456
ST = TBL
RBUF, XCH = 0, 24576
PB1, PB2, PGR, PG, PGB = 159744, 160768, 161792, 162816, 163200
ZERO = PB2 + 512
LDS_BYTES = 163584
ROWB = 43008
XBYTES = 9633792

SRD_X, SRD_DW, SRD_W1, SRD_W2, SRD_A, SRD_B, SRD_O = 20, 24, 28, 32, 36, 40, 48
sROW, sMA, sLUT2 = 44, 45, 46
sW, sPAR, sX0, sY0, sNP = 54, 55, 56, 57, 58
sT0, sT1, sT2, sT3 = 59, 60, 61, 62
sTB = 63
sCP, sONE, sINV, sLUT, sIA, sAL, sEPS, sMASK = 64, 66, 68, 70, 72, 74, 76, 78
sLO, sHI, sM1, sM2 = 10, 11, 14, 15
sS = (16, 17, 3)
sSTAMP = 80

vB2F, vL = 0, 1
vA, vB, vW2A, vW2B, vBA, vBB = 2, 3, 4, 5, 6, 7
vOFA, vRW, vOH, vOR, vGA, vR2A, vL16, vR2B = 8, 9, 10, 11, 12, 13, 14, 15
vR1, vRB, vGH = 16, 17, 18
HR = 16
ACC = {"F": 20, "H": 68}
X = (116, 132, 148)
Z, E, R, H, TMP = 164, 180, 196, 212, 220
CV, AF = 116, 20
vIDX, vTA, vXB, vXW, vXO, vAW, vBF, vBH, vBR, vPF, vB2H, vG, vB2V, vSW, vBQ = range(92, 107)
vD1 = TMP + 35

aSTG = 0
aRB = (72, 108, 144)
aW1, aW2 = 0, (24, 48)
aBt = {"F": 72, "H": 96}
aBR, aRF = 120, 168
aRF2, aRACC = 120, 144
aBIAS, aC32, aC16, aRBIAS, aPFX = 192, 196, 200, 216, 224


def v(i, n=1):
    return f"v{i}" if n == 1 else f"v[{i}:{i+n-1}]"


def a(i, n=1):
    return f"a{i}" if n == 1 else f"a[{i}:{i+n-1}]"


def s(i, n=1):
    return f"s{i}" if n == 1 else f"s[{i}:{i+n-1}]"


def L(t):
    return [x.strip() for x in t.strip("\n").split("\n") if x.strip()]


class Block(list):
    def __call__(self, t):
        self.extend(L(t) if isinstance(t, str) else t)

    def stamp(self, k):
        k = str(k)
        if OPT["seg"]:
            self.append(f"MARK_{k}:")
            return
        if OPT["probe"] is not None and k == "0":
            self("s_memtime s[96:97]")
            return
        if OPT["probe"] is not None:
            names = [OPT["probe"]]
        elif OPT["stamps"]:
            names = ["0"] + (OPT["only"] or DEFAULT_STAMPS).split(",") + ["end"]
        else:
            return
        if k in names:
            self(f"{'s_memrealtime' if OPT['real'] else 's_memtime'} s[100:101]\ns_waitcnt lgkmcnt(0)\ns_mov_b32 {s(sSTAMP + names.index(k))}, s100")


DEFAULT_STAMPS = "1,18,2,3,4,5,7,8,9,T3,P7,T12,P17,P19,T19,16"


def pk(op, d, x, y, z=None, mod=""):
    t = f"v_pk_{op}_f32 {v(d, 2)}, {x}, {y}"
    if z is not None:
        t += f", {z}"
    return t + mod


def p_t(xb, zb, n=16):
    return [pk("fma", zb + i, v(xb + i, 2), v(xb + i, 2), s(sCP, 2)) for i in range(0, n, 2)]


def p_z(xb, zb, n=16):
    return [pk("mul", zb + i, v(zb + i, 2), v(xb + i, 2), mod=" neg_lo:[1,0] neg_hi:[1,0]") for i in range(0, n, 2)]


def p_add(eb, n=16):
    return [pk("add", eb + i, v(eb + i, 2), s(sONE, 2)) for i in range(0, n, 2)]


def p_mul(rb, xb, n=16):
    return [pk("mul", rb + i, v(rb + i, 2), v(xb + i, 2)) for i in range(0, n, 2)]


def t_cvt(hb, rb, n=16):
    return [f"v_cvt_pk_bf16_f32 {v(hb + i // 2)}, {v(rb + i)}, {v(rb + i + 1)}" for i in range(0, n, 2)]


def t_rcp(rb, eb, n=16):
    return [f"v_rcp_f32 {v(rb + i)}, {v(eb + i)}" for i in range(n)]


def t_exp(eb, zb, n=16):
    return [f"v_exp_f32 {v(eb + i)}, {v(zb + i)}" for i in range(n)]


def unpack(dst, src, n):
    o = []
    for i in range(n):
        o += [f"v_lshlrev_b32 {v(dst + 2 * i)}, 16, {v(src + i)}", f"v_and_b32 {v(dst + 2 * i + 1)}, {s(sHI)}, {v(src + i)}"]
    return o


M32 = "v_mfma_f32_32x32x16_bf16"
M16 = "v_mfma_f32_16x16x32_bf16"

SLOTS = ([(t, "a", i, 0) for i in range(3) for t in "FH"] + [("F", "b", i, 0) for i in range(3)]
         + [(t, "a", i, 1) for i in range(3) for t in "HF"] + [("F", "b", i, 1) for i in range(3)])
NS = len(SLOTS)


def neww(j):
    return j == 0 or SLOTS[j][1:] != SLOTS[j - 1][1:]


UNITNO = []
for _j in range(NS):
    UNITNO.append((UNITNO[-1] if UNITNO else -1) + (1 if neww(_j) else 0))


def m_fc1(j):
    xb, bb = X[j % 3], aBt[SLOTS[j][0]]
    o = [f"{M32} {v(xb, 16)}, {a(aBIAS, 4)}, {a(aC32, 4)}, 0"]
    return o + [f"{M32} {v(xb, 16)}, {a(aW1 + 4 * k, 4)}, {a(bb + 4 * k, 4)}, {v(xb, 16)}" for k in range(6)]


def m_fc2(j):
    acc, wb = ACC[SLOTS[j][0]], aW2[UNITNO[j] % 2]
    return [f"{M32} {v(acc + 16 * t, 16)}, {a(wb + 4 * (3 * k + t), 4)}, {v(H + 4 * k, 4)}, "
            + ("0" if (j == 0 and k == 0) else v(acc + 16 * t, 16)) for k in range(2) for t in range(3)]


def r_w1(j):
    _, g, i, late = SLOTS[j]
    off = 12288 * i
    o = [f"ds_read_u16 {a(aBIAS)}, {v(vBA if g == 'a' else vBB)} offset:{128 * i + 384 * late}"]
    return o + [f"ds_read_b64_tr_b16 {a(aW1 + 4 * k + 2 * jj, 2)}, {v(vA if g == 'a' else vB)} offset:{off + 2048 * k + 256 * jj}"
                for k in range(6) for jj in range(2)]


def r_w2(j):
    _, g, i, late = SLOTS[j]
    wb = aW2[UNITNO[j] % 2]
    return [f"ds_read_b64_tr_b16 {a(wb + 4 * (3 * k + t) + 2 * jj, 2)}, {v(vW2A if g == 'a' else vW2B)} "
            f"offset:{12288 * i + 3072 * k + 1536 * jj + 64 * t}" for k in range(2) for t in range(3) for jj in range(2)]


def has(j):
    return 0 <= j < NS


STOLEN = {}


def P(j, pre=(), post=(), late_x=False):
    t = p_t(X[j % 3], Z) if has(j) else []
    z = p_z(X[j % 3], Z) if has(j) else []
    m = p_mul(R, X[(j - 2) % 3])[STOLEN.get(j, 0):] if has(j - 2) else []
    d = p_add(E) if has(j - 1) else []
    core = m + d + t + z if late_x else t + m + z + d
    o = Block(list(pre) + core + list(post))
    o.stamp(f"P{j}")
    return o


def T(j, xM=(), xF=(), xVpre=(), xV=(), xneed=None, tail=12, head=(), tmajor=False, last=("@lg all",)):
    f1 = m_fc1(j + 1) if has(j + 1) else []
    f2 = m_fc2(j - 2) if has(j - 2) else []
    tmajor = tmajor or bool(int(OPT["tmaj"]))
    if tmajor and f2:
        f2 = [f2[3 * k + t] for t in range(3) for k in range(2)]
    M = f1 + f2 + list(xM)
    n = len(M)
    cv = t_cvt(H, R) if has(j - 2) else []
    V = cv + list(xVpre) + (t_rcp(R, E) if has(j - 1) else []) + (t_exp(E, Z) if has(j) else []) + list(xV)
    need = dict(xneed or {})
    if f2:
        need[len(f1)] = max(need.get(len(f1), 0), 6)
        k1 = len(f1) + (1 if tmajor else 3)
        need[k1] = max(need.get(k1, 0), 10 if len(V) >= 10 else len(V))
    F = list(xF)
    nm = len(f1) + len(f2) + sum("32x32" in m for m in xM)
    hi = max(0, nm - 4)
    if has(j + 2) and neww(j + 2):
        w = r_w1(j + 2)
        F += [(1 + k, max(1 + k, hi), [w[1 + 2 * k + jj]]) for k in range(5, -1, -1) for jj in range(2)] + [(0, hi, w[:1])]
    if has(j - 1) and neww(j - 1):
        F += [(0, hi, [x]) for x in r_w2(j - 1)]
    F += [(n - 1, n - 1, [x]) for x in last]
    steal = []
    if has(j - 1):
        base = len(cv) + len(xVpre)
        xb = X[(j - 1) % 3]
        steal = [(None, [f"v_mul_f32 {v(R + i + k)}, {v(R + i + k)}, {v(xb + i + k)}" for k in range(2)], base + i + 1)
                 for i in range(0, 16, 2)]
    o, STOLEN[j + 1] = trun2(M, F, V, need, list(head), steal, int(OPT["drain"]), int(OPT["steal"]))
    o = Block(o)
    o.stamp(f"T{j}")
    return o


def gen():
    b = Block()
    nt = OPT["nt"]
    t0, t1, t2, t3, t4, t5 = range(TMP, TMP + 6)
    vTB, vZ = TMP + 20, TMP + 24

    if OPT["pfslice"]:
        pfcalc = f"s_lshr_b32 s3, s2, 3\ns_lshl_b32 s3, s3, 10\nv_and_b32 {v(t0)}, 7, v0\nv_lshl_add_u32 {v(t0)}, {v(t0)}, 7, s3"
    else:
        pfcalc = f"v_lshlrev_b32 {v(t0)}, 7, v0"
    b.stamp(0)
    b(f"""
    s_cmp_ge_u32 s2, 256
    s_cbranch_scc1 L_end
    s_load_dwordx16 s[4:19], s[0:1], 0
    s_getpc_b64 s[52:53]
    L_pc:
    {pfcalc}
    v_min_u32 {v(t0)}, L_end-L_pc, {v(t0)}
    global_load_dword {v(vPF)}, {v(t0)}, s[52:53] ;@pf
    v_lshrrev_b32 {v(t1)}, 6, v0
    v_and_b32 {v(vL)}, 63, v0
    v_readfirstlane_b32 {s(sW)}, {v(t1)}
    s_and_b32 {s(sT0)}, s2, 1
    s_lshl_b32 {s(sT0)}, {s(sT0)}, 3
    s_bfe_u32 {s(sT1)}, s2, 0x30003
    s_add_u32 {s(sT0)}, {s(sT0)}, {s(sT1)}
    s_mul_i32 {s(sX0)}, {s(sT0)}, 14
    s_bfe_u32 {s(sT0)}, s2, 0x20001
    s_lshl_b32 {s(sT0)}, {s(sT0)}, 2
    s_lshr_b32 {s(sT1)}, s2, 6
    s_add_u32 {s(sT0)}, {s(sT0)}, {s(sT1)}
    s_mul_i32 {s(sY0)}, {s(sT0)}, 14
    v_mul_u32_u24 {v(t0)}, 43, {v(vL)}
    v_lshrrev_b32 {v(t0)}, 7, {v(t0)}
    v_mul_u32_u24 {v(t1)}, 3, {v(t0)}
    v_sub_u32 {v(t1)}, {v(vL)}, {v(t1)}
    v_and_b32 {v(t2)}, 7, {v(t0)}
    v_lshrrev_b32 {v(t0)}, 3, {v(t0)}
    v_mad_u32_u24 {v(t0)}, {v(t0)}, 5, {v(t2)}
    v_cmp_le_u32 vcc, 3, {v(t2)}
    v_mul_u32_u24 {v(t0)}, 192, {v(t0)}
    s_mul_i32 {s(sT0)}, {s(sW)}, 48
    s_sub_u32 {s(sT0)}, {s(sT0)}, 576
    v_lshl_add_u32 {v(t0)}, {v(t1)}, 4, {v(t0)}
    v_add_u32 {v(t0)}, {s(sT0)}, {v(t0)}
    v_bfrev_b32 {v(t5)}, 1
    v_cndmask_b32 {v(vTB)}, {v(t5)}, {v(t0)}, vcc
    s_mul_i32 {s(sT1)}, {s(sW)}, 56
    v_add_u32 {v(t1)}, {s(sT1)}, {v(vL)}
    v_mul_u32_u24 {v(t2)}, 171, {v(t1)}
    v_lshrrev_b32 {v(t2)}, 11, {v(t2)}
    s_sub_u32 {s(sT2)}, {s(sX0)}, 2
    v_add_u32 {v(t3)}, {s(sT2)}, {v(t2)}
    v_cmp_gt_u32 vcc, 224, {v(t3)}
    v_cmp_gt_u32 {s(sMASK, 2)}, 18, {v(t2)}
    s_mul_i32 {s(sT3)}, {s(sY0)}, {ROWB}
    s_mul_i32 {s(sT2)}, {s(sT2)}, 192
    s_add_u32 {s(sT3)}, {s(sT3)}, {s(sT2)}
    s_sub_u32 {s(sT3)}, {s(sT3)}, {2 * ROWB}
    s_and_b64 vcc, vcc, {s(sMASK, 2)}
    s_and_b32 vcc_hi, vcc_hi, 0xffffff
    v_lshl_add_u32 {v(vXO)}, {v(t1)}, 4, {s(sT3)}
    s_mul_i32 {s(sTB)}, {s(sW)}, 3072
    v_cndmask_b32 {v(vXO)}, {v(t5)}, {v(vXO)}, vcc
    s_add_u32 {s(sTB)}, {s(sTB)}, {TBL}
    s_mov_b32 m0, {s(sTB)}
    s_mov_b32 {s(SRD_X + 2)}, {XBYTES}
    s_mov_b32 {s(SRD_X + 3)}, 0x20000
    s_movk_i32 {s(SRD_DW + 2)}, 4800
    s_mov_b32 {s(SRD_DW + 3)}, 0x20000
    s_mov_b32 {s(sROW)}, {ROWB}
    """)
    b.append("@@PRE")
    b("s_waitcnt lgkmcnt(0)")
    b.stamp(1)

    def srd(dst, src, nbytes):
        return L(f"""
        s_mov_b32 {s(dst)}, {s(src)}
        s_mov_b32 {s(dst + 1)}, {s(src + 1)}
        s_mov_b32 {s(dst + 2)}, {nbytes}
        s_mov_b32 {s(dst + 3)}, 0x20000
        """)
    def xload(r):
        o = [f"buffer_load_dwordx4 {a(aSTG + 4 * r, 4)}, {v(vXO)}, {s(SRD_X, 4)}, 0 offen {nt} ;@x{r}"]
        if r < 17:
            o.append(f"v_add_u32 {v(vXO)}, {s(sROW)}, {v(vXO)}")
        return o
    b(f"s_mov_b32 {s(SRD_X)}, s4\ns_mov_b32 {s(SRD_X + 1)}, s5")
    b(xload(0))
    b(f"s_mov_b32 {s(SRD_DW)}, s6\ns_mov_b32 {s(SRD_DW + 1)}, s7\ns_mov_b32 exec_hi, 0xffff")
    for d in range(4):
        b(f"buffer_load_dwordx4 {v(vTB)}, {s(SRD_DW, 4)}, 0 offen lds ;@tbl")
        if d < 3:
            b(f"s_add_u32 m0, m0, 768\nv_add_u32 {v(vTB)}, 1920, {v(vTB)}")
    b("s_mov_b32 exec_hi, -1")

    u = Block()
    ka = Block()
    ka(f"""
    s_lshl_b32 s52, {s(sW)}, 3
    s_lshr_b32 s53, 0x30302818, s52
    s_and_b32 s53, s53, 0xff
    s_load_dwordx2 {s(SRD_A, 2)}, s[0:1], s53
    s_lshr_b32 s53, 0x38382010, s52
    s_and_b32 s53, s53, 0xff
    s_load_dwordx2 {s(SRD_B, 2)}, s[0:1], s53
    s_cmp_eq_u32 {s(sW)}, 0
    s_movk_i32 s53, 192
    s_cselect_b32 {s(SRD_A + 2)}, 768, s53
    s_mov_b32 {s(SRD_A + 3)}, 0x20000
    s_min_u32 {s(sMA)}, {s(sW)}, 2
    s_lshl_b32 {s(sMA)}, {s(sMA)}, 10
    s_add_u32 {s(sMA)}, {s(sMA)}, {PB1}
    s_mov_b32 {s(SRD_B + 3)}, 0x20000
    """)
    for dst, src, n in ((SRD_W1, 8, 73728), (SRD_W2, 12, 73728), (SRD_O, 18, XBYTES)):
        ka(srd(dst, src, n))
    lut = 0
    for cp, col in enumerate([0, 4, 8, 12, 1, 5, 9, 13, 2, 6, 10, 3, 7, 11]):
        lut |= col << (4 * cp)
    lut2 = 0
    for rho in range(14):
        lut2 |= (4 * ((rho & 7) >> 1) + 2 * (rho >> 3) + (rho & 1)) << (4 * rho)
    lg, lxg, lrp, lh, lq, lr, l31, lh16 = range(TMP + 8, TMP + 16)
    ka(f"""
    s_mov_b32 {s(sLO)}, 0xffff
    s_mov_b32 {s(sHI)}, 0xffff0000
    s_mul_i32 {s(sM1)}, {s(sW)}, 3072
    s_mul_i32 {s(sM2)}, {s(sW)}, 9216
    s_mul_i32 {s(sS[0])}, {s(sW)}, 18432
    s_add_u32 {s(sS[1])}, {s(sS[0])}, 5120
    s_add_u32 {s(sS[2])}, {s(sS[0])}, 10240
    """)
    zv = [f"{M32} {v(CV + 16 * i, 16)}, {v(vZ, 4)}, {v(vZ, 4)}, 0" for i in range(6)]
    za = [f"{M32} {a(192 + 16 * i, 16)}, {v(vZ, 4)}, {v(vZ, 4)}, 0" for i in range(2)]
    za += [f"{M16} {a(rb + 32, 4)}, {v(vZ, 4)}, {v(vZ, 4)}, 0" for rb in aRB]
    u(f"""
    v_mov_b64 {v(vZ, 2)}, 0
    v_mov_b64 {v(vZ + 2, 2)}, 0
    s_and_b32 {s(sPAR)}, {s(sW)}, 1
    s_xor_b32 {s(sNP)}, {s(sPAR)}, 1
    v_mul_u32_u24 {v(t3)}, 12, {v(t2)}
    v_sub_u32 {v(t3)}, {v(t1)}, {v(t3)}
    v_subrev_u32 {v(t4)}, 56, {v(vL)}
    v_cmp_gt_u32 vcc, 56, {v(vL)}
    v_mov_b32 {v(t0)}, 18
    v_lshrrev_b32 {v(lg)}, 4, {v(vL)}
    v_cndmask_b32 {v(t3)}, {v(t4)}, {v(t3)}, vcc
    v_cndmask_b32 {v(t2)}, {v(t0)}, {v(t2)}, vcc
    v_mul_u32_u24 {v(t3)}, {XG}, {v(t3)}
    v_lshl_add_u32 {v(t3)}, {v(t2)}, 3, {v(t3)}
    v_add_u32 {v(vXW)}, {XP}, {v(t3)}
    v_and_b32 {v(lxg)}, 3, {v(vL)}
    v_bfe_u32 {v(lr)}, {v(vL)}, 2, 2
    v_lshrrev_b32 {v(lh)}, 5, {v(vL)}
    v_and_b32 {v(lq)}, 1, {v(lg)}
    v_and_b32 {v(l31)}, 31, {v(vL)}
    v_lshlrev_b32 {v(vL16)}, 4, {v(vL)}
    v_lshlrev_b32 {v(lh16)}, 4, {v(lh)}
    v_mul_u32_u24 {v(vIDX)}, 0x5555, {v(lxg)}
    v_lshl_add_u32 {v(t0)}, {v(lg)}, 2, {v(lr)}
    v_sub_u32 {v(t1)}, {v(t0)}, {v(lxg)}
    v_mul_u32_u24 {v(t1)}, 48, {v(t1)}
    s_add_u32 {s(sT0)}, {s(sTB)}, 144
    v_add_u32 {v(vTA)}, {s(sT0)}, {v(t1)}
    v_mul_u32_u24 {v(t0)}, 192, {v(t0)}
    v_lshl_add_u32 {v(t0)}, {v(lxg)}, 3, {v(t0)}
    s_mul_i32 {s(sT0)}, {s(sW)}, 6144
    s_add_u32 {s(sT1)}, {s(sT0)}, {W2L + 2 * 6144}
    v_add_u32 {v(vR2A)}, {s(sT1)}, {v(t0)}
    s_add_u32 {s(sT1)}, {s(sT0)}, {W2E + 4 * 6144}
    s_add_u32 {s(sT2)}, {s(sT0)}, {W2L - 2 * 6144}
    s_cmp_lt_u32 {s(sW)}, 2
    s_cselect_b32 {s(sT1)}, {s(sT1)}, {s(sT2)}
    v_add_u32 {v(vR2B)}, {s(sT1)}, {v(t0)}
    v_add_u32 {v(vRW)}, {s(sT0)}, {v(vL16)}
    v_lshlrev_b32 {v(t0)}, 1, {v(lxg)}
    v_add_u32 {v(t0)}, {v(t0)}, {v(lg)}
    v_min_u32 {v(t0)}, 8, {v(t0)}
    v_mul_u32_u24 {v(t1)}, 640, {v(lr)}
    s_mul_i32 {s(sT0)}, {s(sW)}, {3 * XG}
    s_add_u32 {s(sT0)}, {s(sT0)}, {XP}
    v_lshl_add_u32 {v(t0)}, {v(t0)}, 4, {v(t1)}
    v_add_u32 {v(vXB)}, {s(sT0)}, {v(t0)}
    v_lshrrev_b32 {v(t0)}, 2, {v(l31)}
    v_mul_u32_u24 {v(t0)}, 768, {v(t0)}
    v_lshl_add_u32 {v(t0)}, {v(lh)}, 6, {v(t0)}
    v_lshl_add_u32 {v(vD1)}, {v(lxg)}, 4, {v(t0)}
    v_min_u32 {v(t0)}, 11, {v(vL)}
    v_mul_u32_u24 {v(t0)}, {XG - 16}, {v(t0)}
    v_min_u32 {v(t1)}, 31, {v(vL)}
    v_lshl_add_u32 {v(t0)}, {v(t1)}, 4, {v(t0)}
    v_add_u32 {v(t0)}, {XP + 2 * XPL}, {v(t0)}
    """)
    u(f"ds_write_b128 {v(t0)}, {v(vZ, 4)}")
    pF, pH, pR = TMP + 16, TMP + 17, TMP + 18
    u(f"""
    s_mov_b32 {s(sCP)}, {f32bits(CP):#x}
    s_mov_b32 {s(sCP + 1)}, {f32bits(CP):#x}
    s_mov_b32 {s(sONE)}, 1.0
    s_mov_b32 {s(sONE + 1)}, 1.0
    s_mov_b32 {s(sINV)}, {f32bits(1 / 96):#x}
    s_mov_b32 {s(sINV + 1)}, {f32bits(1 / 96):#x}
    s_mov_b32 {s(sIA)}, {f32bits(1 / ALPHA):#x}
    s_mov_b32 {s(sIA + 1)}, {f32bits(1 / ALPHA):#x}
    s_mov_b32 {s(sAL)}, {f32bits(ALPHA):#x}
    s_mov_b32 {s(sAL + 1)}, {f32bits(ALPHA):#x}
    s_mov_b32 {s(sEPS)}, {f32bits(1e-5):#x}
    s_mov_b32 {s(sEPS + 1)}, {f32bits(1e-5):#x}
    s_mov_b32 {s(sLUT)}, {lut & 0xffffffff:#x}
    s_mov_b32 {s(sLUT + 1)}, {lut >> 32:#x}
    s_mov_b32 {s(sLUT2)}, {lut2 & 0xffffffff:#x}
    s_mov_b32 {s(sLUT2 + 1)}, {lut2 >> 32:#x}
    v_lshrrev_b32 {v(t0)}, 1, {v(lg)}
    v_and_b32 {v(t0)}, {v(t0)}, {v(lg)}
    v_lshl_add_u32 {v(t1)}, {v(lg)}, 2, {v(lxg)}
    v_sub_u32 {v(t1)}, {v(t1)}, {v(t0)}
    v_mad_u32_u24 {v(t1)}, {v(lr)}, 28, {v(t1)}
    v_lshl_add_u32 {v(t2)}, {v(lxg)}, 2, {v(lg)}
    v_cmp_gt_u32 vcc, 14, {v(t2)}
    v_mul_u32_u24 {v(t1)}, {AP}, {v(t1)}
    s_mul_i32 {s(sT0)}, {s(sW)}, 48
    s_add_u32 {s(sT0)}, {s(sT0)}, {ACT}
    v_add_u32 {v(t1)}, {s(sT0)}, {v(t1)}
    v_add_u32 {v(t2)}, {ACT + 196 * AP}, {v(vL16)}
    v_cndmask_b32 {v(vAW)}, {v(t2)}, {v(t1)}, vcc
    s_lshl_b32 {s(sT0)}, {s(sW)}, 5
    v_add_u32 {v(pF)}, {s(sT0)}, {v(l31)}
    s_lshr_b32 {s(sT0)}, {s(sW)}, 1
    s_lshl_b32 {s(sT0)}, {s(sT0)}, 5
    s_add_u32 {s(sT0)}, {s(sT0)}, 128
    s_lshl_b32 {s(sT1)}, {s(sPAR)}, 4
    v_xor_b32 {v(pH)}, {s(sT1)}, {v(l31)}
    v_add_u32 {v(pH)}, {s(sT0)}, {v(pH)}
    s_add_u32 {s(sT0)}, {s(sT0)}, {s(sT1)}
    v_and_b32 {v(pR)}, 15, {v(vL)}
    v_add_u32 {v(pR)}, {s(sT0)}, {v(pR)}
    v_add_u32 {v(t1)}, {ACT}, {v(lh16)}
    s_movk_i32 {s(sT1)}, {AP}
    v_mad_u32_u24 {v(vBF)}, {v(pF)}, {s(sT1)}, {v(t1)}
    v_mad_u32_u24 {v(vBH)}, {v(pH)}, {s(sT1)}, {v(t1)}
    v_lshlrev_b32 {v(t1)}, 4, {v(lg)}
    v_add_u32 {v(t1)}, {ACT + 192 * AP}, {v(t1)}
    v_mad_u32_u24 {v(vBR)}, {v(lxg)}, {s(sT1)}, {v(t1)}
    s_mul_i32 {s(sT2)}, {s(sY0)}, 224
    s_add_u32 {s(sT2)}, {s(sT2)}, {s(sX0)}
    s_movk_i32 {s(sT3)}, 224
    """)
    for p, dst in ((pF, vOFA), (pR, vOH)):
        u(f"""
        v_mul_u32_u24 {v(t1)}, 2341, {v(p)}
        v_lshrrev_b32 {v(t1)}, 15, {v(t1)}
        v_mul_u32_u24 {v(t2)}, 14, {v(t1)}
        v_sub_u32 {v(t2)}, {v(p)}, {v(t2)}
        v_lshlrev_b32 {v(t2)}, 2, {v(t2)}
        v_lshrrev_b64 {v(t4, 2)}, {v(t2)}, {s(sLUT, 2)}
        v_and_b32 {v(t2)}, 15, {v(t4)}
        v_lshlrev_b32 {v(t1)}, 2, {v(t1)}
        v_lshrrev_b64 {v(t4, 2)}, {v(t1)}, {s(sLUT2, 2)}
        v_and_b32 {v(t1)}, 15, {v(t4)}
        v_mad_u32_u24 {v(t1)}, {v(t1)}, {s(sT3)}, {v(t2)}
        v_add_u32 {v(t1)}, {s(sT2)}, {v(t1)}
        v_mul_u32_u24 {v(dst)}, 192, {v(t1)}
        """)
    u(f"""
    s_lshl_b32 {s(sT0)}, {s(sW)}, 2
    s_lshr_b32 {s(sT0)}, 0xb73a, {s(sT0)}
    s_and_b32 {s(sT0)}, {s(sT0)}, 15
    s_add_u32 {s(sT0)}, {s(sT0)}, {s(sT2)}
    s_add_u32 {s(sT0)}, {s(sT0)}, {11 * 224}
    s_mul_i32 {s(sT0)}, {s(sT0)}, 192
    v_lshl_add_u32 {v(t1)}, {v(vL)}, 3, {s(sT0)}
    v_cmp_gt_u32 vcc, 24, {v(vL)}
    v_bfrev_b32 {v(t5)}, 1
    v_add_u32 {v(vOFA)}, {v(vOFA)}, {v(lh16)}
    v_lshl_add_u32 {v(t2)}, {v(lq)}, 5, {v(lh16)}
    v_cndmask_b32 {v(vOR)}, {v(t5)}, {v(t1)}, vcc
    v_add_u32 {v(vOH)}, {v(vOH)}, {v(t2)}
    v_lshlrev_b32 {v(t1)}, 5, {v(lh)}
    v_add_u32 {v(vGA)}, {PG}, {v(t1)}
    s_lshl_b32 {s(sT0)}, {s(sPAR)}, 6
    s_lshl_b32 {s(sT1)}, {s(sNP)}, 6
    v_lshlrev_b32 {v(t1)}, 1, {v(l31)}
    v_add_u32 {v(t1)}, {PB1}, {v(t1)}
    v_add_u32 {v(vBA)}, {s(sT0)}, {v(t1)}
    v_add_u32 {v(vBB)}, {s(sT1)}, {v(t1)}
    v_lshlrev_b32 {v(t0)}, 6, {v(lr)}
    v_lshl_add_u32 {v(t0)}, {v(lxg)}, 3, {v(t0)}
    v_lshl_add_u32 {v(t1)}, {v(lg)}, 10, {v(t0)}
    s_lshr_b32 {s(sT2)}, {s(sW)}, 1
    s_mul_i32 {s(sT2)}, {s(sT2)}, 12288
    s_lshl_b32 {s(sT0)}, {s(sPAR)}, 9
    s_lshl_b32 {s(sT1)}, {s(sNP)}, 9
    s_add_u32 {s(sT2)}, {s(sT2)}, {s(sT0)}
    v_add_u32 {v(vR1)}, {s(sT2)}, {v(t1)}
    v_lshl_add_u32 {v(t0)}, {v(lh)}, 10, {v(t0)}
    v_lshl_add_u32 {v(t0)}, {v(lq)}, 5, {v(t0)}
    v_add_u32 {v(vA)}, {s(sT0)}, {v(t0)}
    v_add_u32 {v(vB)}, {s(sT1)}, {v(t0)}
    v_and_b32 {v(t0)}, 15, {v(vL)}
    s_lshl_b32 {s(sT0)}, {s(sW)}, 6
    s_add_u32 {s(sT0)}, {s(sT0)}, {PB1}
    v_lshl_add_u32 {v(vRB)}, {v(t0)}, 1, {s(sT0)}
    v_lshl_add_u32 {v(t0)}, {v(lh)}, 2, {v(lr)}
    v_mul_u32_u24 {v(t0)}, 192, {v(t0)}
    v_and_b32 {v(t1)}, 1, {v(lxg)}
    v_lshrrev_b32 {v(t2)}, 1, {v(lxg)}
    v_lshl_add_u32 {v(t1)}, {v(t1)}, 1, {v(t2)}
    v_lshl_add_u32 {v(t0)}, {v(t1)}, 3, {v(t0)}
    v_lshl_add_u32 {v(t0)}, {v(lq)}, 5, {v(t0)}
    s_mul_i32 {s(sT0)}, {s(sPAR)}, 6144
    s_add_u32 {s(sT0)}, {s(sT0)}, {W2E}
    s_mul_i32 {s(sT1)}, {s(sNP)}, 6144
    s_add_u32 {s(sT1)}, {s(sT1)}, {W2E}
    v_add_u32 {v(vW2A)}, {s(sT0)}, {v(t0)}
    v_add_u32 {v(vW2B)}, {s(sT1)}, {v(t0)}
    v_and_b32 {v(t1)}, 1, {v(lr)}
    v_lshrrev_b32 {v(t2)}, 1, {v(lr)}
    v_lshlrev_b32 {v(t2)}, 2, {v(t2)}
    v_lshl_add_u32 {v(t1)}, {v(t1)}, 3, {v(t2)}
    v_add_u32 {v(t1)}, {v(t1)}, {v(lxg)}
    v_lshl_add_u32 {v(t1)}, {v(lq)}, 4, {v(t1)}
    v_lshlrev_b32 {v(t1)}, 1, {v(t1)}
    v_add_u32 {v(vB2F)}, {PB2}, {v(t1)}
    v_cmp_eq_u32 vcc, {s(sPAR)}, {v(vZ)}
    v_mov_b32 {v(t2)}, {ZERO}
    v_mov_b32 {v(t0)}, {A_HI:#x}
    v_cndmask_b32 {v(vB2H)}, {v(t2)}, {v(vB2F)}, vcc
    v_mov_b32 {v(t1)}, {A_LO:#x}
    v_cmp_eq_u32 vcc, 0, {v(lh)}
    v_cmp_eq_u32 {s(sMASK, 2)}, 0, {v(lg)}
    v_mov_b32 {v(t3)}, 0
    v_cndmask_b32 {v(t2)}, {v(t1)}, {v(t0)}, vcc
    v_accvgpr_write_b32 {a(aC32)}, {v(t2)}
    v_cndmask_b32 {v(t2)}, {v(t1)}, {v(t0)}, {s(sMASK, 2)}
    v_cndmask_b32 {v(t2)}, {v(t3)}, {v(t2)}, vcc
    v_mov_b32 {v(t1)}, {ZERO}
    """)
    for q in range(4):
        u(f"""
        v_cmp_eq_u32 vcc, {q}, {v(lr)}
        s_nop 1
        v_cndmask_b32 {v(t0)}, {v(t3)}, {v(t2)}, vcc
        v_cndmask_b32 {v(vBQ + q)}, {v(t1)}, {v(vBR)}, vcc
        v_accvgpr_write_b32 {a(aC16 + 4 * q)}, {v(t0)}
        """)
    u(f"""
    s_lshl_b32 {s(sT0)}, {s(sW)}, 10
    s_add_u32 {s(sT0)}, {s(sT0)}, {ST}
    v_add_u32 {v(vSW)}, {s(sT0)}, {v(vL16)}
    s_lshr_b32 {s(sT0)}, s2, 3
    s_mul_i32 {s(sT0)}, {s(sT0)}, 2304
    s_mul_i32 {s(sT1)}, {s(sPAR)}, 13
    s_add_u32 {s(sT1)}, {s(sT1)}, {s(sY0)}
    s_mul_i32 {s(sT1)}, {s(sT1)}, {ROWB}
    s_mul_i32 {s(sT2)}, {s(sX0)}, 192
    s_add_u32 {s(sT1)}, {s(sT1)}, {s(sT2)}
    s_cmp_lt_u32 {s(sW)}, 2
    s_cselect_b32 {s(sT0)}, {s(sT0)}, {s(sT1)}
    s_cselect_b32 {s(sT1)}, 18, 1
    s_cselect_b32 {s(SRD_B + 2)}, {s(SRD_W1 + 2)}, {s(SRD_O + 2)}
    v_lshl_add_u32 {v(t4)}, {v(vL)}, 7, {s(sT0)}
    v_cmp_gt_u32 vcc, {s(sT1)}, {v(vL)}
    s_nop 1
    v_cndmask_b32 {v(t4)}, {v(t5)}, {v(t4)}, vcc
    """)
    zs = za + zv
    w = Block()
    for n, x in enumerate(u):
        w.append(x)
        if n >= 4 and n % 7 == 4 and zs:
            w.append(zs.pop(0))
    assert not zs
    n0 = int(OPT["cut0"])
    while next((x for x in w[n0:] if x.startswith(("s_cmp", "s_cselect"))), "s_cmp").startswith("s_cselect"):
        n0 -= 1
    k0 = b.index("@@PRE")
    b[k0:k0 + 1] = w[:n0]
    u = Block(ka + w[n0:])
    ncut = int(OPT["cut"])
    b(u[:ncut])
    b.stamp(18)
    nh = int(OPT["hide"]) * (17 - int(OPT["early"]))
    kpre = next(k for k, x in enumerate(u) if x.startswith(f"s_lshr_b32 {s(sT0)}, s2, 3"))
    k1 = kpre - nh
    hidden = u[k1:kpre]
    pre = [x.replace(s(sT0), "s52").replace(s(sT1), "s53").replace(s(sT2), "s12").replace(v(t4), v(vG)).replace(v(t5), v(vB2V))
           .replace("vcc", s(18, 2)) for x in u[kpre:]]
    mid = u[ncut:k1] + [f"v_bfrev_b32 {v(vB2V)}, 1"] + pre
    per = min((len(mid) + 10) // 11, int(OPT["ilv"]))
    for r in range(1, 12):
        b(xload(r))
        b(mid[per * (r - 1):per * r])
    b(mid[per * 11:])
    b.stamp(2)

    hop = L(f"""
    s_mov_b64 exec, 0
    s_cmp_eq_u32 {s(sW)}, 1
    s_cbranch_scc1 L_pad3
    s_cmp_eq_u32 {s(sW)}, 2
    s_cbranch_scc1 L_pad5
    s_cmp_eq_u32 {s(sW)}, 3
    s_cbranch_scc1 L_pad7
    s_branch L_pad1
    .p2align 12
    L_body:
    s_mov_b64 exec, -1
    """)
    slots = L(f"""
    s_mov_b32 m0, {s(sMA)}
    buffer_load_dword {v(vB2V)}, {v(vG)}, {s(SRD_B, 4)}, 0 offen
    buffer_load_dwordx4 {v(vL16)}, {s(SRD_A, 4)}, 0 offen lds ;@par
    """)
    b("@lg all\n@vm tbl")
    b([f"ds_read_b64_tr_b16 {v(AF + (3 * j + t) * 4 + 2, 2)}, {v(vTA)} offset:{768 * t + 8 * j} ;@ard" for j in range(6) for t in range(3)])
    b.stamp(3)
    aexp = []
    for g in range(18):
        q = AF + 4 * g
        aexp += [f"v_and_b32 {v(q)}, {s(sLO)}, {v(q + 2)}", f"v_and_b32 {v(q + 1)}, {s(sHI)}, {v(q + 2)}",
                 f"v_and_b32 {v(q + 2)}, {s(sLO)}, {v(q + 3)}", f"v_and_b32 {v(q + 3)}, {s(sHI)}, {v(q + 3)}"]

    def w1dma(p, tag):
        o = []
        for i in range(3):
            pre = [f"s_add_u32 m0, {s(sM1)}, {12288 * p - 128 * p}", "s_nop 0"] if i == 0 else []
            o.append(pre + [f"buffer_load_dwordx4 {v(vD1)}, {s(SRD_W1, 4)}, {s(sS[i])} offen offset:{1024 * i + 128 * p} lds ;@{tag}"])
        return o

    def w2dma(late, tag):
        o = []
        for c in range(9):
            g = c >> 2
            pre = [f"s_add_u32 m0, {s(sM2)}, {(W2L if late else W2E) + 4096 * g}",
                   f"s_add_u32 {s(sT3)}, {s(sM2)}, {36864 * late + 4096 * g}"] if c % 4 == 0 else []
            o.append(pre + [f"buffer_load_dwordx4 {v(vL16)}, {s(SRD_W2, 4)}, {s(sT3)} offen offset:{1024 * (c & 3)} lds ;@{tag}"])
        return o
    early = (w1dma(0, "w1e") + w1dma(1, "w1e") + w1dma(2, "w1e"), w2dma(0, "w2e"))

    def stage(r):
        return [f"@vm x{r}", f"ds_write_b64 {v(vXW)}, {a(aSTG + 4 * r, 2)} offset:{160 * r}",
                f"ds_write_b64 {v(vXW)}, {a(aSTG + 4 * r + 2, 2)} offset:{XPL + 160 * r}"]
    dmas = early[0] + early[1]
    nst = int(OPT["nstage"])
    ne = int(OPT["early"])
    for r in range(12 + ne, 18):
        b(xload(r))
    if ne == 0:
        b(slots)
    vq = aexp + hidden + [f"v_lshlrev_b32 {v(vG)}, 2, {v(vL)}", f"v_add_u32 {v(vG)}, {PB2}, {v(vG)}"]
    per = (len(vq) + 16 - ne) // (17 - ne)
    for r in range(18):
        if r == ne + 1:
            b("@lg ard")
        if r > ne:
            b(vq[per * (r - ne - 1):per * (r - ne)])
        b(stage(r))
        if r < ne:
            b(xload(12 + r))
            if r == ne - 1:
                b(slots)
        if OPT["hops"] and r == int(OPT["hoprow"]):
            b(hop)
        b.stamp(f"x{r}")
        if r >= 18 - nst:
            b(dmas.pop(0))
    b("@lg all\ns_barrier")
    b.stamp(4)

    S, TP, TU, S2 = TMP, TMP + 8, H, H

    def acc(k, j):
        return CV + (k * 6 + j) * 4

    def reads(j):
        return [f"ds_read_b128 {a(aRB[j % 3] + 4 * r, 4)}, {v(vXB)} offset:{(j >> 1) * XG + (j & 1) * XPL + r * 160} ;@q{j}_{r}"
                for r in range(8)]

    def part(j):
        o = []
        for k in range(4):
            d = acc(k, j)
            o += [f"v_add_f32 {v(TP + 4 * j + k)}, {v(d)}, {v(d + 1)}", f"v_add_f32 {v(TU + k)}, {v(d + 2)}, {v(d + 3)}"]
        return o + [f"v_add_f32 {v(TP + 4 * j + k)}, {v(TP + 4 * j + k)}, {v(TU + k)}" for k in range(4)]
    b(reads(0))
    nstat = int(OPT["nstat"])
    sdma = dmas[len(dmas) - nstat:]
    dmas = dmas[:len(dmas) - nstat]
    ncv = len(dmas)
    where = {(72 * q + 36) // ncv: q for q in range(ncv)}
    pend = []
    rd = reads(1)
    for j in range(6):
        if j:
            b(f"@lg q{j}_7")
        rd += reads(j + 2) if j < 4 else []
        for n in range(12):
            t, k = n >> 2, n & 3
            if j == 0 and n in (0, 2, 4, 6):
                b(f"@lg q0_{(2, 4, 5, 7)[n // 2]}")
            b(f"v_smfmac_f32_16x16x64_bf16 {v(acc(k, j), 4)}, {v(AF + (3 * j + t) * 4, 4)}, {a(aRB[j % 3] + 4 * (k + 2 * t), 8)}, {v(vIDX)}")
            m = 12 * j + n
            if n == 4 and 0 < j < 5:
                pend += part(j - 1)
            if m in where:
                b(dmas[where[m]][-1:])
                continue
            pre = [x for x in dmas[where[m + 2]][:-1] if x != "s_nop 0"] if m + 2 in where else []
            b(pre)
            if rd and (not pre or j == 0):
                b(rd.pop(0))
                if j == 0 and rd and n < 9:
                    b(rd.pop(0))
            if pend:
                b(pend.pop(0))
        assert len(rd) == 0, (j, rd)
    b.stamp(5)
    g0, g1, ga = AF + 16, AF + 18, vG
    b(pend)
    U = AF + 8
    for i in range(0, 24, 2):
        for k in range(4):
            d = acc(k, 0) + i
            b(pk("mul", AF + 2 * k, v(d, 2), v(d, 2)) if i == 0 else pk("fma", AF + 2 * k, v(d, 2), v(d, 2), v(AF + 2 * k, 2)))
        if sdma and i % 4 == 0:
            b(sdma.pop(0))
    for x in sdma:
        b(x)
    for k in range(4):
        b(pk("add", U + 2 * k, v(acc(k, 4), 2), v(acc(k, 4) + 2, 2)))
    for o in (0, 2):
        b(pk("add", TP + o, v(TP + o, 2), v(TP + 4 + o, 2)))
        b(pk("add", TP + 8 + o, v(TP + 8 + o, 2), v(TP + 12 + o, 2)))
    for i in (0, 2):
        for k in range(4):
            b(pk("add", U + 2 * k, v(U + 2 * k, 2), v(acc(k, 5) + i, 2)))
    for o in (0, 2):
        b(pk("add", TP + o, v(TP + o, 2), v(TP + 8 + o, 2)))
    for k in range(4):
        b(f"v_add_f32 {v(S + 4 * (k >> 1) + 2 + (k & 1))}, {v(AF + 2 * k)}, {v(AF + 2 * k + 1)}")
        b(f"v_add_f32 {v(TP + 4 + k)}, {v(U + 2 * k)}, {v(U + 2 * k + 1)}")
    for o in (0, 2):
        b(pk("add", S + 2 * o, v(TP + o, 2), v(TP + 4 + o, 2)))
    b(f"""
    ds_write_b128 {v(vSW)}, {v(S, 4)}
    ds_write_b128 {v(vSW)}, {v(S + 4, 4)} offset:4096
    v_add_u32 {v(vSW)}, {ST}, {v(vL16)}
    @vm w1e
    @lg all
    s_barrier
    """)
    b.stamp(7)

    Q = TMP
    for ph in range(2):
        for w in range(4):
            b(f"ds_read_b128 {v(Q + 16 * ph + 4 * w, 4)}, {v(vSW)} offset:{4096 * ph + 1024 * w} ;@s{ph}")
    pre = r_w1(0) + [f"ds_read_u16 {a(aRBIAS + 2 * t)}, {v(vB2H)} offset:{64 * t}" for t in range(3)]
    pre += [f"ds_read_b32 {v(g0 + 1)}, {v(ga)} offset:{PGR - PB2}", f"ds_read_b32 {v(g1 + 1)}, {v(ga)}"]
    b(pre[:7])
    qs = (Q, Q + 16)
    for ph, q in enumerate(qs):
        b(f"@lg s{ph}")
        if ph:
            b(pre[7:])
        for o in (0, 2):
            b(pk("add", q + o, v(q + o, 2), v(q + 4 + o, 2)))
            b(pk("add", q + 8 + o, v(q + 8 + o, 2), v(q + 12 + o, 2)))
    for o in (0, 2):
        for q in qs:
            b(pk("add", q + o, v(q + o, 2), v(q + 8 + o, 2)))
    for o in (0, 2):
        for q in qs:
            b(pk("mul", q + o, v(q + o, 2), s(sINV, 2)))
    for q in qs:
        b(pk("fma", q + 2, v(q, 2), v(q, 2), v(q + 2, 2), " neg_lo:[1,0,0] neg_hi:[1,0,0]"))
    for q in qs:
        b(f"v_max_f32 {v(q + 2)}, 0, {v(q + 2)}\nv_max_f32 {v(q + 3)}, 0, {v(q + 3)}")
    for q in qs:
        b(pk("add", q + 2, v(q + 2, 2), s(sEPS, 2)))
    for q in qs:
        b(f"v_rsq_f32 {v(q + 2)}, {v(q + 2)}\nv_rsq_f32 {v(q + 3)}, {v(q + 3)}")
    for q in qs:
        b(pk("mul", q + 2, v(q + 2, 2), s(sAL, 2)))
    for q in qs:
        b(pk("mul", q, v(q, 2), v(q + 2, 2), mod=" neg_lo:[1,0] neg_hi:[1,0]"))
    wr = []
    for k in range(4):
        ph, sx = k >> 1, k & 1
        base, q = CV + 24 * k, qs[ph]
        for jj in range(3):
            for i in range(8 * jj, 8 * jj + 8, 2):
                b(pk("fma", base + i, v(base + i, 2), v(q + 2, 2), v(q, 2), f" op_sel:[0,{sx},{sx}] op_sel_hi:[1,{sx},{sx}]"))
            for i in range(4 * jj, 4 * jj + 4):
                b(f"v_cvt_pk_bf16_f32 {v(base + 4 * jj + i)}, {v(base + 2 * i)}, {v(base + 2 * i + 1)}")
            b(f"ds_write_b128 {v(vAW)}, {v(base + 8 * jj, 4)} offset:{(8 * ph + sx) * 14 * AP + 16 * jj}")
    b("@lg all\ns_barrier")
    b.stamp(8)

    b([f"ds_read_b128 {a(aBt['F'] + 4 * k, 4)}, {v(vBF)} offset:{32 * k} ;@bf{k}" for k in range(6)])
    b([f"ds_read_b128 {a(aBt['H'] + 4 * k, 4)}, {v(vBH)} offset:{32 * k}" for k in range(6)])
    late = w1dma(3, "wl") + w1dma(4, "wl") + w1dma(5, "wl") + w2dma(1, "wl")
    M = m_fc1(0)
    bq = [f"ds_read_b128 {a(aBR + 12 * q + 4 * k, 4)}, {v(vBQ + q)} offset:{64 * k}" for q in range(4) for k in range(3)]
    F = [(k, k, [f"@lg bf{k}"]) for k in range(6)] + [(1 + k, 1 + k, bq[2 * k:2 * k + 2]) for k in range(6)]
    gt = unpack(g0, g0 + 1, 1) + unpack(g1, g1 + 1, 1) + L(f"""
    v_lshlrev_b32 {v(ga)}, 3, {v(vL)}
    v_mul_f32 {v(g1)}, {v(g1)}, {v(g0)}
    v_mul_f32 {v(g1 + 1)}, {v(g1 + 1)}, {v(g0 + 1)}
    v_mul_f32 {v(g0)}, {s(sIA)}, {v(g0)}
    v_mul_f32 {v(g0 + 1)}, {s(sIA)}, {v(g0 + 1)}
    v_add_u32 {v(ga)}, {PG}, {v(ga)}
    """)
    b(trun(M, F, gt, need={}, tail=0))
    b(f"""
    s_mov_b32 exec_hi, 0xffff
    ds_write_b64 {v(ga)}, {v(g0, 2)}
    ds_write_b64 {v(ga)}, {v(g1, 2)} offset:{PGB - PG}
    s_mov_b32 exec_hi, -1
    s_nop 5
    """)
    b.stamp(9)
    b(P(0))
    b(T(0, xF=[(0, 0, ["@vm w2e", "@lg all", "s_barrier"]), (2, 2, late[0]), (4, 4, late[1]), (6, 6, late[2])], last=()))
    b(P(1, late_x=True))
    hinit = [f"{M32} {v(ACC['H'] + 16 * t, 16)}, {a(aRBIAS + 2 * t, 4)}, {a(aC32, 4)}, 0" for t in range(3)]
    b(T(1, head=("@lg all",), xM=hinit, xF=[(1 + 2 * k, 1 + 2 * k, late[3 + k]) for k in range(4)]))
    b(P(2))
    b(T(2, xF=[(1 + 3 * k, 1 + 3 * k, late[7 + k]) for k in range(4)]))
    b(P(3))
    b(T(3, xF=[(1 + 3 * k, 1 + 3 * k, late[11 + k]) for k in range(4)]))

    XR, WK = TMP + 4, TMP + 12

    def r_fc1(m):
        rd = [f"ds_read_u16 {a(aRBIAS + 2 * mh)}, {v(vRB)} offset:{256 * m + 32 * mh}" for mh in range(2)]
        rd += [f"ds_read_b64_tr_b16 {a(aRF + 12 * mh + 4 * k + 2 * jj, 2)}, {v(vR1)} offset:{24576 * m + 4096 * k + 256 * jj + 32 * mh} ;@rf"
               for k in range(3) for mh in range(2) for jj in range(2)]
        x = XR + 4 * (m >> 1)
        M = []
        for mh in range(2):
            q = (2 * m + mh) & 3
            M.append(f"{M16} {v(x, 4)}, {a(aRBIAS + 2 * mh, 4)}, {a(aC16 + 4 * q, 4)}, {v(x, 4) if q else '0'}")
            M += [f"{M16} {v(x, 4)}, {a(aRF + 12 * mh + 4 * k, 4)}, {a(aBR + 12 * q + 4 * k, 4)}, {v(x, 4)}" for k in range(3)]
        return M, [(0, 8, [x_]) for x_ in rd] + [(12, 12, ["@lg rf"])]

    if int(OPT["rpf"]):
        b(P(4, post=[f"v_lshrrev_b32 {v(TMP)}, 5, {v(vL)}", f"v_lshlrev_b32 {v(TMP)}, 7, {v(TMP)}",
                     f"v_add_u32 {v(TMP + 1)}, {v(vOFA)}, {v(TMP)}", f"v_add_u32 {v(TMP)}, {v(vOH)}, {v(TMP)}"]))
        b(T(4, xF=[(4 * k, 4 * k, late[15 + k]) for k in range(3)] + [(2, 2, [f"buffer_load_dword {a(aPFX)}, {v(TMP + 1)}, {s(SRD_X, 4)}, 0 offen"]),
                   (6, 6, [f"buffer_load_dword {a(aPFX + 1)}, {v(TMP)}, {s(SRD_X, 4)}, 0 offen"]),
                   (10, 10, [f"buffer_load_dwordx2 {a(aPFX + 2, 2)}, {v(vOR)}, {s(SRD_X, 4)}, 0 offen"])]))
    else:
        b(P(4))
        b(T(4, xF=[(4 * k, 4 * k, late[15 + k]) for k in range(3)]))
    bumpA = [f"v_subrev_u32 {v(vW2A)}, 36864, {v(vW2A)}", f"v_add_u32 {v(vA)}, 36864, {v(vA)}"]
    bumpB = [f"v_subrev_u32 {v(vW2B)}, 36864, {v(vW2B)}", f"v_add_u32 {v(vB)}, 36864, {v(vB)}"]
    f1pos, g0 = (((5, 7, 8), 9), ((6, 8, 10), 11))[int(OPT["rpos"])]
    for j in range(5, 15):
        post = {g0: p_t(XR, WK, 8) + p_z(XR, WK, 8), g0 + 1: p_add(WK, 8), g0 + 2: p_mul(WK, XR, 8)}.get(j, [])
        b(P(j, post=post))
        if j == 7:
            b("@vm wl\ns_barrier")
        M_, F_ = r_fc1(f1pos.index(j)) if j in f1pos else ([], [])
        V_ = {g0: t_exp(WK, WK, 8), g0 + 1: t_rcp(WK, WK, 8), g0 + 2: t_cvt(HR, WK, 8)}.get(j, [])
        b(T(j, xM=M_, xF=F_, xV=V_ + {6: bumpA, 11: bumpB}.get(j, [])))
    HX, FX, RX = TMP, TMP + 12, vA
    AH, AFc = ACC["H"], ACC["F"]
    nt2 = OPT["nt2"]
    hx = [f"buffer_load_dwordx4 {v(HX + 4 * t, 4)}, {v(vOH)}, {s(SRD_X, 4)}, 0 offen offset:{64 * t} {nt2} ;@hx" for t in range(3)]
    fx = [f"buffer_load_dwordx4 {v(FX + 4 * c, 4)}, {v(vOFA)}, {s(SRD_X, 4)}, 0 offen offset:{32 * c} {nt2} ;@fx" for c in range(6)]
    vXR_, vGH_, vOFB = vBA, vW2A, vBB
    b(P(15))
    F_ = [(1 + 2 * t, 1 + 2 * t, [hx[t]]) for t in range(3)] + [(7 + 2 * c, 7 + 2 * c, fx[c:c + 1]) for c in range(3)]
    F_ += [(0, 0, [f"s_xor_b32 {s(sT0)}, {s(sW)}, 1"]), (1, 1, [f"s_mul_i32 {s(sT0)}, {s(sT0)}, 6144"])]
    V_ = L(f"""
    v_add_u32 {v(vXR_)}, {s(sT0)}, {v(vL16)}
    v_bfe_u32 {v(vGH_)}, {v(vL)}, 4, 1
    v_lshl_add_u32 {v(vGH_)}, {v(vGH_)}, 6, {v(vGA)}
    """)
    odd = lambda c: AH + 16 * (c >> 1) + 8 + 4 * (c & 1)
    sw = [f"v_permlane16_swap_b32 {v(AH + 16 * t + i)}, {v(AH + 16 * t + 8 + i)}" for t in range(3) for i in range(8)]
    xw = [f"ds_write_b128 {v(vRW)}, {v(odd(c), 4)} offset:{XCH + 1024 * c} ;@xw" for c in range(6)]
    xr = [f"ds_read_b128 {v(odd(c), 4)}, {v(vXR_)} offset:{XCH + 1024 * c}" for c in range(6)]
    if int(OPT["xch"]):
        b(T(15, xF=F_, xV=V_ + sw[:8], tmajor=True))
        b(P(16, pre=xw[:1], post=sw[8:16] + xw[1:2] + sw[16:]))
        F_ = [(2 * c, 2 * c, xw[2 + c:3 + c]) for c in range(4)] + [(8, 8, ["@lg xw", "s_barrier"])]
        F_ += [(9 + c // 2, 9 + c // 2, xr[c:c + 1]) for c in range(6)]
    else:
        b(T(15, xF=F_, xV=V_))
        b(P(16, post=sw))
        F_ = [(c, c, xw[c:c + 1]) for c in range(6)] + [(7, 7, ["@lg xw", "s_barrier"])]
        F_ += [(8 + c // 2, 8 + c // 2, xr[c:c + 1]) for c in range(6)]
    F_ += [(6, 6, [f"ds_read_u16 {a(aRBIAS + 2 * t)}, {v(vB2F)} offset:{64 * t}" for t in range(3)])]
    F_ += [(6, 6, fx[3:4]), (11, 11, fx[4:5]), (12, 12, [f"buffer_load_dwordx2 {v(RX, 2)}, {v(vOR)}, {s(SRD_X, 4)}, 0 offen"])]
    b(T(16, xF=F_, last=(), xV=[f"v_add_u32 {v(vOFB)}, 32, {v(vOFA)}"]))
    post = [pk("add", AH + 16 * t + i, v(AH + 16 * t + i, 2), v(AH + 16 * t + 8 + i, 2)) for t in range(3) for i in range(0, 8, 2)]
    b(P(17, post=["@lg all"] + post))
    finit = [f"{M32} {v(AFc + 16 * t, 16)}, {a(aRBIAS + 2 * t, 4)}, {a(aC32, 4)}, {v(AFc + 16 * t, 16)}" for t in range(3)]
    GH = (X[0], X[0] + 8, Z)
    GF = (AH, AH + 16, X[0], X[0] + 8, Z + 8, R)
    gh = [f"ds_read_b128 {v(GH[t] + 4 * k, 4)}, {v(vGH_)} offset:{128 * t + 16 * k}" for t in range(3) for k in range(2)]
    gf = [f"ds_read_b128 {v(GF[c] + 4 * k, 4)}, {v(vGA)} offset:{64 * c + 16 * k}" for c in range(6) for k in range(2)]

    def rw2(q):
        fb = (aRF, aRF2)[q & 1]
        o = []
        for jj in range(2 - (q >> 1)):
            tau = q + 4 * jj
            reg, off = ((vR2A, 24576), (vR2B, 0), (vR2A, 0))[tau >> 1]
            o += [f"ds_read_b64_tr_b16 {a(fb + 4 * c + 2 * jj, 2)}, {v(reg)} offset:{off + 3072 * (tau & 1) + 32 * c}" for c in range(6)]
        return o
    F_ = [(0, 5, [x]) for x in gh[:4] + rw2(0)] + [(2, 2, fx[5:6]), (0, 0, ["@vm hx"])]
    V_ = [x for t in range(3) for x in unpack(AH + 16 * t + 8, HX + 4 * t, 4)]
    b(T(17, xM=finit, xF=F_, xV=V_))
    hf = lambda t: [pk("fma", AH + 16 * t + 8 + i, v(AH + 16 * t + i, 2), v(GH[t] + i, 2), v(AH + 16 * t + 8 + i, 2)) for i in range(0, 8, 2)]
    hc = lambda t: t_cvt(HX + 4 * t, AH + 16 * t + 8, 8)
    hs = [f"buffer_store_dwordx4 {v(HX + 4 * t, 4)}, {v(vOH)}, {s(SRD_O, 4)}, 0 offen offset:{64 * t} {OPT['st_h']}" for t in range(3)]
    b(P(18, post=hf(0) + hf(1)))
    UF = (X[1], X[1] + 8, X[2], X[2] + 8, E, E + 8)
    F_ = [(0, 3, [x]) for x in gh[4:] + gf[:10]] + [(3, 3, hs[:1]), (5, 5, hs[1:2]), (3, 3, ["@vm fx"])]
    V_ = unpack(UF[0], FX, 4) + unpack(UF[1], FX + 4, 4) + [f"v_permlane16_swap_b32 {v(vOFA)}, {v(vOFB)}"]
    b(T(18, xF=F_, xVpre=hc(0) + hc(1), xV=V_, xneed={3: 12, 5: 16}))
    b(P(19, post=hf(2)))

    def ftail(t, plain):
        o = []
        for c in (2 * t, 2 * t + 1):
            if plain:
                o += [f"v_fma_f32 {v(UF[c] + i)}, {v(AFc + 8 * c + i)}, {v(GF[c] + i)}, {v(UF[c] + i)}" for i in range(8)]
            else:
                o += [pk("fma", UF[c] + i, v(AFc + 8 * c + i, 2), v(GF[c] + i, 2), v(UF[c] + i, 2)) for i in range(0, 8, 2)]
        for c in (2 * t, 2 * t + 1):
            o += t_cvt(FX + 4 * c, UF[c], 8)
        o += [f"v_permlane16_swap_b32 {v(FX + 8 * t + i)}, {v(FX + 8 * t + 4 + i)}" for i in range(4)]
        return o

    def fst(t):
        return [f"buffer_store_dwordx4 {v(FX + 8 * t + 4 * k, 4)}, {v((vOFA, vOFB)[k])}, {s(SRD_O, 4)}, 0 offen offset:{64 * t} {OPT['st_f']}"
                for k in range(2)]
    V_ = hc(2) + [x for c in range(2, 6) for x in unpack(UF[c], FX + 4 * c, 4)][:20] + ftail(0, True)
    F_ = [(1, 1, gf[10:]), (2, 2, hs[2:3])] + [(0, 3, [x]) for x in rw2(1)]
    b(T(19, xF=F_, xV=V_, xneed={2: 12}, tmajor=True))
    b(fst(0))
    b.stamp("f0")
    b([x for c in range(2, 6) for x in unpack(UF[c], FX + 4 * c, 4)][20:])
    for t in (1, 2):
        b(ftail(t, False))
        b(fst(t))
        b.stamp(f"f{t}")

    HQ, RA = AH, AH + 16
    PP, PGm, PBm, RU, ra, rg, rw = X[0], X[1], X[1] + 4, X[1] + 8, X[2], X[2] + 1, X[2] + 2
    hq = lambda q: HR if q == 0 else HQ + 4 * (q - 1)
    rrot = [f"v_mov_b32_dpp {v(hq(q) + i)}, {v(HR + i)} row_ror:{16 - 4 * q} row_mask:0xf bank_mask:0xf" for q in (1, 2, 3) for i in range(4)]
    M_ = [f"{M16} {v(RA + 4 * c, 4)}, {a((aRF, aRF2)[q & 1] + 4 * c, 4)}, {v(hq(q), 4)}, {v(RA + 4 * c, 4) if q else '0'}"
          for q in range(4) for c in range(6)]
    r2, r3 = rw2(2), rw2(3)
    F_ = [(c, c, r2[c:c + 1]) for c in range(6)] + [(6 + c, 6 + c, r3[c:c + 1]) for c in range(6)]
    F_ += [(0, 0, [f"s_mul_i32 {s(sT0)}, {s(sW)}, 2176"]), (1, 1, [f"s_lshl_b32 {s(sT1)}, {s(sW)}, 4"])]
    F_ += [(20, 20, [f"ds_read_b128 {v(PGm, 4)}, {v(rg)}"]), (21, 21, [f"ds_read_b128 {v(PBm, 4)}, {v(rg)} offset:{PGB - PG}"])]
    V_ = rrot + L(f"""
    v_min_u32 {v(rg)}, 23, {v(vL)}
    v_and_b32 {v(ra)}, 3, {v(rg)}
    v_mul_u32_u24 {v(ra)}, 272, {v(ra)}
    v_bfe_u32 {v(rw)}, {v(rg)}, 2, 2
    v_lshl_add_u32 {v(ra)}, {v(rw)}, 6, {v(ra)}
    v_lshrrev_b32 {v(rw)}, 4, {v(rg)}
    v_mul_u32_u24 {v(rw)}, 1088, {v(rw)}
    v_add3_u32 {v(ra)}, {v(ra)}, {v(rw)}, {s(sT1)}
    v_lshlrev_b32 {v(rg)}, 4, {v(rg)}
    v_add_u32 {v(rg)}, {PG}, {v(rg)}
    v_lshrrev_b32 {v(rw)}, 4, {v(vL)}
    v_add_u32 {v(rw)}, {v(rw)}, {v(vL)}
    v_lshl_add_u32 {v(rw)}, {v(rw)}, 4, {s(sT0)}
    """) + unpack(RU, RX, 2)
    o, _ = trun2(M_, F_, V_, {6: 6, 12: 10, 18: 14, 20: 22}, [], drain=8)
    b(o)
    b("s_nop 1")
    for c in (1, 2, 3, 5):
        for i in range(4):
            b(f"v_mov_b32_dpp {v(RA + 16 * (c >> 2) + i)}, {v(RA + 4 * c + i)} row_shr:{4 * (c & 3)} row_mask:0xf bank_mask:{1 << (c & 3):#x}")
        if c == 3:
            b(f"ds_write_b128 {v(rw)}, {v(RA, 4)} offset:{RBUF}")
    b(f"ds_write_b128 {v(rw)}, {v(RA + 16, 4)} offset:{RBUF + 1088}")
    b("@lg all\ns_barrier")
    b([f"ds_read_b128 {v(PP + 4 * w, 4)}, {v(ra)} offset:{RBUF + 2176 * w}" for w in range(4)])
    b([pk("add", RU + i, v(RU + i, 2), v(PBm + i, 2)) for i in (0, 2)])
    b([pk("add", PP + i, v(PP + i, 2), v(PP + 4 + i, 2)) for i in (0, 2)])
    b([pk("add", PP + 8 + i, v(PP + 8 + i, 2), v(PP + 12 + i, 2)) for i in (0, 2)])
    b([pk("add", PP + i, v(PP + i, 2), v(PP + 8 + i, 2)) for i in (0, 2)])
    b([pk("fma", RU + i, v(PP + i, 2), v(PGm + i, 2), v(RU + i, 2)) for i in (0, 2)])
    b(t_cvt(RX, RU, 4))
    b(f"buffer_store_dwordx2 {v(RX, 2)}, {v(vOR)}, {s(SRD_O, 4)}, 0 offen {OPT['st_r']}")
    b.stamp(16)
    if OPT["probe"] is not None:
        b("@vm all")
        b.stamp("end")
        b(f"s_sub_u32 s98, {s(sSTAMP)}, s96" if OPT["probe"] != "0" else "s_mov_b32 s98, 0")
        if OPT["probewg"] is not None:
            b(f"s_cmp_eq_u32 s2, {OPT['probewg']}\ns_cselect_b32 s98, s98, 0")
        b("""
        s_lshl_b32 s98, s98, 2
        s_add_u32 s98, s98, 40000
        L_diag:
        s_memtime s[100:101]
        s_waitcnt lgkmcnt(0)
        s_sub_u32 s100, s100, s96
        s_cmp_lt_u32 s100, s98
        s_cbranch_scc1 L_diag
        """)
    elif OPT["stamps"]:
        b("@vm all")
        b.stamp("end")
        b(f"""
        s_load_dwordx2 s[4:5], s[0:1], 72
        s_waitcnt lgkmcnt(0)
        s_lshl_b32 s6, s2, 2
        s_add_u32 s6, s6, {s(sW)}
        s_lshl_b32 s6, s6, 7
        v_mov_b32 v0, s6
        s_mov_b32 s6, 0x100000
        s_mov_b32 s7, 0x20000
        s_mov_b64 exec, 1
        """)
        for k in range(1, 20):
            kk = min(k, len((OPT["only"] or DEFAULT_STAMPS).split(",")) + 1)
            b(f"s_sub_u32 s8, {s(sSTAMP + kk)}, {s(sSTAMP)}" if not OPT["real"] else
              (f"s_mov_b32 s8, {s(sSTAMP + kk - 1)}" if k < 19 else "s_getreg_b32 s8, hwreg(HW_REG_XCC_ID, 0, 4)"))
            b("v_mov_b32 v2, s8")
            b(f"buffer_store_dword v2, v0, s[4:7], 0 offen offset:{4 * k}")
        b("@vm all")
    return b


def add_pads(lines, start):
    out = []
    off = None
    n = 0
    for t in lines:
        if t == "L_body:":
            off = start
            out.append(f".fill {start // 4}, 4, 0xbf800000")
        if off is not None and not t.endswith(":") and not t.startswith("."):
            sz = isize(t)
            if off + sz > 4096 * (n + 1):
                while off < 4096 * (n + 1):
                    out.append("s_nop 0")
                    off += 4
                n += 1
                out.append(f"L_pad{n}:")
                out.append(f"s_cbranch_execz {'L_pad%d' % (n + 1) if n % 2 else 'L_body'}")
                out.append("s_nop 0")
                off += 8
            off += sz
        out.append(t)
    return out, n, off + 4


def loop_segment(b):
    import re
    m0, m1 = OPT["seg"].split(",")
    i0, i1 = b.index(f"MARK_{m0}:"), b.index(f"MARK_{m1}:")
    body = [x for x in b[i0:i1] if not x.startswith("MARK_")]
    if OPT["drop"]:
        body = [x for x in body if not re.search(OPT["drop"], x)]
    if OPT["nop"]:
        body = [("s_nop 1" if re.match("v_exp|v_rcp", x) else "s_nop 0") if re.search(OPT["nop"], x) else x for x in body]
    o = Block([x for x in b[:i0] if not x.startswith("MARK_")])
    o("@vm all\n@lg all\ns_barrier\ns_mov_b32 s99, 0\ns_memrealtime s[94:95]\ns_memtime s[96:97]\ns_waitcnt lgkmcnt(0)\n.p2align 6\nL_seg:")
    o(body * 5)
    o("""
    s_add_u32 s99, s99, 1
    s_cmp_lt_u32 s99, 5
    s_cbranch_scc1 L_seg
    @vm all
    s_memtime s[100:101]
    s_memrealtime s[92:93]
    s_load_dwordx2 s[4:5], s[0:1], 72
    s_waitcnt lgkmcnt(0)
    s_sub_u32 s8, s100, s96
    s_sub_u32 s9, s92, s94
    s_lshl_b32 s6, s2, 2
    """ + f"s_add_u32 s6, s6, {s(sW)}" + """
    s_lshl_b32 s6, s6, 7
    v_mov_b32 v0, s6
    s_mov_b32 s6, 0x100000
    s_mov_b32 s7, 0x20000
    s_mov_b64 exec, 1
    v_mov_b32 v2, s8
    buffer_store_dword v2, v0, s[4:7], 0 offen offset:4
    v_mov_b32 v3, s9
    buffer_store_dword v3, v0, s[4:7], 0 offen offset:8
    @vm all
    """)
    return o


def build():
    b = gen()
    if OPT["seg"]:
        b = loop_segment(b)
    lines, added = autowait(b, OPT["verbose"])
    bad = 0
    if OPT["align"]:
        lines, bad = fix_align(lines)
    npad = 0
    if OPT["hops"]:
        margin = int(OPT["margin"])
        start = next(x for x in range(4096 - 64, -64, -64) if 4096 - margin - 64 < add_pads(lines, x)[2] % 4096 <= 4096 - margin or x == 0)
        lines, npad, _ = add_pads(lines, start)
        for k in range(npad + 1, 9):
            lines = [t.replace(f"L_pad{k}", "L_body") if not t.endswith(":") else t for t in lines]
    trace = [t for t in lines if not t.endswith(":") and not t.startswith(".")]
    errs = check(trace)
    hdr = open("standalone__modern_conv_block_convnext__vision.s.ref").read().split("\n")
    head = [l for l in hdr if l.startswith(";") and "@launch" not in l and "Override" not in l and "grid=ceil" not in l]
    out = head + [f"; @launch grid=(256,1,1) block=(256,1,1) lds={LDS_BYTES}",
                  '.amdgcn_target "amdgcn-amd-amdhsa--gfx950"', ".text", f".globl {KNAME}", ".p2align 12", ".p2align 8",
                  f".type {KNAME},@function", f"{KNAME}:"]
    for t in lines:
        out.append(t if t.endswith(":") or t.startswith(".") else "    " + t)
    out += ["L_end:", "    s_endpgm", '.section .rodata,"a"', ".p2align 6", f".amdhsa_kernel {KNAME}",
            "  .amdhsa_next_free_vgpr 512", "  .amdhsa_next_free_sgpr 102", "  .amdhsa_accum_offset 256",
            "  .amdhsa_group_segment_fixed_size 0", "  .amdhsa_kernarg_size 80", "  .amdhsa_user_sgpr_count 2",
            "  .amdhsa_user_sgpr_kernarg_segment_ptr 1", "  .amdhsa_system_sgpr_workgroup_id_x 1",
            ".end_amdhsa_kernel", ""]
    info = f"{len(trace)} instrs, {sum(isize(t) for t in trace)} bytes, {added} auto waits, {bad} misaligned, {npad} pads, {len(errs)} lint findings"
    return "\n".join(out), errs, info


if __name__ == "__main__":
    path = sys.argv[1]
    for kv in sys.argv[2:]:
        k, val = kv.split("=")
        OPT[k] = val if k.startswith(("probe", "only", "seg", "drop", "nop")) else {"0": False, "1": True}.get(val, val.replace("+", " "))
    text, errs, info = build()
    for e in errs:
        print("HAZARD", e)
    open(path, "w").write(text)
    print(f"wrote {path}: {info}")
```

```python
import math
import struct
import sys

from asmlint import check
from sched import trun, trun2, autowait, fix_align, isize

KNAME = "standalone__modern_conv_block_convnext__vision_kernel"
OPT = dict(nt="", stamps=False, verbose=False, align=True, st_h="sc1", st_f="sc1", st_r="", hops=False, nt2="", probe=None, probewg=None, only=None, cut0=0, cut=40, cut2=120, steal=8, drain=45, seg=None, tmaj=0, nop=None, real=False, drop=None, pfslice=True, nstage=0, nstat=0, hide=3, early=6, ilv=12, hoprow=5, rpf=0, rpos=1, xch=1)


def f32bits(x):
    return struct.unpack("<I", struct.pack("<f", x))[0]


def bf16_rne(x):
    u = f32bits(x)
    return (u + 0x7FFF + ((u >> 16) & 1)) >> 16


def bf16_val(h):
    return struct.unpack("<f", struct.pack("<I", h << 16))[0]


C1 = 2.0 * math.sqrt(2.0 / math.pi) * math.log2(math.e)
ALPHA = (C1 * 0.044715) ** (1.0 / 3.0)
CP = C1 / ALPHA
A_HI = bf16_rne(ALPHA)
A_LO = bf16_rne(ALPHA - bf16_val(A_HI))

W2L, W2E = 73728, 110592
XP, XG, XPL = 36864, 5776, 2880
ACT, AP = 36864, 208
TBL = 147456
ST = TBL
RBUF, XCH = 0, 24576
PB1, PB2, PGR, PG, PGB = 159744, 160768, 161792, 162816, 163200
ZERO = PB2 + 512
LDS_BYTES = 163584
ROWB = 43008
XBYTES = 9633792

SRD_X, SRD_DW, SRD_W1, SRD_W2, SRD_A, SRD_B, SRD_O = 20, 24, 28, 32, 36, 40, 48
sROW, sMA, sLUT2 = 44, 45, 46
sW, sPAR, sX0, sY0, sNP = 54, 55, 56, 57, 58
sT0, sT1, sT2, sT3 = 59, 60, 61, 62
sTB = 63
sCP, sONE, sINV, sLUT, sIA, sAL, sEPS, sMASK = 64, 66, 68, 70, 72, 74, 76, 78
sLO, sHI, sM1, sM2 = 10, 11, 14, 15
sS = (16, 17, 3)
sSTAMP = 80

vB2F, vL = 0, 1
vA, vB, vW2A, vW2B, vBA, vBB = 2, 3, 4, 5, 6, 7
vOFA, vRW, vOH, vOR, vGA, vR2A, vL16, vR2B = 8, 9, 10, 11, 12, 13, 14, 15
vR1, vRB, vGH = 16, 17, 18
HR = 16
ACC = {"F": 20, "H": 68}
X = (116, 132, 148)
Z, E, R, H, TMP = 164, 180, 196, 212, 220
CV, AF = 116, 20
vIDX, vTA, vXB, vXW, vXO, vAW, vBF, vBH, vBR, vPF, vB2H, vG, vB2V, vSW, vBQ = range(92, 107)
vD1 = TMP + 35

aSTG = 0
aRB = (72, 108, 144)
aW1, aW2 = 0, (24, 48)
aBt = {"F": 72, "H": 96}
aBR, aRF = 120, 168
aRF2, aRACC = 120, 144
aBIAS, aC32, aC16, aRBIAS, aPFX = 192, 196, 200, 216, 224


def v(i, n=1):
    return f"v{i}" if n == 1 else f"v[{i}:{i+n-1}]"


def a(i, n=1):
    return f"a{i}" if n == 1 else f"a[{i}:{i+n-1}]"


def s(i, n=1):
    return f"s{i}" if n == 1 else f"s[{i}:{i+n-1}]"


def L(t):
    return [x.strip() for x in t.strip("\n").split("\n") if x.strip()]


class Block(list):
    def __call__(self, t):
        self.extend(L(t) if isinstance(t, str) else t)

    def stamp(self, k):
        k = str(k)
        if OPT["seg"]:
            self.append(f"MARK_{k}:")
            return
        if OPT["probe"] is not None and k == "0":
            self("s_memtime s[96:97]")
            return
        if OPT["probe"] is not None:
            names = [OPT["probe"]]
        elif OPT["stamps"]:
            names = ["0"] + (OPT["only"] or DEFAULT_STAMPS).split(",") + ["end"]
        else:
            return
        if k in names:
            self(f"{'s_memrealtime' if OPT['real'] else 's_memtime'} s[100:101]\ns_waitcnt lgkmcnt(0)\ns_mov_b32 {s(sSTAMP + names.index(k))}, s100")


DEFAULT_STAMPS = "1,18,2,3,4,5,7,8,9,T3,P7,T12,P17,P19,T19,16"


def pk(op, d, x, y, z=None, mod=""):
    t = f"v_pk_{op}_f32 {v(d, 2)}, {x}, {y}"
    if z is not None:
        t += f", {z}"
    return t + mod


def p_t(xb, zb, n=16):
    return [pk("fma", zb + i, v(xb + i, 2), v(xb + i, 2), s(sCP, 2)) for i in range(0, n, 2)]


def p_z(xb, zb, n=16):
    return [pk("mul", zb + i, v(zb + i, 2), v(xb + i, 2), mod=" neg_lo:[1,0] neg_hi:[1,0]") for i in range(0, n, 2)]


def p_add(eb, n=16):
    return [pk("add", eb + i, v(eb + i, 2), s(sONE, 2)) for i in range(0, n, 2)]


def p_mul(rb, xb, n=16):
    return [pk("mul", rb + i, v(rb + i, 2), v(xb + i, 2)) for i in range(0, n, 2)]


def t_cvt(hb, rb, n=16):
    return [f"v_cvt_pk_bf16_f32 {v(hb + i // 2)}, {v(rb + i)}, {v(rb + i + 1)}" for i in range(0, n, 2)]


def t_rcp(rb, eb, n=16):
    return [f"v_rcp_f32 {v(rb + i)}, {v(eb + i)}" for i in range(n)]


def t_exp(eb, zb, n=16):
    return [f"v_exp_f32 {v(eb + i)}, {v(zb + i)}" for i in range(n)]


def unpack(dst, src, n):
    o = []
    for i in range(n):
        o += [f"v_lshlrev_b32 {v(dst + 2 * i)}, 16, {v(src + i)}", f"v_and_b32 {v(dst + 2 * i + 1)}, {s(sHI)}, {v(src + i)}"]
    return o


M32 = "v_mfma_f32_32x32x16_bf16"
M16 = "v_mfma_f32_16x16x32_bf16"

SLOTS = ([(t, "a", i, 0) for i in range(3) for t in "FH"] + [("F", "b", i, 0) for i in range(3)]
         + [(t, "a", i, 1) for i in range(3) for t in "HF"] + [("F", "b", i, 1) for i in range(3)])
NS = len(SLOTS)


def neww(j):
    return j == 0 or SLOTS[j][1:] != SLOTS[j - 1][1:]


UNITNO = []
for _j in range(NS):
    UNITNO.append((UNITNO[-1] if UNITNO else -1) + (1 if neww(_j) else 0))


def m_fc1(j):
    xb, bb = X[j % 3], aBt[SLOTS[j][0]]
    o = [f"{M32} {v(xb, 16)}, {a(aBIAS, 4)}, {a(aC32, 4)}, 0"]
    return o + [f"{M32} {v(xb, 16)}, {a(aW1 + 4 * k, 4)}, {a(bb + 4 * k, 4)}, {v(xb, 16)}" for k in range(6)]


def m_fc2(j):
    acc, wb = ACC[SLOTS[j][0]], aW2[UNITNO[j] % 2]
    return [f"{M32} {v(acc + 16 * t, 16)}, {a(wb + 4 * (3 * k + t), 4)}, {v(H + 4 * k, 4)}, "
            + ("0" if (j == 0 and k == 0) else v(acc + 16 * t, 16)) for k in range(2) for t in range(3)]


def r_w1(j):
    _, g, i, late = SLOTS[j]
    off = 12288 * i
    o = [f"ds_read_u16 {a(aBIAS)}, {v(vBA if g == 'a' else vBB)} offset:{128 * i + 384 * late}"]
    return o + [f"ds_read_b64_tr_b16 {a(aW1 + 4 * k + 2 * jj, 2)}, {v(vA if g == 'a' else vB)} offset:{off + 2048 * k + 256 * jj}"
                for k in range(6) for jj in range(2)]


def r_w2(j):
    _, g, i, late = SLOTS[j]
    wb = aW2[UNITNO[j] % 2]
    return [f"ds_read_b64_tr_b16 {a(wb + 4 * (3 * k + t) + 2 * jj, 2)}, {v(vW2A if g == 'a' else vW2B)} "
            f"offset:{12288 * i + 3072 * k + 1536 * jj + 64 * t}" for k in range(2) for t in range(3) for jj in range(2)]


def has(j):
    return 0 <= j < NS


STOLEN = {}


def P(j, pre=(), post=(), late_x=False):
    t = p_t(X[j % 3], Z) if has(j) else []
    z = p_z(X[j % 3], Z) if has(j) else []
    m = p_mul(R, X[(j - 2) % 3])[STOLEN.get(j, 0):] if has(j - 2) else []
    d = p_add(E) if has(j - 1) else []
    core = m + d + t + z if late_x else t + m + z + d
    o = Block(list(pre) + core + list(post))
    o.stamp(f"P{j}")
    return o


def T(j, xM=(), xF=(), xVpre=(), xV=(), xneed=None, tail=12, head=(), tmajor=False, last=("@lg all",)):
    f1 = m_fc1(j + 1) if has(j + 1) else []
    f2 = m_fc2(j - 2) if has(j - 2) else []
    tmajor = tmajor or bool(int(OPT["tmaj"]))
    if tmajor and f2:
        f2 = [f2[3 * k + t] for t in range(3) for k in range(2)]
    M = f1 + f2 + list(xM)
    n = len(M)
    cv = t_cvt(H, R) if has(j - 2) else []
    V = cv + list(xVpre) + (t_rcp(R, E) if has(j - 1) else []) + (t_exp(E, Z) if has(j) else []) + list(xV)
    need = dict(xneed or {})
    if f2:
        need[len(f1)] = max(need.get(len(f1), 0), 6)
        k1 = len(f1) + (1 if tmajor else 3)
        need[k1] = max(need.get(k1, 0), 10 if len(V) >= 10 else len(V))
    F = list(xF)
    nm = len(f1) + len(f2) + sum("32x32" in m for m in xM)
    hi = max(0, nm - 4)
    if has(j + 2) and neww(j + 2):
        w = r_w1(j + 2)
        F += [(1 + k, max(1 + k, hi), [w[1 + 2 * k + jj]]) for k in range(5, -1, -1) for jj in range(2)] + [(0, hi, w[:1])]
    if has(j - 1) and neww(j - 1):
        F += [(0, hi, [x]) for x in r_w2(j - 1)]
    F += [(n - 1, n - 1, [x]) for x in last]
    steal = []
    if has(j - 1):
        base = len(cv) + len(xVpre)
        xb = X[(j - 1) % 3]
        steal = [(None, [f"v_mul_f32 {v(R + i + k)}, {v(R + i + k)}, {v(xb + i + k)}" for k in range(2)], base + i + 1)
                 for i in range(0, 16, 2)]
    o, STOLEN[j + 1] = trun2(M, F, V, need, list(head), steal, int(OPT["drain"]), int(OPT["steal"]))
    o = Block(o)
    o.stamp(f"T{j}")
    return o


def gen():
    b = Block()
    nt = OPT["nt"]
    t0, t1, t2, t3, t4, t5 = range(TMP, TMP + 6)
    vTB, vZ = TMP + 20, TMP + 24

    if OPT["pfslice"]:
        pfcalc = f"s_lshr_b32 s3, s2, 3\ns_lshl_b32 s3, s3, 10\nv_and_b32 {v(t0)}, 7, v0\nv_lshl_add_u32 {v(t0)}, {v(t0)}, 7, s3"
    else:
        pfcalc = f"v_lshlrev_b32 {v(t0)}, 7, v0"
    b.stamp(0)
    b(f"""
    s_cmp_ge_u32 s2, 256
    s_cbranch_scc1 L_end
    s_load_dwordx16 s[4:19], s[0:1], 0
    s_getpc_b64 s[52:53]
    L_pc:
    {pfcalc}
    v_min_u32 {v(t0)}, L_end-L_pc, {v(t0)}
    global_load_dword {v(vPF)}, {v(t0)}, s[52:53] ;@pf
    v_lshrrev_b32 {v(t1)}, 6, v0
    v_and_b32 {v(vL)}, 63, v0
    v_readfirstlane_b32 {s(sW)}, {v(t1)}
    s_and_b32 {s(sT0)}, s2, 1
    s_lshl_b32 {s(sT0)}, {s(sT0)}, 3
    s_bfe_u32 {s(sT1)}, s2, 0x30003
    s_add_u32 {s(sT0)}, {s(sT0)}, {s(sT1)}
    s_mul_i32 {s(sX0)}, {s(sT0)}, 14
    s_bfe_u32 {s(sT0)}, s2, 0x20001
    s_lshl_b32 {s(sT0)}, {s(sT0)}, 2
    s_lshr_b32 {s(sT1)}, s2, 6
    s_add_u32 {s(sT0)}, {s(sT0)}, {s(sT1)}
    s_mul_i32 {s(sY0)}, {s(sT0)}, 14
    v_mul_u32_u24 {v(t0)}, 43, {v(vL)}
    v_lshrrev_b32 {v(t0)}, 7, {v(t0)}
    v_mul_u32_u24 {v(t1)}, 3, {v(t0)}
    v_sub_u32 {v(t1)}, {v(vL)}, {v(t1)}
    v_and_b32 {v(t2)}, 7, {v(t0)}
    v_lshrrev_b32 {v(t0)}, 3, {v(t0)}
    v_mad_u32_u24 {v(t0)}, {v(t0)}, 5, {v(t2)}
    v_cmp_le_u32 vcc, 3, {v(t2)}
    v_mul_u32_u24 {v(t0)}, 192, {v(t0)}
    s_mul_i32 {s(sT0)}, {s(sW)}, 48
    s_sub_u32 {s(sT0)}, {s(sT0)}, 576
    v_lshl_add_u32 {v(t0)}, {v(t1)}, 4, {v(t0)}
    v_add_u32 {v(t0)}, {s(sT0)}, {v(t0)}
    v_bfrev_b32 {v(t5)}, 1
    v_cndmask_b32 {v(vTB)}, {v(t5)}, {v(t0)}, vcc
    s_mul_i32 {s(sT1)}, {s(sW)}, 56
    v_add_u32 {v(t1)}, {s(sT1)}, {v(vL)}
    v_mul_u32_u24 {v(t2)}, 171, {v(t1)}
    v_lshrrev_b32 {v(t2)}, 11, {v(t2)}
    s_sub_u32 {s(sT2)}, {s(sX0)}, 2
    v_add_u32 {v(t3)}, {s(sT2)}, {v(t2)}
    v_cmp_gt_u32 vcc, 224, {v(t3)}
    v_cmp_gt_u32 {s(sMASK, 2)}, 18, {v(t2)}
    s_mul_i32 {s(sT3)}, {s(sY0)}, {ROWB}
    s_mul_i32 {s(sT2)}, {s(sT2)}, 192
    s_add_u32 {s(sT3)}, {s(sT3)}, {s(sT2)}
    s_sub_u32 {s(sT3)}, {s(sT3)}, {2 * ROWB}
    s_and_b64 vcc, vcc, {s(sMASK, 2)}
    s_and_b32 vcc_hi, vcc_hi, 0xffffff
    v_lshl_add_u32 {v(vXO)}, {v(t1)}, 4, {s(sT3)}
    s_mul_i32 {s(sTB)}, {s(sW)}, 3072
    v_cndmask_b32 {v(vXO)}, {v(t5)}, {v(vXO)}, vcc
    s_add_u32 {s(sTB)}, {s(sTB)}, {TBL}
    s_mov_b32 m0, {s(sTB)}
    s_mov_b32 {s(SRD_X + 2)}, {XBYTES}
    s_mov_b32 {s(SRD_X + 3)}, 0x20000
    s_movk_i32 {s(SRD_DW + 2)}, 4800
    s_mov_b32 {s(SRD_DW + 3)}, 0x20000
    s_mov_b32 {s(sROW)}, {ROWB}
    """)
    b.append("@@PRE")
    b("s_waitcnt lgkmcnt(0)")
    b.stamp(1)

    def srd(dst, src, nbytes):
        return L(f"""
        s_mov_b32 {s(dst)}, {s(src)}
        s_mov_b32 {s(dst + 1)}, {s(src + 1)}
        s_mov_b32 {s(dst + 2)}, {nbytes}
        s_mov_b32 {s(dst + 3)}, 0x20000
        """)
    def xload(r):
        o = [f"buffer_load_dwordx4 {a(aSTG + 4 * r, 4)}, {v(vXO)}, {s(SRD_X, 4)}, 0 offen {nt} ;@x{r}"]
        if r < 17:
            o.append(f"v_add_u32 {v(vXO)}, {s(sROW)}, {v(vXO)}")
        return o
    b(f"s_mov_b32 {s(SRD_X)}, s4\ns_mov_b32 {s(SRD_X + 1)}, s5")
    b(xload(0))
    b(f"s_mov_b32 {s(SRD_DW)}, s6\ns_mov_b32 {s(SRD_DW + 1)}, s7\ns_mov_b32 exec_hi, 0xffff")
    for d in range(4):
        b(f"buffer_load_dwordx4 {v(vTB)}, {s(SRD_DW, 4)}, 0 offen lds ;@tbl")
        if d < 3:
            b(f"s_add_u32 m0, m0, 768\nv_add_u32 {v(vTB)}, 1920, {v(vTB)}")
    b("s_mov_b32 exec_hi, -1")

    u = Block()
    ka = Block()
    ka(f"""
    s_lshl_b32 s52, {s(sW)}, 3
    s_lshr_b32 s53, 0x30302818, s52
    s_and_b32 s53, s53, 0xff
    s_load_dwordx2 {s(SRD_A, 2)}, s[0:1], s53
    s_lshr_b32 s53, 0x38382010, s52
    s_and_b32 s53, s53, 0xff
    s_load_dwordx2 {s(SRD_B, 2)}, s[0:1], s53
    s_cmp_eq_u32 {s(sW)}, 0
    s_movk_i32 s53, 192
    s_cselect_b32 {s(SRD_A + 2)}, 768, s53
    s_mov_b32 {s(SRD_A + 3)}, 0x20000
    s_min_u32 {s(sMA)}, {s(sW)}, 2
    s_lshl_b32 {s(sMA)}, {s(sMA)}, 10
    s_add_u32 {s(sMA)}, {s(sMA)}, {PB1}
    s_mov_b32 {s(SRD_B + 3)}, 0x20000
    """)
    for dst, src, n in ((SRD_W1, 8, 73728), (SRD_W2, 12, 73728), (SRD_O, 18, XBYTES)):
        ka(srd(dst, src, n))
    lut = 0
    for cp, col in enumerate([0, 4, 8, 12, 1, 5, 9, 13, 2, 6, 10, 3, 7, 11]):
        lut |= col << (4 * cp)
    lut2 = 0
    for rho in range(14):
        lut2 |= (4 * ((rho & 7) >> 1) + 2 * (rho >> 3) + (rho & 1)) << (4 * rho)
    lg, lxg, lrp, lh, lq, lr, l31, lh16 = range(TMP + 8, TMP + 16)
    ka(f"""
    s_mov_b32 {s(sLO)}, 0xffff
    s_mov_b32 {s(sHI)}, 0xffff0000
    s_mul_i32 {s(sM1)}, {s(sW)}, 3072
    s_mul_i32 {s(sM2)}, {s(sW)}, 9216
    s_mul_i32 {s(sS[0])}, {s(sW)}, 18432
    s_add_u32 {s(sS[1])}, {s(sS[0])}, 5120
    s_add_u32 {s(sS[2])}, {s(sS[0])}, 10240
    """)
    zv = [f"{M32} {v(CV + 16 * i, 16)}, {v(vZ, 4)}, {v(vZ, 4)}, 0" for i in range(6)]
    za = [f"{M32} {a(192 + 16 * i, 16)}, {v(vZ, 4)}, {v(vZ, 4)}, 0" for i in range(2)]
    za += [f"{M16} {a(rb + 32, 4)}, {v(vZ, 4)}, {v(vZ, 4)}, 0" for rb in aRB]
    u(f"""
    v_mov_b64 {v(vZ, 2)}, 0
    v_mov_b64 {v(vZ + 2, 2)}, 0
    s_and_b32 {s(sPAR)}, {s(sW)}, 1
    s_xor_b32 {s(sNP)}, {s(sPAR)}, 1
    v_mul_u32_u24 {v(t3)}, 12, {v(t2)}
    v_sub_u32 {v(t3)}, {v(t1)}, {v(t3)}
    v_subrev_u32 {v(t4)}, 56, {v(vL)}
    v_cmp_gt_u32 vcc, 56, {v(vL)}
    v_mov_b32 {v(t0)}, 18
    v_lshrrev_b32 {v(lg)}, 4, {v(vL)}
    v_cndmask_b32 {v(t3)}, {v(t4)}, {v(t3)}, vcc
    v_cndmask_b32 {v(t2)}, {v(t0)}, {v(t2)}, vcc
    v_mul_u32_u24 {v(t3)}, {XG}, {v(t3)}
    v_lshl_add_u32 {v(t3)}, {v(t2)}, 3, {v(t3)}
    v_add_u32 {v(vXW)}, {XP}, {v(t3)}
    v_and_b32 {v(lxg)}, 3, {v(vL)}
    v_bfe_u32 {v(lr)}, {v(vL)}, 2, 2
    v_lshrrev_b32 {v(lh)}, 5, {v(vL)}
    v_and_b32 {v(lq)}, 1, {v(lg)}
    v_and_b32 {v(l31)}, 31, {v(vL)}
    v_lshlrev_b32 {v(vL16)}, 4, {v(vL)}
    v_lshlrev_b32 {v(lh16)}, 4, {v(lh)}
    v_mul_u32_u24 {v(vIDX)}, 0x5555, {v(lxg)}
    v_lshl_add_u32 {v(t0)}, {v(lg)}, 2, {v(lr)}
    v_sub_u32 {v(t1)}, {v(t0)}, {v(lxg)}
    v_mul_u32_u24 {v(t1)}, 48, {v(t1)}
    s_add_u32 {s(sT0)}, {s(sTB)}, 144
    v_add_u32 {v(vTA)}, {s(sT0)}, {v(t1)}
    v_mul_u32_u24 {v(t0)}, 192, {v(t0)}
    v_lshl_add_u32 {v(t0)}, {v(lxg)}, 3, {v(t0)}
    s_mul_i32 {s(sT0)}, {s(sW)}, 6144
    s_add_u32 {s(sT1)}, {s(sT0)}, {W2L + 2 * 6144}
    v_add_u32 {v(vR2A)}, {s(sT1)}, {v(t0)}
    s_add_u32 {s(sT1)}, {s(sT0)}, {W2E + 4 * 6144}
    s_add_u32 {s(sT2)}, {s(sT0)}, {W2L - 2 * 6144}
    s_cmp_lt_u32 {s(sW)}, 2
    s_cselect_b32 {s(sT1)}, {s(sT1)}, {s(sT2)}
    v_add_u32 {v(vR2B)}, {s(sT1)}, {v(t0)}
    v_add_u32 {v(vRW)}, {s(sT0)}, {v(vL16)}
    v_lshlrev_b32 {v(t0)}, 1, {v(lxg)}
    v_add_u32 {v(t0)}, {v(t0)}, {v(lg)}
    v_min_u32 {v(t0)}, 8, {v(t0)}
    v_mul_u32_u24 {v(t1)}, 640, {v(lr)}
    s_mul_i32 {s(sT0)}, {s(sW)}, {3 * XG}
    s_add_u32 {s(sT0)}, {s(sT0)}, {XP}
    v_lshl_add_u32 {v(t0)}, {v(t0)}, 4, {v(t1)}
    v_add_u32 {v(vXB)}, {s(sT0)}, {v(t0)}
    v_lshrrev_b32 {v(t0)}, 2, {v(l31)}
    v_mul_u32_u24 {v(t0)}, 768, {v(t0)}
    v_lshl_add_u32 {v(t0)}, {v(lh)}, 6, {v(t0)}
    v_lshl_add_u32 {v(vD1)}, {v(lxg)}, 4, {v(t0)}
    v_min_u32 {v(t0)}, 11, {v(vL)}
    v_mul_u32_u24 {v(t0)}, {XG - 16}, {v(t0)}
    v_min_u32 {v(t1)}, 31, {v(vL)}
    v_lshl_add_u32 {v(t0)}, {v(t1)}, 4, {v(t0)}
    v_add_u32 {v(t0)}, {XP + 2 * XPL}, {v(t0)}
    """)
    u(f"ds_write_b128 {v(t0)}, {v(vZ, 4)}")
    pF, pH, pR = TMP + 16, TMP + 17, TMP + 18
    u(f"""
    s_mov_b32 {s(sCP)}, {f32bits(CP):#x}
    s_mov_b32 {s(sCP + 1)}, {f32bits(CP):#x}
    s_mov_b32 {s(sONE)}, 1.0
    s_mov_b32 {s(sONE + 1)}, 1.0
    s_mov_b32 {s(sINV)}, {f32bits(1 / 96):#x}
    s_mov_b32 {s(sINV + 1)}, {f32bits(1 / 96):#x}
    s_mov_b32 {s(sIA)}, {f32bits(1 / ALPHA):#x}
    s_mov_b32 {s(sIA + 1)}, {f32bits(1 / ALPHA):#x}
    s_mov_b32 {s(sAL)}, {f32bits(ALPHA):#x}
    s_mov_b32 {s(sAL + 1)}, {f32bits(ALPHA):#x}
    s_mov_b32 {s(sEPS)}, {f32bits(1e-5):#x}
    s_mov_b32 {s(sEPS + 1)}, {f32bits(1e-5):#x}
    s_mov_b32 {s(sLUT)}, {lut & 0xffffffff:#x}
    s_mov_b32 {s(sLUT + 1)}, {lut >> 32:#x}
    s_mov_b32 {s(sLUT2)}, {lut2 & 0xffffffff:#x}
    s_mov_b32 {s(sLUT2 + 1)}, {lut2 >> 32:#x}
    v_lshrrev_b32 {v(t0)}, 1, {v(lg)}
    v_and_b32 {v(t0)}, {v(t0)}, {v(lg)}
    v_lshl_add_u32 {v(t1)}, {v(lg)}, 2, {v(lxg)}
    v_sub_u32 {v(t1)}, {v(t1)}, {v(t0)}
    v_mad_u32_u24 {v(t1)}, {v(lr)}, 28, {v(t1)}
    v_lshl_add_u32 {v(t2)}, {v(lxg)}, 2, {v(lg)}
    v_cmp_gt_u32 vcc, 14, {v(t2)}
    v_mul_u32_u24 {v(t1)}, {AP}, {v(t1)}
    s_mul_i32 {s(sT0)}, {s(sW)}, 48
    s_add_u32 {s(sT0)}, {s(sT0)}, {ACT}
    v_add_u32 {v(t1)}, {s(sT0)}, {v(t1)}
    v_add_u32 {v(t2)}, {ACT + 196 * AP}, {v(vL16)}
    v_cndmask_b32 {v(vAW)}, {v(t2)}, {v(t1)}, vcc
    s_lshl_b32 {s(sT0)}, {s(sW)}, 5
    v_add_u32 {v(pF)}, {s(sT0)}, {v(l31)}
    s_lshr_b32 {s(sT0)}, {s(sW)}, 1
    s_lshl_b32 {s(sT0)}, {s(sT0)}, 5
    s_add_u32 {s(sT0)}, {s(sT0)}, 128
    s_lshl_b32 {s(sT1)}, {s(sPAR)}, 4
    v_xor_b32 {v(pH)}, {s(sT1)}, {v(l31)}
    v_add_u32 {v(pH)}, {s(sT0)}, {v(pH)}
    s_add_u32 {s(sT0)}, {s(sT0)}, {s(sT1)}
    v_and_b32 {v(pR)}, 15, {v(vL)}
    v_add_u32 {v(pR)}, {s(sT0)}, {v(pR)}
    v_add_u32 {v(t1)}, {ACT}, {v(lh16)}
    s_movk_i32 {s(sT1)}, {AP}
    v_mad_u32_u24 {v(vBF)}, {v(pF)}, {s(sT1)}, {v(t1)}
    v_mad_u32_u24 {v(vBH)}, {v(pH)}, {s(sT1)}, {v(t1)}
    v_lshlrev_b32 {v(t1)}, 4, {v(lg)}
    v_add_u32 {v(t1)}, {ACT + 192 * AP}, {v(t1)}
    v_mad_u32_u24 {v(vBR)}, {v(lxg)}, {s(sT1)}, {v(t1)}
    s_mul_i32 {s(sT2)}, {s(sY0)}, 224
    s_add_u32 {s(sT2)}, {s(sT2)}, {s(sX0)}
    s_movk_i32 {s(sT3)}, 224
    """)
    for p, dst in ((pF, vOFA), (pR, vOH)):
        u(f"""
        v_mul_u32_u24 {v(t1)}, 2341, {v(p)}
        v_lshrrev_b32 {v(t1)}, 15, {v(t1)}
        v_mul_u32_u24 {v(t2)}, 14, {v(t1)}
        v_sub_u32 {v(t2)}, {v(p)}, {v(t2)}
        v_lshlrev_b32 {v(t2)}, 2, {v(t2)}
        v_lshrrev_b64 {v(t4, 2)}, {v(t2)}, {s(sLUT, 2)}
        v_and_b32 {v(t2)}, 15, {v(t4)}
        v_lshlrev_b32 {v(t1)}, 2, {v(t1)}
        v_lshrrev_b64 {v(t4, 2)}, {v(t1)}, {s(sLUT2, 2)}
        v_and_b32 {v(t1)}, 15, {v(t4)}
        v_mad_u32_u24 {v(t1)}, {v(t1)}, {s(sT3)}, {v(t2)}
        v_add_u32 {v(t1)}, {s(sT2)}, {v(t1)}
        v_mul_u32_u24 {v(dst)}, 192, {v(t1)}
        """)
    u(f"""
    s_lshl_b32 {s(sT0)}, {s(sW)}, 2
    s_lshr_b32 {s(sT0)}, 0xb73a, {s(sT0)}
    s_and_b32 {s(sT0)}, {s(sT0)}, 15
    s_add_u32 {s(sT0)}, {s(sT0)}, {s(sT2)}
    s_add_u32 {s(sT0)}, {s(sT0)}, {11 * 224}
    s_mul_i32 {s(sT0)}, {s(sT0)}, 192
    v_lshl_add_u32 {v(t1)}, {v(vL)}, 3, {s(sT0)}
    v_cmp_gt_u32 vcc, 24, {v(vL)}
    v_bfrev_b32 {v(t5)}, 1
    v_add_u32 {v(vOFA)}, {v(vOFA)}, {v(lh16)}
    v_lshl_add_u32 {v(t2)}, {v(lq)}, 5, {v(lh16)}
    v_cndmask_b32 {v(vOR)}, {v(t5)}, {v(t1)}, vcc
    v_add_u32 {v(vOH)}, {v(vOH)}, {v(t2)}
    v_lshlrev_b32 {v(t1)}, 5, {v(lh)}
    v_add_u32 {v(vGA)}, {PG}, {v(t1)}
    s_lshl_b32 {s(sT0)}, {s(sPAR)}, 6
    s_lshl_b32 {s(sT1)}, {s(sNP)}, 6
    v_lshlrev_b32 {v(t1)}, 1, {v(l31)}
    v_add_u32 {v(t1)}, {PB1}, {v(t1)}
    v_add_u32 {v(vBA)}, {s(sT0)}, {v(t1)}
    v_add_u32 {v(vBB)}, {s(sT1)}, {v(t1)}
    v_lshlrev_b32 {v(t0)}, 6, {v(lr)}
    v_lshl_add_u32 {v(t0)}, {v(lxg)}, 3, {v(t0)}
    v_lshl_add_u32 {v(t1)}, {v(lg)}, 10, {v(t0)}
    s_lshr_b32 {s(sT2)}, {s(sW)}, 1
    s_mul_i32 {s(sT2)}, {s(sT2)}, 12288
    s_lshl_b32 {s(sT0)}, {s(sPAR)}, 9
    s_lshl_b32 {s(sT1)}, {s(sNP)}, 9
    s_add_u32 {s(sT2)}, {s(sT2)}, {s(sT0)}
    v_add_u32 {v(vR1)}, {s(sT2)}, {v(t1)}
    v_lshl_add_u32 {v(t0)}, {v(lh)}, 10, {v(t0)}
    v_lshl_add_u32 {v(t0)}, {v(lq)}, 5, {v(t0)}
    v_add_u32 {v(vA)}, {s(sT0)}, {v(t0)}
    v_add_u32 {v(vB)}, {s(sT1)}, {v(t0)}
    v_and_b32 {v(t0)}, 15, {v(vL)}
    s_lshl_b32 {s(sT0)}, {s(sW)}, 6
    s_add_u32 {s(sT0)}, {s(sT0)}, {PB1}
    v_lshl_add_u32 {v(vRB)}, {v(t0)}, 1, {s(sT0)}
    v_lshl_add_u32 {v(t0)}, {v(lh)}, 2, {v(lr)}
    v_mul_u32_u24 {v(t0)}, 192, {v(t0)}
    v_and_b32 {v(t1)}, 1, {v(lxg)}
    v_lshrrev_b32 {v(t2)}, 1, {v(lxg)}
    v_lshl_add_u32 {v(t1)}, {v(t1)}, 1, {v(t2)}
    v_lshl_add_u32 {v(t0)}, {v(t1)}, 3, {v(t0)}
    v_lshl_add_u32 {v(t0)}, {v(lq)}, 5, {v(t0)}
    s_mul_i32 {s(sT0)}, {s(sPAR)}, 6144
    s_add_u32 {s(sT0)}, {s(sT0)}, {W2E}
    s_mul_i32 {s(sT1)}, {s(sNP)}, 6144
    s_add_u32 {s(sT1)}, {s(sT1)}, {W2E}
    v_add_u32 {v(vW2A)}, {s(sT0)}, {v(t0)}
    v_add_u32 {v(vW2B)}, {s(sT1)}, {v(t0)}
    v_and_b32 {v(t1)}, 1, {v(lr)}
    v_lshrrev_b32 {v(t2)}, 1, {v(lr)}
    v_lshlrev_b32 {v(t2)}, 2, {v(t2)}
    v_lshl_add_u32 {v(t1)}, {v(t1)}, 3, {v(t2)}
    v_add_u32 {v(t1)}, {v(t1)}, {v(lxg)}
    v_lshl_add_u32 {v(t1)}, {v(lq)}, 4, {v(t1)}
    v_lshlrev_b32 {v(t1)}, 1, {v(t1)}
    v_add_u32 {v(vB2F)}, {PB2}, {v(t1)}
    v_cmp_eq_u32 vcc, {s(sPAR)}, {v(vZ)}
    v_mov_b32 {v(t2)}, {ZERO}
    v_mov_b32 {v(t0)}, {A_HI:#x}
    v_cndmask_b32 {v(vB2H)}, {v(t2)}, {v(vB2F)}, vcc
    v_mov_b32 {v(t1)}, {A_LO:#x}
    v_cmp_eq_u32 vcc, 0, {v(lh)}
    v_cmp_eq_u32 {s(sMASK, 2)}, 0, {v(lg)}
    v_mov_b32 {v(t3)}, 0
    v_cndmask_b32 {v(t2)}, {v(t1)}, {v(t0)}, vcc
    v_accvgpr_write_b32 {a(aC32)}, {v(t2)}
    v_cndmask_b32 {v(t2)}, {v(t1)}, {v(t0)}, {s(sMASK, 2)}
    v_cndmask_b32 {v(t2)}, {v(t3)}, {v(t2)}, vcc
    v_mov_b32 {v(t1)}, {ZERO}
    """)
    for q in range(4):
        u(f"""
        v_cmp_eq_u32 vcc, {q}, {v(lr)}
        s_nop 1
        v_cndmask_b32 {v(t0)}, {v(t3)}, {v(t2)}, vcc
        v_cndmask_b32 {v(vBQ + q)}, {v(t1)}, {v(vBR)}, vcc
        v_accvgpr_write_b32 {a(aC16 + 4 * q)}, {v(t0)}
        """)
    u(f"""
    s_lshl_b32 {s(sT0)}, {s(sW)}, 10
    s_add_u32 {s(sT0)}, {s(sT0)}, {ST}
    v_add_u32 {v(vSW)}, {s(sT0)}, {v(vL16)}
    s_lshr_b32 {s(sT0)}, s2, 3
    s_mul_i32 {s(sT0)}, {s(sT0)}, 2304
    s_mul_i32 {s(sT1)}, {s(sPAR)}, 13
    s_add_u32 {s(sT1)}, {s(sT1)}, {s(sY0)}
    s_mul_i32 {s(sT1)}, {s(sT1)}, {ROWB}
    s_mul_i32 {s(sT2)}, {s(sX0)}, 192
    s_add_u32 {s(sT1)}, {s(sT1)}, {s(sT2)}
    s_cmp_lt_u32 {s(sW)}, 2
    s_cselect_b32 {s(sT0)}, {s(sT0)}, {s(sT1)}
    s_cselect_b32 {s(sT1)}, 18, 1
    s_cselect_b32 {s(SRD_B + 2)}, {s(SRD_W1 + 2)}, {s(SRD_O + 2)}
    v_lshl_add_u32 {v(t4)}, {v(vL)}, 7, {s(sT0)}
    v_cmp_gt_u32 vcc, {s(sT1)}, {v(vL)}
    s_nop 1
    v_cndmask_b32 {v(t4)}, {v(t5)}, {v(t4)}, vcc
    """)
    zs = za + zv
    w = Block()
    for n, x in enumerate(u):
        w.append(x)
        if n >= 4 and n % 7 == 4 and zs:
            w.append(zs.pop(0))
    assert not zs
    n0 = int(OPT["cut0"])
    while next((x for x in w[n0:] if x.startswith(("s_cmp", "s_cselect"))), "s_cmp").startswith("s_cselect"):
        n0 -= 1
    k0 = b.index("@@PRE")
    b[k0:k0 + 1] = w[:n0]
    u = Block(ka + w[n0:])
    ncut = int(OPT["cut"])
    b(u[:ncut])
    b.stamp(18)
    nh = int(OPT["hide"]) * (17 - int(OPT["early"]))
    kpre = next(k for k, x in enumerate(u) if x.startswith(f"s_lshr_b32 {s(sT0)}, s2, 3"))
    k1 = kpre - nh
    hidden = u[k1:kpre]
    pre = [x.replace(s(sT0), "s52").replace(s(sT1), "s53").replace(s(sT2), "s12").replace(v(t4), v(vG)).replace(v(t5), v(vB2V))
           .replace("vcc", s(18, 2)) for x in u[kpre:]]
    mid = u[ncut:k1] + [f"v_bfrev_b32 {v(vB2V)}, 1"] + pre
    per = min((len(mid) + 10) // 11, int(OPT["ilv"]))
    for r in range(1, 12):
        b(xload(r))
        b(mid[per * (r - 1):per * r])
    b(mid[per * 11:])
    b.stamp(2)

    hop = L(f"""
    s_mov_b64 exec, 0
    s_cmp_eq_u32 {s(sW)}, 1
    s_cbranch_scc1 L_pad3
    s_cmp_eq_u32 {s(sW)}, 2
    s_cbranch_scc1 L_pad5
    s_cmp_eq_u32 {s(sW)}, 3
    s_cbranch_scc1 L_pad7
    s_branch L_pad1
    .p2align 12
    L_body:
    s_mov_b64 exec, -1
    """)
    slots = L(f"""
    s_mov_b32 m0, {s(sMA)}
    buffer_load_dword {v(vB2V)}, {v(vG)}, {s(SRD_B, 4)}, 0 offen
    buffer_load_dwordx4 {v(vL16)}, {s(SRD_A, 4)}, 0 offen lds ;@par
    """)
    b("@lg all\n@vm tbl")
    b([f"ds_read_b64_tr_b16 {v(AF + (3 * j + t) * 4 + 2, 2)}, {v(vTA)} offset:{768 * t + 8 * j} ;@ard" for j in range(6) for t in range(3)])
    b.stamp(3)
    aexp = []
    for g in range(18):
        q = AF + 4 * g
        aexp += [f"v_and_b32 {v(q)}, {s(sLO)}, {v(q + 2)}", f"v_and_b32 {v(q + 1)}, {s(sHI)}, {v(q + 2)}",
                 f"v_and_b32 {v(q + 2)}, {s(sLO)}, {v(q + 3)}", f"v_and_b32 {v(q + 3)}, {s(sHI)}, {v(q + 3)}"]

    def w1dma(p, tag):
        o = []
        for i in range(3):
            pre = [f"s_add_u32 m0, {s(sM1)}, {12288 * p - 128 * p}", "s_nop 0"] if i == 0 else []
            o.append(pre + [f"buffer_load_dwordx4 {v(vD1)}, {s(SRD_W1, 4)}, {s(sS[i])} offen offset:{1024 * i + 128 * p} lds ;@{tag}"])
        return o

    def w2dma(late, tag):
        o = []
        for c in range(9):
            g = c >> 2
            pre = [f"s_add_u32 m0, {s(sM2)}, {(W2L if late else W2E) + 4096 * g}",
                   f"s_add_u32 {s(sT3)}, {s(sM2)}, {36864 * late + 4096 * g}"] if c % 4 == 0 else []
            o.append(pre + [f"buffer_load_dwordx4 {v(vL16)}, {s(SRD_W2, 4)}, {s(sT3)} offen offset:{1024 * (c & 3)} lds ;@{tag}"])
        return o
    early = (w1dma(0, "w1e") + w1dma(1, "w1e") + w1dma(2, "w1e"), w2dma(0, "w2e"))

    def stage(r):
        return [f"@vm x{r}", f"ds_write_b64 {v(vXW)}, {a(aSTG + 4 * r, 2)} offset:{160 * r}",
                f"ds_write_b64 {v(vXW)}, {a(aSTG + 4 * r + 2, 2)} offset:{XPL + 160 * r}"]
    dmas = early[0] + early[1]
    nst = int(OPT["nstage"])
    ne = int(OPT["early"])
    for r in range(12 + ne, 18):
        b(xload(r))
    if ne == 0:
        b(slots)
    vq = aexp + hidden + [f"v_lshlrev_b32 {v(vG)}, 2, {v(vL)}", f"v_add_u32 {v(vG)}, {PB2}, {v(vG)}"]
    per = (len(vq) + 16 - ne) // (17 - ne)
    for r in range(18):
        if r == ne + 1:
            b("@lg ard")
        if r > ne:
            b(vq[per * (r - ne - 1):per * (r - ne)])
        b(stage(r))
        if r < ne:
            b(xload(12 + r))
            if r == ne - 1:
                b(slots)
        if OPT["hops"] and r == int(OPT["hoprow"]):
            b(hop)
        b.stamp(f"x{r}")
        if r >= 18 - nst:
            b(dmas.pop(0))
    b("@lg all\ns_barrier")
    b.stamp(4)

    S, TP, TU, S2 = TMP, TMP + 8, H, H

    def acc(k, j):
        return CV + (k * 6 + j) * 4

    def reads(j):
        return [f"ds_read_b128 {a(aRB[j % 3] + 4 * r, 4)}, {v(vXB)} offset:{(j >> 1) * XG + (j & 1) * XPL + r * 160} ;@q{j}_{r}"
                for r in range(8)]

    def part(j):
        o = []
        for k in range(4):
            d = acc(k, j)
            o += [f"v_add_f32 {v(TP + 4 * j + k)}, {v(d)}, {v(d + 1)}", f"v_add_f32 {v(TU + k)}, {v(d + 2)}, {v(d + 3)}"]
        return o + [f"v_add_f32 {v(TP + 4 * j + k)}, {v(TP + 4 * j + k)}, {v(TU + k)}" for k in range(4)]
    b(reads(0))
    nstat = int(OPT["nstat"])
    sdma = dmas[len(dmas) - nstat:]
    dmas = dmas[:len(dmas) - nstat]
    ncv = len(dmas)
    where = {(72 * q + 36) // ncv: q for q in range(ncv)}
    pend = []
    rd = reads(1)
    for j in range(6):
        if j:
            b(f"@lg q{j}_7")
        rd += reads(j + 2) if j < 4 else []
        for n in range(12):
            t, k = n >> 2, n & 3
            if j == 0 and n in (0, 2, 4, 6):
                b(f"@lg q0_{(2, 4, 5, 7)[n // 2]}")
            b(f"v_smfmac_f32_16x16x64_bf16 {v(acc(k, j), 4)}, {v(AF + (3 * j + t) * 4, 4)}, {a(aRB[j % 3] + 4 * (k + 2 * t), 8)}, {v(vIDX)}")
            m = 12 * j + n
            if n == 4 and 0 < j < 5:
                pend += part(j - 1)
            if m in where:
                b(dmas[where[m]][-1:])
                continue
            pre = [x for x in dmas[where[m + 2]][:-1] if x != "s_nop 0"] if m + 2 in where else []
            b(pre)
            if rd and (not pre or j == 0):
                b(rd.pop(0))
                if j == 0 and rd and n < 9:
                    b(rd.pop(0))
            if pend:
                b(pend.pop(0))
        assert len(rd) == 0, (j, rd)
    b.stamp(5)
    g0, g1, ga = AF + 16, AF + 18, vG
    b(pend)
    U = AF + 8
    for i in range(0, 24, 2):
        for k in range(4):
            d = acc(k, 0) + i
            b(pk("mul", AF + 2 * k, v(d, 2), v(d, 2)) if i == 0 else pk("fma", AF + 2 * k, v(d, 2), v(d, 2), v(AF + 2 * k, 2)))
        if sdma and i % 4 == 0:
            b(sdma.pop(0))
    for x in sdma:
        b(x)
    for k in range(4):
        b(pk("add", U + 2 * k, v(acc(k, 4), 2), v(acc(k, 4) + 2, 2)))
    for o in (0, 2):
        b(pk("add", TP + o, v(TP + o, 2), v(TP + 4 + o, 2)))
        b(pk("add", TP + 8 + o, v(TP + 8 + o, 2), v(TP + 12 + o, 2)))
    for i in (0, 2):
        for k in range(4):
            b(pk("add", U + 2 * k, v(U + 2 * k, 2), v(acc(k, 5) + i, 2)))
    for o in (0, 2):
        b(pk("add", TP + o, v(TP + o, 2), v(TP + 8 + o, 2)))
    for k in range(4):
        b(f"v_add_f32 {v(S + 4 * (k >> 1) + 2 + (k & 1))}, {v(AF + 2 * k)}, {v(AF + 2 * k + 1)}")
        b(f"v_add_f32 {v(TP + 4 + k)}, {v(U + 2 * k)}, {v(U + 2 * k + 1)}")
    for o in (0, 2):
        b(pk("add", S + 2 * o, v(TP + o, 2), v(TP + 4 + o, 2)))
    b(f"""
    ds_write_b128 {v(vSW)}, {v(S, 4)}
    ds_write_b128 {v(vSW)}, {v(S + 4, 4)} offset:4096
    v_add_u32 {v(vSW)}, {ST}, {v(vL16)}
    @vm w1e
    @lg all
    s_barrier
    """)
    b.stamp(7)

    Q = TMP
    for ph in range(2):
        for w in range(4):
            b(f"ds_read_b128 {v(Q + 16 * ph + 4 * w, 4)}, {v(vSW)} offset:{4096 * ph + 1024 * w} ;@s{ph}")
    pre = r_w1(0) + [f"ds_read_u16 {a(aRBIAS + 2 * t)}, {v(vB2H)} offset:{64 * t}" for t in range(3)]
    pre += [f"ds_read_b32 {v(g0 + 1)}, {v(ga)} offset:{PGR - PB2}", f"ds_read_b32 {v(g1 + 1)}, {v(ga)}"]
    b(pre[:7])
    qs = (Q, Q + 16)
    for ph, q in enumerate(qs):
        b(f"@lg s{ph}")
        if ph:
            b(pre[7:])
        for o in (0, 2):
            b(pk("add", q + o, v(q + o, 2), v(q + 4 + o, 2)))
            b(pk("add", q + 8 + o, v(q + 8 + o, 2), v(q + 12 + o, 2)))
    for o in (0, 2):
        for q in qs:
            b(pk("add", q + o, v(q + o, 2), v(q + 8 + o, 2)))
    for o in (0, 2):
        for q in qs:
            b(pk("mul", q + o, v(q + o, 2), s(sINV, 2)))
    for q in qs:
        b(pk("fma", q + 2, v(q, 2), v(q, 2), v(q + 2, 2), " neg_lo:[1,0,0] neg_hi:[1,0,0]"))
    for q in qs:
        b(f"v_max_f32 {v(q + 2)}, 0, {v(q + 2)}\nv_max_f32 {v(q + 3)}, 0, {v(q + 3)}")
    for q in qs:
        b(pk("add", q + 2, v(q + 2, 2), s(sEPS, 2)))
    for q in qs:
        b(f"v_rsq_f32 {v(q + 2)}, {v(q + 2)}\nv_rsq_f32 {v(q + 3)}, {v(q + 3)}")
    for q in qs:
        b(pk("mul", q + 2, v(q + 2, 2), s(sAL, 2)))
    for q in qs:
        b(pk("mul", q, v(q, 2), v(q + 2, 2), mod=" neg_lo:[1,0] neg_hi:[1,0]"))
    wr = []
    for k in range(4):
        ph, sx = k >> 1, k & 1
        base, q = CV + 24 * k, qs[ph]
        for jj in range(3):
            for i in range(8 * jj, 8 * jj + 8, 2):
                b(pk("fma", base + i, v(base + i, 2), v(q + 2, 2), v(q, 2), f" op_sel:[0,{sx},{sx}] op_sel_hi:[1,{sx},{sx}]"))
            for i in range(4 * jj, 4 * jj + 4):
                b(f"v_cvt_pk_bf16_f32 {v(base + 4 * jj + i)}, {v(base + 2 * i)}, {v(base + 2 * i + 1)}")
            b(f"ds_write_b128 {v(vAW)}, {v(base + 8 * jj, 4)} offset:{(8 * ph + sx) * 14 * AP + 16 * jj}")
    b("@lg all\ns_barrier")
    b.stamp(8)

    b([f"ds_read_b128 {a(aBt['F'] + 4 * k, 4)}, {v(vBF)} offset:{32 * k} ;@bf{k}" for k in range(6)])
    b([f"ds_read_b128 {a(aBt['H'] + 4 * k, 4)}, {v(vBH)} offset:{32 * k}" for k in range(6)])
    late = w1dma(3, "wl") + w1dma(4, "wl") + w1dma(5, "wl") + w2dma(1, "wl")
    M = m_fc1(0)
    bq = [f"ds_read_b128 {a(aBR + 12 * q + 4 * k, 4)}, {v(vBQ + q)} offset:{64 * k}" for q in range(4) for k in range(3)]
    F = [(k, k, [f"@lg bf{k}"]) for k in range(6)] + [(1 + k, 1 + k, bq[2 * k:2 * k + 2]) for k in range(6)]
    gt = unpack(g0, g0 + 1, 1) + unpack(g1, g1 + 1, 1) + L(f"""
    v_lshlrev_b32 {v(ga)}, 3, {v(vL)}
    v_mul_f32 {v(g1)}, {v(g1)}, {v(g0)}
    v_mul_f32 {v(g1 + 1)}, {v(g1 + 1)}, {v(g0 + 1)}
    v_mul_f32 {v(g0)}, {s(sIA)}, {v(g0)}
    v_mul_f32 {v(g0 + 1)}, {s(sIA)}, {v(g0 + 1)}
    v_add_u32 {v(ga)}, {PG}, {v(ga)}
    """)
    b(trun(M, F, gt, need={}, tail=0))
    b(f"""
    s_mov_b32 exec_hi, 0xffff
    ds_write_b64 {v(ga)}, {v(g0, 2)}
    ds_write_b64 {v(ga)}, {v(g1, 2)} offset:{PGB - PG}
    s_mov_b32 exec_hi, -1
    s_nop 5
    """)
    b.stamp(9)
    b(P(0))
    b(T(0, xF=[(0, 0, ["@vm w2e", "@lg all", "s_barrier"]), (2, 2, late[0]), (4, 4, late[1]), (6, 6, late[2])], last=()))
    b(P(1, late_x=True))
    hinit = [f"{M32} {v(ACC['H'] + 16 * t, 16)}, {a(aRBIAS + 2 * t, 4)}, {a(aC32, 4)}, 0" for t in range(3)]
    b(T(1, head=("@lg all",), xM=hinit, xF=[(1 + 2 * k, 1 + 2 * k, late[3 + k]) for k in range(4)]))
    b(P(2))
    b(T(2, xF=[(1 + 3 * k, 1 + 3 * k, late[7 + k]) for k in range(4)]))
    b(P(3))
    b(T(3, xF=[(1 + 3 * k, 1 + 3 * k, late[11 + k]) for k in range(4)]))

    XR, WK = TMP + 4, TMP + 12

    def r_fc1(m):
        rd = [f"ds_read_u16 {a(aRBIAS + 2 * mh)}, {v(vRB)} offset:{256 * m + 32 * mh}" for mh in range(2)]
        rd += [f"ds_read_b64_tr_b16 {a(aRF + 12 * mh + 4 * k + 2 * jj, 2)}, {v(vR1)} offset:{24576 * m + 4096 * k + 256 * jj + 32 * mh} ;@rf"
               for k in range(3) for mh in range(2) for jj in range(2)]
        x = XR + 4 * (m >> 1)
        M = []
        for mh in range(2):
            q = (2 * m + mh) & 3
            M.append(f"{M16} {v(x, 4)}, {a(aRBIAS + 2 * mh, 4)}, {a(aC16 + 4 * q, 4)}, {v(x, 4) if q else '0'}")
            M += [f"{M16} {v(x, 4)}, {a(aRF + 12 * mh + 4 * k, 4)}, {a(aBR + 12 * q + 4 * k, 4)}, {v(x, 4)}" for k in range(3)]
        return M, [(0, 8, [x_]) for x_ in rd] + [(12, 12, ["@lg rf"])]

    if int(OPT["rpf"]):
        b(P(4, post=[f"v_lshrrev_b32 {v(TMP)}, 5, {v(vL)}", f"v_lshlrev_b32 {v(TMP)}, 7, {v(TMP)}",
                     f"v_add_u32 {v(TMP + 1)}, {v(vOFA)}, {v(TMP)}", f"v_add_u32 {v(TMP)}, {v(vOH)}, {v(TMP)}"]))
        b(T(4, xF=[(4 * k, 4 * k, late[15 + k]) for k in range(3)] + [(2, 2, [f"buffer_load_dword {a(aPFX)}, {v(TMP + 1)}, {s(SRD_X, 4)}, 0 offen"]),
                   (6, 6, [f"buffer_load_dword {a(aPFX + 1)}, {v(TMP)}, {s(SRD_X, 4)}, 0 offen"]),
                   (10, 10, [f"buffer_load_dwordx2 {a(aPFX + 2, 2)}, {v(vOR)}, {s(SRD_X, 4)}, 0 offen"])]))
    else:
        b(P(4))
        b(T(4, xF=[(4 * k, 4 * k, late[15 + k]) for k in range(3)]))
    bumpA = [f"v_subrev_u32 {v(vW2A)}, 36864, {v(vW2A)}", f"v_add_u32 {v(vA)}, 36864, {v(vA)}"]
    bumpB = [f"v_subrev_u32 {v(vW2B)}, 36864, {v(vW2B)}", f"v_add_u32 {v(vB)}, 36864, {v(vB)}"]
    f1pos, g0 = (((5, 7, 8), 9), ((6, 8, 10), 11))[int(OPT["rpos"])]
    for j in range(5, 15):
        post = {g0: p_t(XR, WK, 8) + p_z(XR, WK, 8), g0 + 1: p_add(WK, 8), g0 + 2: p_mul(WK, XR, 8)}.get(j, [])
        b(P(j, post=post))
        if j == 7:
            b("@vm wl\ns_barrier")
        M_, F_ = r_fc1(f1pos.index(j)) if j in f1pos else ([], [])
        V_ = {g0: t_exp(WK, WK, 8), g0 + 1: t_rcp(WK, WK, 8), g0 + 2: t_cvt(HR, WK, 8)}.get(j, [])
        b(T(j, xM=M_, xF=F_, xV=V_ + {6: bumpA, 11: bumpB}.get(j, [])))
    HX, FX, RX = TMP, TMP + 12, vA
    AH, AFc = ACC["H"], ACC["F"]
    nt2 = OPT["nt2"]
    hx = [f"buffer_load_dwordx4 {v(HX + 4 * t, 4)}, {v(vOH)}, {s(SRD_X, 4)}, 0 offen offset:{64 * t} {nt2} ;@hx" for t in range(3)]
    fx = [f"buffer_load_dwordx4 {v(FX + 4 * c, 4)}, {v(vOFA)}, {s(SRD_X, 4)}, 0 offen offset:{32 * c} {nt2} ;@fx" for c in range(6)]
    vXR_, vGH_, vOFB = vBA, vW2A, vBB
    b(P(15))
    F_ = [(1 + 2 * t, 1 + 2 * t, [hx[t]]) for t in range(3)] + [(7 + 2 * c, 7 + 2 * c, fx[c:c + 1]) for c in range(3)]
    F_ += [(0, 0, [f"s_xor_b32 {s(sT0)}, {s(sW)}, 1"]), (1, 1, [f"s_mul_i32 {s(sT0)}, {s(sT0)}, 6144"])]
    V_ = L(f"""
    v_add_u32 {v(vXR_)}, {s(sT0)}, {v(vL16)}
    v_bfe_u32 {v(vGH_)}, {v(vL)}, 4, 1
    v_lshl_add_u32 {v(vGH_)}, {v(vGH_)}, 6, {v(vGA)}
    """)
    odd = lambda c: AH + 16 * (c >> 1) + 8 + 4 * (c & 1)
    sw = [f"v_permlane16_swap_b32 {v(AH + 16 * t + i)}, {v(AH + 16 * t + 8 + i)}" for t in range(3) for i in range(8)]
    xw = [f"ds_write_b128 {v(vRW)}, {v(odd(c), 4)} offset:{XCH + 1024 * c} ;@xw" for c in range(6)]
    xr = [f"ds_read_b128 {v(odd(c), 4)}, {v(vXR_)} offset:{XCH + 1024 * c}" for c in range(6)]
    if int(OPT["xch"]):
        b(T(15, xF=F_, xV=V_ + sw[:8], tmajor=True))
        b(P(16, pre=xw[:1], post=sw[8:16] + xw[1:2] + sw[16:]))
        F_ = [(2 * c, 2 * c, xw[2 + c:3 + c]) for c in range(4)] + [(8, 8, ["@lg xw", "s_barrier"])]
        F_ += [(9 + c // 2, 9 + c // 2, xr[c:c + 1]) for c in range(6)]
    else:
        b(T(15, xF=F_, xV=V_))
        b(P(16, post=sw))
        F_ = [(c, c, xw[c:c + 1]) for c in range(6)] + [(7, 7, ["@lg xw", "s_barrier"])]
        F_ += [(8 + c // 2, 8 + c // 2, xr[c:c + 1]) for c in range(6)]
    F_ += [(6, 6, [f"ds_read_u16 {a(aRBIAS + 2 * t)}, {v(vB2F)} offset:{64 * t}" for t in range(3)])]
    F_ += [(6, 6, fx[3:4]), (11, 11, fx[4:5]), (12, 12, [f"buffer_load_dwordx2 {v(RX, 2)}, {v(vOR)}, {s(SRD_X, 4)}, 0 offen"])]
    b(T(16, xF=F_, last=(), xV=[f"v_add_u32 {v(vOFB)}, 32, {v(vOFA)}"]))
    post = [pk("add", AH + 16 * t + i, v(AH + 16 * t + i, 2), v(AH + 16 * t + 8 + i, 2)) for t in range(3) for i in range(0, 8, 2)]
    b(P(17, post=["@lg all"] + post))
    finit = [f"{M32} {v(AFc + 16 * t, 16)}, {a(aRBIAS + 2 * t, 4)}, {a(aC32, 4)}, {v(AFc + 16 * t, 16)}" for t in range(3)]
    GH = (X[0], X[0] + 8, Z)
    GF = (AH, AH + 16, X[0], X[0] + 8, Z + 8, R)
    gh = [f"ds_read_b128 {v(GH[t] + 4 * k, 4)}, {v(vGH_)} offset:{128 * t + 16 * k}" for t in range(3) for k in range(2)]
    gf = [f"ds_read_b128 {v(GF[c] + 4 * k, 4)}, {v(vGA)} offset:{64 * c + 16 * k}" for c in range(6) for k in range(2)]

    def rw2(q):
        fb = (aRF, aRF2)[q & 1]
        o = []
        for jj in range(2 - (q >> 1)):
            tau = q + 4 * jj
            reg, off = ((vR2A, 24576), (vR2B, 0), (vR2A, 0))[tau >> 1]
            o += [f"ds_read_b64_tr_b16 {a(fb + 4 * c + 2 * jj, 2)}, {v(reg)} offset:{off + 3072 * (tau & 1) + 32 * c}" for c in range(6)]
        return o
    F_ = [(0, 5, [x]) for x in gh[:4] + rw2(0)] + [(2, 2, fx[5:6]), (0, 0, ["@vm hx"])]
    V_ = [x for t in range(3) for x in unpack(AH + 16 * t + 8, HX + 4 * t, 4)]
    b(T(17, xM=finit, xF=F_, xV=V_))
    hf = lambda t: [pk("fma", AH + 16 * t + 8 + i, v(AH + 16 * t + i, 2), v(GH[t] + i, 2), v(AH + 16 * t + 8 + i, 2)) for i in range(0, 8, 2)]
    hc = lambda t: t_cvt(HX + 4 * t, AH + 16 * t + 8, 8)
    hs = [f"buffer_store_dwordx4 {v(HX + 4 * t, 4)}, {v(vOH)}, {s(SRD_O, 4)}, 0 offen offset:{64 * t} {OPT['st_h']}" for t in range(3)]
    b(P(18, post=hf(0) + hf(1)))
    UF = (X[1], X[1] + 8, X[2], X[2] + 8, E, E + 8)
    F_ = [(0, 3, [x]) for x in gh[4:] + gf[:10]] + [(3, 3, hs[:1]), (5, 5, hs[1:2]), (3, 3, ["@vm fx"])]
    V_ = unpack(UF[0], FX, 4) + unpack(UF[1], FX + 4, 4) + [f"v_permlane16_swap_b32 {v(vOFA)}, {v(vOFB)}"]
    b(T(18, xF=F_, xVpre=hc(0) + hc(1), xV=V_, xneed={3: 12, 5: 16}))
    b(P(19, post=hf(2)))

    def ftail(t, plain):
        o = []
        for c in (2 * t, 2 * t + 1):
            if plain:
                o += [f"v_fma_f32 {v(UF[c] + i)}, {v(AFc + 8 * c + i)}, {v(GF[c] + i)}, {v(UF[c] + i)}" for i in range(8)]
            else:
                o += [pk("fma", UF[c] + i, v(AFc + 8 * c + i, 2), v(GF[c] + i, 2), v(UF[c] + i, 2)) for i in range(0, 8, 2)]
        for c in (2 * t, 2 * t + 1):
            o += t_cvt(FX + 4 * c, UF[c], 8)
        o += [f"v_permlane16_swap_b32 {v(FX + 8 * t + i)}, {v(FX + 8 * t + 4 + i)}" for i in range(4)]
        return o

    def fst(t):
        return [f"buffer_store_dwordx4 {v(FX + 8 * t + 4 * k, 4)}, {v((vOFA, vOFB)[k])}, {s(SRD_O, 4)}, 0 offen offset:{64 * t} {OPT['st_f']}"
                for k in range(2)]
    V_ = hc(2) + [x for c in range(2, 6) for x in unpack(UF[c], FX + 4 * c, 4)][:20] + ftail(0, True)
    F_ = [(1, 1, gf[10:]), (2, 2, hs[2:3])] + [(0, 3, [x]) for x in rw2(1)]
    b(T(19, xF=F_, xV=V_, xneed={2: 12}, tmajor=True))
    b(fst(0))
    b.stamp("f0")
    b([x for c in range(2, 6) for x in unpack(UF[c], FX + 4 * c, 4)][20:])
    for t in (1, 2):
        b(ftail(t, False))
        b(fst(t))
        b.stamp(f"f{t}")

    HQ, RA = AH, AH + 16
    PP, PGm, PBm, RU, ra, rg, rw = X[0], X[1], X[1] + 4, X[1] + 8, X[2], X[2] + 1, X[2] + 2
    hq = lambda q: HR if q == 0 else HQ + 4 * (q - 1)
    rrot = [f"v_mov_b32_dpp {v(hq(q) + i)}, {v(HR + i)} row_ror:{16 - 4 * q} row_mask:0xf bank_mask:0xf" for q in (1, 2, 3) for i in range(4)]
    M_ = [f"{M16} {v(RA + 4 * c, 4)}, {a((aRF, aRF2)[q & 1] + 4 * c, 4)}, {v(hq(q), 4)}, {v(RA + 4 * c, 4) if q else '0'}"
          for q in range(4) for c in range(6)]
    r2, r3 = rw2(2), rw2(3)
    F_ = [(c, c, r2[c:c + 1]) for c in range(6)] + [(6 + c, 6 + c, r3[c:c + 1]) for c in range(6)]
    F_ += [(0, 0, [f"s_mul_i32 {s(sT0)}, {s(sW)}, 2176"]), (1, 1, [f"s_lshl_b32 {s(sT1)}, {s(sW)}, 4"])]
    F_ += [(20, 20, [f"ds_read_b128 {v(PGm, 4)}, {v(rg)}"]), (21, 21, [f"ds_read_b128 {v(PBm, 4)}, {v(rg)} offset:{PGB - PG}"])]
    V_ = rrot + L(f"""
    v_min_u32 {v(rg)}, 23, {v(vL)}
    v_and_b32 {v(ra)}, 3, {v(rg)}
    v_mul_u32_u24 {v(ra)}, 272, {v(ra)}
    v_bfe_u32 {v(rw)}, {v(rg)}, 2, 2
    v_lshl_add_u32 {v(ra)}, {v(rw)}, 6, {v(ra)}
    v_lshrrev_b32 {v(rw)}, 4, {v(rg)}
    v_mul_u32_u24 {v(rw)}, 1088, {v(rw)}
    v_add3_u32 {v(ra)}, {v(ra)}, {v(rw)}, {s(sT1)}
    v_lshlrev_b32 {v(rg)}, 4, {v(rg)}
    v_add_u32 {v(rg)}, {PG}, {v(rg)}
    v_lshrrev_b32 {v(rw)}, 4, {v(vL)}
    v_add_u32 {v(rw)}, {v(rw)}, {v(vL)}
    v_lshl_add_u32 {v(rw)}, {v(rw)}, 4, {s(sT0)}
    """) + unpack(RU, RX, 2)
    o, _ = trun2(M_, F_, V_, {6: 6, 12: 10, 18: 14, 20: 22}, [], drain=8)
    b(o)
    b("s_nop 1")
    for c in (1, 2, 3, 5):
        for i in range(4):
            b(f"v_mov_b32_dpp {v(RA + 16 * (c >> 2) + i)}, {v(RA + 4 * c + i)} row_shr:{4 * (c & 3)} row_mask:0xf bank_mask:{1 << (c & 3):#x}")
        if c == 3:
            b(f"ds_write_b128 {v(rw)}, {v(RA, 4)} offset:{RBUF}")
    b(f"ds_write_b128 {v(rw)}, {v(RA + 16, 4)} offset:{RBUF + 1088}")
    b("@lg all\ns_barrier")
    b([f"ds_read_b128 {v(PP + 4 * w, 4)}, {v(ra)} offset:{RBUF + 2176 * w}" for w in range(4)])
    b([pk("add", RU + i, v(RU + i, 2), v(PBm + i, 2)) for i in (0, 2)])
    b([pk("add", PP + i, v(PP + i, 2), v(PP + 4 + i, 2)) for i in (0, 2)])
    b([pk("add", PP + 8 + i, v(PP + 8 + i, 2), v(PP + 12 + i, 2)) for i in (0, 2)])
    b([pk("add", PP + i, v(PP + i, 2), v(PP + 8 + i, 2)) for i in (0, 2)])
    b([pk("fma", RU + i, v(PP + i, 2), v(PGm + i, 2), v(RU + i, 2)) for i in (0, 2)])
    b(t_cvt(RX, RU, 4))
    b(f"buffer_store_dwordx2 {v(RX, 2)}, {v(vOR)}, {s(SRD_O, 4)}, 0 offen {OPT['st_r']}")
    b.stamp(16)
    if OPT["probe"] is not None:
        b("@vm all")
        b.stamp("end")
        b(f"s_sub_u32 s98, {s(sSTAMP)}, s96" if OPT["probe"] != "0" else "s_mov_b32 s98, 0")
        if OPT["probewg"] is not None:
            b(f"s_cmp_eq_u32 s2, {OPT['probewg']}\ns_cselect_b32 s98, s98, 0")
        b("""
        s_lshl_b32 s98, s98, 2
        s_add_u32 s98, s98, 40000
        L_diag:
        s_memtime s[100:101]
        s_waitcnt lgkmcnt(0)
        s_sub_u32 s100, s100, s96
        s_cmp_lt_u32 s100, s98
        s_cbranch_scc1 L_diag
        """)
    elif OPT["stamps"]:
        b("@vm all")
        b.stamp("end")
        b(f"""
        s_load_dwordx2 s[4:5], s[0:1], 72
        s_waitcnt lgkmcnt(0)
        s_lshl_b32 s6, s2, 2
        s_add_u32 s6, s6, {s(sW)}
        s_lshl_b32 s6, s6, 7
        v_mov_b32 v0, s6
        s_mov_b32 s6, 0x100000
        s_mov_b32 s7, 0x20000
        s_mov_b64 exec, 1
        """)
        for k in range(1, 20):
            kk = min(k, len((OPT["only"] or DEFAULT_STAMPS).split(",")) + 1)
            b(f"s_sub_u32 s8, {s(sSTAMP + kk)}, {s(sSTAMP)}" if not OPT["real"] else
              (f"s_mov_b32 s8, {s(sSTAMP + kk - 1)}" if k < 19 else "s_getreg_b32 s8, hwreg(HW_REG_XCC_ID, 0, 4)"))
            b("v_mov_b32 v2, s8")
            b(f"buffer_store_dword v2, v0, s[4:7], 0 offen offset:{4 * k}")
        b("@vm all")
    return b


def add_pads(lines):
    out = []
    off = None
    n = 0
    for t in lines:
        if t == "L_body:":
            off = 0
        if off is not None and not t.endswith(":") and not t.startswith("."):
            sz = isize(t)
            if off + sz > 4096 * (n + 1):
                while off < 4096 * (n + 1):
                    out.append("s_nop 0")
                    off += 4
                n += 1
                out.append(f"L_pad{n}:")
                out.append(f"s_cbranch_execz {'L_pad%d' % (n + 1) if n % 2 else 'L_body'}")
                out.append("s_nop 0")
                off += 8
            off += sz
        out.append(t)
    return out, n


def loop_segment(b):
    import re
    m0, m1 = OPT["seg"].split(",")
    i0, i1 = b.index(f"MARK_{m0}:"), b.index(f"MARK_{m1}:")
    body = [x for x in b[i0:i1] if not x.startswith("MARK_")]
    if OPT["drop"]:
        body = [x for x in body if not re.search(OPT["drop"], x)]
    if OPT["nop"]:
        body = [("s_nop 1" if re.match("v_exp|v_rcp", x) else "s_nop 0") if re.search(OPT["nop"], x) else x for x in body]
    o = Block([x for x in b[:i0] if not x.startswith("MARK_")])
    o("@vm all\n@lg all\ns_barrier\ns_mov_b32 s99, 0\ns_memrealtime s[94:95]\ns_memtime s[96:97]\ns_waitcnt lgkmcnt(0)\n.p2align 6\nL_seg:")
    o(body * 5)
    o("""
    s_add_u32 s99, s99, 1
    s_cmp_lt_u32 s99, 5
    s_cbranch_scc1 L_seg
    @vm all
    s_memtime s[100:101]
    s_memrealtime s[92:93]
    s_load_dwordx2 s[4:5], s[0:1], 72
    s_waitcnt lgkmcnt(0)
    s_sub_u32 s8, s100, s96
    s_sub_u32 s9, s92, s94
    s_lshl_b32 s6, s2, 2
    """ + f"s_add_u32 s6, s6, {s(sW)}" + """
    s_lshl_b32 s6, s6, 7
    v_mov_b32 v0, s6
    s_mov_b32 s6, 0x100000
    s_mov_b32 s7, 0x20000
    s_mov_b64 exec, 1
    v_mov_b32 v2, s8
    buffer_store_dword v2, v0, s[4:7], 0 offen offset:4
    v_mov_b32 v3, s9
    buffer_store_dword v3, v0, s[4:7], 0 offen offset:8
    @vm all
    """)
    return o


def build():
    b = gen()
    if OPT["seg"]:
        b = loop_segment(b)
    lines, added = autowait(b, OPT["verbose"])
    bad = 0
    if OPT["align"]:
        lines, bad = fix_align(lines)
    npad = 0
    if OPT["hops"]:
        lines, npad = add_pads(lines)
        for k in range(npad + 1, 9):
            lines = [t.replace(f"L_pad{k}", "L_body") if not t.endswith(":") else t for t in lines]
    trace = [t for t in lines if not t.endswith(":") and not t.startswith(".")]
    errs = check(trace)
    hdr = open("standalone__modern_conv_block_convnext__vision.s.ref").read().split("\n")
    head = [l for l in hdr if l.startswith(";") and "@launch" not in l and "Override" not in l and "grid=ceil" not in l]
    out = head + [f"; @launch grid=(256,1,1) block=(256,1,1) lds={LDS_BYTES}",
                  '.amdgcn_target "amdgcn-amd-amdhsa--gfx950"', ".text", f".globl {KNAME}", ".p2align 12", ".p2align 8",
                  f".type {KNAME},@function", f"{KNAME}:"]
    for t in lines:
        out.append(t if t.endswith(":") or t.startswith(".") else "    " + t)
    out += ["L_end:", "    s_endpgm", '.section .rodata,"a"', ".p2align 6", f".amdhsa_kernel {KNAME}",
            "  .amdhsa_next_free_vgpr 512", "  .amdhsa_next_free_sgpr 102", "  .amdhsa_accum_offset 256",
            "  .amdhsa_group_segment_fixed_size 0", "  .amdhsa_kernarg_size 80", "  .amdhsa_user_sgpr_count 2",
            "  .amdhsa_user_sgpr_kernarg_segment_ptr 1", "  .amdhsa_system_sgpr_workgroup_id_x 1",
            ".end_amdhsa_kernel", ""]
    info = f"{len(trace)} instrs, {sum(isize(t) for t in trace)} bytes, {added} auto waits, {bad} misaligned, {npad} pads, {len(errs)} lint findings"
    return "\n".join(out), errs, info


if __name__ == "__main__":
    path = sys.argv[1]
    for kv in sys.argv[2:]:
        k, val = kv.split("=")
        OPT[k] = val if k.startswith(("probe", "only", "seg", "drop", "nop")) else {"0": False, "1": True}.get(val, val.replace("+", " "))
    text, errs, info = build()
    for e in errs:
        print("HAZARD", e)
    open(path, "w").write(text)
    print(f"wrote {path}: {info}")
```

```python
import math
import struct
import sys

from asmlint import check
from sched import trun, trun2, autowait, fix_align, isize

KNAME = "standalone__modern_conv_block_convnext__vision_kernel"
OPT = dict(nt="", stamps=False, verbose=False, align=True, st_h="sc1", st_f="sc1", st_r="sc1", hops=True, margin=16, nt2="", probe=None, probewg=None, only=None, cut0=0, cut=40, cut2=120, steal=8, drain=45, seg=None, tmaj=0, nop=None, real=False, drop=None, pfslice=True, nstage=0, nstat=0, hide=3, early=6, ilv=12, hoprow=3, rpf=0, rpos=1, xch=2, stagerow=12, ln2=0, rend=1, w2m=0, prew=0, q0lag=0)


def f32bits(x):
    return struct.unpack("<I", struct.pack("<f", x))[0]


def bf16_rne(x):
    u = f32bits(x)
    return (u + 0x7FFF + ((u >> 16) & 1)) >> 16


def bf16_val(h):
    return struct.unpack("<f", struct.pack("<I", h << 16))[0]


C1 = 2.0 * math.sqrt(2.0 / math.pi) * math.log2(math.e)
ALPHA = (C1 * 0.044715) ** (1.0 / 3.0)
CP = C1 / ALPHA
A_HI = bf16_rne(ALPHA)
A_LO = bf16_rne(ALPHA - bf16_val(A_HI))

W2L, W2E = 73728, 110592
XP, XG, XPL = 36864, 5776, 2880
ACT, AP = 36864, 208
TBL = 147456
ST = TBL
RBUF, XCH = 24576, 0
PB1, PB2, PGR, PG, PGB = 159744, 160768, 161792, 162816, 163200
ZERO = PB2 + 512
LDS_BYTES = 163584
ROWB = 43008
XBYTES = 9633792

SRD_X, SRD_DW, SRD_W1, SRD_W2, SRD_A, SRD_B, SRD_O = 20, 24, 28, 32, 36, 40, 48
sROW, sMA, sLUT2 = 44, 45, 46
sW, sPAR, sX0, sY0, sNP = 54, 55, 56, 57, 58
sT0, sT1, sT2, sT3 = 59, 60, 61, 62
sTB = 63
sCP, sONE, sINV, sLUT, sIA, sAL, sEPS, sMASK = 64, 66, 68, 70, 72, 74, 76, 78
sLO, sHI, sM1, sM2 = 10, 11, 14, 15
sS = (16, 17, 3)
sSTAMP = 80

vB2F, vL = 0, 1
vA, vB, vW2A, vW2B, vBA, vBB = 2, 3, 4, 5, 6, 7
vOFA, vRW, vOH, vOR, vGA, vR2A, vL16, vR2B = 8, 9, 10, 11, 12, 13, 14, 15
vR1, vRB, vGH = 16, 17, 18
HR = 16
ACC = {"F": 20, "H": 68}
X = (116, 132, 148)
Z, E, R, H, TMP = 164, 180, 196, 212, 220
CV, AF = 116, 20
vIDX, vTA, vXB, vXW, vXO, vAW, vBF, vBH, vBR, vPF, vB2H, vG, vB2V, vSW, vBQ = range(92, 107)
vD1 = TMP + 35

aSTG = 0
aRB = (72, 108, 144)
aW1, aW2 = 0, (24, 48)
aBt = {"F": 72, "H": 96}
aBR, aRF = 120, 168
aRF2, aRACC = 120, 144
aBIAS, aC32, aC16, aRBIAS, aPFX = 192, 196, 200, 216, 224


def v(i, n=1):
    return f"v{i}" if n == 1 else f"v[{i}:{i+n-1}]"


def a(i, n=1):
    return f"a{i}" if n == 1 else f"a[{i}:{i+n-1}]"


def s(i, n=1):
    return f"s{i}" if n == 1 else f"s[{i}:{i+n-1}]"


def L(t):
    return [x.strip() for x in t.strip("\n").split("\n") if x.strip()]


class Block(list):
    def __call__(self, t):
        self.extend(L(t) if isinstance(t, str) else t)

    def stamp(self, k):
        k = str(k)
        if OPT["seg"]:
            self.append(f"MARK_{k}:")
            return
        if OPT["probe"] is not None and k == "0":
            self("s_memtime s[96:97]")
            return
        if OPT["probe"] is not None:
            names = [OPT["probe"]]
        elif OPT["stamps"]:
            names = ["0"] + (OPT["only"] or DEFAULT_STAMPS).split(",") + ["end"]
        else:
            return
        if k in names:
            self(f"{'s_memrealtime' if OPT['real'] else 's_memtime'} s[100:101]\ns_waitcnt lgkmcnt(0)\ns_mov_b32 {s(sSTAMP + names.index(k))}, s100")


DEFAULT_STAMPS = "1,18,2,3,4,5,7,8,9,T3,P7,T12,P17,P19,T19,16"


def pk(op, d, x, y, z=None, mod=""):
    t = f"v_pk_{op}_f32 {v(d, 2)}, {x}, {y}"
    if z is not None:
        t += f", {z}"
    return t + mod


def p_t(xb, zb, n=16):
    return [pk("fma", zb + i, v(xb + i, 2), v(xb + i, 2), s(sCP, 2)) for i in range(0, n, 2)]


def p_z(xb, zb, n=16):
    return [pk("mul", zb + i, v(zb + i, 2), v(xb + i, 2), mod=" neg_lo:[1,0] neg_hi:[1,0]") for i in range(0, n, 2)]


def p_add(eb, n=16):
    return [pk("add", eb + i, v(eb + i, 2), s(sONE, 2)) for i in range(0, n, 2)]


def p_mul(rb, xb, n=16):
    return [pk("mul", rb + i, v(rb + i, 2), v(xb + i, 2)) for i in range(0, n, 2)]


def t_cvt(hb, rb, n=16):
    return [f"v_cvt_pk_bf16_f32 {v(hb + i // 2)}, {v(rb + i)}, {v(rb + i + 1)}" for i in range(0, n, 2)]


def t_rcp(rb, eb, n=16):
    return [f"v_rcp_f32 {v(rb + i)}, {v(eb + i)}" for i in range(n)]


def t_exp(eb, zb, n=16):
    return [f"v_exp_f32 {v(eb + i)}, {v(zb + i)}" for i in range(n)]


def unpack(dst, src, n):
    o = []
    for i in range(n):
        o += [f"v_lshlrev_b32 {v(dst + 2 * i)}, 16, {v(src + i)}", f"v_and_b32 {v(dst + 2 * i + 1)}, {s(sHI)}, {v(src + i)}"]
    return o


M32 = "v_mfma_f32_32x32x16_bf16"
M16 = "v_mfma_f32_16x16x32_bf16"

SLOTS = ([(t, "a", i, 0) for i in range(3) for t in "FH"] + [("F", "b", i, 0) for i in range(3)]
         + [(t, "a", i, 1) for i in range(3) for t in "HF"] + [("F", "b", i, 1) for i in range(3)])
NS = len(SLOTS)


def neww(j):
    return j == 0 or SLOTS[j][1:] != SLOTS[j - 1][1:]


UNITNO = []
for _j in range(NS):
    UNITNO.append((UNITNO[-1] if UNITNO else -1) + (1 if neww(_j) else 0))


def m_fc1(j):
    xb, bb = X[j % 3], aBt[SLOTS[j][0]]
    o = [f"{M32} {v(xb, 16)}, {a(aBIAS, 4)}, {a(aC32, 4)}, 0"]
    return o + [f"{M32} {v(xb, 16)}, {a(aW1 + 4 * k, 4)}, {a(bb + 4 * k, 4)}, {v(xb, 16)}" for k in range(6)]


def m_fc2(j):
    acc, wb = ACC[SLOTS[j][0]], aW2[UNITNO[j] % 2]
    return [f"{M32} {v(acc + 16 * t, 16)}, {a(wb + 4 * (3 * k + t), 4)}, {v(H + 4 * k, 4)}, "
            + ("0" if (j == 0 and k == 0) else v(acc + 16 * t, 16)) for k in range(2) for t in range(3)]


def r_w1(j):
    _, g, i, late = SLOTS[j]
    off = 12288 * i
    o = [f"ds_read_u16 {a(aBIAS)}, {v(vBA if g == 'a' else vBB)} offset:{128 * i + 384 * late}"]
    return o + [f"ds_read_b64_tr_b16 {a(aW1 + 4 * k + 2 * jj, 2)}, {v(vA if g == 'a' else vB)} offset:{off + 2048 * k + 256 * jj}"
                for k in range(6) for jj in range(2)]


def r_w2(j):
    _, g, i, late = SLOTS[j]
    wb = aW2[UNITNO[j] % 2]
    return [f"ds_read_b64_tr_b16 {a(wb + 4 * (3 * k + t) + 2 * jj, 2)}, {v(vW2A if g == 'a' else vW2B)} "
            f"offset:{12288 * i + 3072 * k + 1536 * jj + 64 * t}" for k in range(2) for t in range(3) for jj in range(2)]


def has(j):
    return 0 <= j < NS


STOLEN = {}


def P(j, pre=(), post=(), late_x=False):
    t = p_t(X[j % 3], Z) if has(j) else []
    z = p_z(X[j % 3], Z) if has(j) else []
    m = p_mul(R, X[(j - 2) % 3])[STOLEN.get(j, 0):] if has(j - 2) else []
    d = p_add(E) if has(j - 1) else []
    core = m + d + t + z if late_x else t + m + z + d
    o = Block(list(pre) + core + list(post))
    o.stamp(f"P{j}")
    return o


def T(j, xM=(), xF=(), xVpre=(), xV=(), xneed=None, tail=12, head=(), tmajor=False, last=("@lg all",), skip_w2=False):
    f1 = m_fc1(j + 1) if has(j + 1) else []
    f2 = m_fc2(j - 2) if has(j - 2) else []
    tmajor = tmajor or bool(int(OPT["tmaj"]))
    if tmajor and f2:
        f2 = [f2[3 * k + t] for t in range(3) for k in range(2)]
    M = f1 + f2 + list(xM)
    n = len(M)
    cv = t_cvt(H, R) if has(j - 2) else []
    V = cv + list(xVpre) + (t_rcp(R, E) if has(j - 1) else []) + (t_exp(E, Z) if has(j) else []) + list(xV)
    need = dict(xneed or {})
    if f2:
        need[len(f1)] = max(need.get(len(f1), 0), 6)
        k1 = len(f1) + (1 if tmajor else 3)
        need[k1] = max(need.get(k1, 0), 10 if len(V) >= 10 else len(V))
    F = list(xF)
    nm = len(f1) + len(f2) + sum("32x32" in m for m in xM)
    hi = max(0, nm - 4)
    if has(j + 2) and neww(j + 2):
        w = r_w1(j + 2)
        F += [(1 + k, max(1 + k, hi), [w[1 + 2 * k + jj]]) for k in range(5, -1, -1) for jj in range(2)] + [(0, hi, w[:1])]
    if has(j - 1) and neww(j - 1) and not skip_w2:
        F += [(0, hi, [x]) for x in r_w2(j - 1)]
    F += [(n - 1, n - 1, [x]) for x in last]
    steal = []
    if has(j - 1):
        base = len(cv) + len(xVpre)
        xb = X[(j - 1) % 3]
        steal = [(None, [f"v_mul_f32 {v(R + i + k)}, {v(R + i + k)}, {v(xb + i + k)}" for k in range(2)], base + i + 1)
                 for i in range(0, 16, 2)]
    o, STOLEN[j + 1] = trun2(M, F, V, need, list(head), steal, int(OPT["drain"]), int(OPT["steal"]))
    o = Block(o)
    o.stamp(f"T{j}")
    return o


def gen():
    b = Block()
    nt = OPT["nt"]
    t0, t1, t2, t3, t4, t5 = range(TMP, TMP + 6)
    vTB, vZ = TMP + 20, TMP + 24

    if OPT["pfslice"]:
        pfcalc = f"s_lshr_b32 s3, s2, 3\ns_lshl_b32 s3, s3, 10\nv_and_b32 {v(t0)}, 7, v0\nv_lshl_add_u32 {v(t0)}, {v(t0)}, 7, s3"
    else:
        pfcalc = f"v_lshlrev_b32 {v(t0)}, 7, v0"
    b.stamp(0)
    b(f"""
    s_cmp_ge_u32 s2, 256
    s_cbranch_scc1 L_end
    s_load_dwordx16 s[4:19], s[0:1], 0
    s_getpc_b64 s[52:53]
    L_pc:
    {pfcalc}
    v_min_u32 {v(t0)}, L_end-L_pc, {v(t0)}
    global_load_dword {v(vPF)}, {v(t0)}, s[52:53] ;@pf
    v_lshrrev_b32 {v(t1)}, 6, v0
    v_and_b32 {v(vL)}, 63, v0
    v_readfirstlane_b32 {s(sW)}, {v(t1)}
    s_and_b32 {s(sT0)}, s2, 1
    s_lshl_b32 {s(sT0)}, {s(sT0)}, 3
    s_bfe_u32 {s(sT1)}, s2, 0x30003
    s_add_u32 {s(sT0)}, {s(sT0)}, {s(sT1)}
    s_mul_i32 {s(sX0)}, {s(sT0)}, 14
    s_bfe_u32 {s(sT0)}, s2, 0x20001
    s_lshl_b32 {s(sT0)}, {s(sT0)}, 2
    s_lshr_b32 {s(sT1)}, s2, 6
    s_add_u32 {s(sT0)}, {s(sT0)}, {s(sT1)}
    s_mul_i32 {s(sY0)}, {s(sT0)}, 14
    v_mul_u32_u24 {v(t0)}, 43, {v(vL)}
    v_lshrrev_b32 {v(t0)}, 7, {v(t0)}
    v_mul_u32_u24 {v(t1)}, 3, {v(t0)}
    v_sub_u32 {v(t1)}, {v(vL)}, {v(t1)}
    v_and_b32 {v(t2)}, 7, {v(t0)}
    v_lshrrev_b32 {v(t0)}, 3, {v(t0)}
    v_mad_u32_u24 {v(t0)}, {v(t0)}, 5, {v(t2)}
    v_cmp_le_u32 vcc, 3, {v(t2)}
    v_mul_u32_u24 {v(t0)}, 192, {v(t0)}
    s_mul_i32 {s(sT0)}, {s(sW)}, 48
    s_sub_u32 {s(sT0)}, {s(sT0)}, 576
    v_lshl_add_u32 {v(t0)}, {v(t1)}, 4, {v(t0)}
    v_add_u32 {v(t0)}, {s(sT0)}, {v(t0)}
    v_bfrev_b32 {v(t5)}, 1
    v_cndmask_b32 {v(vTB)}, {v(t5)}, {v(t0)}, vcc
    s_mul_i32 {s(sT1)}, {s(sW)}, 56
    v_add_u32 {v(t1)}, {s(sT1)}, {v(vL)}
    v_mul_u32_u24 {v(t2)}, 171, {v(t1)}
    v_lshrrev_b32 {v(t2)}, 11, {v(t2)}
    s_sub_u32 {s(sT2)}, {s(sX0)}, 2
    v_add_u32 {v(t3)}, {s(sT2)}, {v(t2)}
    v_cmp_gt_u32 vcc, 224, {v(t3)}
    v_cmp_gt_u32 {s(sMASK, 2)}, 18, {v(t2)}
    s_mul_i32 {s(sT3)}, {s(sY0)}, {ROWB}
    s_mul_i32 {s(sT2)}, {s(sT2)}, 192
    s_add_u32 {s(sT3)}, {s(sT3)}, {s(sT2)}
    s_sub_u32 {s(sT3)}, {s(sT3)}, {2 * ROWB}
    s_and_b64 vcc, vcc, {s(sMASK, 2)}
    s_and_b32 vcc_hi, vcc_hi, 0xffffff
    v_lshl_add_u32 {v(vXO)}, {v(t1)}, 4, {s(sT3)}
    s_mul_i32 {s(sTB)}, {s(sW)}, 3072
    v_cndmask_b32 {v(vXO)}, {v(t5)}, {v(vXO)}, vcc
    s_add_u32 {s(sTB)}, {s(sTB)}, {TBL}
    s_mov_b32 m0, {s(sTB)}
    s_mov_b32 {s(SRD_X + 2)}, {XBYTES}
    s_mov_b32 {s(SRD_X + 3)}, 0x20000
    s_movk_i32 {s(SRD_DW + 2)}, 4800
    s_mov_b32 {s(SRD_DW + 3)}, 0x20000
    s_mov_b32 {s(sROW)}, {ROWB}
    """)
    b.append("@@PRE")
    b("s_waitcnt lgkmcnt(0)")
    b.stamp(1)

    def srd(dst, src, nbytes):
        return L(f"""
        s_mov_b32 {s(dst)}, {s(src)}
        s_mov_b32 {s(dst + 1)}, {s(src + 1)}
        s_mov_b32 {s(dst + 2)}, {nbytes}
        s_mov_b32 {s(dst + 3)}, 0x20000
        """)
    def xload(r):
        o = [f"buffer_load_dwordx4 {a(aSTG + 4 * r, 4)}, {v(vXO)}, {s(SRD_X, 4)}, 0 offen {nt} ;@x{r}"]
        if r < 17:
            o.append(f"v_add_u32 {v(vXO)}, {s(sROW)}, {v(vXO)}")
        return o
    b(f"s_mov_b32 {s(SRD_X)}, s4\ns_mov_b32 {s(SRD_X + 1)}, s5")
    b(xload(0))
    b(f"s_mov_b32 {s(SRD_DW)}, s6\ns_mov_b32 {s(SRD_DW + 1)}, s7\ns_mov_b32 exec_hi, 0xffff")
    for d in range(4):
        b(f"buffer_load_dwordx4 {v(vTB)}, {s(SRD_DW, 4)}, 0 offen lds ;@tbl")
        if d < 3:
            b(f"s_add_u32 m0, m0, 768\nv_add_u32 {v(vTB)}, 1920, {v(vTB)}")
    b("s_mov_b32 exec_hi, -1")

    u = Block()
    ka = Block()
    ka(f"""
    s_lshl_b32 s52, {s(sW)}, 3
    s_lshr_b32 s53, 0x30302818, s52
    s_and_b32 s53, s53, 0xff
    s_load_dwordx2 {s(SRD_A, 2)}, s[0:1], s53
    s_lshr_b32 s53, 0x38382010, s52
    s_and_b32 s53, s53, 0xff
    s_load_dwordx2 {s(SRD_B, 2)}, s[0:1], s53
    s_cmp_eq_u32 {s(sW)}, 0
    s_movk_i32 s53, 192
    s_cselect_b32 {s(SRD_A + 2)}, 768, s53
    s_mov_b32 {s(SRD_A + 3)}, 0x20000
    s_min_u32 {s(sMA)}, {s(sW)}, 2
    s_lshl_b32 {s(sMA)}, {s(sMA)}, 10
    s_add_u32 {s(sMA)}, {s(sMA)}, {PB1}
    s_mov_b32 {s(SRD_B + 3)}, 0x20000
    """)
    for dst, src, n in ((SRD_W1, 8, 73728), (SRD_W2, 12, 73728), (SRD_O, 18, XBYTES)):
        ka(srd(dst, src, n))
    lut = 0
    for cp, col in enumerate([0, 4, 8, 12, 1, 5, 9, 13, 2, 6, 10, 3, 7, 11]):
        lut |= col << (4 * cp)
    lut2 = 0
    for rho in range(14):
        lut2 |= (4 * ((rho & 7) >> 1) + 2 * (rho >> 3) + (rho & 1)) << (4 * rho)
    lg, lxg, lrp, lh, lq, lr, l31, lh16 = range(TMP + 8, TMP + 16)
    ka(f"""
    s_mov_b32 {s(sLO)}, 0xffff
    s_mov_b32 {s(sHI)}, 0xffff0000
    s_mul_i32 {s(sM1)}, {s(sW)}, 3072
    s_mul_i32 {s(sM2)}, {s(sW)}, 9216
    s_mul_i32 {s(sS[0])}, {s(sW)}, 18432
    s_add_u32 {s(sS[1])}, {s(sS[0])}, 5120
    s_add_u32 {s(sS[2])}, {s(sS[0])}, 10240
    """)
    zv = [f"{M32} {v(CV + 16 * i, 16)}, {v(vZ, 4)}, {v(vZ, 4)}, 0" for i in range(6)]
    za = [f"{M32} {a(192 + 16 * i, 16)}, {v(vZ, 4)}, {v(vZ, 4)}, 0" for i in range(2)]
    za += [f"{M16} {a(rb + 32, 4)}, {v(vZ, 4)}, {v(vZ, 4)}, 0" for rb in aRB]
    u(f"""
    v_mov_b64 {v(vZ, 2)}, 0
    v_mov_b64 {v(vZ + 2, 2)}, 0
    s_and_b32 {s(sPAR)}, {s(sW)}, 1
    s_xor_b32 {s(sNP)}, {s(sPAR)}, 1
    v_mul_u32_u24 {v(t3)}, 12, {v(t2)}
    v_sub_u32 {v(t3)}, {v(t1)}, {v(t3)}
    v_subrev_u32 {v(t4)}, 56, {v(vL)}
    v_cmp_gt_u32 vcc, 56, {v(vL)}
    v_mov_b32 {v(t0)}, 18
    v_lshrrev_b32 {v(lg)}, 4, {v(vL)}
    v_cndmask_b32 {v(t3)}, {v(t4)}, {v(t3)}, vcc
    v_cndmask_b32 {v(t2)}, {v(t0)}, {v(t2)}, vcc
    v_mul_u32_u24 {v(t3)}, {XG}, {v(t3)}
    v_lshl_add_u32 {v(t3)}, {v(t2)}, 3, {v(t3)}
    v_add_u32 {v(vXW)}, {XP}, {v(t3)}
    v_and_b32 {v(lxg)}, 3, {v(vL)}
    v_bfe_u32 {v(lr)}, {v(vL)}, 2, 2
    v_lshrrev_b32 {v(lh)}, 5, {v(vL)}
    v_and_b32 {v(lq)}, 1, {v(lg)}
    v_and_b32 {v(l31)}, 31, {v(vL)}
    v_lshlrev_b32 {v(vL16)}, 4, {v(vL)}
    v_lshlrev_b32 {v(lh16)}, 4, {v(lh)}
    v_mul_u32_u24 {v(vIDX)}, 0x5555, {v(lxg)}
    v_lshl_add_u32 {v(t0)}, {v(lg)}, 2, {v(lr)}
    v_sub_u32 {v(t1)}, {v(t0)}, {v(lxg)}
    v_mul_u32_u24 {v(t1)}, 48, {v(t1)}
    s_add_u32 {s(sT0)}, {s(sTB)}, 144
    v_add_u32 {v(vTA)}, {s(sT0)}, {v(t1)}
    v_mul_u32_u24 {v(t0)}, 192, {v(t0)}
    v_lshl_add_u32 {v(t0)}, {v(lxg)}, 3, {v(t0)}
    s_mul_i32 {s(sT0)}, {s(sW)}, 6144
    s_add_u32 {s(sT1)}, {s(sT0)}, {W2L + 2 * 6144}
    v_add_u32 {v(vR2A)}, {s(sT1)}, {v(t0)}
    s_add_u32 {s(sT1)}, {s(sT0)}, {W2E + 4 * 6144}
    s_add_u32 {s(sT2)}, {s(sT0)}, {W2L - 2 * 6144}
    s_cmp_lt_u32 {s(sW)}, 2
    s_cselect_b32 {s(sT1)}, {s(sT1)}, {s(sT2)}
    v_add_u32 {v(vR2B)}, {s(sT1)}, {v(t0)}
    v_add_u32 {v(vRW)}, {s(sT0)}, {v(vL16)}
    v_lshlrev_b32 {v(t0)}, 1, {v(lxg)}
    v_add_u32 {v(t0)}, {v(t0)}, {v(lg)}
    v_min_u32 {v(t0)}, 8, {v(t0)}
    v_mul_u32_u24 {v(t1)}, 640, {v(lr)}
    s_mul_i32 {s(sT0)}, {s(sW)}, {3 * XG}
    s_add_u32 {s(sT0)}, {s(sT0)}, {XP}
    v_lshl_add_u32 {v(t0)}, {v(t0)}, 4, {v(t1)}
    v_add_u32 {v(vXB)}, {s(sT0)}, {v(t0)}
    v_lshrrev_b32 {v(t0)}, 2, {v(l31)}
    v_mul_u32_u24 {v(t0)}, 768, {v(t0)}
    v_lshl_add_u32 {v(t0)}, {v(lh)}, 6, {v(t0)}
    v_lshl_add_u32 {v(vD1)}, {v(lxg)}, 4, {v(t0)}
    v_min_u32 {v(t0)}, 11, {v(vL)}
    v_mul_u32_u24 {v(t0)}, {XG - 16}, {v(t0)}
    v_min_u32 {v(t1)}, 31, {v(vL)}
    v_lshl_add_u32 {v(t0)}, {v(t1)}, 4, {v(t0)}
    v_add_u32 {v(t0)}, {XP + 2 * XPL}, {v(t0)}
    """)
    u(f"ds_write_b128 {v(t0)}, {v(vZ, 4)}")
    pF, pH, pR = TMP + 16, TMP + 17, TMP + 18
    u(f"""
    s_mov_b32 {s(sCP)}, {f32bits(CP):#x}
    s_mov_b32 {s(sCP + 1)}, {f32bits(CP):#x}
    s_mov_b32 {s(sONE)}, 1.0
    s_mov_b32 {s(sONE + 1)}, 1.0
    s_mov_b32 {s(sINV)}, {f32bits(1 / 96):#x}
    s_mov_b32 {s(sINV + 1)}, {f32bits(1 / 96):#x}
    s_mov_b32 {s(sIA)}, {f32bits(1 / ALPHA):#x}
    s_mov_b32 {s(sIA + 1)}, {f32bits(1 / ALPHA):#x}
    s_mov_b32 {s(sAL)}, {f32bits(ALPHA):#x}
    s_mov_b32 {s(sAL + 1)}, {f32bits(ALPHA):#x}
    s_mov_b32 {s(sEPS)}, {f32bits(1e-5):#x}
    s_mov_b32 {s(sEPS + 1)}, {f32bits(1e-5):#x}
    s_mov_b32 {s(sLUT)}, {lut & 0xffffffff:#x}
    s_mov_b32 {s(sLUT + 1)}, {lut >> 32:#x}
    s_mov_b32 {s(sLUT2)}, {lut2 & 0xffffffff:#x}
    s_mov_b32 {s(sLUT2 + 1)}, {lut2 >> 32:#x}
    v_lshrrev_b32 {v(t0)}, 1, {v(lg)}
    v_and_b32 {v(t0)}, {v(t0)}, {v(lg)}
    v_lshl_add_u32 {v(t1)}, {v(lg)}, 2, {v(lxg)}
    v_sub_u32 {v(t1)}, {v(t1)}, {v(t0)}
    v_mad_u32_u24 {v(t1)}, {v(lr)}, 28, {v(t1)}
    v_lshl_add_u32 {v(t2)}, {v(lxg)}, 2, {v(lg)}
    v_cmp_gt_u32 vcc, 14, {v(t2)}
    v_mul_u32_u24 {v(t1)}, {AP}, {v(t1)}
    s_mul_i32 {s(sT0)}, {s(sW)}, 48
    s_add_u32 {s(sT0)}, {s(sT0)}, {ACT}
    v_add_u32 {v(t1)}, {s(sT0)}, {v(t1)}
    v_add_u32 {v(t2)}, {ACT + 196 * AP}, {v(vL16)}
    v_cndmask_b32 {v(vAW)}, {v(t2)}, {v(t1)}, vcc
    s_lshl_b32 {s(sT0)}, {s(sW)}, 5
    v_add_u32 {v(pF)}, {s(sT0)}, {v(l31)}
    s_lshr_b32 {s(sT0)}, {s(sW)}, 1
    s_lshl_b32 {s(sT0)}, {s(sT0)}, 5
    s_add_u32 {s(sT0)}, {s(sT0)}, 128
    s_lshl_b32 {s(sT1)}, {s(sPAR)}, 4
    v_xor_b32 {v(pH)}, {s(sT1)}, {v(l31)}
    v_add_u32 {v(pH)}, {s(sT0)}, {v(pH)}
    s_add_u32 {s(sT0)}, {s(sT0)}, {s(sT1)}
    v_and_b32 {v(pR)}, 15, {v(vL)}
    v_add_u32 {v(pR)}, {s(sT0)}, {v(pR)}
    v_add_u32 {v(t1)}, {ACT}, {v(lh16)}
    s_movk_i32 {s(sT1)}, {AP}
    v_mad_u32_u24 {v(vBF)}, {v(pF)}, {s(sT1)}, {v(t1)}
    v_mad_u32_u24 {v(vBH)}, {v(pH)}, {s(sT1)}, {v(t1)}
    v_lshlrev_b32 {v(t1)}, 4, {v(lg)}
    v_add_u32 {v(t1)}, {ACT + 192 * AP}, {v(t1)}
    v_mad_u32_u24 {v(vBR)}, {v(lxg)}, {s(sT1)}, {v(t1)}
    s_mul_i32 {s(sT2)}, {s(sY0)}, 224
    s_add_u32 {s(sT2)}, {s(sT2)}, {s(sX0)}
    s_movk_i32 {s(sT3)}, 224
    """)
    for p, dst in ((pF, vOFA), (pR, vOH)):
        u(f"""
        v_mul_u32_u24 {v(t1)}, 2341, {v(p)}
        v_lshrrev_b32 {v(t1)}, 15, {v(t1)}
        v_mul_u32_u24 {v(t2)}, 14, {v(t1)}
        v_sub_u32 {v(t2)}, {v(p)}, {v(t2)}
        v_lshlrev_b32 {v(t2)}, 2, {v(t2)}
        v_lshrrev_b64 {v(t4, 2)}, {v(t2)}, {s(sLUT, 2)}
        v_and_b32 {v(t2)}, 15, {v(t4)}
        v_lshlrev_b32 {v(t1)}, 2, {v(t1)}
        v_lshrrev_b64 {v(t4, 2)}, {v(t1)}, {s(sLUT2, 2)}
        v_and_b32 {v(t1)}, 15, {v(t4)}
        v_mad_u32_u24 {v(t1)}, {v(t1)}, {s(sT3)}, {v(t2)}
        v_add_u32 {v(t1)}, {s(sT2)}, {v(t1)}
        v_mul_u32_u24 {v(dst)}, 192, {v(t1)}
        """)
    u(f"""
    s_lshl_b32 {s(sT0)}, {s(sW)}, 2
    s_lshr_b32 {s(sT0)}, 0xb73a, {s(sT0)}
    s_and_b32 {s(sT0)}, {s(sT0)}, 15
    s_add_u32 {s(sT0)}, {s(sT0)}, {s(sT2)}
    s_add_u32 {s(sT0)}, {s(sT0)}, {11 * 224}
    s_mul_i32 {s(sT0)}, {s(sT0)}, 192
    v_lshl_add_u32 {v(t1)}, {v(vL)}, 3, {s(sT0)}
    v_cmp_gt_u32 vcc, 24, {v(vL)}
    v_bfrev_b32 {v(t5)}, 1
    v_add_u32 {v(vOFA)}, {v(vOFA)}, {v(lh16)}
    v_lshl_add_u32 {v(t2)}, {v(lq)}, 5, {v(lh16)}
    v_cndmask_b32 {v(vOR)}, {v(t5)}, {v(t1)}, vcc
    v_add_u32 {v(vOH)}, {v(vOH)}, {v(t2)}
    v_lshlrev_b32 {v(t1)}, 5, {v(lh)}
    v_add_u32 {v(vGA)}, {PG}, {v(t1)}
    s_lshl_b32 {s(sT0)}, {s(sPAR)}, 6
    s_lshl_b32 {s(sT1)}, {s(sNP)}, 6
    v_lshlrev_b32 {v(t1)}, 1, {v(l31)}
    v_add_u32 {v(t1)}, {PB1}, {v(t1)}
    v_add_u32 {v(vBA)}, {s(sT0)}, {v(t1)}
    v_add_u32 {v(vBB)}, {s(sT1)}, {v(t1)}
    v_lshlrev_b32 {v(t0)}, 6, {v(lr)}
    v_lshl_add_u32 {v(t0)}, {v(lxg)}, 3, {v(t0)}
    v_lshl_add_u32 {v(t1)}, {v(lg)}, 10, {v(t0)}
    s_lshr_b32 {s(sT2)}, {s(sW)}, 1
    s_mul_i32 {s(sT2)}, {s(sT2)}, 12288
    s_lshl_b32 {s(sT0)}, {s(sPAR)}, 9
    s_lshl_b32 {s(sT1)}, {s(sNP)}, 9
    s_add_u32 {s(sT2)}, {s(sT2)}, {s(sT0)}
    v_add_u32 {v(vR1)}, {s(sT2)}, {v(t1)}
    v_lshl_add_u32 {v(t0)}, {v(lh)}, 10, {v(t0)}
    v_lshl_add_u32 {v(t0)}, {v(lq)}, 5, {v(t0)}
    v_add_u32 {v(vA)}, {s(sT0)}, {v(t0)}
    v_add_u32 {v(vB)}, {s(sT1)}, {v(t0)}
    v_and_b32 {v(t0)}, 15, {v(vL)}
    s_lshl_b32 {s(sT0)}, {s(sW)}, 6
    s_add_u32 {s(sT0)}, {s(sT0)}, {PB1}
    v_lshl_add_u32 {v(vRB)}, {v(t0)}, 1, {s(sT0)}
    v_lshl_add_u32 {v(t0)}, {v(lh)}, 2, {v(lr)}
    v_mul_u32_u24 {v(t0)}, 192, {v(t0)}
    v_and_b32 {v(t1)}, 1, {v(lxg)}
    v_lshrrev_b32 {v(t2)}, 1, {v(lxg)}
    v_lshl_add_u32 {v(t1)}, {v(t1)}, 1, {v(t2)}
    v_lshl_add_u32 {v(t0)}, {v(t1)}, 3, {v(t0)}
    v_lshl_add_u32 {v(t0)}, {v(lq)}, 5, {v(t0)}
    s_mul_i32 {s(sT0)}, {s(sPAR)}, 6144
    s_add_u32 {s(sT0)}, {s(sT0)}, {W2E}
    s_mul_i32 {s(sT1)}, {s(sNP)}, 6144
    s_add_u32 {s(sT1)}, {s(sT1)}, {W2E}
    v_add_u32 {v(vW2A)}, {s(sT0)}, {v(t0)}
    v_add_u32 {v(vW2B)}, {s(sT1)}, {v(t0)}
    v_and_b32 {v(t1)}, 1, {v(lr)}
    v_lshrrev_b32 {v(t2)}, 1, {v(lr)}
    v_lshlrev_b32 {v(t2)}, 2, {v(t2)}
    v_lshl_add_u32 {v(t1)}, {v(t1)}, 3, {v(t2)}
    v_add_u32 {v(t1)}, {v(t1)}, {v(lxg)}
    v_lshl_add_u32 {v(t1)}, {v(lq)}, 4, {v(t1)}
    v_lshlrev_b32 {v(t1)}, 1, {v(t1)}
    v_add_u32 {v(vB2F)}, {PB2}, {v(t1)}
    v_cmp_eq_u32 vcc, {s(sPAR)}, {v(vZ)}
    v_mov_b32 {v(t2)}, {ZERO}
    v_mov_b32 {v(t0)}, {A_HI:#x}
    v_cndmask_b32 {v(vB2H)}, {v(t2)}, {v(vB2F)}, vcc
    v_mov_b32 {v(t1)}, {A_LO:#x}
    v_cmp_eq_u32 vcc, 0, {v(lh)}
    v_cmp_eq_u32 {s(sMASK, 2)}, 0, {v(lg)}
    v_mov_b32 {v(t3)}, 0
    v_cndmask_b32 {v(t2)}, {v(t1)}, {v(t0)}, vcc
    v_accvgpr_write_b32 {a(aC32)}, {v(t2)}
    v_cndmask_b32 {v(t2)}, {v(t1)}, {v(t0)}, {s(sMASK, 2)}
    v_cndmask_b32 {v(t2)}, {v(t3)}, {v(t2)}, vcc
    v_mov_b32 {v(t1)}, {ZERO}
    """)
    for q in range(4):
        u(f"""
        v_cmp_eq_u32 vcc, {q}, {v(lr)}
        s_nop 1
        v_cndmask_b32 {v(t0)}, {v(t3)}, {v(t2)}, vcc
        v_cndmask_b32 {v(vBQ + q)}, {v(t1)}, {v(vBR)}, vcc
        v_accvgpr_write_b32 {a(aC16 + 4 * q)}, {v(t0)}
        """)
    u(f"""
    s_lshl_b32 {s(sT0)}, {s(sW)}, 10
    s_add_u32 {s(sT0)}, {s(sT0)}, {ST}
    v_add_u32 {v(vSW)}, {s(sT0)}, {v(vL16)}
    s_lshr_b32 {s(sT0)}, s2, 3
    s_mul_i32 {s(sT0)}, {s(sT0)}, 2304
    s_mul_i32 {s(sT1)}, {s(sPAR)}, 13
    s_add_u32 {s(sT1)}, {s(sT1)}, {s(sY0)}
    s_mul_i32 {s(sT1)}, {s(sT1)}, {ROWB}
    s_mul_i32 {s(sT2)}, {s(sX0)}, 192
    s_add_u32 {s(sT1)}, {s(sT1)}, {s(sT2)}
    s_cmp_lt_u32 {s(sW)}, 2
    s_cselect_b32 {s(sT0)}, {s(sT0)}, {s(sT1)}
    s_cselect_b32 {s(sT1)}, 18, 1
    s_cselect_b32 {s(SRD_B + 2)}, {s(SRD_W1 + 2)}, {s(SRD_O + 2)}
    v_lshl_add_u32 {v(t4)}, {v(vL)}, 7, {s(sT0)}
    v_cmp_gt_u32 vcc, {s(sT1)}, {v(vL)}
    s_nop 1
    v_cndmask_b32 {v(t4)}, {v(t5)}, {v(t4)}, vcc
    """)
    zs = za + zv
    w = Block()
    for n, x in enumerate(u):
        w.append(x)
        if n >= 4 and n % 7 == 4 and zs:
            w.append(zs.pop(0))
    assert not zs
    n0 = int(OPT["cut0"])
    while next((x for x in w[n0:] if x.startswith(("s_cmp", "s_cselect"))), "s_cmp").startswith("s_cselect"):
        n0 -= 1
    k0 = b.index("@@PRE")
    b[k0:k0 + 1] = w[:n0]
    u = Block(ka + w[n0:])
    ncut = int(OPT["cut"])
    b(u[:ncut])
    b.stamp(18)
    nh = int(OPT["hide"]) * (17 - int(OPT["early"]))
    kpre = next(k for k, x in enumerate(u) if x.startswith(f"s_lshr_b32 {s(sT0)}, s2, 3"))
    k1 = kpre - nh
    hidden = u[k1:kpre]
    pre = [x.replace(s(sT0), "s52").replace(s(sT1), "s53").replace(s(sT2), "s12").replace(v(t4), v(vG)).replace(v(t5), v(vB2V))
           .replace("vcc", s(18, 2)) for x in u[kpre:]]
    mid = u[ncut:k1] + [f"v_bfrev_b32 {v(vB2V)}, 1"] + pre
    per = min((len(mid) + 10) // 11, int(OPT["ilv"]))
    for r in range(1, 12):
        b(xload(r))
        b(mid[per * (r - 1):per * r])
    b(mid[per * 11:])
    b.stamp(2)

    hop = L(f"""
    s_mov_b64 exec, 0
    s_cmp_eq_u32 {s(sW)}, 1
    s_cbranch_scc1 L_pad3
    s_cmp_eq_u32 {s(sW)}, 2
    s_cbranch_scc1 L_pad5
    s_cmp_eq_u32 {s(sW)}, 3
    s_cbranch_scc1 L_pad7
    s_branch L_pad1
    .p2align 12
    L_body:
    s_mov_b64 exec, -1
    """)
    slots = L(f"""
    s_mov_b32 m0, {s(sMA)}
    buffer_load_dword {v(vB2V)}, {v(vG)}, {s(SRD_B, 4)}, 0 offen
    buffer_load_dwordx4 {v(vL16)}, {s(SRD_A, 4)}, 0 offen lds ;@par
    """)
    b("@lg all\n@vm tbl")
    b([f"ds_read_b64_tr_b16 {v(AF + (3 * j + t) * 4 + 2, 2)}, {v(vTA)} offset:{768 * t + 8 * j} ;@ard" for j in range(6) for t in range(3)])
    b.stamp(3)
    aexp = []
    for g in range(18):
        q = AF + 4 * g
        aexp += [f"v_and_b32 {v(q)}, {s(sLO)}, {v(q + 2)}", f"v_and_b32 {v(q + 1)}, {s(sHI)}, {v(q + 2)}",
                 f"v_and_b32 {v(q + 2)}, {s(sLO)}, {v(q + 3)}", f"v_and_b32 {v(q + 3)}, {s(sHI)}, {v(q + 3)}"]

    def w1dma(p, tag):
        o = []
        for i in range(3):
            pre = [f"s_add_u32 m0, {s(sM1)}, {12288 * p - 128 * p}", "s_nop 0"] if i == 0 else []
            o.append(pre + [f"buffer_load_dwordx4 {v(vD1)}, {s(SRD_W1, 4)}, {s(sS[i])} offen offset:{1024 * i + 128 * p} lds ;@{tag}"])
        return o

    def w2dma(late, tag):
        o = []
        for c in range(9):
            g = c >> 2
            pre = [f"s_add_u32 m0, {s(sM2)}, {(W2L if late else W2E) + 4096 * g}",
                   f"s_add_u32 {s(sT3)}, {s(sM2)}, {36864 * late + 4096 * g}"] if c % 4 == 0 else []
            o.append(pre + [f"buffer_load_dwordx4 {v(vL16)}, {s(SRD_W2, 4)}, {s(sT3)} offen offset:{1024 * (c & 3)} lds ;@{tag}"])
        return o
    early = (w1dma(0, "w1e") + w1dma(1, "w1e") + w1dma(2, "w1e"), w2dma(0, "w2e"))

    def stage(r):
        return [f"@vm x{r}", f"ds_write_b64 {v(vXW)}, {a(aSTG + 4 * r, 2)} offset:{160 * r}",
                f"ds_write_b64 {v(vXW)}, {a(aSTG + 4 * r + 2, 2)} offset:{XPL + 160 * r}"]
    w2m = int(OPT["w2m"])
    dmas = early[0] + ([] if w2m else early[1])
    nst = int(OPT["nstage"])
    ne = int(OPT["early"])
    for r in range(12 + ne, 18):
        b(xload(r))
    if ne == 0:
        b(slots)
    vq = aexp + hidden + [f"v_lshlrev_b32 {v(vG)}, 2, {v(vL)}", f"v_add_u32 {v(vG)}, {PB2}, {v(vG)}"]
    per = (len(vq) + 16 - ne) // (17 - ne)
    for r in range(18):
        if r == ne + 1:
            b("@lg ard")
        if r > ne:
            b(vq[per * (r - ne - 1):per * (r - ne)])
        b(stage(r))
        if r < ne:
            b(xload(12 + r))
            if r == ne - 1:
                b(slots)
        if OPT["hops"] and r == int(OPT["hoprow"]):
            b(hop)
        b.stamp(f"x{r}")
        if int(OPT["stagerow"]) <= r < int(OPT["stagerow"]) + nst:
            b(dmas.pop(0))
    b("@lg all\ns_barrier")
    b.stamp(4)

    S, TP, TU, S2 = TMP, TMP + 8, H, H

    def acc(k, j):
        return CV + (k * 6 + j) * 4

    def reads(j):
        return [f"ds_read_b128 {a(aRB[j % 3] + 4 * r, 4)}, {v(vXB)} offset:{(j >> 1) * XG + (j & 1) * XPL + r * 160} ;@q{j}_{r}"
                for r in range(8)]

    def part(j):
        o = []
        for k in range(4):
            d = acc(k, j)
            o += [f"v_add_f32 {v(TP + 4 * j + k)}, {v(d)}, {v(d + 1)}", f"v_add_f32 {v(TU + k)}, {v(d + 2)}, {v(d + 3)}"]
        return o + [f"v_add_f32 {v(TP + 4 * j + k)}, {v(TP + 4 * j + k)}, {v(TU + k)}" for k in range(4)]
    b(reads(0))
    nstat = int(OPT["nstat"])
    sdma = dmas[len(dmas) - nstat:]
    dmas = dmas[:len(dmas) - nstat]
    ncv = len(dmas)
    where = {(72 * q + 36) // ncv: q for q in range(ncv)}
    pend = []
    for j in range(6):
        rd = reads(j + 1) if j < 5 else []
        for n in range(12):
            t, k = n >> 2, n & 3
            if j == 0 and n == 0:
                b("@lg q0_1")
            b(f"v_smfmac_f32_16x16x64_bf16 {v(acc(k, j), 4)}, {v(AF + (3 * j + t) * 4, 4)}, {a(aRB[j % 3] + 4 * (k + 2 * t), 8)}, {v(vIDX)}")
            m = 12 * j + n
            if n == 4 and 0 < j < 5:
                pend += part(j - 1)
            if j == 0 and n in (0, 1, 2, 5):
                b(f"@lg q0_{(2, 3, 4, 0, 0, 7)[n]}")
            elif n == 5:
                b(f"@lg q{j}_7")
            elif n == 11 and j < 5:
                b(f"@lg q{j + 1}_4")
            if m in where:
                b(dmas[where[m]][-1:])
                continue
            pre = [x for x in dmas[where[m + 2]][:-1] if x != "s_nop 0"] if m + 2 in where else []
            b(pre)
            if rd and (j > 0 or n >= int(OPT["q0lag"])):
                b(rd.pop(0))
            if pend:
                b(pend.pop(0))
        assert len(rd) == 0, (j, rd)
    b.stamp(5)
    g0, g1, ga = AF + 16, AF + 18, vG
    b(pend)
    U = AF + 8
    for i in range(0, 24, 2):
        for k in range(4):
            d = acc(k, 0) + i
            b(pk("mul", AF + 2 * k, v(d, 2), v(d, 2)) if i == 0 else pk("fma", AF + 2 * k, v(d, 2), v(d, 2), v(AF + 2 * k, 2)))
        if sdma and i % 4 == 0:
            b(sdma.pop(0))
    for x in sdma:
        b(x)
    for k in range(4):
        b(pk("add", U + 2 * k, v(acc(k, 4), 2), v(acc(k, 4) + 2, 2)))
    for o in (0, 2):
        b(pk("add", TP + o, v(TP + o, 2), v(TP + 4 + o, 2)))
        b(pk("add", TP + 8 + o, v(TP + 8 + o, 2), v(TP + 12 + o, 2)))
    for i in (0, 2):
        for k in range(4):
            b(pk("add", U + 2 * k, v(U + 2 * k, 2), v(acc(k, 5) + i, 2)))
    for o in (0, 2):
        b(pk("add", TP + o, v(TP + o, 2), v(TP + 8 + o, 2)))
    for k in range(4):
        b(f"v_add_f32 {v(S + 4 * (k >> 1) + 2 + (k & 1))}, {v(AF + 2 * k)}, {v(AF + 2 * k + 1)}")
        b(f"v_add_f32 {v(TP + 4 + k)}, {v(U + 2 * k)}, {v(U + 2 * k + 1)}")
    for o in (0, 2):
        b(pk("add", S + 2 * o, v(TP + o, 2), v(TP + 4 + o, 2)))
    b(f"""
    ds_write_b128 {v(vSW)}, {v(S, 4)}
    ds_write_b128 {v(vSW)}, {v(S + 4, 4)} offset:4096
    v_add_u32 {v(vSW)}, {ST}, {v(vL16)}
    @vm w1e
    @lg all
    s_barrier
    """)
    b.stamp(7)

    Q = TMP
    for ph in range(2):
        for w in range(4):
            b(f"ds_read_b128 {v(Q + 16 * ph + 4 * w, 4)}, {v(vSW)} offset:{4096 * ph + 1024 * w} ;@s{ph}")
    pre = r_w1(0) + [f"ds_read_u16 {a(aRBIAS + 2 * t)}, {v(vB2H)} offset:{64 * t}" for t in range(3)]
    pre += [f"ds_read_b32 {v(g0 + 1)}, {v(ga)} offset:{PGR - PB2}", f"ds_read_b32 {v(g1 + 1)}, {v(ga)}"]
    prew = int(OPT["prew"])
    if not prew:
        b(pre[:7])
    qs = (Q, Q + 16)

    def fin(q):
        return ([pk("add", q + o, v(q + o, 2), v(q + 4 + o, 2)) for o in (0, 2)]
                + [pk("add", q + 8 + o, v(q + 8 + o, 2), v(q + 12 + o, 2)) for o in (0, 2)]
                + [pk("add", q + o, v(q + o, 2), v(q + 8 + o, 2)) for o in (0, 2)]
                + [pk("mul", q + o, v(q + o, 2), s(sINV, 2)) for o in (0, 2)]
                + [pk("fma", q + 2, v(q, 2), v(q, 2), v(q + 2, 2), " neg_lo:[1,0,0] neg_hi:[1,0,0]"),
                   f"v_max_f32 {v(q + 2)}, 0, {v(q + 2)}", f"v_max_f32 {v(q + 3)}, 0, {v(q + 3)}",
                   pk("add", q + 2, v(q + 2, 2), s(sEPS, 2)),
                   f"v_rsq_f32 {v(q + 2)}, {v(q + 2)}", f"v_rsq_f32 {v(q + 3)}, {v(q + 3)}", "s_nop 0",
                   pk("mul", q + 2, v(q + 2, 2), s(sAL, 2)),
                   pk("mul", q, v(q, 2), v(q + 2, 2), mod=" neg_lo:[1,0] neg_hi:[1,0]")])
    f0, f1 = fin(qs[0]), fin(qs[1])
    if int(OPT["ln2"]):
        b("@lg s0")
        b(f0)
        b("@lg s1")
        b(pre[7:])
        f1 = [x for x in f1 if x != "s_nop 0"]
    else:
        b("@lg s0")
        b(f0[:4])
        b("@lg s1")
        if not prew:
            b(pre[7:])
        b(f1[:4])
        b([x for p in zip(f0[4:], f1[4:]) for x in p if x != "s_nop 0"])
        f1 = []
    for k in range(4):
        ph, sx = k >> 1, k & 1
        base, q = CV + 24 * k, qs[ph]
        for jj in range(3):
            for i in range(8 * jj, 8 * jj + 8, 2):
                b(pk("fma", base + i, v(base + i, 2), v(q + 2, 2), v(q, 2), f" op_sel:[0,{sx},{sx}] op_sel_hi:[1,{sx},{sx}]"))
                if f1 and i % 4 == 0:
                    b(f1.pop(0))
            for i in range(4 * jj, 4 * jj + 4):
                b(f"v_cvt_pk_bf16_f32 {v(base + 4 * jj + i)}, {v(base + 2 * i)}, {v(base + 2 * i + 1)}")
                if f1 and i % 4 == 1:
                    b(f1.pop(0))
            b(f"ds_write_b128 {v(vAW)}, {v(base + 8 * jj, 4)} offset:{(8 * ph + sx) * 14 * AP + 16 * jj}")
            if prew:
                b(pre[:2])
                pre = pre[2:]
        assert k == 0 or not f1
    b("@lg all\ns_barrier")
    b.stamp(8)

    b([f"ds_read_b128 {a(aBt['F'] + 4 * k, 4)}, {v(vBF)} offset:{32 * k} ;@bf{k}" for k in range(6)])
    b([f"ds_read_b128 {a(aBt['H'] + 4 * k, 4)}, {v(vBH)} offset:{32 * k}" for k in range(6)])
    late = w1dma(3, "wl") + w1dma(4, "wl") + w1dma(5, "wl") + w2dma(1, "wl")
    M = m_fc1(0)
    bq = [f"ds_read_b128 {a(aBR + 12 * q + 4 * k, 4)}, {v(vBQ + q)} offset:{64 * k}" for q in range(4) for k in range(3)]
    F = [(k, k, [f"@lg bf{k}"]) for k in range(6)]
    if w2m:
        F += [(2 * k, 2 * k, early[1][k]) for k in range(4)]
    else:
        F += [(1 + k, 1 + k, bq[2 * k:2 * k + 2]) for k in range(6)]
    gt = unpack(g0, g0 + 1, 1) + unpack(g1, g1 + 1, 1) + L(f"""
    v_lshlrev_b32 {v(ga)}, 3, {v(vL)}
    v_mul_f32 {v(g1)}, {v(g1)}, {v(g0)}
    v_mul_f32 {v(g1 + 1)}, {v(g1 + 1)}, {v(g0 + 1)}
    v_mul_f32 {v(g0)}, {s(sIA)}, {v(g0)}
    v_mul_f32 {v(g0 + 1)}, {s(sIA)}, {v(g0 + 1)}
    v_add_u32 {v(ga)}, {PG}, {v(ga)}
    """)
    b(trun(M, F, gt, need={}, tail=0))
    b(f"""
    s_mov_b32 exec_hi, 0xffff
    ds_write_b64 {v(ga)}, {v(g0, 2)}
    ds_write_b64 {v(ga)}, {v(g1, 2)} offset:{PGB - PG}
    s_mov_b32 exec_hi, -1
    s_nop 5
    """)
    b.stamp(9)
    b(P(0))
    hinit = [f"{M32} {v(ACC['H'] + 16 * t, 16)}, {a(aRBIAS + 2 * t, 4)}, {a(aC32, 4)}, 0" for t in range(3)]
    if w2m:
        b(T(0, head=("@lg all",), xF=[(k, k, early[1][4 + k]) for k in range(5)] + [(0, 1, [x]) for x in bq[:3]], last=()))
        b(P(1, late_x=True))
        b(T(1, head=("@lg all",), xM=hinit, xF=[(0, 6, [x]) for x in bq[3:]], skip_w2=True))
        b(P(2))
        F_ = [(k // 3, k // 3, [x + " ;@w20"]) for k, x in enumerate(r_w2(0))] + [(6, 6, ["@lg w20"])]
        b(T(2, head=("@vm w2e", "s_barrier"), xF=F_ + [(4 + 2 * k, 4 + 2 * k, late[k]) for k in range(4)]))
        b(P(3))
        b(T(3, xF=[(1 + 2 * k, 1 + 2 * k, late[4 + k]) for k in range(5)]))
        b(P(4))
        b(T(4, xF=[(1 + 2 * k, 1 + 2 * k, late[9 + k]) for k in range(5)]))
    else:
        b(T(0, xF=[(0, 0, ["@vm w2e", "@lg all", "s_barrier"]), (2, 2, late[0]), (4, 4, late[1]), (6, 6, late[2])], last=()))
        b(P(1, late_x=True))
        b(T(1, head=("@lg all",), xM=hinit, xF=[(1 + 2 * k, 1 + 2 * k, late[3 + k]) for k in range(4)]))
        b(P(2))
        b(T(2, xF=[(1 + 3 * k, 1 + 3 * k, late[7 + k]) for k in range(4)]))
        b(P(3))
        b(T(3, xF=[(1 + 3 * k, 1 + 3 * k, late[11 + k]) for k in range(4)]))
        b(P(4))
        b(T(4, xF=[(4 * k, 4 * k, late[15 + k]) for k in range(3)]))

    XR, WK = TMP + 4, TMP + 12

    def r_fc1(m):
        rd = [f"ds_read_u16 {a(aRBIAS + 2 * mh)}, {v(vRB)} offset:{256 * m + 32 * mh}" for mh in range(2)]
        rd += [f"ds_read_b64_tr_b16 {a(aRF + 12 * mh + 4 * k + 2 * jj, 2)}, {v(vR1)} offset:{24576 * m + 4096 * k + 256 * jj + 32 * mh} ;@rf"
               for k in range(3) for mh in range(2) for jj in range(2)]
        x = XR + 4 * (m >> 1)
        M = []
        for mh in range(2):
            q = (2 * m + mh) & 3
            M.append(f"{M16} {v(x, 4)}, {a(aRBIAS + 2 * mh, 4)}, {a(aC16 + 4 * q, 4)}, {v(x, 4) if q else '0'}")
            M += [f"{M16} {v(x, 4)}, {a(aRF + 12 * mh + 4 * k, 4)}, {a(aBR + 12 * q + 4 * k, 4)}, {v(x, 4)}" for k in range(3)]
        return M, [(0, 8, [x_]) for x_ in rd] + [(12, 12, ["@lg rf"])]

    bumpA = [f"v_subrev_u32 {v(vW2A)}, 36864, {v(vW2A)}", f"v_add_u32 {v(vA)}, 36864, {v(vA)}"]
    bumpB = [f"v_subrev_u32 {v(vW2B)}, 36864, {v(vW2B)}", f"v_add_u32 {v(vB)}, 36864, {v(vB)}"]
    f1pos, g0 = (((5, 7, 8), 9), ((6, 8, 10), 11))[int(OPT["rpos"])]
    for j in range(5, 15):
        post = {g0: p_t(XR, WK, 8) + p_z(XR, WK, 8), g0 + 1: p_add(WK, 8), g0 + 2: p_mul(WK, XR, 8)}.get(j, [])
        b(P(j, post=post))
        if j == 7:
            b("@vm wl\ns_barrier")
        M_, F_ = r_fc1(f1pos.index(j)) if j in f1pos else ([], [])
        if j == 5 and w2m:
            F_ = F_ + [(2 * k, 2 * k, late[14 + k]) for k in range(4)]
        V_ = {g0: t_exp(WK, WK, 8), g0 + 1: t_rcp(WK, WK, 8), g0 + 2: t_cvt(HR, WK, 8)}.get(j, [])
        b(T(j, xM=M_, xF=F_, xV=V_ + {6: bumpA, 11: bumpB}.get(j, [])))
    HX, FX, RX = TMP, TMP + 12, vA
    AH, AFc = ACC["H"], ACC["F"]
    nt2 = OPT["nt2"]
    hx = [f"buffer_load_dwordx4 {v(HX + 4 * t, 4)}, {v(vOH)}, {s(SRD_X, 4)}, 0 offen offset:{64 * t} {nt2} ;@hx" for t in range(3)]
    fx = [f"buffer_load_dwordx4 {v(FX + 4 * c, 4)}, {v(vOFA)}, {s(SRD_X, 4)}, 0 offen offset:{32 * c} {nt2} ;@fx" for c in range(6)]
    vXR_, vGH_, vOFB = vBA, vW2A, vBB
    b(P(15))
    F_ = [(1 + 2 * t, 1 + 2 * t, [hx[t]]) for t in range(3)] + [(7 + 2 * c, 7 + 2 * c, fx[c:c + 1]) for c in range(3)]
    F_ += [(0, 0, [f"s_xor_b32 {s(sT0)}, {s(sW)}, 1"]), (1, 1, [f"s_mul_i32 {s(sT0)}, {s(sT0)}, 6144"])]
    V_ = L(f"""
    v_add_u32 {v(vXR_)}, {s(sT0)}, {v(vL16)}
    v_bfe_u32 {v(vGH_)}, {v(vL)}, 4, 1
    v_lshl_add_u32 {v(vGH_)}, {v(vGH_)}, 6, {v(vGA)}
    """)
    odd = lambda c: AH + 16 * (c >> 1) + 8 + 4 * (c & 1)
    sw = [f"v_permlane16_swap_b32 {v(AH + 16 * t + i)}, {v(AH + 16 * t + 8 + i)}" for t in range(3) for i in range(8)]
    xw = [f"ds_write_b128 {v(vRW)}, {v(odd(c), 4)} offset:{XCH + 1024 * c} ;@xw" for c in range(6)]
    xr = [f"ds_read_b128 {v(odd(c), 4)}, {v(vXR_)} offset:{XCH + 1024 * c}" for c in range(6)]
    if int(OPT["xch"]):
        b(T(15, xF=F_, xV=V_ + sw[:8], tmajor=True))
        b(P(16, pre=xw[:1], post=sw[8:16] + xw[1:2] + sw[16:]))
        if int(OPT["xch"]) == 1:
            F_ = [(2 * c, 2 * c, xw[2 + c:3 + c]) for c in range(4)] + [(8, 8, ["@lg xw", "s_barrier"])]
            F_ += [(9 + c // 2, 9 + c // 2, xr[c:c + 1]) for c in range(6)]
        else:
            F_ = [(c, c, xw[2 + c:3 + c]) for c in range(4)] + [(7, 7, ["@lg xw", "s_barrier"])]
            F_ += [(8 + c // 2, 8 + c // 2, xr[c:c + 1]) for c in range(6)]
    else:
        b(T(15, xF=F_, xV=V_))
        b(P(16, post=sw))
        F_ = [(c, c, xw[c:c + 1]) for c in range(6)] + [(7, 7, ["@lg xw", "s_barrier"])]
        F_ += [(8 + c // 2, 8 + c // 2, xr[c:c + 1]) for c in range(6)]
    F_ += [(6, 6, [f"ds_read_u16 {a(aRBIAS + 2 * t)}, {v(vB2F)} offset:{64 * t}" for t in range(3)])]
    F_ += [(6, 6, fx[3:4]), (11, 11, fx[4:5]), (12, 12, [f"buffer_load_dwordx2 {v(RX, 2)}, {v(vOR)}, {s(SRD_X, 4)}, 0 offen"])]
    b(T(16, xF=F_, last=(), xV=[f"v_add_u32 {v(vOFB)}, 32, {v(vOFA)}"]))
    post = [pk("add", AH + 16 * t + i, v(AH + 16 * t + i, 2), v(AH + 16 * t + 8 + i, 2)) for t in range(3) for i in range(0, 8, 2)]
    b(P(17, post=["@lg all"] + post))
    finit = [f"{M32} {v(AFc + 16 * t, 16)}, {a(aRBIAS + 2 * t, 4)}, {a(aC32, 4)}, {v(AFc + 16 * t, 16)}" for t in range(3)]
    GH = (X[0], X[0] + 8, Z)
    GF = (AH, AH + 16, X[0], X[0] + 8, Z + 8, R)
    gh = [f"ds_read_b128 {v(GH[t] + 4 * k, 4)}, {v(vGH_)} offset:{128 * t + 16 * k}" for t in range(3) for k in range(2)]
    gf = [f"ds_read_b128 {v(GF[c] + 4 * k, 4)}, {v(vGA)} offset:{64 * c + 16 * k}" for c in range(6) for k in range(2)]

    rend = int(OPT["rend"])
    RFB = (aRF, aRF2, aBt["H"], aW1) if rend else (aRF, aRF2, aRF, aRF2)

    def rw2(q):
        fb = RFB[q]
        o = []
        for jj in range(2 - (q >> 1)):
            tau = q + 4 * jj
            reg, off = ((vR2A, 24576), (vR2B, 0), (vR2A, 0))[tau >> 1]
            o += [f"ds_read_b64_tr_b16 {a(fb + 4 * c + 2 * jj, 2)}, {v(reg)} offset:{off + 3072 * (tau & 1) + 32 * c}" for c in range(6)]
        return o
    F_ = [(0, 5, [x]) for x in gh[:4] + rw2(0)] + [(2, 2, fx[5:6]), (0, 0, ["@vm hx"])]
    V_ = [x for t in range(3) for x in unpack(AH + 16 * t + 8, HX + 4 * t, 4)]
    b(T(17, xM=finit, xF=F_, xV=V_))
    hf = lambda t: [pk("fma", AH + 16 * t + 8 + i, v(AH + 16 * t + i, 2), v(GH[t] + i, 2), v(AH + 16 * t + 8 + i, 2)) for i in range(0, 8, 2)]
    hc = lambda t: t_cvt(HX + 4 * t, AH + 16 * t + 8, 8)
    hs = [f"buffer_store_dwordx4 {v(HX + 4 * t, 4)}, {v(vOH)}, {s(SRD_O, 4)}, 0 offen offset:{64 * t} {OPT['st_h']}" for t in range(3)]
    b(P(18, post=hf(0) + hf(1)))
    UF = (X[1], X[1] + 8, X[2], X[2] + 8, E, E + 8)
    F_ = [(0, 3, [x]) for x in gh[4:] + gf[:10] + (rw2(2) if rend else [])] + [(3, 3, hs[:1]), (5, 5, hs[1:2]), (3, 3, ["@vm fx"])]
    V_ = unpack(UF[0], FX, 4) + unpack(UF[1], FX + 4, 4) + [f"v_permlane16_swap_b32 {v(vOFA)}, {v(vOFB)}"]
    b(T(18, xF=F_, xVpre=hc(0) + hc(1), xV=V_, xneed={3: 12, 5: 16}))
    b(P(19, post=hf(2)))

    def ftail(t, plain):
        o = []
        for c in (2 * t, 2 * t + 1):
            if plain:
                o += [f"v_fma_f32 {v(UF[c] + i)}, {v(AFc + 8 * c + i)}, {v(GF[c] + i)}, {v(UF[c] + i)}" for i in range(8)]
            else:
                o += [pk("fma", UF[c] + i, v(AFc + 8 * c + i, 2), v(GF[c] + i, 2), v(UF[c] + i, 2)) for i in range(0, 8, 2)]
        for c in (2 * t, 2 * t + 1):
            o += t_cvt(FX + 4 * c, UF[c], 8)
        o += [f"v_permlane16_swap_b32 {v(FX + 8 * t + i)}, {v(FX + 8 * t + 4 + i)}" for i in range(4)]
        return o

    def fst(t):
        return [f"buffer_store_dwordx4 {v(FX + 8 * t + 4 * k, 4)}, {v((vOFA, vOFB)[k])}, {s(SRD_O, 4)}, 0 offen offset:{64 * t} {OPT['st_f']}"
                for k in range(2)]
    V_ = hc(2) + [x for c in range(2, 6) for x in unpack(UF[c], FX + 4 * c, 4)][:20] + ftail(0, True)
    F_ = [(1, 1, gf[10:]), (2, 2, hs[2:3])] + [(0, 3, [x]) for x in rw2(1) + (rw2(3) if rend else [])]
    b(T(19, xF=F_, xV=V_, xneed={2: 12}, tmajor=True))
    b(fst(0))
    b.stamp("f0")
    b([x for c in range(2, 6) for x in unpack(UF[c], FX + 4 * c, 4)][20:])
    for t in (1, 2):
        b(ftail(t, False))
        if t == 1 or not rend:
            b(fst(t))
        b.stamp(f"f{t}")

    HQ, RA = AH, AH + 16
    PP, PGm, PBm, RU, ra, rg, rw = X[0], X[1], X[1] + 4, X[1] + 8, X[2], X[2] + 1, X[2] + 2
    hq = lambda q: HR if q == 0 else HQ + 4 * (q - 1)
    rrot = [f"v_mov_b32_dpp {v(hq(q) + i)}, {v(HR + i)} row_ror:{16 - 4 * q} row_mask:0xf bank_mask:0xf" for q in (1, 2, 3) for i in range(4)]
    M_ = [f"{M16} {v(RA + 4 * c, 4)}, {a(RFB[q] + 4 * c, 4)}, {v(hq(q), 4)}, {v(RA + 4 * c, 4) if q else '0'}"
          for q in range(4) for c in range(6)]
    r2, r3 = rw2(2), rw2(3)
    F_ = [(c, c, r2[c:c + 1]) for c in range(6)] + [(6 + c, 6 + c, r3[c:c + 1]) for c in range(6)]
    if rend:
        F_ = [(3, 3, fst(2)[:1]), (9, 9, fst(2)[1:])]
    F_ += [(0, 0, [f"s_mul_i32 {s(sT0)}, {s(sW)}, 2176"]), (1, 1, [f"s_lshl_b32 {s(sT1)}, {s(sW)}, 4"])]
    F_ += [(20, 20, [f"ds_read_b128 {v(PGm, 4)}, {v(rg)}"]), (21, 21, [f"ds_read_b128 {v(PBm, 4)}, {v(rg)} offset:{PGB - PG}"])]
    V_ = rrot + L(f"""
    v_min_u32 {v(rg)}, 23, {v(vL)}
    v_and_b32 {v(ra)}, 3, {v(rg)}
    v_mul_u32_u24 {v(ra)}, 272, {v(ra)}
    v_bfe_u32 {v(rw)}, {v(rg)}, 2, 2
    v_lshl_add_u32 {v(ra)}, {v(rw)}, 6, {v(ra)}
    v_lshrrev_b32 {v(rw)}, 4, {v(rg)}
    v_mul_u32_u24 {v(rw)}, 1088, {v(rw)}
    v_add3_u32 {v(ra)}, {v(ra)}, {v(rw)}, {s(sT1)}
    v_lshlrev_b32 {v(rg)}, 4, {v(rg)}
    v_add_u32 {v(rg)}, {PG}, {v(rg)}
    v_lshrrev_b32 {v(rw)}, 4, {v(vL)}
    v_add_u32 {v(rw)}, {v(rw)}, {v(vL)}
    v_lshl_add_u32 {v(rw)}, {v(rw)}, 4, {s(sT0)}
    """) + unpack(RU, RX, 2)
    o, _ = trun2(M_, F_, V_, {6: 6, 12: 10, 18: 14, 20: 22}, [], drain=8)
    b(o)
    b("s_nop 1")
    for c in (1, 2, 3, 5):
        for i in range(4):
            b(f"v_mov_b32_dpp {v(RA + 16 * (c >> 2) + i)}, {v(RA + 4 * c + i)} row_shr:{4 * (c & 3)} row_mask:0xf bank_mask:{1 << (c & 3):#x}")
        if c == 3:
            b(f"ds_write_b128 {v(rw)}, {v(RA, 4)} offset:{RBUF}")
    b(f"ds_write_b128 {v(rw)}, {v(RA + 16, 4)} offset:{RBUF + 1088}")
    b("@lg all\ns_barrier")
    b([f"ds_read_b128 {v(PP + 4 * w, 4)}, {v(ra)} offset:{RBUF + 2176 * w}" for w in range(4)])
    b([pk("add", RU + i, v(RU + i, 2), v(PBm + i, 2)) for i in (0, 2)])
    b([pk("add", PP + i, v(PP + i, 2), v(PP + 4 + i, 2)) for i in (0, 2)])
    b([pk("add", PP + 8 + i, v(PP + 8 + i, 2), v(PP + 12 + i, 2)) for i in (0, 2)])
    b([pk("add", PP + i, v(PP + i, 2), v(PP + 8 + i, 2)) for i in (0, 2)])
    b([pk("fma", RU + i, v(PP + i, 2), v(PGm + i, 2), v(RU + i, 2)) for i in (0, 2)])
    b(t_cvt(RX, RU, 4))
    b(f"buffer_store_dwordx2 {v(RX, 2)}, {v(vOR)}, {s(SRD_O, 4)}, 0 offen {OPT['st_r']}")
    b.stamp(16)
    if OPT["probe"] is not None:
        b("@vm all")
        b.stamp("end")
        b(f"s_sub_u32 s98, {s(sSTAMP)}, s96" if OPT["probe"] != "0" else "s_mov_b32 s98, 0")
        if OPT["probewg"] is not None:
            b(f"s_cmp_eq_u32 s2, {OPT['probewg']}\ns_cselect_b32 s98, s98, 0")
        b("""
        s_lshl_b32 s98, s98, 2
        s_add_u32 s98, s98, 40000
        L_diag:
        s_memtime s[100:101]
        s_waitcnt lgkmcnt(0)
        s_sub_u32 s100, s100, s96
        s_cmp_lt_u32 s100, s98
        s_cbranch_scc1 L_diag
        """)
    elif OPT["stamps"]:
        b("@vm all")
        b.stamp("end")
        b(f"""
        s_load_dwordx2 s[4:5], s[0:1], 72
        s_waitcnt lgkmcnt(0)
        s_lshl_b32 s6, s2, 2
        s_add_u32 s6, s6, {s(sW)}
        s_lshl_b32 s6, s6, 7
        v_mov_b32 v0, s6
        s_mov_b32 s6, 0x100000
        s_mov_b32 s7, 0x20000
        s_mov_b64 exec, 1
        """)
        for k in range(1, 20):
            kk = min(k, len((OPT["only"] or DEFAULT_STAMPS).split(",")) + 1)
            b(f"s_sub_u32 s8, {s(sSTAMP + kk)}, {s(sSTAMP)}" if not OPT["real"] else
              (f"s_mov_b32 s8, {s(sSTAMP + min(k - 1, kk + 5 if kk == k else kk))}" if k < 19 else "s_getreg_b32 s8, hwreg(HW_REG_XCC_ID, 0, 4)"))
            b("v_mov_b32 v2, s8")
            b(f"buffer_store_dword v2, v0, s[4:7], 0 offen offset:{4 * k}")
        b("@vm all")
    return b


def add_pads(lines, start):
    out = []
    off = None
    n = 0
    for t in lines:
        if t == "L_body:":
            off = start
            out.append(f".fill {start // 4}, 4, 0xbf800000")
        if off is not None and not t.endswith(":") and not t.startswith("."):
            sz = isize(t)
            if off + sz > 4096 * (n + 1):
                while off < 4096 * (n + 1):
                    out.append("s_nop 0")
                    off += 4
                n += 1
                out.append(f"L_pad{n}:")
                out.append(f"s_cbranch_execz {'L_pad%d' % (n + 1) if n % 2 else 'L_body'}")
                out.append("s_nop 0")
                off += 8
            off += sz
        out.append(t)
    return out, n, off + 4


def loop_segment(b):
    import re
    m0, m1 = OPT["seg"].split(",")
    i0, i1 = b.index(f"MARK_{m0}:"), b.index(f"MARK_{m1}:")
    body = [x for x in b[i0:i1] if not x.startswith("MARK_")]
    if OPT["drop"]:
        body = [x for x in body if not re.search(OPT["drop"], x)]
    if OPT["nop"]:
        body = [("s_nop 1" if re.match("v_exp|v_rcp", x) else "s_nop 0") if re.search(OPT["nop"], x) else x for x in body]
    o = Block([x for x in b[:i0] if not x.startswith("MARK_")])
    o("@vm all\n@lg all\ns_barrier\ns_mov_b32 s99, 0\ns_memrealtime s[94:95]\ns_memtime s[96:97]\ns_waitcnt lgkmcnt(0)\n.p2align 6\nL_seg:")
    o(body * 5)
    o("""
    s_add_u32 s99, s99, 1
    s_cmp_lt_u32 s99, 5
    s_cbranch_scc1 L_seg
    @vm all
    s_memtime s[100:101]
    s_memrealtime s[92:93]
    s_load_dwordx2 s[4:5], s[0:1], 72
    s_waitcnt lgkmcnt(0)
    s_sub_u32 s8, s100, s96
    s_sub_u32 s9, s92, s94
    s_lshl_b32 s6, s2, 2
    """ + f"s_add_u32 s6, s6, {s(sW)}" + """
    s_lshl_b32 s6, s6, 7
    v_mov_b32 v0, s6
    s_mov_b32 s6, 0x100000
    s_mov_b32 s7, 0x20000
    s_mov_b64 exec, 1
    v_mov_b32 v2, s8
    buffer_store_dword v2, v0, s[4:7], 0 offen offset:4
    v_mov_b32 v3, s9
    buffer_store_dword v3, v0, s[4:7], 0 offen offset:8
    @vm all
    """)
    return o


def build():
    b = gen()
    if OPT["seg"]:
        b = loop_segment(b)
    lines, added = autowait(b, OPT["verbose"])
    bad = 0
    if OPT["align"]:
        lines, bad = fix_align(lines)
    npad = 0
    if OPT["hops"]:
        margin = int(OPT["margin"])
        start = next(x for x in range(4096 - 64, -64, -64) if 4096 - margin - 64 < add_pads(lines, x)[2] % 4096 <= 4096 - margin or x == 0)
        lines, npad, _ = add_pads(lines, start)
        for k in range(npad + 1, 9):
            lines = [t.replace(f"L_pad{k}", "L_body") if not t.endswith(":") else t for t in lines]
    trace = [t for t in lines if not t.endswith(":") and not t.startswith(".")]
    errs = check(trace)
    hdr = open("standalone__modern_conv_block_convnext__vision.s.ref").read().split("\n")
    head = [l for l in hdr if l.startswith(";") and "@launch" not in l and "Override" not in l and "grid=ceil" not in l]
    head += """;
; Fused ConvNeXt block: one workgroup (4 waves) per 14x14 pixel tile, tiles grouped per XCD for L2 halo reuse.
;   1. x tile (18x18, zero padded) staged in LDS as 4-channel planes; weights streamed to LDS by DMA.
;   2. depthwise 5x5 conv as sparse MFMA with Toeplitz filter fragments (each wave owns 24 channels).
;   3. layer norm: per-wave partial sums exchanged through LDS, normalised activations written as bf16.
;   4. MLP per wave: a 32-pixel tile over all hidden units, a shared 32-pixel tile over half of them and a
;      4-pixel remainder over a quarter; tanh-GELU as x * rcp(1 + exp2(-x * (c + x * x))) on pre-scaled x.
;   5. out = x + gamma * (h + b2), stored in 64-byte segments.""".split("\n")
    out = head + [f"; @launch grid=(256,1,1) block=(256,1,1) lds={LDS_BYTES}",
                  '.amdgcn_target "amdgcn-amd-amdhsa--gfx950"', ".text", f".globl {KNAME}", ".p2align 12", ".p2align 8",
                  f".type {KNAME},@function", f"{KNAME}:"]
    for t in lines:
        out.append(t if t.endswith(":") or t.startswith(".") else "    " + t)
    out += ["L_end:", "    s_endpgm", '.section .rodata,"a"', ".p2align 6", f".amdhsa_kernel {KNAME}",
            "  .amdhsa_next_free_vgpr 512", "  .amdhsa_next_free_sgpr 102", "  .amdhsa_accum_offset 256",
            "  .amdhsa_group_segment_fixed_size 0", "  .amdhsa_kernarg_size 80", "  .amdhsa_user_sgpr_count 2",
            "  .amdhsa_user_sgpr_kernarg_segment_ptr 1", "  .amdhsa_system_sgpr_workgroup_id_x 1",
            ".end_amdhsa_kernel", ""]
    info = f"{len(trace)} instrs, {sum(isize(t) for t in trace)} bytes, {added} auto waits, {bad} misaligned, {npad} pads, {len(errs)} lint findings"
    return "\n".join(out), errs, info


if __name__ == "__main__":
    path = sys.argv[1]
    for kv in sys.argv[2:]:
        k, val = kv.split("=")
        OPT[k] = val if k.startswith(("probe", "only", "seg", "drop", "nop")) else {"0": False, "1": True}.get(val, val.replace("+", " "))
    text, errs, info = build()
    for e in errs:
        print("HAZARD", e)
    open(path, "w").write(text)
    print(f"wrote {path}: {info}")
```

```python
import math
import struct
import sys

from asmlint import check
from sched import trun, trun2, autowait, fix_align, isize

KNAME = "standalone__modern_conv_block_convnext__vision_kernel"
OPT = dict(nt="", stamps=False, verbose=False, align=True, st_h="sc1", st_f="sc1", st_r="sc1", hops=True, margin=16, nt2="", probe=None, probewg=None, only=None, cut0=0, cut=40, cut2=120, steal=8, drain=45, seg=None, tmaj=0, nop=None, real=False, drop=None, pfslice=True, nstage=0, nstat=0, hide=3, early=6, ilv=12, hoprow=3, rpf=0, rpos=1, xch=2, stagerow=12, ln2=0, rend=1, w2m=0, prew=0, q0lag=0, slotrow=11, wlines=18, xfirst=1)


def f32bits(x):
    return struct.unpack("<I", struct.pack("<f", x))[0]


def bf16_rne(x):
    u = f32bits(x)
    return (u + 0x7FFF + ((u >> 16) & 1)) >> 16


def bf16_val(h):
    return struct.unpack("<f", struct.pack("<I", h << 16))[0]


C1 = 2.0 * math.sqrt(2.0 / math.pi) * math.log2(math.e)
ALPHA = (C1 * 0.044715) ** (1.0 / 3.0)
CP = C1 / ALPHA
A_HI = bf16_rne(ALPHA)
A_LO = bf16_rne(ALPHA - bf16_val(A_HI))

W2L, W2E = 73728, 110592
XP, XG, XPL = 36864, 5776, 2880
ACT, AP = 36864, 208
TBL = 147456
ST = TBL
RBUF, XCH = 24576, 0
PB1, PB2, PGR, PG, PGB = 159744, 160768, 161792, 162816, 163200
ZERO = PB2 + 512
LDS_BYTES = 163584
ROWB = 43008
XBYTES = 9633792

SRD_X, SRD_DW, SRD_W1, SRD_W2, SRD_A, SRD_B, SRD_O = 20, 24, 28, 32, 36, 40, 48
sROW, sMA, sLUT2 = 44, 45, 46
sW, sPAR, sX0, sY0, sNP = 54, 55, 56, 57, 58
sT0, sT1, sT2, sT3 = 59, 60, 61, 62
sTB = 63
sCP, sONE, sINV, sLUT, sIA, sAL, sEPS, sMASK = 64, 66, 68, 70, 72, 74, 76, 78
sLO, sHI, sM1, sM2 = 10, 11, 14, 15
sS = (16, 17, 3)
sSTAMP = 80

vB2F, vL = 0, 1
vA, vB, vW2A, vW2B, vBA, vBB = 2, 3, 4, 5, 6, 7
vOFA, vRW, vOH, vOR, vGA, vR2A, vL16, vR2B = 8, 9, 10, 11, 12, 13, 14, 15
vR1, vRB, vGH = 16, 17, 18
HR = 16
ACC = {"F": 20, "H": 68}
X = (116, 132, 148)
Z, E, R, H, TMP = 164, 180, 196, 212, 220
CV, AF = 116, 20
vIDX, vTA, vXB, vXW, vXO, vAW, vBF, vBH, vBR, vPF, vB2H, vG, vB2V, vSW, vBQ = range(92, 107)
vD1 = TMP + 35

aSTG = 0
aRB = (72, 108, 144)
aW1, aW2 = 0, (24, 48)
aBt = {"F": 72, "H": 96}
aBR, aRF = 120, 168
aRF2, aRACC = 120, 144
aBIAS, aC32, aC16, aRBIAS, aPFX = 192, 196, 200, 216, 224


def v(i, n=1):
    return f"v{i}" if n == 1 else f"v[{i}:{i+n-1}]"


def a(i, n=1):
    return f"a{i}" if n == 1 else f"a[{i}:{i+n-1}]"


def s(i, n=1):
    return f"s{i}" if n == 1 else f"s[{i}:{i+n-1}]"


def L(t):
    return [x.strip() for x in t.strip("\n").split("\n") if x.strip()]


class Block(list):
    def __call__(self, t):
        self.extend(L(t) if isinstance(t, str) else t)

    def stamp(self, k):
        k = str(k)
        if OPT["seg"]:
            self.append(f"MARK_{k}:")
            return
        if OPT["probe"] is not None and k == "0":
            self("s_memtime s[96:97]")
            return
        if OPT["probe"] is not None:
            names = [OPT["probe"]]
        elif OPT["stamps"]:
            names = ["0"] + (OPT["only"] or DEFAULT_STAMPS).split(",") + ["end"]
        else:
            return
        if k in names:
            self(f"{'s_memrealtime' if OPT['real'] else 's_memtime'} s[100:101]\ns_waitcnt lgkmcnt(0)\ns_mov_b32 {s(sSTAMP + names.index(k))}, s100")


DEFAULT_STAMPS = "1,18,2,3,4,5,7,8,9,T3,P7,T12,P17,P19,T19,16"


def pk(op, d, x, y, z=None, mod=""):
    t = f"v_pk_{op}_f32 {v(d, 2)}, {x}, {y}"
    if z is not None:
        t += f", {z}"
    return t + mod


def p_t(xb, zb, n=16):
    return [pk("fma", zb + i, v(xb + i, 2), v(xb + i, 2), s(sCP, 2)) for i in range(0, n, 2)]


def p_z(xb, zb, n=16):
    return [pk("mul", zb + i, v(zb + i, 2), v(xb + i, 2), mod=" neg_lo:[1,0] neg_hi:[1,0]") for i in range(0, n, 2)]


def p_add(eb, n=16):
    return [pk("add", eb + i, v(eb + i, 2), s(sONE, 2)) for i in range(0, n, 2)]


def p_mul(rb, xb, n=16):
    return [pk("mul", rb + i, v(rb + i, 2), v(xb + i, 2)) for i in range(0, n, 2)]


def t_cvt(hb, rb, n=16):
    return [f"v_cvt_pk_bf16_f32 {v(hb + i // 2)}, {v(rb + i)}, {v(rb + i + 1)}" for i in range(0, n, 2)]


def t_rcp(rb, eb, n=16):
    return [f"v_rcp_f32 {v(rb + i)}, {v(eb + i)}" for i in range(n)]


def t_exp(eb, zb, n=16):
    return [f"v_exp_f32 {v(eb + i)}, {v(zb + i)}" for i in range(n)]


def unpack(dst, src, n):
    o = []
    for i in range(n):
        o += [f"v_lshlrev_b32 {v(dst + 2 * i)}, 16, {v(src + i)}", f"v_and_b32 {v(dst + 2 * i + 1)}, {s(sHI)}, {v(src + i)}"]
    return o


M32 = "v_mfma_f32_32x32x16_bf16"
M16 = "v_mfma_f32_16x16x32_bf16"

SLOTS = ([(t, "a", i, 0) for i in range(3) for t in "FH"] + [("F", "b", i, 0) for i in range(3)]
         + [(t, "a", i, 1) for i in range(3) for t in "HF"] + [("F", "b", i, 1) for i in range(3)])
NS = len(SLOTS)


def neww(j):
    return j == 0 or SLOTS[j][1:] != SLOTS[j - 1][1:]


UNITNO = []
for _j in range(NS):
    UNITNO.append((UNITNO[-1] if UNITNO else -1) + (1 if neww(_j) else 0))


def m_fc1(j):
    xb, bb = X[j % 3], aBt[SLOTS[j][0]]
    o = [f"{M32} {v(xb, 16)}, {a(aBIAS, 4)}, {a(aC32, 4)}, 0"]
    return o + [f"{M32} {v(xb, 16)}, {a(aW1 + 4 * k, 4)}, {a(bb + 4 * k, 4)}, {v(xb, 16)}" for k in range(6)]


def m_fc2(j):
    acc, wb = ACC[SLOTS[j][0]], aW2[UNITNO[j] % 2]
    return [f"{M32} {v(acc + 16 * t, 16)}, {a(wb + 4 * (3 * k + t), 4)}, {v(H + 4 * k, 4)}, "
            + ("0" if (j == 0 and k == 0) else v(acc + 16 * t, 16)) for k in range(2) for t in range(3)]


def r_w1(j):
    _, g, i, late = SLOTS[j]
    off = 12288 * i
    o = [f"ds_read_u16 {a(aBIAS)}, {v(vBA if g == 'a' else vBB)} offset:{128 * i + 384 * late}"]
    return o + [f"ds_read_b64_tr_b16 {a(aW1 + 4 * k + 2 * jj, 2)}, {v(vA if g == 'a' else vB)} offset:{off + 2048 * k + 256 * jj}"
                for k in range(6) for jj in range(2)]


def r_w2(j):
    _, g, i, late = SLOTS[j]
    wb = aW2[UNITNO[j] % 2]
    return [f"ds_read_b64_tr_b16 {a(wb + 4 * (3 * k + t) + 2 * jj, 2)}, {v(vW2A if g == 'a' else vW2B)} "
            f"offset:{12288 * i + 3072 * k + 1536 * jj + 64 * t}" for k in range(2) for t in range(3) for jj in range(2)]


def has(j):
    return 0 <= j < NS


STOLEN = {}


def P(j, pre=(), post=(), late_x=False):
    t = p_t(X[j % 3], Z) if has(j) else []
    z = p_z(X[j % 3], Z) if has(j) else []
    m = p_mul(R, X[(j - 2) % 3])[STOLEN.get(j, 0):] if has(j - 2) else []
    d = p_add(E) if has(j - 1) else []
    core = m + d + t + z if late_x else t + m + z + d
    o = Block(list(pre) + core + list(post))
    o.stamp(f"P{j}")
    return o


def T(j, xM=(), xF=(), xVpre=(), xV=(), xneed=None, tail=12, head=(), tmajor=False, last=("@lg all",), skip_w2=False):
    f1 = m_fc1(j + 1) if has(j + 1) else []
    f2 = m_fc2(j - 2) if has(j - 2) else []
    tmajor = tmajor or bool(int(OPT["tmaj"]))
    if tmajor and f2:
        f2 = [f2[3 * k + t] for t in range(3) for k in range(2)]
    M = f1 + f2 + list(xM)
    n = len(M)
    cv = t_cvt(H, R) if has(j - 2) else []
    V = cv + list(xVpre) + (t_rcp(R, E) if has(j - 1) else []) + (t_exp(E, Z) if has(j) else []) + list(xV)
    need = dict(xneed or {})
    if f2:
        need[len(f1)] = max(need.get(len(f1), 0), 6)
        k1 = len(f1) + (1 if tmajor else 3)
        need[k1] = max(need.get(k1, 0), 10 if len(V) >= 10 else len(V))
    F = list(xF)
    nm = len(f1) + len(f2) + sum("32x32" in m for m in xM)
    hi = max(0, nm - 4)
    if has(j + 2) and neww(j + 2):
        w = r_w1(j + 2)
        F += [(1 + k, max(1 + k, hi), [w[1 + 2 * k + jj]]) for k in range(5, -1, -1) for jj in range(2)] + [(0, hi, w[:1])]
    if has(j - 1) and neww(j - 1) and not skip_w2:
        F += [(0, hi, [x]) for x in r_w2(j - 1)]
    F += [(n - 1, n - 1, [x]) for x in last]
    steal = []
    if has(j - 1):
        base = len(cv) + len(xVpre)
        xb = X[(j - 1) % 3]
        steal = [(None, [f"v_mul_f32 {v(R + i + k)}, {v(R + i + k)}, {v(xb + i + k)}" for k in range(2)], base + i + 1)
                 for i in range(0, 16, 2)]
    o, STOLEN[j + 1] = trun2(M, F, V, need, list(head), steal, int(OPT["drain"]), int(OPT["steal"]))
    o = Block(o)
    o.stamp(f"T{j}")
    return o


def gen():
    b = Block()
    nt = OPT["nt"]
    t0, t1, t2, t3, t4, t5 = range(TMP, TMP + 6)
    vTB, vZ = TMP + 20, TMP + 24

    if OPT["pfslice"]:
        pfcalc = f"s_lshr_b32 s3, s2, 3\ns_lshl_b32 s3, s3, 10\nv_and_b32 {v(t0)}, 7, v0\nv_lshl_add_u32 {v(t0)}, {v(t0)}, 7, s3"
    else:
        pfcalc = f"v_lshlrev_b32 {v(t0)}, 7, v0"
    b.stamp(0)
    b(f"""
    s_cmp_ge_u32 s2, 256
    s_cbranch_scc1 L_end
    s_load_dwordx16 s[4:19], s[0:1], 0
    s_getpc_b64 s[52:53]
    L_pc:
    {pfcalc}
    v_min_u32 {v(t0)}, L_end-L_pc, {v(t0)}
    global_load_dword {v(vPF)}, {v(t0)}, s[52:53] ;@pf
    v_lshrrev_b32 {v(t1)}, 6, v0
    v_and_b32 {v(vL)}, 63, v0
    v_readfirstlane_b32 {s(sW)}, {v(t1)}
    s_and_b32 {s(sT0)}, s2, 1
    s_lshl_b32 {s(sT0)}, {s(sT0)}, 3
    s_bfe_u32 {s(sT1)}, s2, 0x30003
    s_add_u32 {s(sT0)}, {s(sT0)}, {s(sT1)}
    s_mul_i32 {s(sX0)}, {s(sT0)}, 14
    s_bfe_u32 {s(sT0)}, s2, 0x20001
    s_lshl_b32 {s(sT0)}, {s(sT0)}, 2
    s_lshr_b32 {s(sT1)}, s2, 6
    s_add_u32 {s(sT0)}, {s(sT0)}, {s(sT1)}
    s_mul_i32 {s(sY0)}, {s(sT0)}, 14
    v_mul_u32_u24 {v(t0)}, 43, {v(vL)}
    v_lshrrev_b32 {v(t0)}, 7, {v(t0)}
    v_mul_u32_u24 {v(t1)}, 3, {v(t0)}
    v_sub_u32 {v(t1)}, {v(vL)}, {v(t1)}
    v_and_b32 {v(t2)}, 7, {v(t0)}
    v_lshrrev_b32 {v(t0)}, 3, {v(t0)}
    v_mad_u32_u24 {v(t0)}, {v(t0)}, 5, {v(t2)}
    v_cmp_le_u32 vcc, 3, {v(t2)}
    v_mul_u32_u24 {v(t0)}, 192, {v(t0)}
    s_mul_i32 {s(sT0)}, {s(sW)}, 48
    s_sub_u32 {s(sT0)}, {s(sT0)}, 576
    v_lshl_add_u32 {v(t0)}, {v(t1)}, 4, {v(t0)}
    v_add_u32 {v(t0)}, {s(sT0)}, {v(t0)}
    v_bfrev_b32 {v(t5)}, 1
    v_cndmask_b32 {v(vTB)}, {v(t5)}, {v(t0)}, vcc
    s_mul_i32 {s(sT1)}, {s(sW)}, 56
    v_add_u32 {v(t1)}, {s(sT1)}, {v(vL)}
    v_mul_u32_u24 {v(t2)}, 171, {v(t1)}
    v_lshrrev_b32 {v(t2)}, 11, {v(t2)}
    s_sub_u32 {s(sT2)}, {s(sX0)}, 2
    v_add_u32 {v(t3)}, {s(sT2)}, {v(t2)}
    v_cmp_gt_u32 vcc, 224, {v(t3)}
    v_cmp_gt_u32 {s(sMASK, 2)}, 18, {v(t2)}
    s_mul_i32 {s(sT3)}, {s(sY0)}, {ROWB}
    s_mul_i32 {s(sT2)}, {s(sT2)}, 192
    s_add_u32 {s(sT3)}, {s(sT3)}, {s(sT2)}
    s_sub_u32 {s(sT3)}, {s(sT3)}, {2 * ROWB}
    s_and_b64 vcc, vcc, {s(sMASK, 2)}
    s_and_b32 vcc_hi, vcc_hi, 0xffffff
    v_lshl_add_u32 {v(vXO)}, {v(t1)}, 4, {s(sT3)}
    s_mul_i32 {s(sTB)}, {s(sW)}, 3072
    v_cndmask_b32 {v(vXO)}, {v(t5)}, {v(vXO)}, vcc
    s_add_u32 {s(sTB)}, {s(sTB)}, {TBL}
    s_mov_b32 m0, {s(sTB)}
    s_mov_b32 {s(SRD_X + 2)}, {XBYTES}
    s_mov_b32 {s(SRD_X + 3)}, 0x20000
    s_movk_i32 {s(SRD_DW + 2)}, 4800
    s_mov_b32 {s(SRD_DW + 3)}, 0x20000
    s_mov_b32 {s(sROW)}, {ROWB}
    """)
    b.append("@@PRE")
    b("s_waitcnt lgkmcnt(0)")
    b.stamp(1)

    def srd(dst, src, nbytes):
        return L(f"""
        s_mov_b32 {s(dst)}, {s(src)}
        s_mov_b32 {s(dst + 1)}, {s(src + 1)}
        s_mov_b32 {s(dst + 2)}, {nbytes}
        s_mov_b32 {s(dst + 3)}, 0x20000
        """)
    def xload(r):
        o = [f"buffer_load_dwordx4 {a(aSTG + 4 * r, 4)}, {v(vXO)}, {s(SRD_X, 4)}, 0 offen {nt} ;@x{r}"]
        if r < 17:
            o.append(f"v_add_u32 {v(vXO)}, {s(sROW)}, {v(vXO)}")
        return o
    b(f"s_mov_b32 {s(SRD_X)}, s4\ns_mov_b32 {s(SRD_X + 1)}, s5")
    xf = int(OPT["xfirst"])
    for r in range(xf):
        b(xload(r))
    b(f"s_mov_b32 {s(SRD_DW)}, s6\ns_mov_b32 {s(SRD_DW + 1)}, s7\ns_mov_b32 exec_hi, 0xffff")
    for d in range(4):
        b(f"buffer_load_dwordx4 {v(vTB)}, {s(SRD_DW, 4)}, 0 offen lds ;@tbl")
        if d < 3:
            b(f"s_add_u32 m0, m0, 768\nv_add_u32 {v(vTB)}, 1920, {v(vTB)}")
    b("s_mov_b32 exec_hi, -1")

    u = Block()
    ka = Block()
    ka(f"""
    s_lshl_b32 s52, {s(sW)}, 3
    s_lshr_b32 s53, 0x30302818, s52
    s_and_b32 s53, s53, 0xff
    s_load_dwordx2 {s(SRD_A, 2)}, s[0:1], s53
    s_lshr_b32 s53, 0x38382010, s52
    s_and_b32 s53, s53, 0xff
    s_load_dwordx2 {s(SRD_B, 2)}, s[0:1], s53
    s_cmp_eq_u32 {s(sW)}, 0
    s_movk_i32 s53, 192
    s_cselect_b32 {s(SRD_A + 2)}, 768, s53
    s_mov_b32 {s(SRD_A + 3)}, 0x20000
    s_min_u32 {s(sMA)}, {s(sW)}, 2
    s_lshl_b32 {s(sMA)}, {s(sMA)}, 10
    s_add_u32 {s(sMA)}, {s(sMA)}, {PB1}
    s_mov_b32 {s(SRD_B + 3)}, 0x20000
    """)
    for dst, src, n in ((SRD_W1, 8, 73728), (SRD_W2, 12, 73728), (SRD_O, 18, XBYTES)):
        ka(srd(dst, src, n))
    lut = 0
    for cp, col in enumerate([0, 4, 8, 12, 1, 5, 9, 13, 2, 6, 10, 3, 7, 11]):
        lut |= col << (4 * cp)
    lut2 = 0
    for rho in range(14):
        lut2 |= (4 * ((rho & 7) >> 1) + 2 * (rho >> 3) + (rho & 1)) << (4 * rho)
    lg, lxg, lrp, lh, lq, lr, l31, lh16 = range(TMP + 8, TMP + 16)
    ka(f"""
    s_mov_b32 {s(sLO)}, 0xffff
    s_mov_b32 {s(sHI)}, 0xffff0000
    s_mul_i32 {s(sM1)}, {s(sW)}, 3072
    s_mul_i32 {s(sM2)}, {s(sW)}, 9216
    s_mul_i32 {s(sS[0])}, {s(sW)}, 18432
    s_add_u32 {s(sS[1])}, {s(sS[0])}, 5120
    s_add_u32 {s(sS[2])}, {s(sS[0])}, 10240
    """)
    zv = [f"{M32} {v(CV + 16 * i, 16)}, {v(vZ, 4)}, {v(vZ, 4)}, 0" for i in range(6)]
    za = [f"{M32} {a(192 + 16 * i, 16)}, {v(vZ, 4)}, {v(vZ, 4)}, 0" for i in range(2)]
    za += [f"{M16} {a(rb + 32, 4)}, {v(vZ, 4)}, {v(vZ, 4)}, 0" for rb in aRB]
    u(f"""
    v_mov_b64 {v(vZ, 2)}, 0
    v_mov_b64 {v(vZ + 2, 2)}, 0
    s_and_b32 {s(sPAR)}, {s(sW)}, 1
    s_xor_b32 {s(sNP)}, {s(sPAR)}, 1
    v_mul_u32_u24 {v(t3)}, 12, {v(t2)}
    v_sub_u32 {v(t3)}, {v(t1)}, {v(t3)}
    v_subrev_u32 {v(t4)}, 56, {v(vL)}
    v_cmp_gt_u32 vcc, 56, {v(vL)}
    v_mov_b32 {v(t0)}, 18
    v_lshrrev_b32 {v(lg)}, 4, {v(vL)}
    v_cndmask_b32 {v(t3)}, {v(t4)}, {v(t3)}, vcc
    v_cndmask_b32 {v(t2)}, {v(t0)}, {v(t2)}, vcc
    v_mul_u32_u24 {v(t3)}, {XG}, {v(t3)}
    v_lshl_add_u32 {v(t3)}, {v(t2)}, 3, {v(t3)}
    v_add_u32 {v(vXW)}, {XP}, {v(t3)}
    v_and_b32 {v(lxg)}, 3, {v(vL)}
    v_bfe_u32 {v(lr)}, {v(vL)}, 2, 2
    v_lshrrev_b32 {v(lh)}, 5, {v(vL)}
    v_and_b32 {v(lq)}, 1, {v(lg)}
    v_and_b32 {v(l31)}, 31, {v(vL)}
    v_lshlrev_b32 {v(vL16)}, 4, {v(vL)}
    v_lshlrev_b32 {v(lh16)}, 4, {v(lh)}
    v_mul_u32_u24 {v(vIDX)}, 0x5555, {v(lxg)}
    v_lshl_add_u32 {v(t0)}, {v(lg)}, 2, {v(lr)}
    v_sub_u32 {v(t1)}, {v(t0)}, {v(lxg)}
    v_mul_u32_u24 {v(t1)}, 48, {v(t1)}
    s_add_u32 {s(sT0)}, {s(sTB)}, 144
    v_add_u32 {v(vTA)}, {s(sT0)}, {v(t1)}
    v_mul_u32_u24 {v(t0)}, 192, {v(t0)}
    v_lshl_add_u32 {v(t0)}, {v(lxg)}, 3, {v(t0)}
    s_mul_i32 {s(sT0)}, {s(sW)}, 6144
    s_add_u32 {s(sT1)}, {s(sT0)}, {W2L + 2 * 6144}
    v_add_u32 {v(vR2A)}, {s(sT1)}, {v(t0)}
    s_add_u32 {s(sT1)}, {s(sT0)}, {W2E + 4 * 6144}
    s_add_u32 {s(sT2)}, {s(sT0)}, {W2L - 2 * 6144}
    s_cmp_lt_u32 {s(sW)}, 2
    s_cselect_b32 {s(sT1)}, {s(sT1)}, {s(sT2)}
    v_add_u32 {v(vR2B)}, {s(sT1)}, {v(t0)}
    v_add_u32 {v(vRW)}, {s(sT0)}, {v(vL16)}
    v_lshlrev_b32 {v(t0)}, 1, {v(lxg)}
    v_add_u32 {v(t0)}, {v(t0)}, {v(lg)}
    v_min_u32 {v(t0)}, 8, {v(t0)}
    v_mul_u32_u24 {v(t1)}, 640, {v(lr)}
    s_mul_i32 {s(sT0)}, {s(sW)}, {3 * XG}
    s_add_u32 {s(sT0)}, {s(sT0)}, {XP}
    v_lshl_add_u32 {v(t0)}, {v(t0)}, 4, {v(t1)}
    v_add_u32 {v(vXB)}, {s(sT0)}, {v(t0)}
    v_lshrrev_b32 {v(t0)}, 2, {v(l31)}
    v_mul_u32_u24 {v(t0)}, 768, {v(t0)}
    v_lshl_add_u32 {v(t0)}, {v(lh)}, 6, {v(t0)}
    v_lshl_add_u32 {v(vD1)}, {v(lxg)}, 4, {v(t0)}
    v_min_u32 {v(t0)}, 11, {v(vL)}
    v_mul_u32_u24 {v(t0)}, {XG - 16}, {v(t0)}
    v_min_u32 {v(t1)}, 31, {v(vL)}
    v_lshl_add_u32 {v(t0)}, {v(t1)}, 4, {v(t0)}
    v_add_u32 {v(t0)}, {XP + 2 * XPL}, {v(t0)}
    """)
    u(f"ds_write_b128 {v(t0)}, {v(vZ, 4)}")
    pF, pH, pR = TMP + 16, TMP + 17, TMP + 18
    u(f"""
    s_mov_b32 {s(sCP)}, {f32bits(CP):#x}
    s_mov_b32 {s(sCP + 1)}, {f32bits(CP):#x}
    s_mov_b32 {s(sONE)}, 1.0
    s_mov_b32 {s(sONE + 1)}, 1.0
    s_mov_b32 {s(sINV)}, {f32bits(1 / 96):#x}
    s_mov_b32 {s(sINV + 1)}, {f32bits(1 / 96):#x}
    s_mov_b32 {s(sIA)}, {f32bits(1 / ALPHA):#x}
    s_mov_b32 {s(sIA + 1)}, {f32bits(1 / ALPHA):#x}
    s_mov_b32 {s(sAL)}, {f32bits(ALPHA):#x}
    s_mov_b32 {s(sAL + 1)}, {f32bits(ALPHA):#x}
    s_mov_b32 {s(sEPS)}, {f32bits(1e-5):#x}
    s_mov_b32 {s(sEPS + 1)}, {f32bits(1e-5):#x}
    s_mov_b32 {s(sLUT)}, {lut & 0xffffffff:#x}
    s_mov_b32 {s(sLUT + 1)}, {lut >> 32:#x}
    s_mov_b32 {s(sLUT2)}, {lut2 & 0xffffffff:#x}
    s_mov_b32 {s(sLUT2 + 1)}, {lut2 >> 32:#x}
    v_lshrrev_b32 {v(t0)}, 1, {v(lg)}
    v_and_b32 {v(t0)}, {v(t0)}, {v(lg)}
    v_lshl_add_u32 {v(t1)}, {v(lg)}, 2, {v(lxg)}
    v_sub_u32 {v(t1)}, {v(t1)}, {v(t0)}
    v_mad_u32_u24 {v(t1)}, {v(lr)}, 28, {v(t1)}
    v_lshl_add_u32 {v(t2)}, {v(lxg)}, 2, {v(lg)}
    v_cmp_gt_u32 vcc, 14, {v(t2)}
    v_mul_u32_u24 {v(t1)}, {AP}, {v(t1)}
    s_mul_i32 {s(sT0)}, {s(sW)}, 48
    s_add_u32 {s(sT0)}, {s(sT0)}, {ACT}
    v_add_u32 {v(t1)}, {s(sT0)}, {v(t1)}
    v_add_u32 {v(t2)}, {ACT + 196 * AP}, {v(vL16)}
    v_cndmask_b32 {v(vAW)}, {v(t2)}, {v(t1)}, vcc
    s_lshl_b32 {s(sT0)}, {s(sW)}, 5
    v_add_u32 {v(pF)}, {s(sT0)}, {v(l31)}
    s_lshr_b32 {s(sT0)}, {s(sW)}, 1
    s_lshl_b32 {s(sT0)}, {s(sT0)}, 5
    s_add_u32 {s(sT0)}, {s(sT0)}, 128
    s_lshl_b32 {s(sT1)}, {s(sPAR)}, 4
    v_xor_b32 {v(pH)}, {s(sT1)}, {v(l31)}
    v_add_u32 {v(pH)}, {s(sT0)}, {v(pH)}
    s_add_u32 {s(sT0)}, {s(sT0)}, {s(sT1)}
    v_and_b32 {v(pR)}, 15, {v(vL)}
    v_add_u32 {v(pR)}, {s(sT0)}, {v(pR)}
    v_add_u32 {v(t1)}, {ACT}, {v(lh16)}
    s_movk_i32 {s(sT1)}, {AP}
    v_mad_u32_u24 {v(vBF)}, {v(pF)}, {s(sT1)}, {v(t1)}
    v_mad_u32_u24 {v(vBH)}, {v(pH)}, {s(sT1)}, {v(t1)}
    v_lshlrev_b32 {v(t1)}, 4, {v(lg)}
    v_add_u32 {v(t1)}, {ACT + 192 * AP}, {v(t1)}
    v_mad_u32_u24 {v(vBR)}, {v(lxg)}, {s(sT1)}, {v(t1)}
    s_mul_i32 {s(sT2)}, {s(sY0)}, 224
    s_add_u32 {s(sT2)}, {s(sT2)}, {s(sX0)}
    s_movk_i32 {s(sT3)}, 224
    """)
    for p, dst in ((pF, vOFA), (pR, vOH)):
        u(f"""
        v_mul_u32_u24 {v(t1)}, 2341, {v(p)}
        v_lshrrev_b32 {v(t1)}, 15, {v(t1)}
        v_mul_u32_u24 {v(t2)}, 14, {v(t1)}
        v_sub_u32 {v(t2)}, {v(p)}, {v(t2)}
        v_lshlrev_b32 {v(t2)}, 2, {v(t2)}
        v_lshrrev_b64 {v(t4, 2)}, {v(t2)}, {s(sLUT, 2)}
        v_and_b32 {v(t2)}, 15, {v(t4)}
        v_lshlrev_b32 {v(t1)}, 2, {v(t1)}
        v_lshrrev_b64 {v(t4, 2)}, {v(t1)}, {s(sLUT2, 2)}
        v_and_b32 {v(t1)}, 15, {v(t4)}
        v_mad_u32_u24 {v(t1)}, {v(t1)}, {s(sT3)}, {v(t2)}
        v_add_u32 {v(t1)}, {s(sT2)}, {v(t1)}
        v_mul_u32_u24 {v(dst)}, 192, {v(t1)}
        """)
    u(f"""
    s_lshl_b32 {s(sT0)}, {s(sW)}, 2
    s_lshr_b32 {s(sT0)}, 0xb73a, {s(sT0)}
    s_and_b32 {s(sT0)}, {s(sT0)}, 15
    s_add_u32 {s(sT0)}, {s(sT0)}, {s(sT2)}
    s_add_u32 {s(sT0)}, {s(sT0)}, {11 * 224}
    s_mul_i32 {s(sT0)}, {s(sT0)}, 192
    v_lshl_add_u32 {v(t1)}, {v(vL)}, 3, {s(sT0)}
    v_cmp_gt_u32 vcc, 24, {v(vL)}
    v_bfrev_b32 {v(t5)}, 1
    v_add_u32 {v(vOFA)}, {v(vOFA)}, {v(lh16)}
    v_lshl_add_u32 {v(t2)}, {v(lq)}, 5, {v(lh16)}
    v_cndmask_b32 {v(vOR)}, {v(t5)}, {v(t1)}, vcc
    v_add_u32 {v(vOH)}, {v(vOH)}, {v(t2)}
    v_lshlrev_b32 {v(t1)}, 5, {v(lh)}
    v_add_u32 {v(vGA)}, {PG}, {v(t1)}
    s_lshl_b32 {s(sT0)}, {s(sPAR)}, 6
    s_lshl_b32 {s(sT1)}, {s(sNP)}, 6
    v_lshlrev_b32 {v(t1)}, 1, {v(l31)}
    v_add_u32 {v(t1)}, {PB1}, {v(t1)}
    v_add_u32 {v(vBA)}, {s(sT0)}, {v(t1)}
    v_add_u32 {v(vBB)}, {s(sT1)}, {v(t1)}
    v_lshlrev_b32 {v(t0)}, 6, {v(lr)}
    v_lshl_add_u32 {v(t0)}, {v(lxg)}, 3, {v(t0)}
    v_lshl_add_u32 {v(t1)}, {v(lg)}, 10, {v(t0)}
    s_lshr_b32 {s(sT2)}, {s(sW)}, 1
    s_mul_i32 {s(sT2)}, {s(sT2)}, 12288
    s_lshl_b32 {s(sT0)}, {s(sPAR)}, 9
    s_lshl_b32 {s(sT1)}, {s(sNP)}, 9
    s_add_u32 {s(sT2)}, {s(sT2)}, {s(sT0)}
    v_add_u32 {v(vR1)}, {s(sT2)}, {v(t1)}
    v_lshl_add_u32 {v(t0)}, {v(lh)}, 10, {v(t0)}
    v_lshl_add_u32 {v(t0)}, {v(lq)}, 5, {v(t0)}
    v_add_u32 {v(vA)}, {s(sT0)}, {v(t0)}
    v_add_u32 {v(vB)}, {s(sT1)}, {v(t0)}
    v_and_b32 {v(t0)}, 15, {v(vL)}
    s_lshl_b32 {s(sT0)}, {s(sW)}, 6
    s_add_u32 {s(sT0)}, {s(sT0)}, {PB1}
    v_lshl_add_u32 {v(vRB)}, {v(t0)}, 1, {s(sT0)}
    v_lshl_add_u32 {v(t0)}, {v(lh)}, 2, {v(lr)}
    v_mul_u32_u24 {v(t0)}, 192, {v(t0)}
    v_and_b32 {v(t1)}, 1, {v(lxg)}
    v_lshrrev_b32 {v(t2)}, 1, {v(lxg)}
    v_lshl_add_u32 {v(t1)}, {v(t1)}, 1, {v(t2)}
    v_lshl_add_u32 {v(t0)}, {v(t1)}, 3, {v(t0)}
    v_lshl_add_u32 {v(t0)}, {v(lq)}, 5, {v(t0)}
    s_mul_i32 {s(sT0)}, {s(sPAR)}, 6144
    s_add_u32 {s(sT0)}, {s(sT0)}, {W2E}
    s_mul_i32 {s(sT1)}, {s(sNP)}, 6144
    s_add_u32 {s(sT1)}, {s(sT1)}, {W2E}
    v_add_u32 {v(vW2A)}, {s(sT0)}, {v(t0)}
    v_add_u32 {v(vW2B)}, {s(sT1)}, {v(t0)}
    v_and_b32 {v(t1)}, 1, {v(lr)}
    v_lshrrev_b32 {v(t2)}, 1, {v(lr)}
    v_lshlrev_b32 {v(t2)}, 2, {v(t2)}
    v_lshl_add_u32 {v(t1)}, {v(t1)}, 3, {v(t2)}
    v_add_u32 {v(t1)}, {v(t1)}, {v(lxg)}
    v_lshl_add_u32 {v(t1)}, {v(lq)}, 4, {v(t1)}
    v_lshlrev_b32 {v(t1)}, 1, {v(t1)}
    v_add_u32 {v(vB2F)}, {PB2}, {v(t1)}
    v_cmp_eq_u32 vcc, {s(sPAR)}, {v(vZ)}
    v_mov_b32 {v(t2)}, {ZERO}
    v_mov_b32 {v(t0)}, {A_HI:#x}
    v_cndmask_b32 {v(vB2H)}, {v(t2)}, {v(vB2F)}, vcc
    v_mov_b32 {v(t1)}, {A_LO:#x}
    v_cmp_eq_u32 vcc, 0, {v(lh)}
    v_cmp_eq_u32 {s(sMASK, 2)}, 0, {v(lg)}
    v_mov_b32 {v(t3)}, 0
    v_cndmask_b32 {v(t2)}, {v(t1)}, {v(t0)}, vcc
    v_accvgpr_write_b32 {a(aC32)}, {v(t2)}
    v_cndmask_b32 {v(t2)}, {v(t1)}, {v(t0)}, {s(sMASK, 2)}
    v_cndmask_b32 {v(t2)}, {v(t3)}, {v(t2)}, vcc
    v_mov_b32 {v(t1)}, {ZERO}
    """)
    for q in range(4):
        u(f"""
        v_cmp_eq_u32 vcc, {q}, {v(lr)}
        s_nop 1
        v_cndmask_b32 {v(t0)}, {v(t3)}, {v(t2)}, vcc
        v_cndmask_b32 {v(vBQ + q)}, {v(t1)}, {v(vBR)}, vcc
        v_accvgpr_write_b32 {a(aC16 + 4 * q)}, {v(t0)}
        """)
    u(f"""
    s_lshl_b32 {s(sT0)}, {s(sW)}, 10
    s_add_u32 {s(sT0)}, {s(sT0)}, {ST}
    v_add_u32 {v(vSW)}, {s(sT0)}, {v(vL16)}
    s_lshr_b32 {s(sT0)}, s2, 3
    s_mul_i32 {s(sT0)}, {s(sT0)}, 2304
    s_mul_i32 {s(sT1)}, {s(sPAR)}, 13
    s_add_u32 {s(sT1)}, {s(sT1)}, {s(sY0)}
    s_mul_i32 {s(sT1)}, {s(sT1)}, {ROWB}
    s_mul_i32 {s(sT2)}, {s(sX0)}, 192
    s_add_u32 {s(sT1)}, {s(sT1)}, {s(sT2)}
    s_cmp_lt_u32 {s(sW)}, 2
    s_cselect_b32 {s(sT0)}, {s(sT0)}, {s(sT1)}
    s_cselect_b32 {s(sT1)}, {int(OPT['wlines'])}, 1
    s_cselect_b32 {s(SRD_B + 2)}, {s(SRD_W1 + 2)}, {s(SRD_O + 2)}
    v_lshl_add_u32 {v(t4)}, {v(vL)}, 7, {s(sT0)}
    v_cmp_gt_u32 vcc, {s(sT1)}, {v(vL)}
    s_nop 1
    v_cndmask_b32 {v(t4)}, {v(t5)}, {v(t4)}, vcc
    """)
    zs = za + zv
    w = Block()
    for n, x in enumerate(u):
        w.append(x)
        if n >= 4 and n % 7 == 4 and zs:
            w.append(zs.pop(0))
    assert not zs
    n0 = int(OPT["cut0"])
    while next((x for x in w[n0:] if x.startswith(("s_cmp", "s_cselect"))), "s_cmp").startswith("s_cselect"):
        n0 -= 1
    k0 = b.index("@@PRE")
    b[k0:k0 + 1] = w[:n0]
    u = Block(ka + w[n0:])
    ncut = int(OPT["cut"])
    b(u[:ncut])
    b.stamp(18)
    nh = int(OPT["hide"]) * (17 - int(OPT["early"]))
    kpre = next(k for k, x in enumerate(u) if x.startswith(f"s_lshr_b32 {s(sT0)}, s2, 3"))
    k1 = kpre - nh
    hidden = u[k1:kpre]
    pre = [x.replace(s(sT0), "s52").replace(s(sT1), "s53").replace(s(sT2), "s12").replace(v(t4), v(vG)).replace(v(t5), v(vB2V))
           .replace("vcc", s(18, 2)) for x in u[kpre:]]
    mid = u[ncut:k1] + [f"v_bfrev_b32 {v(vB2V)}, 1"] + pre
    per = min((len(mid) + 11 - xf) // (12 - xf), int(OPT["ilv"]))
    for r in range(xf, 12):
        b(xload(r))
        b(mid[per * (r - xf):per * (r - xf + 1)])
    b(mid[per * (12 - xf):])
    b.stamp(2)

    hop = L(f"""
    s_mov_b64 exec, 0
    s_cmp_eq_u32 {s(sW)}, 1
    s_cbranch_scc1 L_pad3
    s_cmp_eq_u32 {s(sW)}, 2
    s_cbranch_scc1 L_pad5
    s_cmp_eq_u32 {s(sW)}, 3
    s_cbranch_scc1 L_pad7
    s_branch L_pad1
    .p2align 12
    L_body:
    s_mov_b64 exec, -1
    """)
    slots = L(f"""
    s_mov_b32 m0, {s(sMA)}
    buffer_load_dword {v(vB2V)}, {v(vG)}, {s(SRD_B, 4)}, 0 offen
    buffer_load_dwordx4 {v(vL16)}, {s(SRD_A, 4)}, 0 offen lds ;@par
    """)
    b("@lg all\n@vm tbl")
    b([f"ds_read_b64_tr_b16 {v(AF + (3 * j + t) * 4 + 2, 2)}, {v(vTA)} offset:{768 * t + 8 * j} ;@ard" for j in range(6) for t in range(3)])
    b.stamp(3)
    aexp = []
    for g in range(18):
        q = AF + 4 * g
        aexp += [f"v_and_b32 {v(q)}, {s(sLO)}, {v(q + 2)}", f"v_and_b32 {v(q + 1)}, {s(sHI)}, {v(q + 2)}",
                 f"v_and_b32 {v(q + 2)}, {s(sLO)}, {v(q + 3)}", f"v_and_b32 {v(q + 3)}, {s(sHI)}, {v(q + 3)}"]

    def w1dma(p, tag):
        o = []
        for i in range(3):
            pre = [f"s_add_u32 m0, {s(sM1)}, {12288 * p - 128 * p}", "s_nop 0"] if i == 0 else []
            o.append(pre + [f"buffer_load_dwordx4 {v(vD1)}, {s(SRD_W1, 4)}, {s(sS[i])} offen offset:{1024 * i + 128 * p} lds ;@{tag}"])
        return o

    def w2dma(late, tag):
        o = []
        for c in range(9):
            g = c >> 2
            pre = [f"s_add_u32 m0, {s(sM2)}, {(W2L if late else W2E) + 4096 * g}",
                   f"s_add_u32 {s(sT3)}, {s(sM2)}, {36864 * late + 4096 * g}"] if c % 4 == 0 else []
            o.append(pre + [f"buffer_load_dwordx4 {v(vL16)}, {s(SRD_W2, 4)}, {s(sT3)} offen offset:{1024 * (c & 3)} lds ;@{tag}"])
        return o
    early = (w1dma(0, "w1e") + w1dma(1, "w1e") + w1dma(2, "w1e"), w2dma(0, "w2e"))

    def stage(r):
        return [f"@vm x{r}", f"ds_write_b64 {v(vXW)}, {a(aSTG + 4 * r, 2)} offset:{160 * r}",
                f"ds_write_b64 {v(vXW)}, {a(aSTG + 4 * r + 2, 2)} offset:{XPL + 160 * r}"]
    w2m = int(OPT["w2m"])
    dmas = early[0] + ([] if w2m else early[1])
    nst = int(OPT["nstage"])
    ne = int(OPT["early"])
    for r in range(12 + ne, 18):
        b(xload(r))
    if ne == 0:
        b(slots)
    vq = aexp + hidden
    per = (len(vq) + 16 - ne) // (17 - ne)
    for r in range(18):
        if r == ne + 1:
            b("@lg ard")
        if r > ne:
            b(vq[per * (r - ne - 1):per * (r - ne)])
        b(stage(r))
        if r < ne:
            b(xload(12 + r))
        if ne and r == int(OPT["slotrow"]):
            b(slots)
        if OPT["hops"] and r == int(OPT["hoprow"]):
            b(hop)
        b.stamp(f"x{r}")
        if int(OPT["stagerow"]) <= r < int(OPT["stagerow"]) + nst:
            b(dmas.pop(0))
    b([f"v_lshlrev_b32 {v(vG)}, 2, {v(vL)}", f"v_add_u32 {v(vG)}, {PB2}, {v(vG)}"])
    b("@lg all\ns_barrier")
    b.stamp(4)

    S, TP, TU, S2 = TMP, TMP + 8, H, H

    def acc(k, j):
        return CV + (k * 6 + j) * 4

    def reads(j):
        return [f"ds_read_b128 {a(aRB[j % 3] + 4 * r, 4)}, {v(vXB)} offset:{(j >> 1) * XG + (j & 1) * XPL + r * 160} ;@q{j}_{r}"
                for r in range(8)]

    def part(j):
        o = []
        for k in range(4):
            d = acc(k, j)
            o += [f"v_add_f32 {v(TP + 4 * j + k)}, {v(d)}, {v(d + 1)}", f"v_add_f32 {v(TU + k)}, {v(d + 2)}, {v(d + 3)}"]
        return o + [f"v_add_f32 {v(TP + 4 * j + k)}, {v(TP + 4 * j + k)}, {v(TU + k)}" for k in range(4)]
    b(reads(0))
    nstat = int(OPT["nstat"])
    sdma = dmas[len(dmas) - nstat:]
    dmas = dmas[:len(dmas) - nstat]
    ncv = len(dmas)
    where = {(72 * q + 36) // ncv: q for q in range(ncv)}
    pend = []
    for j in range(6):
        rd = reads(j + 1) if j < 5 else []
        for n in range(12):
            t, k = n >> 2, n & 3
            if j == 0 and n == 0:
                b("@lg q0_1")
            b(f"v_smfmac_f32_16x16x64_bf16 {v(acc(k, j), 4)}, {v(AF + (3 * j + t) * 4, 4)}, {a(aRB[j % 3] + 4 * (k + 2 * t), 8)}, {v(vIDX)}")
            m = 12 * j + n
            if n == 4 and 0 < j < 5:
                pend += part(j - 1)
            if j == 0 and n in (0, 1, 2, 5):
                b(f"@lg q0_{(2, 3, 4, 0, 0, 7)[n]}")
            elif n == 5:
                b(f"@lg q{j}_7")
            elif n == 11 and j < 5:
                b(f"@lg q{j + 1}_4")
            if m in where:
                b(dmas[where[m]][-1:])
                continue
            pre = [x for x in dmas[where[m + 2]][:-1] if x != "s_nop 0"] if m + 2 in where else []
            b(pre)
            if rd and (j > 0 or n >= int(OPT["q0lag"])):
                b(rd.pop(0))
            if pend:
                b(pend.pop(0))
        assert len(rd) == 0, (j, rd)
    b.stamp(5)
    g0, g1, ga = AF + 16, AF + 18, vG
    b(pend)
    U = AF + 8
    for i in range(0, 24, 2):
        for k in range(4):
            d = acc(k, 0) + i
            b(pk("mul", AF + 2 * k, v(d, 2), v(d, 2)) if i == 0 else pk("fma", AF + 2 * k, v(d, 2), v(d, 2), v(AF + 2 * k, 2)))
        if sdma and i % 4 == 0:
            b(sdma.pop(0))
    for x in sdma:
        b(x)
    for k in range(4):
        b(pk("add", U + 2 * k, v(acc(k, 4), 2), v(acc(k, 4) + 2, 2)))
    for o in (0, 2):
        b(pk("add", TP + o, v(TP + o, 2), v(TP + 4 + o, 2)))
        b(pk("add", TP + 8 + o, v(TP + 8 + o, 2), v(TP + 12 + o, 2)))
    for i in (0, 2):
        for k in range(4):
            b(pk("add", U + 2 * k, v(U + 2 * k, 2), v(acc(k, 5) + i, 2)))
    for o in (0, 2):
        b(pk("add", TP + o, v(TP + o, 2), v(TP + 8 + o, 2)))
    for k in range(4):
        b(f"v_add_f32 {v(S + 4 * (k >> 1) + 2 + (k & 1))}, {v(AF + 2 * k)}, {v(AF + 2 * k + 1)}")
        b(f"v_add_f32 {v(TP + 4 + k)}, {v(U + 2 * k)}, {v(U + 2 * k + 1)}")
    for o in (0, 2):
        b(pk("add", S + 2 * o, v(TP + o, 2), v(TP + 4 + o, 2)))
    b(f"""
    ds_write_b128 {v(vSW)}, {v(S, 4)}
    ds_write_b128 {v(vSW)}, {v(S + 4, 4)} offset:4096
    v_add_u32 {v(vSW)}, {ST}, {v(vL16)}
    @vm w1e
    @lg all
    s_barrier
    """)
    b.stamp(7)

    Q = TMP
    for ph in range(2):
        for w in range(4):
            b(f"ds_read_b128 {v(Q + 16 * ph + 4 * w, 4)}, {v(vSW)} offset:{4096 * ph + 1024 * w} ;@s{ph}")
    pre = r_w1(0) + [f"ds_read_u16 {a(aRBIAS + 2 * t)}, {v(vB2H)} offset:{64 * t}" for t in range(3)]
    pre += [f"ds_read_b32 {v(g0 + 1)}, {v(ga)} offset:{PGR - PB2}", f"ds_read_b32 {v(g1 + 1)}, {v(ga)}"]
    prew = int(OPT["prew"])
    if not prew:
        b(pre[:7])
    qs = (Q, Q + 16)

    def fin(q):
        return ([pk("add", q + o, v(q + o, 2), v(q + 4 + o, 2)) for o in (0, 2)]
                + [pk("add", q + 8 + o, v(q + 8 + o, 2), v(q + 12 + o, 2)) for o in (0, 2)]
                + [pk("add", q + o, v(q + o, 2), v(q + 8 + o, 2)) for o in (0, 2)]
                + [pk("mul", q + o, v(q + o, 2), s(sINV, 2)) for o in (0, 2)]
                + [pk("fma", q + 2, v(q, 2), v(q, 2), v(q + 2, 2), " neg_lo:[1,0,0] neg_hi:[1,0,0]"),
                   f"v_max_f32 {v(q + 2)}, 0, {v(q + 2)}", f"v_max_f32 {v(q + 3)}, 0, {v(q + 3)}",
                   pk("add", q + 2, v(q + 2, 2), s(sEPS, 2)),
                   f"v_rsq_f32 {v(q + 2)}, {v(q + 2)}", f"v_rsq_f32 {v(q + 3)}, {v(q + 3)}", "s_nop 0",
                   pk("mul", q + 2, v(q + 2, 2), s(sAL, 2)),
                   pk("mul", q, v(q, 2), v(q + 2, 2), mod=" neg_lo:[1,0] neg_hi:[1,0]")])
    f0, f1 = fin(qs[0]), fin(qs[1])
    if int(OPT["ln2"]):
        b("@lg s0")
        b(f0)
        b("@lg s1")
        b(pre[7:])
        f1 = [x for x in f1 if x != "s_nop 0"]
    else:
        b("@lg s0")
        b(f0[:4])
        b("@lg s1")
        if not prew:
            b(pre[7:])
        b(f1[:4])
        b([x for p in zip(f0[4:], f1[4:]) for x in p if x != "s_nop 0"])
        f1 = []
    for k in range(4):
        ph, sx = k >> 1, k & 1
        base, q = CV + 24 * k, qs[ph]
        for jj in range(3):
            for i in range(8 * jj, 8 * jj + 8, 2):
                b(pk("fma", base + i, v(base + i, 2), v(q + 2, 2), v(q, 2), f" op_sel:[0,{sx},{sx}] op_sel_hi:[1,{sx},{sx}]"))
                if f1 and i % 4 == 0:
                    b(f1.pop(0))
            for i in range(4 * jj, 4 * jj + 4):
                b(f"v_cvt_pk_bf16_f32 {v(base + 4 * jj + i)}, {v(base + 2 * i)}, {v(base + 2 * i + 1)}")
                if f1 and i % 4 == 1:
                    b(f1.pop(0))
            b(f"ds_write_b128 {v(vAW)}, {v(base + 8 * jj, 4)} offset:{(8 * ph + sx) * 14 * AP + 16 * jj}")
            if prew:
                b(pre[:2])
                pre = pre[2:]
        assert k == 0 or not f1
    b("@lg all\ns_barrier")
    b.stamp(8)

    b([f"ds_read_b128 {a(aBt['F'] + 4 * k, 4)}, {v(vBF)} offset:{32 * k} ;@bf{k}" for k in range(6)])
    b([f"ds_read_b128 {a(aBt['H'] + 4 * k, 4)}, {v(vBH)} offset:{32 * k}" for k in range(6)])
    late = w1dma(3, "wl") + w1dma(4, "wl") + w1dma(5, "wl") + w2dma(1, "wl")
    M = m_fc1(0)
    bq = [f"ds_read_b128 {a(aBR + 12 * q + 4 * k, 4)}, {v(vBQ + q)} offset:{64 * k}" for q in range(4) for k in range(3)]
    F = [(k, k, [f"@lg bf{k}"]) for k in range(6)]
    if w2m:
        F += [(2 * k, 2 * k, early[1][k]) for k in range(4)]
    else:
        F += [(1 + k, 1 + k, bq[2 * k:2 * k + 2]) for k in range(6)]
    gt = unpack(g0, g0 + 1, 1) + unpack(g1, g1 + 1, 1) + L(f"""
    v_lshlrev_b32 {v(ga)}, 3, {v(vL)}
    v_mul_f32 {v(g1)}, {v(g1)}, {v(g0)}
    v_mul_f32 {v(g1 + 1)}, {v(g1 + 1)}, {v(g0 + 1)}
    v_mul_f32 {v(g0)}, {s(sIA)}, {v(g0)}
    v_mul_f32 {v(g0 + 1)}, {s(sIA)}, {v(g0 + 1)}
    v_add_u32 {v(ga)}, {PG}, {v(ga)}
    """)
    b(trun(M, F, gt, need={}, tail=0))
    b(f"""
    s_mov_b32 exec_hi, 0xffff
    ds_write_b64 {v(ga)}, {v(g0, 2)}
    ds_write_b64 {v(ga)}, {v(g1, 2)} offset:{PGB - PG}
    s_mov_b32 exec_hi, -1
    s_nop 5
    """)
    b.stamp(9)
    b(P(0))
    hinit = [f"{M32} {v(ACC['H'] + 16 * t, 16)}, {a(aRBIAS + 2 * t, 4)}, {a(aC32, 4)}, 0" for t in range(3)]
    if w2m:
        b(T(0, head=("@lg all",), xF=[(k, k, early[1][4 + k]) for k in range(5)] + [(0, 1, [x]) for x in bq[:3]], last=()))
        b(P(1, late_x=True))
        b(T(1, head=("@lg all",), xM=hinit, xF=[(0, 6, [x]) for x in bq[3:]], skip_w2=True))
        b(P(2))
        F_ = [(k // 3, k // 3, [x + " ;@w20"]) for k, x in enumerate(r_w2(0))] + [(6, 6, ["@lg w20"])]
        b(T(2, head=("@vm w2e", "s_barrier"), xF=F_ + [(4 + 2 * k, 4 + 2 * k, late[k]) for k in range(4)]))
        b(P(3))
        b(T(3, xF=[(1 + 2 * k, 1 + 2 * k, late[4 + k]) for k in range(5)]))
        b(P(4))
        b(T(4, xF=[(1 + 2 * k, 1 + 2 * k, late[9 + k]) for k in range(5)]))
    else:
        b(T(0, xF=[(0, 0, ["@vm w2e", "@lg all", "s_barrier"]), (2, 2, late[0]), (4, 4, late[1]), (6, 6, late[2])], last=()))
        b(P(1, late_x=True))
        b(T(1, head=("@lg all",), xM=hinit, xF=[(1 + 2 * k, 1 + 2 * k, late[3 + k]) for k in range(4)]))
        b(P(2))
        b(T(2, xF=[(1 + 3 * k, 1 + 3 * k, late[7 + k]) for k in range(4)]))
        b(P(3))
        b(T(3, xF=[(1 + 3 * k, 1 + 3 * k, late[11 + k]) for k in range(4)]))
        b(P(4))
        b(T(4, xF=[(4 * k, 4 * k, late[15 + k]) for k in range(3)]))

    XR, WK = TMP + 4, TMP + 12

    def r_fc1(m):
        rd = [f"ds_read_u16 {a(aRBIAS + 2 * mh)}, {v(vRB)} offset:{256 * m + 32 * mh}" for mh in range(2)]
        rd += [f"ds_read_b64_tr_b16 {a(aRF + 12 * mh + 4 * k + 2 * jj, 2)}, {v(vR1)} offset:{24576 * m + 4096 * k + 256 * jj + 32 * mh} ;@rf"
               for k in range(3) for mh in range(2) for jj in range(2)]
        x = XR + 4 * (m >> 1)
        M = []
        for mh in range(2):
            q = (2 * m + mh) & 3
            M.append(f"{M16} {v(x, 4)}, {a(aRBIAS + 2 * mh, 4)}, {a(aC16 + 4 * q, 4)}, {v(x, 4) if q else '0'}")
            M += [f"{M16} {v(x, 4)}, {a(aRF + 12 * mh + 4 * k, 4)}, {a(aBR + 12 * q + 4 * k, 4)}, {v(x, 4)}" for k in range(3)]
        return M, [(0, 8, [x_]) for x_ in rd] + [(12, 12, ["@lg rf"])]

    bumpA = [f"v_subrev_u32 {v(vW2A)}, 36864, {v(vW2A)}", f"v_add_u32 {v(vA)}, 36864, {v(vA)}"]
    bumpB = [f"v_subrev_u32 {v(vW2B)}, 36864, {v(vW2B)}", f"v_add_u32 {v(vB)}, 36864, {v(vB)}"]
    f1pos, g0 = (((5, 7, 8), 9), ((6, 8, 10), 11))[int(OPT["rpos"])]
    for j in range(5, 15):
        post = {g0: p_t(XR, WK, 8) + p_z(XR, WK, 8), g0 + 1: p_add(WK, 8), g0 + 2: p_mul(WK, XR, 8)}.get(j, [])
        b(P(j, post=post))
        if j == 7:
            b("@vm wl\ns_barrier")
        M_, F_ = r_fc1(f1pos.index(j)) if j in f1pos else ([], [])
        if j == 5 and w2m:
            F_ = F_ + [(2 * k, 2 * k, late[14 + k]) for k in range(4)]
        V_ = {g0: t_exp(WK, WK, 8), g0 + 1: t_rcp(WK, WK, 8), g0 + 2: t_cvt(HR, WK, 8)}.get(j, [])
        b(T(j, xM=M_, xF=F_, xV=V_ + {6: bumpA, 11: bumpB}.get(j, [])))
    HX, FX, RX = TMP, TMP + 12, vA
    AH, AFc = ACC["H"], ACC["F"]
    nt2 = OPT["nt2"]
    hx = [f"buffer_load_dwordx4 {v(HX + 4 * t, 4)}, {v(vOH)}, {s(SRD_X, 4)}, 0 offen offset:{64 * t} {nt2} ;@hx" for t in range(3)]
    fx = [f"buffer_load_dwordx4 {v(FX + 4 * c, 4)}, {v(vOFA)}, {s(SRD_X, 4)}, 0 offen offset:{32 * c} {nt2} ;@fx" for c in range(6)]
    vXR_, vGH_, vOFB = vBA, vW2A, vBB
    b(P(15))
    F_ = [(1 + 2 * t, 1 + 2 * t, [hx[t]]) for t in range(3)] + [(7 + 2 * c, 7 + 2 * c, fx[c:c + 1]) for c in range(3)]
    F_ += [(0, 0, [f"s_xor_b32 {s(sT0)}, {s(sW)}, 1"]), (1, 1, [f"s_mul_i32 {s(sT0)}, {s(sT0)}, 6144"])]
    V_ = L(f"""
    v_add_u32 {v(vXR_)}, {s(sT0)}, {v(vL16)}
    v_bfe_u32 {v(vGH_)}, {v(vL)}, 4, 1
    v_lshl_add_u32 {v(vGH_)}, {v(vGH_)}, 6, {v(vGA)}
    """)
    odd = lambda c: AH + 16 * (c >> 1) + 8 + 4 * (c & 1)
    sw = [f"v_permlane16_swap_b32 {v(AH + 16 * t + i)}, {v(AH + 16 * t + 8 + i)}" for t in range(3) for i in range(8)]
    xw = [f"ds_write_b128 {v(vRW)}, {v(odd(c), 4)} offset:{XCH + 1024 * c} ;@xw" for c in range(6)]
    xr = [f"ds_read_b128 {v(odd(c), 4)}, {v(vXR_)} offset:{XCH + 1024 * c}" for c in range(6)]
    if int(OPT["xch"]):
        b(T(15, xF=F_, xV=V_ + sw[:8], tmajor=True))
        b(P(16, pre=xw[:1], post=sw[8:16] + xw[1:2] + sw[16:]))
        if int(OPT["xch"]) == 1:
            F_ = [(2 * c, 2 * c, xw[2 + c:3 + c]) for c in range(4)] + [(8, 8, ["@lg xw", "s_barrier"])]
            F_ += [(9 + c // 2, 9 + c // 2, xr[c:c + 1]) for c in range(6)]
        else:
            F_ = [(c, c, xw[2 + c:3 + c]) for c in range(4)] + [(7, 7, ["@lg xw", "s_barrier"])]
            F_ += [(8 + c // 2, 8 + c // 2, xr[c:c + 1]) for c in range(6)]
    else:
        b(T(15, xF=F_, xV=V_))
        b(P(16, post=sw))
        F_ = [(c, c, xw[c:c + 1]) for c in range(6)] + [(7, 7, ["@lg xw", "s_barrier"])]
        F_ += [(8 + c // 2, 8 + c // 2, xr[c:c + 1]) for c in range(6)]
    F_ += [(6, 6, [f"ds_read_u16 {a(aRBIAS + 2 * t)}, {v(vB2F)} offset:{64 * t}" for t in range(3)])]
    F_ += [(6, 6, fx[3:4]), (11, 11, fx[4:5]), (12, 12, [f"buffer_load_dwordx2 {v(RX, 2)}, {v(vOR)}, {s(SRD_X, 4)}, 0 offen"])]
    b(T(16, xF=F_, last=(), xV=[f"v_add_u32 {v(vOFB)}, 32, {v(vOFA)}"]))
    post = [pk("add", AH + 16 * t + i, v(AH + 16 * t + i, 2), v(AH + 16 * t + 8 + i, 2)) for t in range(3) for i in range(0, 8, 2)]
    b(P(17, post=["@lg all"] + post))
    finit = [f"{M32} {v(AFc + 16 * t, 16)}, {a(aRBIAS + 2 * t, 4)}, {a(aC32, 4)}, {v(AFc + 16 * t, 16)}" for t in range(3)]
    GH = (X[0], X[0] + 8, Z)
    GF = (AH, AH + 16, X[0], X[0] + 8, Z + 8, R)
    gh = [f"ds_read_b128 {v(GH[t] + 4 * k, 4)}, {v(vGH_)} offset:{128 * t + 16 * k}" for t in range(3) for k in range(2)]
    gf = [f"ds_read_b128 {v(GF[c] + 4 * k, 4)}, {v(vGA)} offset:{64 * c + 16 * k}" for c in range(6) for k in range(2)]

    rend = int(OPT["rend"])
    RFB = (aRF, aRF2, aBt["H"], aW1) if rend else (aRF, aRF2, aRF, aRF2)

    def rw2(q):
        fb = RFB[q]
        o = []
        for jj in range(2 - (q >> 1)):
            tau = q + 4 * jj
            reg, off = ((vR2A, 24576), (vR2B, 0), (vR2A, 0))[tau >> 1]
            o += [f"ds_read_b64_tr_b16 {a(fb + 4 * c + 2 * jj, 2)}, {v(reg)} offset:{off + 3072 * (tau & 1) + 32 * c}" for c in range(6)]
        return o
    F_ = [(0, 5, [x]) for x in gh[:4] + rw2(0)] + [(2, 2, fx[5:6]), (0, 0, ["@vm hx"])]
    V_ = [x for t in range(3) for x in unpack(AH + 16 * t + 8, HX + 4 * t, 4)]
    b(T(17, xM=finit, xF=F_, xV=V_))
    hf = lambda t: [pk("fma", AH + 16 * t + 8 + i, v(AH + 16 * t + i, 2), v(GH[t] + i, 2), v(AH + 16 * t + 8 + i, 2)) for i in range(0, 8, 2)]
    hc = lambda t: t_cvt(HX + 4 * t, AH + 16 * t + 8, 8)
    hs = [f"buffer_store_dwordx4 {v(HX + 4 * t, 4)}, {v(vOH)}, {s(SRD_O, 4)}, 0 offen offset:{64 * t} {OPT['st_h']}" for t in range(3)]
    b(P(18, post=hf(0) + hf(1)))
    UF = (X[1], X[1] + 8, X[2], X[2] + 8, E, E + 8)
    F_ = [(0, 3, [x]) for x in gh[4:] + gf[:10] + (rw2(2) if rend else [])] + [(3, 3, hs[:1]), (5, 5, hs[1:2]), (3, 3, ["@vm fx"])]
    V_ = unpack(UF[0], FX, 4) + unpack(UF[1], FX + 4, 4) + [f"v_permlane16_swap_b32 {v(vOFA)}, {v(vOFB)}"]
    b(T(18, xF=F_, xVpre=hc(0) + hc(1), xV=V_, xneed={3: 12, 5: 16}))
    b(P(19, post=hf(2)))

    def ftail(t, plain):
        o = []
        for c in (2 * t, 2 * t + 1):
            if plain:
                o += [f"v_fma_f32 {v(UF[c] + i)}, {v(AFc + 8 * c + i)}, {v(GF[c] + i)}, {v(UF[c] + i)}" for i in range(8)]
            else:
                o += [pk("fma", UF[c] + i, v(AFc + 8 * c + i, 2), v(GF[c] + i, 2), v(UF[c] + i, 2)) for i in range(0, 8, 2)]
        for c in (2 * t, 2 * t + 1):
            o += t_cvt(FX + 4 * c, UF[c], 8)
        o += [f"v_permlane16_swap_b32 {v(FX + 8 * t + i)}, {v(FX + 8 * t + 4 + i)}" for i in range(4)]
        return o

    def fst(t):
        return [f"buffer_store_dwordx4 {v(FX + 8 * t + 4 * k, 4)}, {v((vOFA, vOFB)[k])}, {s(SRD_O, 4)}, 0 offen offset:{64 * t} {OPT['st_f']}"
                for k in range(2)]
    V_ = hc(2) + [x for c in range(2, 6) for x in unpack(UF[c], FX + 4 * c, 4)][:20] + ftail(0, True)
    F_ = [(1, 1, gf[10:]), (2, 2, hs[2:3])] + [(0, 3, [x]) for x in rw2(1) + (rw2(3) if rend else [])]
    b(T(19, xF=F_, xV=V_, xneed={2: 12}, tmajor=True))
    b(fst(0))
    b.stamp("f0")
    b([x for c in range(2, 6) for x in unpack(UF[c], FX + 4 * c, 4)][20:])
    for t in (1, 2):
        b(ftail(t, False))
        if t == 1 or not rend:
            b(fst(t))
        b.stamp(f"f{t}")

    HQ, RA = AH, AH + 16
    PP, PGm, PBm, RU, ra, rg, rw = X[0], X[1], X[1] + 4, X[1] + 8, X[2], X[2] + 1, X[2] + 2
    hq = lambda q: HR if q == 0 else HQ + 4 * (q - 1)
    rrot = [f"v_mov_b32_dpp {v(hq(q) + i)}, {v(HR + i)} row_ror:{16 - 4 * q} row_mask:0xf bank_mask:0xf" for q in (1, 2, 3) for i in range(4)]
    M_ = [f"{M16} {v(RA + 4 * c, 4)}, {a(RFB[q] + 4 * c, 4)}, {v(hq(q), 4)}, {v(RA + 4 * c, 4) if q else '0'}"
          for q in range(4) for c in range(6)]
    r2, r3 = rw2(2), rw2(3)
    F_ = [(c, c, r2[c:c + 1]) for c in range(6)] + [(6 + c, 6 + c, r3[c:c + 1]) for c in range(6)]
    if rend:
        F_ = [(3, 3, fst(2)[:1]), (9, 9, fst(2)[1:])]
    F_ += [(0, 0, [f"s_mul_i32 {s(sT0)}, {s(sW)}, 2176"]), (1, 1, [f"s_lshl_b32 {s(sT1)}, {s(sW)}, 4"])]
    F_ += [(20, 20, [f"ds_read_b128 {v(PGm, 4)}, {v(rg)}"]), (21, 21, [f"ds_read_b128 {v(PBm, 4)}, {v(rg)} offset:{PGB - PG}"])]
    V_ = rrot + L(f"""
    v_min_u32 {v(rg)}, 23, {v(vL)}
    v_and_b32 {v(ra)}, 3, {v(rg)}
    v_mul_u32_u24 {v(ra)}, 272, {v(ra)}
    v_bfe_u32 {v(rw)}, {v(rg)}, 2, 2
    v_lshl_add_u32 {v(ra)}, {v(rw)}, 6, {v(ra)}
    v_lshrrev_b32 {v(rw)}, 4, {v(rg)}
    v_mul_u32_u24 {v(rw)}, 1088, {v(rw)}
    v_add3_u32 {v(ra)}, {v(ra)}, {v(rw)}, {s(sT1)}
    v_lshlrev_b32 {v(rg)}, 4, {v(rg)}
    v_add_u32 {v(rg)}, {PG}, {v(rg)}
    v_lshrrev_b32 {v(rw)}, 4, {v(vL)}
    v_add_u32 {v(rw)}, {v(rw)}, {v(vL)}
    v_lshl_add_u32 {v(rw)}, {v(rw)}, 4, {s(sT0)}
    """) + unpack(RU, RX, 2)
    o, _ = trun2(M_, F_, V_, {6: 6, 12: 10, 18: 14, 20: 22}, [], drain=8)
    b(o)
    b("s_nop 1")
    for c in (1, 2, 3, 5):
        for i in range(4):
            b(f"v_mov_b32_dpp {v(RA + 16 * (c >> 2) + i)}, {v(RA + 4 * c + i)} row_shr:{4 * (c & 3)} row_mask:0xf bank_mask:{1 << (c & 3):#x}")
        if c == 3:
            b(f"ds_write_b128 {v(rw)}, {v(RA, 4)} offset:{RBUF}")
    b(f"ds_write_b128 {v(rw)}, {v(RA + 16, 4)} offset:{RBUF + 1088}")
    b("@lg all\ns_barrier")
    b([f"ds_read_b128 {v(PP + 4 * w, 4)}, {v(ra)} offset:{RBUF + 2176 * w}" for w in range(4)])
    b([pk("add", RU + i, v(RU + i, 2), v(PBm + i, 2)) for i in (0, 2)])
    b([pk("add", PP + i, v(PP + i, 2), v(PP + 4 + i, 2)) for i in (0, 2)])
    b([pk("add", PP + 8 + i, v(PP + 8 + i, 2), v(PP + 12 + i, 2)) for i in (0, 2)])
    b([pk("add", PP + i, v(PP + i, 2), v(PP + 8 + i, 2)) for i in (0, 2)])
    b([pk("fma", RU + i, v(PP + i, 2), v(PGm + i, 2), v(RU + i, 2)) for i in (0, 2)])
    b(t_cvt(RX, RU, 4))
    b(f"buffer_store_dwordx2 {v(RX, 2)}, {v(vOR)}, {s(SRD_O, 4)}, 0 offen {OPT['st_r']}")
    b.stamp(16)
    if OPT["probe"] is not None:
        b("@vm all")
        b.stamp("end")
        b(f"s_sub_u32 s98, {s(sSTAMP)}, s96" if OPT["probe"] != "0" else "s_mov_b32 s98, 0")
        if OPT["probewg"] is not None:
            b(f"s_cmp_eq_u32 s2, {OPT['probewg']}\ns_cselect_b32 s98, s98, 0")
        b("""
        s_lshl_b32 s98, s98, 2
        s_add_u32 s98, s98, 40000
        L_diag:
        s_memtime s[100:101]
        s_waitcnt lgkmcnt(0)
        s_sub_u32 s100, s100, s96
        s_cmp_lt_u32 s100, s98
        s_cbranch_scc1 L_diag
        """)
    elif OPT["stamps"]:
        b("@vm all")
        b.stamp("end")
        b(f"""
        s_load_dwordx2 s[4:5], s[0:1], 72
        s_waitcnt lgkmcnt(0)
        s_lshl_b32 s6, s2, 2
        s_add_u32 s6, s6, {s(sW)}
        s_lshl_b32 s6, s6, 7
        v_mov_b32 v0, s6
        s_mov_b32 s6, 0x100000
        s_mov_b32 s7, 0x20000
        s_mov_b64 exec, 1
        """)
        for k in range(1, 20):
            kk = min(k, len((OPT["only"] or DEFAULT_STAMPS).split(",")) + 1)
            b(f"s_sub_u32 s8, {s(sSTAMP + kk)}, {s(sSTAMP)}" if not OPT["real"] else
              (f"s_mov_b32 s8, {s(sSTAMP + min(k - 1, kk + 5 if kk == k else kk))}" if k < 19 else "s_getreg_b32 s8, hwreg(HW_REG_XCC_ID, 0, 4)"))
            b("v_mov_b32 v2, s8")
            b(f"buffer_store_dword v2, v0, s[4:7], 0 offen offset:{4 * k}")
        b("@vm all")
    return b


def add_pads(lines, start):
    out = []
    off = None
    n = 0
    for t in lines:
        if t == "L_body:":
            off = start
            out.append(f".fill {start // 4}, 4, 0xbf800000")
        if off is not None and not t.endswith(":") and not t.startswith("."):
            sz = isize(t)
            if off + sz > 4096 * (n + 1):
                while off < 4096 * (n + 1):
                    out.append("s_nop 0")
                    off += 4
                n += 1
                out.append(f"L_pad{n}:")
                out.append(f"s_cbranch_execz {'L_pad%d' % (n + 1) if n % 2 else 'L_body'}")
                out.append("s_nop 0")
                off += 8
            off += sz
        out.append(t)
    return out, n, off + 4


def loop_segment(b):
    import re
    m0, m1 = OPT["seg"].split(",")
    i0, i1 = b.index(f"MARK_{m0}:"), b.index(f"MARK_{m1}:")
    body = [x for x in b[i0:i1] if not x.startswith("MARK_")]
    if OPT["drop"]:
        body = [x for x in body if not re.search(OPT["drop"], x)]
    if OPT["nop"]:
        body = [("s_nop 1" if re.match("v_exp|v_rcp", x) else "s_nop 0") if re.search(OPT["nop"], x) else x for x in body]
    o = Block([x for x in b[:i0] if not x.startswith("MARK_")])
    o("@vm all\n@lg all\ns_barrier\ns_mov_b32 s99, 0\ns_memrealtime s[94:95]\ns_memtime s[96:97]\ns_waitcnt lgkmcnt(0)\n.p2align 6\nL_seg:")
    o(body * 5)
    o("""
    s_add_u32 s99, s99, 1
    s_cmp_lt_u32 s99, 5
    s_cbranch_scc1 L_seg
    @vm all
    s_memtime s[100:101]
    s_memrealtime s[92:93]
    s_load_dwordx2 s[4:5], s[0:1], 72
    s_waitcnt lgkmcnt(0)
    s_sub_u32 s8, s100, s96
    s_sub_u32 s9, s92, s94
    s_lshl_b32 s6, s2, 2
    """ + f"s_add_u32 s6, s6, {s(sW)}" + """
    s_lshl_b32 s6, s6, 7
    v_mov_b32 v0, s6
    s_mov_b32 s6, 0x100000
    s_mov_b32 s7, 0x20000
    s_mov_b64 exec, 1
    v_mov_b32 v2, s8
    buffer_store_dword v2, v0, s[4:7], 0 offen offset:4
    v_mov_b32 v3, s9
    buffer_store_dword v3, v0, s[4:7], 0 offen offset:8
    @vm all
    """)
    return o


def build():
    b = gen()
    if OPT["seg"]:
        b = loop_segment(b)
    lines, added = autowait(b, OPT["verbose"])
    bad = 0
    if OPT["align"]:
        lines, bad = fix_align(lines)
    npad = 0
    if OPT["hops"]:
        margin = int(OPT["margin"])
        start = next(x for x in range(4096 - 64, -64, -64) if 4096 - margin - 64 < add_pads(lines, x)[2] % 4096 <= 4096 - margin or x == 0)
        lines, npad, _ = add_pads(lines, start)
        for k in range(npad + 1, 9):
            lines = [t.replace(f"L_pad{k}", "L_body") if not t.endswith(":") else t for t in lines]
    trace = [t for t in lines if not t.endswith(":") and not t.startswith(".")]
    errs = check(trace)
    hdr = open("standalone__modern_conv_block_convnext__vision.s.ref").read().split("\n")
    head = [l for l in hdr if l.startswith(";") and "@launch" not in l and "Override" not in l and "grid=ceil" not in l]
    head += """;
; Fused ConvNeXt block: one workgroup (4 waves) per 14x14 pixel tile, tiles grouped per XCD for L2 halo reuse.
;   1. x tile (18x18, zero padded) staged in LDS as 4-channel planes; weights streamed to LDS by DMA.
;   2. depthwise 5x5 conv as sparse MFMA with Toeplitz filter fragments (each wave owns 24 channels).
;   3. layer norm: per-wave partial sums exchanged through LDS, normalised activations written as bf16.
;   4. MLP per wave: a 32-pixel tile over all hidden units, a shared 32-pixel tile over half of them and a
;      4-pixel remainder over a quarter; tanh-GELU as x * rcp(1 + exp2(-x * (c + x * x))) on pre-scaled x.
;   5. out = x + gamma * (h + b2), stored in 64-byte segments.""".split("\n")
    out = head + [f"; @launch grid=(256,1,1) block=(256,1,1) lds={LDS_BYTES}",
                  '.amdgcn_target "amdgcn-amd-amdhsa--gfx950"', ".text", f".globl {KNAME}", ".p2align 12", ".p2align 8",
                  f".type {KNAME},@function", f"{KNAME}:"]
    for t in lines:
        out.append(t if t.endswith(":") or t.startswith(".") else "    " + t)
    out += ["L_end:", "    s_endpgm", '.section .rodata,"a"', ".p2align 6", f".amdhsa_kernel {KNAME}",
            "  .amdhsa_next_free_vgpr 512", "  .amdhsa_next_free_sgpr 102", "  .amdhsa_accum_offset 256",
            "  .amdhsa_group_segment_fixed_size 0", "  .amdhsa_kernarg_size 80", "  .amdhsa_user_sgpr_count 2",
            "  .amdhsa_user_sgpr_kernarg_segment_ptr 1", "  .amdhsa_system_sgpr_workgroup_id_x 1",
            ".end_amdhsa_kernel", ""]
    info = f"{len(trace)} instrs, {sum(isize(t) for t in trace)} bytes, {added} auto waits, {bad} misaligned, {npad} pads, {len(errs)} lint findings"
    return "\n".join(out), errs, info


if __name__ == "__main__":
    path = sys.argv[1]
    for kv in sys.argv[2:]:
        k, val = kv.split("=")
        OPT[k] = val if k.startswith(("probe", "only", "seg", "drop", "nop")) else {"0": False, "1": True}.get(val, val.replace("+", " "))
    text, errs, info = build()
    for e in errs:
        print("HAZARD", e)
    open(path, "w").write(text)
    print(f"wrote {path}: {info}")
```

```python
import math
import struct
import sys

from asmlint import check
from sched import trun, trun2, autowait, fix_align, isize

KNAME = "standalone__modern_conv_block_convnext__vision_kernel"
OPT = dict(nt="", stamps=False, verbose=False, align=True, st_h="sc1", st_f="sc1", st_r="sc1", hops=True, margin=16, nt2="", probe=None, probewg=None, only=None, cut0=0, cut=0, cut2=120, steal=8, drain=45, seg=None, tmaj=0, nop=None, real=False, drop=None, pfslice=True, nstage=0, nstat=0, hide=3, early=6, ilv=4, hoprow=6, rpf=0, rpos=1, xch=2, stagerow=12, ln2=0, rend=1, w2m=0, prew=0, q0lag=0, slotrow=14, wlines=18, xfirst=4, rlate=0, st2late=0, dense=0)


def f32bits(x):
    return struct.unpack("<I", struct.pack("<f", x))[0]


def bf16_rne(x):
    u = f32bits(x)
    return (u + 0x7FFF + ((u >> 16) & 1)) >> 16


def bf16_val(h):
    return struct.unpack("<f", struct.pack("<I", h << 16))[0]


C1 = 2.0 * math.sqrt(2.0 / math.pi) * math.log2(math.e)
ALPHA = (C1 * 0.044715) ** (1.0 / 3.0)
CP = C1 / ALPHA
A_HI = bf16_rne(ALPHA)
A_LO = bf16_rne(ALPHA - bf16_val(A_HI))

W2L, W2E = 73728, 110592
XP, XG, XPL = 36864, 5776, 2880
ACT, AP = 36864, 208
TBL = 147456
ST = TBL
RBUF, XCH = 24576, 0
PB1, PB2, PGR, PG, PGB = 159744, 160768, 161792, 162816, 163200
ZERO = PB2 + 512
LDS_BYTES = 163584
ROWB = 43008
XBYTES = 9633792

SRD_X, SRD_DW, SRD_W1, SRD_W2, SRD_A, SRD_B, SRD_O = 20, 24, 28, 32, 36, 40, 48
sROW, sMA, sLUT2 = 44, 45, 46
sW, sPAR, sX0, sY0, sNP = 54, 55, 56, 57, 58
sT0, sT1, sT2, sT3 = 59, 60, 61, 62
sTB = 63
sCP, sONE, sINV, sLUT, sIA, sAL, sEPS, sMASK = 64, 66, 68, 70, 72, 74, 76, 78
sLO, sHI, sM1, sM2 = 10, 11, 14, 15
sS = (16, 17, 3)
sSTAMP = 80

vB2F, vL = 0, 1
vA, vB, vW2A, vW2B, vBA, vBB = 2, 3, 4, 5, 6, 7
vOFA, vRW, vOH, vOR, vGA, vR2A, vL16, vR2B = 8, 9, 10, 11, 12, 13, 14, 15
vR1, vRB, vGH = 16, 17, 18
HR = 16
ACC = {"F": 20, "H": 68}
X = (116, 132, 148)
Z, E, R, H, TMP = 164, 180, 196, 212, 220
CV, AF = 116, 20
vIDX, vTA, vXB, vXW, vXO, vAW, vBF, vBH, vBR, vPF, vB2H, vG, vB2V, vSW, vBQ = range(92, 107)
vD1 = TMP + 35

aSTG = 0
aRB = (72, 108, 144)
aW1, aW2 = 0, (24, 48)
aBt = {"F": 72, "H": 96}
aBR, aRF = 120, 168
aRF2, aRACC = 120, 144
aBIAS, aC32, aC16, aRBIAS, aXR = 192, 196, 200, 216, 224


def v(i, n=1):
    return f"v{i}" if n == 1 else f"v[{i}:{i+n-1}]"


def a(i, n=1):
    return f"a{i}" if n == 1 else f"a[{i}:{i+n-1}]"


def s(i, n=1):
    return f"s{i}" if n == 1 else f"s[{i}:{i+n-1}]"


def L(t):
    return [x.strip() for x in t.strip("\n").split("\n") if x.strip()]


class Block(list):
    def __call__(self, t):
        self.extend(L(t) if isinstance(t, str) else t)

    def stamp(self, k):
        k = str(k)
        if OPT["seg"]:
            self.append(f"MARK_{k}:")
            return
        if OPT["probe"] is not None and k == "0":
            self("s_memtime s[96:97]")
            return
        if OPT["probe"] is not None:
            names = [OPT["probe"]]
        elif OPT["stamps"]:
            names = ["0"] + (OPT["only"] or DEFAULT_STAMPS).split(",") + ["end"]
        else:
            return
        if k in names:
            self(f"{'s_memrealtime' if OPT['real'] else 's_memtime'} s[100:101]\ns_waitcnt lgkmcnt(0)\ns_mov_b32 {s(sSTAMP + names.index(k))}, s100")


DEFAULT_STAMPS = "1,18,2,3,4,5,7,8,9,T3,P7,T12,P17,P19,T19,16"


def pk(op, d, x, y, z=None, mod=""):
    t = f"v_pk_{op}_f32 {v(d, 2)}, {x}, {y}"
    if z is not None:
        t += f", {z}"
    return t + mod


def p_t(xb, zb, n=16):
    return [pk("fma", zb + i, v(xb + i, 2), v(xb + i, 2), s(sCP, 2)) for i in range(0, n, 2)]


def p_z(xb, zb, n=16):
    return [pk("mul", zb + i, v(zb + i, 2), v(xb + i, 2), mod=" neg_lo:[1,0] neg_hi:[1,0]") for i in range(0, n, 2)]


def p_add(eb, n=16):
    return [pk("add", eb + i, v(eb + i, 2), s(sONE, 2)) for i in range(0, n, 2)]


def p_mul(rb, xb, n=16):
    return [pk("mul", rb + i, v(rb + i, 2), v(xb + i, 2)) for i in range(0, n, 2)]


def t_cvt(hb, rb, n=16):
    return [f"v_cvt_pk_bf16_f32 {v(hb + i // 2)}, {v(rb + i)}, {v(rb + i + 1)}" for i in range(0, n, 2)]


def t_rcp(rb, eb, n=16):
    return [f"v_rcp_f32 {v(rb + i)}, {v(eb + i)}" for i in range(n)]


def t_exp(eb, zb, n=16):
    return [f"v_exp_f32 {v(eb + i)}, {v(zb + i)}" for i in range(n)]


def unpack(dst, src, n):
    o = []
    for i in range(n):
        o += [f"v_lshlrev_b32 {v(dst + 2 * i)}, 16, {v(src + i)}", f"v_and_b32 {v(dst + 2 * i + 1)}, {s(sHI)}, {v(src + i)}"]
    return o


M32 = "v_mfma_f32_32x32x16_bf16"
M16 = "v_mfma_f32_16x16x32_bf16"

SLOTS = ([(t, "a", i, 0) for i in range(3) for t in "FH"] + [("F", "b", i, 0) for i in range(3)]
         + [(t, "a", i, 1) for i in range(3) for t in "HF"] + [("F", "b", i, 1) for i in range(3)])
NS = len(SLOTS)


def neww(j):
    return j == 0 or SLOTS[j][1:] != SLOTS[j - 1][1:]


UNITNO = []
for _j in range(NS):
    UNITNO.append((UNITNO[-1] if UNITNO else -1) + (1 if neww(_j) else 0))


def m_fc1(j):
    xb, bb = X[j % 3], aBt[SLOTS[j][0]]
    o = [f"{M32} {v(xb, 16)}, {a(aBIAS, 4)}, {a(aC32, 4)}, 0"]
    return o + [f"{M32} {v(xb, 16)}, {a(aW1 + 4 * k, 4)}, {a(bb + 4 * k, 4)}, {v(xb, 16)}" for k in range(6)]


def m_fc2(j):
    acc, wb = ACC[SLOTS[j][0]], aW2[UNITNO[j] % 2]
    return [f"{M32} {v(acc + 16 * t, 16)}, {a(wb + 4 * (3 * k + t), 4)}, {v(H + 4 * k, 4)}, "
            + ("0" if (j == 0 and k == 0) else v(acc + 16 * t, 16)) for k in range(2) for t in range(3)]


def r_w1(j):
    _, g, i, late = SLOTS[j]
    off = 12288 * i
    o = [f"ds_read_u16 {a(aBIAS)}, {v(vBA if g == 'a' else vBB)} offset:{128 * i + 384 * late}"]
    return o + [f"ds_read_b64_tr_b16 {a(aW1 + 4 * k + 2 * jj, 2)}, {v(vA if g == 'a' else vB)} offset:{off + 2048 * k + 256 * jj}"
                for k in range(6) for jj in range(2)]


def r_w2(j):
    _, g, i, late = SLOTS[j]
    wb = aW2[UNITNO[j] % 2]
    return [f"ds_read_b64_tr_b16 {a(wb + 4 * (3 * k + t) + 2 * jj, 2)}, {v(vW2A if g == 'a' else vW2B)} "
            f"offset:{12288 * i + 3072 * k + 1536 * jj + 64 * t}" for k in range(2) for t in range(3) for jj in range(2)]


def has(j):
    return 0 <= j < NS


STOLEN = {}


def P(j, pre=(), post=(), late_x=False):
    t = p_t(X[j % 3], Z) if has(j) else []
    z = p_z(X[j % 3], Z) if has(j) else []
    m = p_mul(R, X[(j - 2) % 3])[STOLEN.get(j, 0):] if has(j - 2) else []
    d = p_add(E) if has(j - 1) else []
    core = m + d + t + z if late_x else t + m + z + d
    o = Block(list(pre) + core + list(post))
    o.stamp(f"P{j}")
    return o


def T(j, xM=(), xF=(), xVpre=(), xV=(), xneed=None, tail=12, head=(), tmajor=False, last=("@lg all",), skip_w2=False):
    f1 = m_fc1(j + 1) if has(j + 1) else []
    f2 = m_fc2(j - 2) if has(j - 2) else []
    tmajor = tmajor or bool(int(OPT["tmaj"]))
    if tmajor and f2:
        f2 = [f2[3 * k + t] for t in range(3) for k in range(2)]
    M = f1 + f2 + list(xM)
    n = len(M)
    cv = t_cvt(H, R) if has(j - 2) else []
    V = cv + list(xVpre) + (t_rcp(R, E) if has(j - 1) else []) + (t_exp(E, Z) if has(j) else []) + list(xV)
    need = dict(xneed or {})
    if f2:
        need[len(f1)] = max(need.get(len(f1), 0), 6)
        k1 = len(f1) + (1 if tmajor else 3)
        need[k1] = max(need.get(k1, 0), 10 if len(V) >= 10 else len(V))
    F = list(xF)
    nm = len(f1) + len(f2) + sum("32x32" in m for m in xM)
    hi = max(0, nm - 4)
    if has(j + 2) and neww(j + 2):
        w = r_w1(j + 2)
        F += [(1 + k, max(1 + k, hi), [w[1 + 2 * k + jj]]) for k in range(5, -1, -1) for jj in range(2)] + [(0, hi, w[:1])]
    if has(j - 1) and neww(j - 1) and not skip_w2:
        F += [(0, hi, [x]) for x in r_w2(j - 1)]
    F += [(n - 1, n - 1, [x]) for x in last]
    steal = []
    if has(j - 1):
        base = len(cv) + len(xVpre)
        xb = X[(j - 1) % 3]
        steal = [(None, [f"v_mul_f32 {v(R + i + k)}, {v(R + i + k)}, {v(xb + i + k)}" for k in range(2)], base + i + 1)
                 for i in range(0, 16, 2)]
    o, STOLEN[j + 1] = trun2(M, F, V, need, list(head), steal, int(OPT["drain"]), int(OPT["steal"]))
    o = Block(o)
    o.stamp(f"T{j}")
    return o


def gen():
    b = Block()
    nt = OPT["nt"]
    t0, t1, t2, t3, t4, t5 = range(TMP, TMP + 6)
    vTB, vZ = TMP + 20, TMP + 24

    if OPT["pfslice"]:
        pfcalc = f"s_lshr_b32 s3, s2, 3\ns_lshl_b32 s3, s3, 10\nv_and_b32 {v(t0)}, 7, v0\nv_lshl_add_u32 {v(t0)}, {v(t0)}, 7, s3"
    else:
        pfcalc = f"v_lshlrev_b32 {v(t0)}, 7, v0"
    b.stamp(0)
    b(f"""
    s_cmp_ge_u32 s2, 256
    s_cbranch_scc1 L_end
    s_load_dwordx16 s[4:19], s[0:1], 0
    s_getpc_b64 s[52:53]
    L_pc:
    {pfcalc}
    v_min_u32 {v(t0)}, L_end-L_pc, {v(t0)}
    global_load_dword {v(vPF)}, {v(t0)}, s[52:53] ;@pf
    v_lshrrev_b32 {v(t1)}, 6, v0
    v_and_b32 {v(vL)}, 63, v0
    v_readfirstlane_b32 {s(sW)}, {v(t1)}
    s_and_b32 {s(sT0)}, s2, 1
    s_lshl_b32 {s(sT0)}, {s(sT0)}, 3
    s_bfe_u32 {s(sT1)}, s2, 0x30003
    s_add_u32 {s(sT0)}, {s(sT0)}, {s(sT1)}
    s_mul_i32 {s(sX0)}, {s(sT0)}, 14
    s_bfe_u32 {s(sT0)}, s2, 0x20001
    s_lshl_b32 {s(sT0)}, {s(sT0)}, 2
    s_lshr_b32 {s(sT1)}, s2, 6
    s_add_u32 {s(sT0)}, {s(sT0)}, {s(sT1)}
    s_mul_i32 {s(sY0)}, {s(sT0)}, 14
    v_mul_u32_u24 {v(t0)}, 43, {v(vL)}
    v_lshrrev_b32 {v(t0)}, 7, {v(t0)}
    v_mul_u32_u24 {v(t1)}, 3, {v(t0)}
    v_sub_u32 {v(t1)}, {v(vL)}, {v(t1)}
    v_and_b32 {v(t2)}, 7, {v(t0)}
    v_lshrrev_b32 {v(t0)}, 3, {v(t0)}
    v_mad_u32_u24 {v(t0)}, {v(t0)}, 5, {v(t2)}
    v_cmp_le_u32 vcc, 3, {v(t2)}
    v_mul_u32_u24 {v(t0)}, 192, {v(t0)}
    s_mul_i32 {s(sT0)}, {s(sW)}, 48
    s_sub_u32 {s(sT0)}, {s(sT0)}, 576
    v_lshl_add_u32 {v(t0)}, {v(t1)}, 4, {v(t0)}
    v_add_u32 {v(t0)}, {s(sT0)}, {v(t0)}
    v_bfrev_b32 {v(t5)}, 1
    v_cndmask_b32 {v(vTB)}, {v(t5)}, {v(t0)}, vcc
    s_mul_i32 {s(sT1)}, {s(sW)}, 56
    v_add_u32 {v(t1)}, {s(sT1)}, {v(vL)}
    v_mul_u32_u24 {v(t2)}, 171, {v(t1)}
    v_lshrrev_b32 {v(t2)}, 11, {v(t2)}
    s_sub_u32 {s(sT2)}, {s(sX0)}, 2
    v_add_u32 {v(t3)}, {s(sT2)}, {v(t2)}
    v_cmp_gt_u32 vcc, 224, {v(t3)}
    v_cmp_gt_u32 {s(sMASK, 2)}, 18, {v(t2)}
    s_mul_i32 {s(sT3)}, {s(sY0)}, {ROWB}
    s_mul_i32 {s(sT2)}, {s(sT2)}, 192
    s_add_u32 {s(sT3)}, {s(sT3)}, {s(sT2)}
    s_sub_u32 {s(sT3)}, {s(sT3)}, {2 * ROWB}
    s_and_b64 vcc, vcc, {s(sMASK, 2)}
    s_and_b32 vcc_hi, vcc_hi, 0xffffff
    v_lshl_add_u32 {v(vXO)}, {v(t1)}, 4, {s(sT3)}
    s_mul_i32 {s(sTB)}, {s(sW)}, 3072
    v_cndmask_b32 {v(vXO)}, {v(t5)}, {v(vXO)}, vcc
    s_add_u32 {s(sTB)}, {s(sTB)}, {TBL}
    s_mov_b32 m0, {s(sTB)}
    s_mov_b32 {s(SRD_X + 2)}, {XBYTES}
    s_mov_b32 {s(SRD_X + 3)}, 0x20000
    s_movk_i32 {s(SRD_DW + 2)}, 4800
    s_mov_b32 {s(SRD_DW + 3)}, 0x20000
    s_mov_b32 {s(sROW)}, {ROWB}
    """)
    b.append("@@PRE")
    b("s_waitcnt lgkmcnt(0)")
    b.stamp(1)

    def srd(dst, src, nbytes):
        return L(f"""
        s_mov_b32 {s(dst)}, {s(src)}
        s_mov_b32 {s(dst + 1)}, {s(src + 1)}
        s_mov_b32 {s(dst + 2)}, {nbytes}
        s_mov_b32 {s(dst + 3)}, 0x20000
        """)
    def xload(r):
        o = [f"buffer_load_dwordx4 {a(aSTG + 4 * r, 4)}, {v(vXO)}, {s(SRD_X, 4)}, 0 offen {nt} ;@x{r}"]
        if r < 17:
            o.append(f"v_add_u32 {v(vXO)}, {s(sROW)}, {v(vXO)}")
        return o
    b(f"s_mov_b32 {s(SRD_X)}, s4\ns_mov_b32 {s(SRD_X + 1)}, s5")
    xf = int(OPT["xfirst"])
    for r in range(xf):
        b(xload(r))
    b(f"s_mov_b32 {s(SRD_DW)}, s6\ns_mov_b32 {s(SRD_DW + 1)}, s7\ns_mov_b32 exec_hi, 0xffff")
    for d in range(4):
        b(f"buffer_load_dwordx4 {v(vTB)}, {s(SRD_DW, 4)}, 0 offen lds ;@tbl")
        if d < 3:
            b(f"s_add_u32 m0, m0, 768\nv_add_u32 {v(vTB)}, 1920, {v(vTB)}")
    b("s_mov_b32 exec_hi, -1")

    u = Block()
    ka = Block()
    ka(f"""
    s_lshl_b32 s52, {s(sW)}, 3
    s_lshr_b32 s53, 0x30302818, s52
    s_and_b32 s53, s53, 0xff
    s_load_dwordx2 {s(SRD_A, 2)}, s[0:1], s53
    s_lshr_b32 s53, 0x38382010, s52
    s_and_b32 s53, s53, 0xff
    s_load_dwordx2 {s(SRD_B, 2)}, s[0:1], s53
    s_cmp_eq_u32 {s(sW)}, 0
    s_movk_i32 s53, 192
    s_cselect_b32 {s(SRD_A + 2)}, 768, s53
    s_mov_b32 {s(SRD_A + 3)}, 0x20000
    s_min_u32 {s(sMA)}, {s(sW)}, 2
    s_lshl_b32 {s(sMA)}, {s(sMA)}, 10
    s_add_u32 {s(sMA)}, {s(sMA)}, {PB1}
    s_mov_b32 {s(SRD_B + 3)}, 0x20000
    """)
    for dst, src, n in ((SRD_W1, 8, 73728), (SRD_W2, 12, 73728), (SRD_O, 18, XBYTES)):
        ka(srd(dst, src, n))
    lut = 0
    for cp, col in enumerate([0, 4, 8, 12, 1, 5, 9, 13, 2, 6, 10, 3, 7, 11]):
        lut |= col << (4 * cp)
    lut2 = 0
    for rho in range(14):
        lut2 |= (4 * ((rho & 7) >> 1) + 2 * (rho >> 3) + (rho & 1)) << (4 * rho)
    lg, lxg, lrp, lh, lq, lr, l31, lh16 = range(TMP + 8, TMP + 16)
    ka(f"""
    s_mov_b32 {s(sLO)}, 0xffff
    s_mov_b32 {s(sHI)}, 0xffff0000
    s_mul_i32 {s(sM1)}, {s(sW)}, 3072
    s_mul_i32 {s(sM2)}, {s(sW)}, 9216
    s_mul_i32 {s(sS[0])}, {s(sW)}, 18432
    s_add_u32 {s(sS[1])}, {s(sS[0])}, 5120
    s_add_u32 {s(sS[2])}, {s(sS[0])}, 10240
    """)
    zv = [f"{M32} {v(CV + 16 * i, 16)}, {v(vZ, 4)}, {v(vZ, 4)}, 0" for i in range(6)]
    za = [f"{M32} {a(192 + 16 * i, 16)}, {v(vZ, 4)}, {v(vZ, 4)}, 0" for i in range(2)]
    za += [f"{M16} {a(rb + 32, 4)}, {v(vZ, 4)}, {v(vZ, 4)}, 0" for rb in aRB]
    u(f"""
    v_mov_b64 {v(vZ, 2)}, 0
    v_mov_b64 {v(vZ + 2, 2)}, 0
    s_and_b32 {s(sPAR)}, {s(sW)}, 1
    s_xor_b32 {s(sNP)}, {s(sPAR)}, 1
    v_mul_u32_u24 {v(t3)}, 12, {v(t2)}
    v_sub_u32 {v(t3)}, {v(t1)}, {v(t3)}
    v_subrev_u32 {v(t4)}, 56, {v(vL)}
    v_cmp_gt_u32 vcc, 56, {v(vL)}
    v_mov_b32 {v(t0)}, 18
    v_lshrrev_b32 {v(lg)}, 4, {v(vL)}
    v_cndmask_b32 {v(t3)}, {v(t4)}, {v(t3)}, vcc
    v_cndmask_b32 {v(t2)}, {v(t0)}, {v(t2)}, vcc
    v_mul_u32_u24 {v(t3)}, {XG}, {v(t3)}
    v_lshl_add_u32 {v(t3)}, {v(t2)}, 3, {v(t3)}
    v_add_u32 {v(vXW)}, {XP}, {v(t3)}
    v_and_b32 {v(lxg)}, 3, {v(vL)}
    v_bfe_u32 {v(lr)}, {v(vL)}, 2, 2
    v_lshrrev_b32 {v(lh)}, 5, {v(vL)}
    v_and_b32 {v(lq)}, 1, {v(lg)}
    v_and_b32 {v(l31)}, 31, {v(vL)}
    v_lshlrev_b32 {v(vL16)}, 4, {v(vL)}
    v_lshlrev_b32 {v(lh16)}, 4, {v(lh)}
    v_mul_u32_u24 {v(vIDX)}, 0x5555, {v(lxg)}
    v_lshl_add_u32 {v(t0)}, {v(lg)}, 2, {v(lr)}
    v_sub_u32 {v(t1)}, {v(t0)}, {v(lxg)}
    v_mul_u32_u24 {v(t1)}, 48, {v(t1)}
    s_add_u32 {s(sT0)}, {s(sTB)}, 144
    v_add_u32 {v(vTA)}, {s(sT0)}, {v(t1)}
    v_mul_u32_u24 {v(t0)}, 192, {v(t0)}
    v_lshl_add_u32 {v(t0)}, {v(lxg)}, 3, {v(t0)}
    s_mul_i32 {s(sT0)}, {s(sW)}, 6144
    s_add_u32 {s(sT1)}, {s(sT0)}, {W2L + 2 * 6144}
    v_add_u32 {v(vR2A)}, {s(sT1)}, {v(t0)}
    s_add_u32 {s(sT1)}, {s(sT0)}, {W2E + 4 * 6144}
    s_add_u32 {s(sT2)}, {s(sT0)}, {W2L - 2 * 6144}
    s_cmp_lt_u32 {s(sW)}, 2
    s_cselect_b32 {s(sT1)}, {s(sT1)}, {s(sT2)}
    v_add_u32 {v(vR2B)}, {s(sT1)}, {v(t0)}
    v_add_u32 {v(vRW)}, {s(sT0)}, {v(vL16)}
    v_lshlrev_b32 {v(t0)}, 1, {v(lxg)}
    v_add_u32 {v(t0)}, {v(t0)}, {v(lg)}
    v_min_u32 {v(t0)}, 8, {v(t0)}
    v_mul_u32_u24 {v(t1)}, 640, {v(lr)}
    s_mul_i32 {s(sT0)}, {s(sW)}, {3 * XG}
    s_add_u32 {s(sT0)}, {s(sT0)}, {XP}
    v_lshl_add_u32 {v(t0)}, {v(t0)}, 4, {v(t1)}
    v_add_u32 {v(vXB)}, {s(sT0)}, {v(t0)}
    v_lshrrev_b32 {v(t0)}, 2, {v(l31)}
    v_mul_u32_u24 {v(t0)}, 768, {v(t0)}
    v_lshl_add_u32 {v(t0)}, {v(lh)}, 6, {v(t0)}
    v_lshl_add_u32 {v(vD1)}, {v(lxg)}, 4, {v(t0)}
    v_min_u32 {v(t0)}, 11, {v(vL)}
    v_mul_u32_u24 {v(t0)}, {XG - 16}, {v(t0)}
    v_min_u32 {v(t1)}, 31, {v(vL)}
    v_lshl_add_u32 {v(t0)}, {v(t1)}, 4, {v(t0)}
    v_add_u32 {v(t0)}, {XP + 2 * XPL}, {v(t0)}
    """)
    u(f"ds_write_b128 {v(t0)}, {v(vZ, 4)}")
    pF, pH, pR = TMP + 16, TMP + 17, TMP + 18
    u(f"""
    s_mov_b32 {s(sCP)}, {f32bits(CP):#x}
    s_mov_b32 {s(sCP + 1)}, {f32bits(CP):#x}
    s_mov_b32 {s(sONE)}, 1.0
    s_mov_b32 {s(sONE + 1)}, 1.0
    s_mov_b32 {s(sINV)}, {f32bits(1 / 96):#x}
    s_mov_b32 {s(sINV + 1)}, {f32bits(1 / 96):#x}
    s_mov_b32 {s(sIA)}, {f32bits(1 / ALPHA):#x}
    s_mov_b32 {s(sIA + 1)}, {f32bits(1 / ALPHA):#x}
    s_mov_b32 {s(sAL)}, {f32bits(ALPHA):#x}
    s_mov_b32 {s(sAL + 1)}, {f32bits(ALPHA):#x}
    s_mov_b32 {s(sEPS)}, {f32bits(1e-5):#x}
    s_mov_b32 {s(sEPS + 1)}, {f32bits(1e-5):#x}
    s_mov_b32 {s(sLUT)}, {lut & 0xffffffff:#x}
    s_mov_b32 {s(sLUT + 1)}, {lut >> 32:#x}
    s_mov_b32 {s(sLUT2)}, {lut2 & 0xffffffff:#x}
    s_mov_b32 {s(sLUT2 + 1)}, {lut2 >> 32:#x}
    v_lshrrev_b32 {v(t0)}, 1, {v(lg)}
    v_and_b32 {v(t0)}, {v(t0)}, {v(lg)}
    v_lshl_add_u32 {v(t1)}, {v(lg)}, 2, {v(lxg)}
    v_sub_u32 {v(t1)}, {v(t1)}, {v(t0)}
    v_mad_u32_u24 {v(t1)}, {v(lr)}, 28, {v(t1)}
    v_lshl_add_u32 {v(t2)}, {v(lxg)}, 2, {v(lg)}
    v_cmp_gt_u32 vcc, 14, {v(t2)}
    v_mul_u32_u24 {v(t1)}, {AP}, {v(t1)}
    s_mul_i32 {s(sT0)}, {s(sW)}, 48
    s_add_u32 {s(sT0)}, {s(sT0)}, {ACT}
    v_add_u32 {v(t1)}, {s(sT0)}, {v(t1)}
    v_add_u32 {v(t2)}, {ACT + 196 * AP}, {v(vL16)}
    v_cndmask_b32 {v(vAW)}, {v(t2)}, {v(t1)}, vcc
    s_lshl_b32 {s(sT0)}, {s(sW)}, 5
    v_add_u32 {v(pF)}, {s(sT0)}, {v(l31)}
    s_lshr_b32 {s(sT0)}, {s(sW)}, 1
    s_lshl_b32 {s(sT0)}, {s(sT0)}, 5
    s_add_u32 {s(sT0)}, {s(sT0)}, 128
    s_lshl_b32 {s(sT1)}, {s(sPAR)}, 4
    v_xor_b32 {v(pH)}, {s(sT1)}, {v(l31)}
    v_add_u32 {v(pH)}, {s(sT0)}, {v(pH)}
    s_add_u32 {s(sT0)}, {s(sT0)}, {s(sT1)}
    v_and_b32 {v(pR)}, 15, {v(vL)}
    v_add_u32 {v(pR)}, {s(sT0)}, {v(pR)}
    v_add_u32 {v(t1)}, {ACT}, {v(lh16)}
    s_movk_i32 {s(sT1)}, {AP}
    v_mad_u32_u24 {v(vBF)}, {v(pF)}, {s(sT1)}, {v(t1)}
    v_mad_u32_u24 {v(vBH)}, {v(pH)}, {s(sT1)}, {v(t1)}
    v_lshlrev_b32 {v(t1)}, 4, {v(lg)}
    v_add_u32 {v(t1)}, {ACT + 192 * AP}, {v(t1)}
    v_mad_u32_u24 {v(vBR)}, {v(lxg)}, {s(sT1)}, {v(t1)}
    s_mul_i32 {s(sT2)}, {s(sY0)}, 224
    s_add_u32 {s(sT2)}, {s(sT2)}, {s(sX0)}
    s_movk_i32 {s(sT3)}, 224
    """)
    for p, dst in ((pF, vOFA), (pR, vOH)):
        u(f"""
        v_mul_u32_u24 {v(t1)}, 2341, {v(p)}
        v_lshrrev_b32 {v(t1)}, 15, {v(t1)}
        v_mul_u32_u24 {v(t2)}, 14, {v(t1)}
        v_sub_u32 {v(t2)}, {v(p)}, {v(t2)}
        v_lshlrev_b32 {v(t2)}, 2, {v(t2)}
        v_lshrrev_b64 {v(t4, 2)}, {v(t2)}, {s(sLUT, 2)}
        v_and_b32 {v(t2)}, 15, {v(t4)}
        v_lshlrev_b32 {v(t1)}, 2, {v(t1)}
        v_lshrrev_b64 {v(t4, 2)}, {v(t1)}, {s(sLUT2, 2)}
        v_and_b32 {v(t1)}, 15, {v(t4)}
        v_mad_u32_u24 {v(t1)}, {v(t1)}, {s(sT3)}, {v(t2)}
        v_add_u32 {v(t1)}, {s(sT2)}, {v(t1)}
        v_mul_u32_u24 {v(dst)}, 192, {v(t1)}
        """)
    u(f"""
    s_lshl_b32 {s(sT0)}, {s(sW)}, 2
    s_lshr_b32 {s(sT0)}, 0xb73a, {s(sT0)}
    s_and_b32 {s(sT0)}, {s(sT0)}, 15
    s_add_u32 {s(sT0)}, {s(sT0)}, {s(sT2)}
    s_add_u32 {s(sT0)}, {s(sT0)}, {11 * 224}
    s_mul_i32 {s(sT0)}, {s(sT0)}, 192
    v_lshl_add_u32 {v(t1)}, {v(vL)}, 3, {s(sT0)}
    v_cmp_gt_u32 vcc, 24, {v(vL)}
    v_bfrev_b32 {v(t5)}, 1
    v_add_u32 {v(vOFA)}, {v(vOFA)}, {v(lh16)}
    v_lshl_add_u32 {v(t2)}, {v(lq)}, 5, {v(lh16)}
    v_cndmask_b32 {v(vOR)}, {v(t5)}, {v(t1)}, vcc
    v_add_u32 {v(vOH)}, {v(vOH)}, {v(t2)}
    v_lshlrev_b32 {v(t1)}, 5, {v(lh)}
    v_add_u32 {v(vGA)}, {PG}, {v(t1)}
    s_lshl_b32 {s(sT0)}, {s(sPAR)}, 6
    s_lshl_b32 {s(sT1)}, {s(sNP)}, 6
    v_lshlrev_b32 {v(t1)}, 1, {v(l31)}
    v_add_u32 {v(t1)}, {PB1}, {v(t1)}
    v_add_u32 {v(vBA)}, {s(sT0)}, {v(t1)}
    v_add_u32 {v(vBB)}, {s(sT1)}, {v(t1)}
    v_lshlrev_b32 {v(t0)}, 6, {v(lr)}
    v_lshl_add_u32 {v(t0)}, {v(lxg)}, 3, {v(t0)}
    v_lshl_add_u32 {v(t1)}, {v(lg)}, 10, {v(t0)}
    s_lshr_b32 {s(sT2)}, {s(sW)}, 1
    s_mul_i32 {s(sT2)}, {s(sT2)}, 12288
    s_lshl_b32 {s(sT0)}, {s(sPAR)}, 9
    s_lshl_b32 {s(sT1)}, {s(sNP)}, 9
    s_add_u32 {s(sT2)}, {s(sT2)}, {s(sT0)}
    v_add_u32 {v(vR1)}, {s(sT2)}, {v(t1)}
    v_lshl_add_u32 {v(t0)}, {v(lh)}, 10, {v(t0)}
    v_lshl_add_u32 {v(t0)}, {v(lq)}, 5, {v(t0)}
    v_add_u32 {v(vA)}, {s(sT0)}, {v(t0)}
    v_add_u32 {v(vB)}, {s(sT1)}, {v(t0)}
    v_and_b32 {v(t0)}, 15, {v(vL)}
    s_lshl_b32 {s(sT0)}, {s(sW)}, 6
    s_add_u32 {s(sT0)}, {s(sT0)}, {PB1}
    v_lshl_add_u32 {v(vRB)}, {v(t0)}, 1, {s(sT0)}
    v_lshl_add_u32 {v(t0)}, {v(lh)}, 2, {v(lr)}
    v_mul_u32_u24 {v(t0)}, 192, {v(t0)}
    v_and_b32 {v(t1)}, 1, {v(lxg)}
    v_lshrrev_b32 {v(t2)}, 1, {v(lxg)}
    v_lshl_add_u32 {v(t1)}, {v(t1)}, 1, {v(t2)}
    v_lshl_add_u32 {v(t0)}, {v(t1)}, 3, {v(t0)}
    v_lshl_add_u32 {v(t0)}, {v(lq)}, 5, {v(t0)}
    s_mul_i32 {s(sT0)}, {s(sPAR)}, 6144
    s_add_u32 {s(sT0)}, {s(sT0)}, {W2E}
    s_mul_i32 {s(sT1)}, {s(sNP)}, 6144
    s_add_u32 {s(sT1)}, {s(sT1)}, {W2E}
    v_add_u32 {v(vW2A)}, {s(sT0)}, {v(t0)}
    v_add_u32 {v(vW2B)}, {s(sT1)}, {v(t0)}
    v_and_b32 {v(t1)}, 1, {v(lr)}
    v_lshrrev_b32 {v(t2)}, 1, {v(lr)}
    v_lshlrev_b32 {v(t2)}, 2, {v(t2)}
    v_lshl_add_u32 {v(t1)}, {v(t1)}, 3, {v(t2)}
    v_add_u32 {v(t1)}, {v(t1)}, {v(lxg)}
    v_lshl_add_u32 {v(t1)}, {v(lq)}, 4, {v(t1)}
    v_lshlrev_b32 {v(t1)}, 1, {v(t1)}
    v_add_u32 {v(vB2F)}, {PB2}, {v(t1)}
    v_cmp_eq_u32 vcc, {s(sPAR)}, {v(vZ)}
    v_mov_b32 {v(t2)}, {ZERO}
    v_mov_b32 {v(t0)}, {A_HI:#x}
    v_cndmask_b32 {v(vB2H)}, {v(t2)}, {v(vB2F)}, vcc
    v_mov_b32 {v(t1)}, {A_LO:#x}
    v_cmp_eq_u32 vcc, 0, {v(lh)}
    v_cmp_eq_u32 {s(sMASK, 2)}, 0, {v(lg)}
    v_mov_b32 {v(t3)}, 0
    v_cndmask_b32 {v(t2)}, {v(t1)}, {v(t0)}, vcc
    v_accvgpr_write_b32 {a(aC32)}, {v(t2)}
    v_cndmask_b32 {v(t2)}, {v(t1)}, {v(t0)}, {s(sMASK, 2)}
    v_cndmask_b32 {v(t2)}, {v(t3)}, {v(t2)}, vcc
    v_mov_b32 {v(t1)}, {ZERO}
    """)
    for q in range(4):
        u(f"""
        v_cmp_eq_u32 vcc, {q}, {v(lr)}
        s_nop 1
        v_cndmask_b32 {v(t0)}, {v(t3)}, {v(t2)}, vcc
        v_cndmask_b32 {v(vBQ + q)}, {v(t1)}, {v(vBR)}, vcc
        v_accvgpr_write_b32 {a(aC16 + 4 * q)}, {v(t0)}
        """)
    u(f"""
    s_lshl_b32 {s(sT0)}, {s(sW)}, 10
    s_add_u32 {s(sT0)}, {s(sT0)}, {ST}
    v_add_u32 {v(vSW)}, {s(sT0)}, {v(vL16)}
    s_lshr_b32 {s(sT0)}, s2, 3
    s_mul_i32 {s(sT0)}, {s(sT0)}, 2304
    s_mul_i32 {s(sT1)}, {s(sPAR)}, 13
    s_add_u32 {s(sT1)}, {s(sT1)}, {s(sY0)}
    s_mul_i32 {s(sT1)}, {s(sT1)}, {ROWB}
    s_mul_i32 {s(sT2)}, {s(sX0)}, 192
    s_add_u32 {s(sT1)}, {s(sT1)}, {s(sT2)}
    s_cmp_lt_u32 {s(sW)}, 2
    s_cselect_b32 {s(sT0)}, {s(sT0)}, {s(sT1)}
    s_cselect_b32 {s(sT1)}, {int(OPT['wlines'])}, 1
    s_cselect_b32 {s(SRD_B + 2)}, {s(SRD_W1 + 2)}, {s(SRD_O + 2)}
    v_lshl_add_u32 {v(t4)}, {v(vL)}, 7, {s(sT0)}
    v_cmp_gt_u32 vcc, {s(sT1)}, {v(vL)}
    s_nop 1
    v_cndmask_b32 {v(t4)}, {v(t5)}, {v(t4)}, vcc
    """)
    zs = za + zv
    w = Block()
    for n, x in enumerate(u):
        w.append(x)
        if n >= 4 and n % 7 == 4 and zs:
            w.append(zs.pop(0))
    assert not zs
    n0 = int(OPT["cut0"])
    while next((x for x in w[n0:] if x.startswith(("s_cmp", "s_cselect"))), "s_cmp").startswith("s_cselect"):
        n0 -= 1
    k0 = b.index("@@PRE")
    b[k0:k0 + 1] = w[:n0]
    u = Block(ka + w[n0:])
    ncut = int(OPT["cut"])
    b(u[:ncut])
    b.stamp(18)
    nh = int(OPT["hide"]) * (17 - int(OPT["early"]))
    kpre = next(k for k, x in enumerate(u) if x.startswith(f"s_lshr_b32 {s(sT0)}, s2, 3"))
    k1 = kpre - nh
    hidden = u[k1:kpre]
    pre = [x.replace(s(sT0), "s52").replace(s(sT1), "s53").replace(s(sT2), "s12").replace(v(t4), v(vG)).replace(v(t5), v(vB2V))
           .replace("vcc", s(18, 2)) for x in u[kpre:]]
    mid = u[ncut:k1] + [f"v_bfrev_b32 {v(vB2V)}, 1"] + pre
    per = min((len(mid) + 11 - xf) // (12 - xf), int(OPT["ilv"]))
    for r in range(xf, 12):
        b(xload(r))
        b(mid[per * (r - xf):per * (r - xf + 1)])
    b(mid[per * (12 - xf):])
    b.stamp(2)

    hop = L(f"""
    s_mov_b64 exec, 0
    s_cmp_eq_u32 {s(sW)}, 1
    s_cbranch_scc1 L_pad3
    s_cmp_eq_u32 {s(sW)}, 2
    s_cbranch_scc1 L_pad5
    s_cmp_eq_u32 {s(sW)}, 3
    s_cbranch_scc1 L_pad7
    s_branch L_pad1
    .p2align 12
    L_body:
    s_mov_b64 exec, -1
    """)
    slots = L(f"""
    s_mov_b32 m0, {s(sMA)}
    buffer_load_dword {v(vB2V)}, {v(vG)}, {s(SRD_B, 4)}, 0 offen
    buffer_load_dwordx4 {v(vL16)}, {s(SRD_A, 4)}, 0 offen lds ;@par
    """)
    if OPT["hops"] and int(OPT["hoprow"]) < 0:
        b(hop)
    b("@lg all\n@vm tbl")
    b([f"ds_read_b64_tr_b16 {v(AF + (3 * j + t) * 4 + 2, 2)}, {v(vTA)} offset:{768 * t + 8 * j} ;@ard" for j in range(6) for t in range(3)])
    b.stamp(3)
    aexp = []
    for g in range(18):
        q = AF + 4 * g
        aexp += [f"v_and_b32 {v(q)}, {s(sLO)}, {v(q + 2)}", f"v_and_b32 {v(q + 1)}, {s(sHI)}, {v(q + 2)}",
                 f"v_and_b32 {v(q + 2)}, {s(sLO)}, {v(q + 3)}", f"v_and_b32 {v(q + 3)}, {s(sHI)}, {v(q + 3)}"]

    def w1dma(p, tag):
        o = []
        for i in range(3):
            pre = [f"s_add_u32 m0, {s(sM1)}, {12288 * p - 128 * p}", "s_nop 0"] if i == 0 else []
            o.append(pre + [f"buffer_load_dwordx4 {v(vD1)}, {s(SRD_W1, 4)}, {s(sS[i])} offen offset:{1024 * i + 128 * p} lds ;@{tag}"])
        return o

    def w2dma(late, tag):
        o = []
        for c in range(9):
            g = c >> 2
            pre = [f"s_add_u32 m0, {s(sM2)}, {(W2L if late else W2E) + 4096 * g}",
                   f"s_add_u32 {s(sT3)}, {s(sM2)}, {36864 * late + 4096 * g}"] if c % 4 == 0 else []
            o.append(pre + [f"buffer_load_dwordx4 {v(vL16)}, {s(SRD_W2, 4)}, {s(sT3)} offen offset:{1024 * (c & 3)} lds ;@{tag}"])
        return o
    early = (w1dma(0, "w1e") + w1dma(1, "w1e") + w1dma(2, "w1e"), w2dma(0, "w2e"))

    def stage(r):
        return [f"@vm x{r}", f"ds_write_b64 {v(vXW)}, {a(aSTG + 4 * r, 2)} offset:{160 * r}",
                f"ds_write_b64 {v(vXW)}, {a(aSTG + 4 * r + 2, 2)} offset:{XPL + 160 * r}"]
    w2m = int(OPT["w2m"])
    dmas = early[0] + ([] if w2m else early[1])
    nst = int(OPT["nstage"])
    ne = int(OPT["early"])
    for r in range(12 + ne, 18):
        b(xload(r))
    if ne == 0:
        b(slots)
    vq = aexp + hidden
    per = (len(vq) + 16 - ne) // (17 - ne)
    for r in range(18):
        if r == ne + 1:
            b("@lg ard")
        if r > ne:
            b(vq[per * (r - ne - 1):per * (r - ne)])
        b(stage(r))
        if r < ne:
            b(xload(12 + r))
        if ne and r == int(OPT["slotrow"]):
            b(slots)
        if OPT["hops"] and r == int(OPT["hoprow"]):
            b(hop)
        b.stamp(f"x{r}")
        if int(OPT["stagerow"]) <= r < int(OPT["stagerow"]) + nst:
            b(dmas.pop(0))
    b([f"v_lshlrev_b32 {v(vG)}, 2, {v(vL)}", f"v_add_u32 {v(vG)}, {PB2}, {v(vG)}"])
    b("@lg all\ns_barrier")
    b.stamp(4)

    S, TP, TU, S2 = TMP, TMP + 8, H, H

    def acc(k, j):
        return CV + (k * 6 + j) * 4

    def reads(j):
        return [f"ds_read_b128 {a(aRB[j % 3] + 4 * r, 4)}, {v(vXB)} offset:{(j >> 1) * XG + (j & 1) * XPL + r * 160} ;@q{j}_{r}"
                for r in range(8)]

    def part(j):
        o = []
        for k in range(4):
            d = acc(k, j)
            o += [f"v_add_f32 {v(TP + 4 * j + k)}, {v(d)}, {v(d + 1)}", f"v_add_f32 {v(TU + k)}, {v(d + 2)}, {v(d + 3)}"]
        return o + [f"v_add_f32 {v(TP + 4 * j + k)}, {v(TP + 4 * j + k)}, {v(TU + k)}" for k in range(4)]
    b(reads(0))
    nstat = int(OPT["nstat"])
    sdma = dmas[len(dmas) - nstat:]
    dmas = dmas[:len(dmas) - nstat]
    ncv = len(dmas)
    where = {(72 * q + 36) // ncv: q for q in range(ncv)}
    pend = []
    for j in range(6):
        rd = reads(j + 1) if j < 5 else []
        for n in range(12):
            t, k = n >> 2, n & 3
            if j == 0 and n == 0:
                b("@lg q0_1")
            if t == 2 and int(OPT["dense"]):
                b(f"{M16} {v(acc(k, j), 4)}, {v(AF + (3 * j + t) * 4, 4)}, {a(aRB[j % 3] + 4 * (k + 4), 4)}, {v(acc(k, j), 4)}")
            else:
                b(f"v_smfmac_f32_16x16x64_bf16 {v(acc(k, j), 4)}, {v(AF + (3 * j + t) * 4, 4)}, {a(aRB[j % 3] + 4 * (k + 2 * t), 8)}, {v(vIDX)}")
            m = 12 * j + n
            if n == 4 and 0 < j < 5:
                pend += part(j - 1)
            if j == 0 and n in (0, 1, 2, 5):
                b(f"@lg q0_{(2, 3, 4, 0, 0, 7)[n]}")
            elif n == 5:
                b(f"@lg q{j}_7")
            elif n == 11 and j < 5:
                b(f"@lg q{j + 1}_4")
            if m in where:
                b(dmas[where[m]][-1:])
                continue
            pre = [x for x in dmas[where[m + 2]][:-1] if x != "s_nop 0"] if m + 2 in where else []
            b(pre)
            if rd and (j > 0 or n >= int(OPT["q0lag"])):
                b(rd.pop(0))
            if pend:
                b(pend.pop(0))
        assert len(rd) == 0, (j, rd)
    b.stamp(5)
    g0, g1, ga = AF + 16, AF + 18, vG
    b(pend)
    U = AF + 8
    for i in range(0, 24, 2):
        for k in range(4):
            d = acc(k, 0) + i
            b(pk("mul", AF + 2 * k, v(d, 2), v(d, 2)) if i == 0 else pk("fma", AF + 2 * k, v(d, 2), v(d, 2), v(AF + 2 * k, 2)))
        if sdma and i % 4 == 0:
            b(sdma.pop(0))
    for x in sdma:
        b(x)
    for k in range(4):
        b(pk("add", U + 2 * k, v(acc(k, 4), 2), v(acc(k, 4) + 2, 2)))
    for o in (0, 2):
        b(pk("add", TP + o, v(TP + o, 2), v(TP + 4 + o, 2)))
        b(pk("add", TP + 8 + o, v(TP + 8 + o, 2), v(TP + 12 + o, 2)))
    for i in (0, 2):
        for k in range(4):
            b(pk("add", U + 2 * k, v(U + 2 * k, 2), v(acc(k, 5) + i, 2)))
    for o in (0, 2):
        b(pk("add", TP + o, v(TP + o, 2), v(TP + 8 + o, 2)))
    for k in range(4):
        b(f"v_add_f32 {v(S + 4 * (k >> 1) + 2 + (k & 1))}, {v(AF + 2 * k)}, {v(AF + 2 * k + 1)}")
        b(f"v_add_f32 {v(TP + 4 + k)}, {v(U + 2 * k)}, {v(U + 2 * k + 1)}")
    for o in (0, 2):
        b(pk("add", S + 2 * o, v(TP + o, 2), v(TP + 4 + o, 2)))
    b(f"""
    ds_write_b128 {v(vSW)}, {v(S, 4)}
    ds_write_b128 {v(vSW)}, {v(S + 4, 4)} offset:4096
    v_add_u32 {v(vSW)}, {ST}, {v(vL16)}
    @vm w1e
    @lg all
    s_barrier
    """)
    b.stamp(7)

    Q = TMP
    for ph in range(2):
        for w in range(4):
            b(f"ds_read_b128 {v(Q + 16 * ph + 4 * w, 4)}, {v(vSW)} offset:{4096 * ph + 1024 * w} ;@s{ph}")
    pre = r_w1(0) + [f"ds_read_u16 {a(aRBIAS + 2 * t)}, {v(vB2H)} offset:{64 * t}" for t in range(3)]
    pre += [f"ds_read_b32 {v(g0 + 1)}, {v(ga)} offset:{PGR - PB2}", f"ds_read_b32 {v(g1 + 1)}, {v(ga)}"]
    prew = int(OPT["prew"])
    if not prew:
        b(pre[:7])
    qs = (Q, Q + 16)

    def fin(q):
        return ([pk("add", q + o, v(q + o, 2), v(q + 4 + o, 2)) for o in (0, 2)]
                + [pk("add", q + 8 + o, v(q + 8 + o, 2), v(q + 12 + o, 2)) for o in (0, 2)]
                + [pk("add", q + o, v(q + o, 2), v(q + 8 + o, 2)) for o in (0, 2)]
                + [pk("mul", q + o, v(q + o, 2), s(sINV, 2)) for o in (0, 2)]
                + [pk("fma", q + 2, v(q, 2), v(q, 2), v(q + 2, 2), " neg_lo:[1,0,0] neg_hi:[1,0,0]"),
                   f"v_max_f32 {v(q + 2)}, 0, {v(q + 2)}", f"v_max_f32 {v(q + 3)}, 0, {v(q + 3)}",
                   pk("add", q + 2, v(q + 2, 2), s(sEPS, 2)),
                   f"v_rsq_f32 {v(q + 2)}, {v(q + 2)}", f"v_rsq_f32 {v(q + 3)}, {v(q + 3)}", "s_nop 0",
                   pk("mul", q + 2, v(q + 2, 2), s(sAL, 2)),
                   pk("mul", q, v(q, 2), v(q + 2, 2), mod=" neg_lo:[1,0] neg_hi:[1,0]")])
    f0, f1 = fin(qs[0]), fin(qs[1])
    if int(OPT["ln2"]):
        b("@lg s0")
        b(f0)
        b("@lg s1")
        b(pre[7:])
        f1 = [x for x in f1 if x != "s_nop 0"]
    else:
        b("@lg s0")
        b(f0[:4])
        b("@lg s1")
        if not prew:
            b(pre[7:])
        b(f1[:4])
        b([x for p in zip(f0[4:], f1[4:]) for x in p if x != "s_nop 0"])
        f1 = []
    for k in range(4):
        ph, sx = k >> 1, k & 1
        base, q = CV + 24 * k, qs[ph]
        for jj in range(3):
            for i in range(8 * jj, 8 * jj + 8, 2):
                b(pk("fma", base + i, v(base + i, 2), v(q + 2, 2), v(q, 2), f" op_sel:[0,{sx},{sx}] op_sel_hi:[1,{sx},{sx}]"))
                if f1 and i % 4 == 0:
                    b(f1.pop(0))
            for i in range(4 * jj, 4 * jj + 4):
                b(f"v_cvt_pk_bf16_f32 {v(base + 4 * jj + i)}, {v(base + 2 * i)}, {v(base + 2 * i + 1)}")
                if f1 and i % 4 == 1:
                    b(f1.pop(0))
            b(f"ds_write_b128 {v(vAW)}, {v(base + 8 * jj, 4)} offset:{(8 * ph + sx) * 14 * AP + 16 * jj}")
            if prew:
                b(pre[:2])
                pre = pre[2:]
        assert k == 0 or not f1
    b("@lg all\ns_barrier")
    b.stamp(8)

    b([f"ds_read_b128 {a(aBt['F'] + 4 * k, 4)}, {v(vBF)} offset:{32 * k} ;@bf{k}" for k in range(6)])
    b([f"ds_read_b128 {a(aBt['H'] + 4 * k, 4)}, {v(vBH)} offset:{32 * k}" for k in range(6)])
    late = w1dma(3, "wl") + w1dma(4, "wl") + w1dma(5, "wl") + w2dma(1, "wl")
    M = m_fc1(0)
    bq = [f"ds_read_b128 {a(aBR + 12 * q + 4 * k, 4)}, {v(vBQ + q)} offset:{64 * k}" for q in range(4) for k in range(3)]
    F = [(k, k, [f"@lg bf{k}"]) for k in range(6)]
    if w2m:
        F += [(2 * k, 2 * k, early[1][k]) for k in range(4)]
    else:
        F += [(1 + k, 1 + k, bq[2 * k:2 * k + 2]) for k in range(6)]
    gt = unpack(g0, g0 + 1, 1) + unpack(g1, g1 + 1, 1) + L(f"""
    v_lshlrev_b32 {v(ga)}, 3, {v(vL)}
    v_mul_f32 {v(g1)}, {v(g1)}, {v(g0)}
    v_mul_f32 {v(g1 + 1)}, {v(g1 + 1)}, {v(g0 + 1)}
    v_mul_f32 {v(g0)}, {s(sIA)}, {v(g0)}
    v_mul_f32 {v(g0 + 1)}, {s(sIA)}, {v(g0 + 1)}
    v_add_u32 {v(ga)}, {PG}, {v(ga)}
    """)
    b(trun(M, F, gt, need={}, tail=0))
    b(f"""
    s_mov_b32 exec_hi, 0xffff
    ds_write_b64 {v(ga)}, {v(g0, 2)}
    ds_write_b64 {v(ga)}, {v(g1, 2)} offset:{PGB - PG}
    s_mov_b32 exec_hi, -1
    s_nop 5
    """)
    b.stamp(9)
    b(P(0))
    hinit = [f"{M32} {v(ACC['H'] + 16 * t, 16)}, {a(aRBIAS + 2 * t, 4)}, {a(aC32, 4)}, 0" for t in range(3)]
    if w2m:
        b(T(0, head=("@lg all",), xF=[(k, k, early[1][4 + k]) for k in range(5)] + [(0, 1, [x]) for x in bq[:3]], last=()))
        b(P(1, late_x=True))
        b(T(1, head=("@lg all",), xM=hinit, xF=[(0, 6, [x]) for x in bq[3:]], skip_w2=True))
        b(P(2))
        F_ = [(k // 3, k // 3, [x + " ;@w20"]) for k, x in enumerate(r_w2(0))] + [(6, 6, ["@lg w20"])]
        b(T(2, head=("@vm w2e", "s_barrier"), xF=F_ + [(4 + 2 * k, 4 + 2 * k, late[k]) for k in range(4)]))
        b(P(3))
        b(T(3, xF=[(1 + 2 * k, 1 + 2 * k, late[4 + k]) for k in range(5)]))
        b(P(4))
        b(T(4, xF=[(1 + 2 * k, 1 + 2 * k, late[9 + k]) for k in range(5)]))
    else:
        b(T(0, xF=[(0, 0, ["@vm w2e", "@lg all", "s_barrier"]), (2, 2, late[0]), (4, 4, late[1]), (6, 6, late[2])], last=()))
        b(P(1, late_x=True))
        b(T(1, head=("@lg all",), xM=hinit, xF=[(1 + 2 * k, 1 + 2 * k, late[3 + k]) for k in range(4)]))
        b(P(2))
        b(T(2, xF=[(1 + 3 * k, 1 + 3 * k, late[7 + k]) for k in range(4)]))
        b(P(3))
        b(T(3, xF=[(1 + 3 * k, 1 + 3 * k, late[11 + k]) for k in range(4)]))
        b(P(4))
        b(T(4, xF=[(4 * k, 4 * k, late[15 + k]) for k in range(3)]))

    XR, WK = TMP + 4, TMP + 12

    def r_fc1(m):
        rd = [f"ds_read_u16 {a(aRBIAS + 2 * mh)}, {v(vRB)} offset:{256 * m + 32 * mh}" for mh in range(2)]
        rd += [f"ds_read_b64_tr_b16 {a(aRF + 12 * mh + 4 * k + 2 * jj, 2)}, {v(vR1)} offset:{24576 * m + 4096 * k + 256 * jj + 32 * mh} ;@rf"
               for k in range(3) for mh in range(2) for jj in range(2)]
        x = a(aXR + 4 * (m >> 1), 4) if int(OPT["rlate"]) else v(XR + 4 * (m >> 1), 4)
        M = []
        for mh in range(2):
            q = (2 * m + mh) & 3
            M.append(f"{M16} {x}, {a(aRBIAS + 2 * mh, 4)}, {a(aC16 + 4 * q, 4)}, {x if q else '0'}")
            M += [f"{M16} {x}, {a(aRF + 12 * mh + 4 * k, 4)}, {a(aBR + 12 * q + 4 * k, 4)}, {x}" for k in range(3)]
        return M, [(0, 8, [x_]) for x_ in rd] + [(12, 12, ["@lg rf"])]

    bumpA = [f"v_subrev_u32 {v(vW2A)}, 36864, {v(vW2A)}", f"v_add_u32 {v(vA)}, 36864, {v(vA)}"]
    bumpB = [f"v_subrev_u32 {v(vW2B)}, 36864, {v(vW2B)}", f"v_add_u32 {v(vB)}, 36864, {v(vB)}"]
    f1pos, g0 = (((5, 7, 8), 9), ((6, 8, 10), 11))[int(OPT["rpos"])]
    rlate = int(OPT["rlate"])
    if rlate:
        g0 = 99
    for j in range(5, 15):
        post = {g0: p_t(XR, WK, 8) + p_z(XR, WK, 8), g0 + 1: p_add(WK, 8), g0 + 2: p_mul(WK, XR, 8)}.get(j, [])
        b(P(j, post=post))
        if j == 7:
            b("@vm wl\ns_barrier")
        M_, F_ = r_fc1(f1pos.index(j)) if j in f1pos else ([], [])
        if j == 5 and w2m:
            F_ = F_ + [(2 * k, 2 * k, late[14 + k]) for k in range(4)]
        V_ = {g0: t_exp(WK, WK, 8), g0 + 1: t_rcp(WK, WK, 8), g0 + 2: t_cvt(HR, WK, 8)}.get(j, [])
        b(T(j, xM=M_, xF=F_, xV=V_ + {6: bumpA, 11: bumpB}.get(j, [])))
    HX, FX, RX = TMP, TMP + 12, vA
    AH, AFc = ACC["H"], ACC["F"]
    nt2 = OPT["nt2"]
    hx = [f"buffer_load_dwordx4 {v(HX + 4 * t, 4)}, {v(vOH)}, {s(SRD_X, 4)}, 0 offen offset:{64 * t} {nt2} ;@hx" for t in range(3)]
    fx = [f"buffer_load_dwordx4 {v(FX + 4 * c, 4)}, {v(vOFA)}, {s(SRD_X, 4)}, 0 offen offset:{32 * c} {nt2} ;@fx" for c in range(6)]
    vXR_, vGH_, vOFB = vBA, vW2A, vBB
    b(P(15))
    F_ = [(1 + 2 * t, 1 + 2 * t, [hx[t]]) for t in range(3)] + [(7 + 2 * c, 7 + 2 * c, fx[c:c + 1]) for c in range(3)]
    F_ += [(0, 0, [f"s_xor_b32 {s(sT0)}, {s(sW)}, 1"]), (1, 1, [f"s_mul_i32 {s(sT0)}, {s(sT0)}, 6144"])]
    V_ = L(f"""
    v_add_u32 {v(vXR_)}, {s(sT0)}, {v(vL16)}
    v_bfe_u32 {v(vGH_)}, {v(vL)}, 4, 1
    v_lshl_add_u32 {v(vGH_)}, {v(vGH_)}, 6, {v(vGA)}
    """)
    odd = lambda c: AH + 16 * (c >> 1) + 8 + 4 * (c & 1)
    sw = [f"v_permlane16_swap_b32 {v(AH + 16 * t + i)}, {v(AH + 16 * t + 8 + i)}" for t in range(3) for i in range(8)]
    xw = [f"ds_write_b128 {v(vRW)}, {v(odd(c), 4)} offset:{XCH + 1024 * c} ;@xw" for c in range(6)]
    xr = [f"ds_read_b128 {v(odd(c), 4)}, {v(vXR_)} offset:{XCH + 1024 * c}" for c in range(6)]
    if int(OPT["xch"]):
        b(T(15, xF=F_, xV=V_ + sw[:8], tmajor=True))
        b(P(16, pre=xw[:1], post=sw[8:16] + xw[1:2] + sw[16:]))
        if int(OPT["xch"]) == 1:
            F_ = [(2 * c, 2 * c, xw[2 + c:3 + c]) for c in range(4)] + [(8, 8, ["@lg xw", "s_barrier"])]
            F_ += [(9 + c // 2, 9 + c // 2, xr[c:c + 1]) for c in range(6)]
        else:
            F_ = [(c, c, xw[2 + c:3 + c]) for c in range(4)] + [(7, 7, ["@lg xw", "s_barrier"])]
            F_ += [(8 + c // 2, 8 + c // 2, xr[c:c + 1]) for c in range(6)]
    else:
        b(T(15, xF=F_, xV=V_))
        b(P(16, post=sw))
        F_ = [(c, c, xw[c:c + 1]) for c in range(6)] + [(7, 7, ["@lg xw", "s_barrier"])]
        F_ += [(8 + c // 2, 8 + c // 2, xr[c:c + 1]) for c in range(6)]
    F_ += [(6, 6, [f"ds_read_u16 {a(aRBIAS + 2 * t)}, {v(vB2F)} offset:{64 * t}" for t in range(3)])]
    F_ += [(6, 6, fx[3:4]), (11, 11, fx[4:5]), (12, 12, [f"buffer_load_dwordx2 {v(RX, 2)}, {v(vOR)}, {s(SRD_X, 4)}, 0 offen"])]
    b(T(16, xF=F_, last=(), xV=[f"v_add_u32 {v(vOFB)}, 32, {v(vOFA)}"]))
    post = [pk("add", AH + 16 * t + i, v(AH + 16 * t + i, 2), v(AH + 16 * t + 8 + i, 2)) for t in range(3) for i in range(0, 8, 2)]
    b(P(17, post=["@lg all"] + post))
    finit = [f"{M32} {v(AFc + 16 * t, 16)}, {a(aRBIAS + 2 * t, 4)}, {a(aC32, 4)}, {v(AFc + 16 * t, 16)}" for t in range(3)]
    GH = (X[0], X[0] + 8, Z)
    GF = (AH, AH + 16, X[0], X[0] + 8, Z + 8, R)
    gh = [f"ds_read_b128 {v(GH[t] + 4 * k, 4)}, {v(vGH_)} offset:{128 * t + 16 * k}" for t in range(3) for k in range(2)]
    gf = [f"ds_read_b128 {v(GF[c] + 4 * k, 4)}, {v(vGA)} offset:{64 * c + 16 * k}" for c in range(6) for k in range(2)]

    rend = int(OPT["rend"])
    RFB = (aRF, aRF2, aBt["H"], aW1) if rend else (aRF, aRF2, aRF, aRF2)

    def rw2(q):
        fb = RFB[q]
        o = []
        for jj in range(2 - (q >> 1)):
            tau = q + 4 * jj
            reg, off = ((vR2A, 24576), (vR2B, 0), (vR2A, 0))[tau >> 1]
            o += [f"ds_read_b64_tr_b16 {a(fb + 4 * c + 2 * jj, 2)}, {v(reg)} offset:{off + 3072 * (tau & 1) + 32 * c}" for c in range(6)]
        return o
    F_ = [(0, 5, [x]) for x in gh[:4] + ([] if rlate else rw2(0))] + [(2, 2, fx[5:6]), (0, 0, ["@vm hx"])]
    V_ = [x for t in range(3) for x in unpack(AH + 16 * t + 8, HX + 4 * t, 4)]
    b(T(17, xM=finit, xF=F_, xV=V_))
    hf = lambda t: [pk("fma", AH + 16 * t + 8 + i, v(AH + 16 * t + i, 2), v(GH[t] + i, 2), v(AH + 16 * t + 8 + i, 2)) for i in range(0, 8, 2)]
    hc = lambda t: t_cvt(HX + 4 * t, AH + 16 * t + 8, 8)
    hs = [f"buffer_store_dwordx4 {v(HX + 4 * t, 4)}, {v(vOH)}, {s(SRD_O, 4)}, 0 offen offset:{64 * t} {OPT['st_h']}" for t in range(3)]
    b(P(18, post=hf(0) + hf(1)))
    UF = (X[1], X[1] + 8, X[2], X[2] + 8, E, E + 8)
    F_ = [(0, 3, [x]) for x in gh[4:] + gf[:10] + (rw2(2) if rend and not rlate else [])] + [(3, 3, hs[:1]), (5, 5, hs[1:2]), (3, 3, ["@vm fx"])]
    V_ = unpack(UF[0], FX, 4) + unpack(UF[1], FX + 4, 4) + [f"v_permlane16_swap_b32 {v(vOFA)}, {v(vOFB)}"]
    b(T(18, xF=F_, xVpre=hc(0) + hc(1), xV=V_, xneed={3: 12, 5: 16}))
    b(P(19, post=hf(2)))

    def ftail(t, plain):
        o = []
        for c in (2 * t, 2 * t + 1):
            if plain:
                o += [f"v_fma_f32 {v(UF[c] + i)}, {v(AFc + 8 * c + i)}, {v(GF[c] + i)}, {v(UF[c] + i)}" for i in range(8)]
            else:
                o += [pk("fma", UF[c] + i, v(AFc + 8 * c + i, 2), v(GF[c] + i, 2), v(UF[c] + i, 2)) for i in range(0, 8, 2)]
        for c in (2 * t, 2 * t + 1):
            o += t_cvt(FX + 4 * c, UF[c], 8)
        o += [f"v_permlane16_swap_b32 {v(FX + 8 * t + i)}, {v(FX + 8 * t + 4 + i)}" for i in range(4)]
        return o

    def fst(t):
        return [f"buffer_store_dwordx4 {v(FX + 8 * t + 4 * k, 4)}, {v((vOFA, vOFB)[k])}, {s(SRD_O, 4)}, 0 offen offset:{64 * t} {OPT['st_f']}"
                for k in range(2)]
    V_ = hc(2) + [x for c in range(2, 6) for x in unpack(UF[c], FX + 4 * c, 4)][:20] + ftail(0, True)
    F_ = [(1, 1, gf[10:]), (2, 2, hs[2:3])] + [(0, 3, [x]) for x in ([] if rlate else rw2(1) + (rw2(3) if rend else []))]
    b(T(19, xF=F_, xV=V_, xneed={2: 12}, tmajor=True))
    b(fst(0))
    b.stamp("f0")
    b([x for c in range(2, 6) for x in unpack(UF[c], FX + 4 * c, 4)][20:])
    for t in (1, 2):
        b(ftail(t, False))
        if t == 1 or not rend or (rlate and not int(OPT["st2late"])):
            b(fst(t))
        b.stamp(f"f{t}")

    HQ, RA = AH, AH + 16
    PP, PGm, PBm, RU, ra, rg, rw = X[0], X[1], X[1] + 4, X[1] + 8, X[2], X[2] + 1, X[2] + 2
    hq = lambda q: HR if q == 0 else HQ + 4 * (q - 1)
    if rlate:
        XE, WE = Z, R
        st2 = fst(2) if int(OPT["st2late"]) else ["s_nop 0", "s_nop 0"]
        b(rw2(0))
        b([f"v_accvgpr_read_b32 {v(XE + i)}, {a(aXR + i)}" for i in range(8)])
        b(p_t(XE, WE, 8) + p_z(XE, WE, 8))
        b([x for x in st2[:1] if x != "s_nop 0"] + rw2(1))
        b(t_exp(WE, WE, 8) + p_add(WE, 8))
        b([x for x in st2[1:] if x != "s_nop 0"] + rw2(2) + rw2(3))
        b(t_rcp(WE, WE, 8) + p_mul(WE, XE, 8) + t_cvt(HR, WE, 8) + ["@lg all", "s_nop 0"])
    rrot = [f"v_mov_b32_dpp {v(hq(q) + i)}, {v(HR + i)} row_ror:{16 - 4 * q} row_mask:0xf bank_mask:0xf" for q in (1, 2, 3) for i in range(4)]
    M_ = [f"{M16} {v(RA + 4 * c, 4)}, {a(RFB[q] + 4 * c, 4)}, {v(hq(q), 4)}, {v(RA + 4 * c, 4) if q else '0'}"
          for q in range(4) for c in range(6)]
    r2, r3 = rw2(2), rw2(3)
    F_ = [(c, c, r2[c:c + 1]) for c in range(6)] + [(6 + c, 6 + c, r3[c:c + 1]) for c in range(6)]
    if rend:
        F_ = [] if rlate else [(3, 3, fst(2)[:1]), (9, 9, fst(2)[1:])]
    F_ += [(0, 0, [f"s_mul_i32 {s(sT0)}, {s(sW)}, 2176"]), (1, 1, [f"s_lshl_b32 {s(sT1)}, {s(sW)}, 4"])]
    F_ += [(20, 20, [f"ds_read_b128 {v(PGm, 4)}, {v(rg)}"]), (21, 21, [f"ds_read_b128 {v(PBm, 4)}, {v(rg)} offset:{PGB - PG}"])]
    V_ = rrot + L(f"""
    v_min_u32 {v(rg)}, 23, {v(vL)}
    v_and_b32 {v(ra)}, 3, {v(rg)}
    v_mul_u32_u24 {v(ra)}, 272, {v(ra)}
    v_bfe_u32 {v(rw)}, {v(rg)}, 2, 2
    v_lshl_add_u32 {v(ra)}, {v(rw)}, 6, {v(ra)}
    v_lshrrev_b32 {v(rw)}, 4, {v(rg)}
    v_mul_u32_u24 {v(rw)}, 1088, {v(rw)}
    v_add3_u32 {v(ra)}, {v(ra)}, {v(rw)}, {s(sT1)}
    v_lshlrev_b32 {v(rg)}, 4, {v(rg)}
    v_add_u32 {v(rg)}, {PG}, {v(rg)}
    v_lshrrev_b32 {v(rw)}, 4, {v(vL)}
    v_add_u32 {v(rw)}, {v(rw)}, {v(vL)}
    v_lshl_add_u32 {v(rw)}, {v(rw)}, 4, {s(sT0)}
    """) + unpack(RU, RX, 2)
    o, _ = trun2(M_, F_, V_, {6: 6, 12: 10, 18: 14, 20: 22}, [], drain=8)
    b(o)
    b("s_nop 1")
    for c in (1, 2, 3, 5):
        for i in range(4):
            b(f"v_mov_b32_dpp {v(RA + 16 * (c >> 2) + i)}, {v(RA + 4 * c + i)} row_shr:{4 * (c & 3)} row_mask:0xf bank_mask:{1 << (c & 3):#x}")
        if c == 3:
            b(f"ds_write_b128 {v(rw)}, {v(RA, 4)} offset:{RBUF}")
    b(f"ds_write_b128 {v(rw)}, {v(RA + 16, 4)} offset:{RBUF + 1088}")
    b("@lg all\ns_barrier")
    b([f"ds_read_b128 {v(PP + 4 * w, 4)}, {v(ra)} offset:{RBUF + 2176 * w}" for w in range(4)])
    b([pk("add", RU + i, v(RU + i, 2), v(PBm + i, 2)) for i in (0, 2)])
    b([pk("add", PP + i, v(PP + i, 2), v(PP + 4 + i, 2)) for i in (0, 2)])
    b([pk("add", PP + 8 + i, v(PP + 8 + i, 2), v(PP + 12 + i, 2)) for i in (0, 2)])
    b([pk("add", PP + i, v(PP + i, 2), v(PP + 8 + i, 2)) for i in (0, 2)])
    b([pk("fma", RU + i, v(PP + i, 2), v(PGm + i, 2), v(RU + i, 2)) for i in (0, 2)])
    b(t_cvt(RX, RU, 4))
    b(f"buffer_store_dwordx2 {v(RX, 2)}, {v(vOR)}, {s(SRD_O, 4)}, 0 offen {OPT['st_r']}")
    b.stamp(16)
    if OPT["probe"] is not None:
        b("@vm all")
        b.stamp("end")
        b(f"s_sub_u32 s98, {s(sSTAMP)}, s96" if OPT["probe"] != "0" else "s_mov_b32 s98, 0")
        if OPT["probewg"] is not None:
            b(f"s_cmp_eq_u32 s2, {OPT['probewg']}\ns_cselect_b32 s98, s98, 0")
        b("""
        s_lshl_b32 s98, s98, 3
        s_add_u32 s98, s98, 40000
        L_diag:
        s_memtime s[100:101]
        s_waitcnt lgkmcnt(0)
        s_sub_u32 s100, s100, s96
        s_cmp_lt_u32 s100, s98
        s_cbranch_scc1 L_diag
        """)
    elif OPT["stamps"]:
        b("@vm all")
        b.stamp("end")
        b(f"""
        s_load_dwordx2 s[4:5], s[0:1], 72
        s_waitcnt lgkmcnt(0)
        s_lshl_b32 s6, s2, 2
        s_add_u32 s6, s6, {s(sW)}
        s_lshl_b32 s6, s6, 7
        v_mov_b32 v0, s6
        s_mov_b32 s6, 0x100000
        s_mov_b32 s7, 0x20000
        s_mov_b64 exec, 1
        """)
        for k in range(1, 20):
            kk = min(k, len((OPT["only"] or DEFAULT_STAMPS).split(",")) + 1)
            b(f"s_sub_u32 s8, {s(sSTAMP + kk)}, {s(sSTAMP)}" if not OPT["real"] else
              (f"s_mov_b32 s8, {s(sSTAMP + min(k - 1, kk + 5 if kk == k else kk))}" if k < 19 else "s_getreg_b32 s8, hwreg(HW_REG_XCC_ID, 0, 4)"))
            b("v_mov_b32 v2, s8")
            b(f"buffer_store_dword v2, v0, s[4:7], 0 offen offset:{4 * k}")
        b("@vm all")
    return b


def add_pads(lines, start):
    out = []
    off = None
    n = 0
    for t in lines:
        if t == "L_body:":
            off = start
            out.append(f".fill {start // 4}, 4, 0xbf800000")
        if off is not None and not t.endswith(":") and not t.startswith("."):
            sz = isize(t)
            if off + sz > 4096 * (n + 1):
                while off < 4096 * (n + 1):
                    out.append("s_nop 0")
                    off += 4
                n += 1
                out.append(f"L_pad{n}:")
                out.append(f"s_cbranch_execz {'L_pad%d' % (n + 1) if n % 2 else 'L_body'}")
                out.append("s_nop 0")
                off += 8
            off += sz
        out.append(t)
    return out, n, off + 4


def loop_segment(b):
    import re
    m0, m1 = OPT["seg"].split(",")
    i0, i1 = b.index(f"MARK_{m0}:"), b.index(f"MARK_{m1}:")
    body = [x for x in b[i0:i1] if not x.startswith("MARK_")]
    if OPT["drop"]:
        body = [x for x in body if not re.search(OPT["drop"], x)]
    if OPT["nop"]:
        body = [("s_nop 1" if re.match("v_exp|v_rcp", x) else "s_nop 0") if re.search(OPT["nop"], x) else x for x in body]
    o = Block([x for x in b[:i0] if not x.startswith("MARK_")])
    o("@vm all\n@lg all\ns_barrier\ns_mov_b32 s99, 0\ns_memrealtime s[94:95]\ns_memtime s[96:97]\ns_waitcnt lgkmcnt(0)\n.p2align 6\nL_seg:")
    o(body * 5)
    o("""
    s_add_u32 s99, s99, 1
    s_cmp_lt_u32 s99, 5
    s_cbranch_scc1 L_seg
    @vm all
    s_memtime s[100:101]
    s_memrealtime s[92:93]
    s_load_dwordx2 s[4:5], s[0:1], 72
    s_waitcnt lgkmcnt(0)
    s_sub_u32 s8, s100, s96
    s_sub_u32 s9, s92, s94
    s_lshl_b32 s6, s2, 2
    """ + f"s_add_u32 s6, s6, {s(sW)}" + """
    s_lshl_b32 s6, s6, 7
    v_mov_b32 v0, s6
    s_mov_b32 s6, 0x100000
    s_mov_b32 s7, 0x20000
    s_mov_b64 exec, 1
    v_mov_b32 v2, s8
    buffer_store_dword v2, v0, s[4:7], 0 offen offset:4
    v_mov_b32 v3, s9
    buffer_store_dword v3, v0, s[4:7], 0 offen offset:8
    @vm all
    """)
    return o


def build():
    b = gen()
    if OPT["seg"]:
        b = loop_segment(b)
    lines, added = autowait(b, OPT["verbose"])
    bad = 0
    if OPT["align"]:
        lines, bad = fix_align(lines)
    npad = 0
    if OPT["hops"]:
        margin = int(OPT["margin"])
        start = next(x for x in range(4096 - 64, -64, -64) if 4096 - margin - 64 < add_pads(lines, x)[2] % 4096 <= 4096 - margin or x == 0)
        lines, npad, _ = add_pads(lines, start)
        for k in range(npad + 1, 9):
            lines = [t.replace(f"L_pad{k}", "L_body") if not t.endswith(":") else t for t in lines]
    trace = [t for t in lines if not t.endswith(":") and not t.startswith(".")]
    errs = check(trace)
    hdr = open("standalone__modern_conv_block_convnext__vision.s.ref").read().split("\n")
    head = [l for l in hdr if l.startswith(";") and "@launch" not in l and "Override" not in l and "grid=ceil" not in l]
    head += """;
; Fused ConvNeXt block: one workgroup (4 waves) per 14x14 pixel tile, tiles grouped per XCD for L2 halo reuse.
;   1. x tile (18x18, zero padded) staged in LDS as 4-channel planes; weights streamed to LDS by DMA.
;   2. depthwise 5x5 conv as sparse MFMA with Toeplitz filter fragments (each wave owns 24 channels).
;   3. layer norm: per-wave partial sums exchanged through LDS, normalised activations written as bf16.
;   4. MLP per wave: a 32-pixel tile over all hidden units, a shared 32-pixel tile over half of them and a
;      4-pixel remainder over a quarter; tanh-GELU as x * rcp(1 + exp2(-x * (c + x * x))) on pre-scaled x.
;   5. out = x + gamma * (h + b2), stored in 64-byte segments.""".split("\n")
    out = head + [f"; @launch grid=(256,1,1) block=(256,1,1) lds={LDS_BYTES}",
                  '.amdgcn_target "amdgcn-amd-amdhsa--gfx950"', ".text", f".globl {KNAME}", ".p2align 12", ".p2align 8",
                  f".type {KNAME},@function", f"{KNAME}:"]
    for t in lines:
        out.append(t if t.endswith(":") or t.startswith(".") else "    " + t)
    out += ["L_end:", "    s_endpgm", '.section .rodata,"a"', ".p2align 6", f".amdhsa_kernel {KNAME}",
            "  .amdhsa_next_free_vgpr 512", "  .amdhsa_next_free_sgpr 102", "  .amdhsa_accum_offset 256",
            "  .amdhsa_group_segment_fixed_size 0", "  .amdhsa_kernarg_size 80", "  .amdhsa_user_sgpr_count 2",
            "  .amdhsa_user_sgpr_kernarg_segment_ptr 1", "  .amdhsa_system_sgpr_workgroup_id_x 1",
            ".end_amdhsa_kernel", ""]
    info = f"{len(trace)} instrs, {sum(isize(t) for t in trace)} bytes, {added} auto waits, {bad} misaligned, {npad} pads, {len(errs)} lint findings"
    return "\n".join(out), errs, info


if __name__ == "__main__":
    path = sys.argv[1]
    for kv in sys.argv[2:]:
        k, val = kv.split("=")
        OPT[k] = val if k.startswith(("probe", "only", "seg", "drop", "nop")) else {"0": False, "1": True}.get(val, val.replace("+", " "))
    text, errs, info = build()
    for e in errs:
        print("HAZARD", e)
    open(path, "w").write(text)
    print(f"wrote {path}: {info}")
```

```python
import math
import struct
import sys

from asmlint import check
from sched import trun, trun2, autowait, fix_align, isize

KNAME = "standalone__modern_conv_block_convnext__vision_kernel"
OPT = dict(nt="", stamps=False, verbose=False, align=True, st_h="sc1", st_f="sc1", st_r="sc1", hops=True, margin=16, nt2="", probe=None, probewg=None, only=None, cut0=0, cut=0, cut2=120, steal=8, drain=45, seg=None, tmaj=0, nop=None, real=False, drop=None, pfslice=True, nstage=0, nstat=0, hide=0, early=6, ilv=4, hoprow=6, rpf=0, rpos=1, xch=2, stagerow=12, ln2=0, rend=1, w2m=0, prew=0, q0lag=0, slotrow=14, wlines=18, xfirst=4, allx=0, rlate=0, st2late=0, dense=0)


def f32bits(x):
    return struct.unpack("<I", struct.pack("<f", x))[0]


def bf16_rne(x):
    u = f32bits(x)
    return (u + 0x7FFF + ((u >> 16) & 1)) >> 16


def bf16_val(h):
    return struct.unpack("<f", struct.pack("<I", h << 16))[0]


C1 = 2.0 * math.sqrt(2.0 / math.pi) * math.log2(math.e)
ALPHA = (C1 * 0.044715) ** (1.0 / 3.0)
CP = C1 / ALPHA
A_HI = bf16_rne(ALPHA)
A_LO = bf16_rne(ALPHA - bf16_val(A_HI))

W2L, W2E = 73728, 110592
XP, XG, XPL = 36864, 5776, 2880
ACT, AP = 36864, 208
TBL = 147456
ST = TBL
RBUF, XCH = 24576, 0
PB1, PB2, PGR, PG, PGB = 159744, 160768, 161792, 162816, 163200
ZERO = PB2 + 512
LDS_BYTES = 163584
ROWB = 43008
XBYTES = 9633792

SRD_X, SRD_DW, SRD_W1, SRD_W2, SRD_A, SRD_B, SRD_O = 20, 24, 28, 32, 36, 40, 48
sROW, sMA, sLUT2 = 44, 45, 46
sW, sPAR, sX0, sY0, sNP = 54, 55, 56, 57, 58
sT0, sT1, sT2, sT3 = 59, 60, 61, 62
sTB = 63
sCP, sONE, sINV, sLUT, sIA, sAL, sEPS, sMASK = 64, 66, 68, 70, 72, 74, 76, 78
sLO, sHI, sM1, sM2 = 10, 11, 14, 15
sS = (16, 17, 3)
sSTAMP = 80

vB2F, vL = 0, 1
vA, vB, vW2A, vW2B, vBA, vBB = 2, 3, 4, 5, 6, 7
vOFA, vRW, vOH, vOR, vGA, vR2A, vL16, vR2B = 8, 9, 10, 11, 12, 13, 14, 15
vR1, vRB, vGH = 16, 17, 18
HR = 16
ACC = {"F": 20, "H": 68}
X = (116, 132, 148)
Z, E, R, H, TMP = 164, 180, 196, 212, 220
CV, AF = 116, 20
vIDX, vTA, vXB, vXW, vXO, vAW, vBF, vBH, vBR, vPF, vB2H, vG, vB2V, vSW, vBQ = range(92, 107)
vD1 = TMP + 35

aSTG = 0
aRB = (72, 108, 144)
aW1, aW2 = 0, (24, 48)
aBt = {"F": 72, "H": 96}
aBR, aRF = 120, 168
aRF2, aRACC = 120, 144
aBIAS, aC32, aC16, aRBIAS, aXR = 192, 196, 200, 216, 224


def v(i, n=1):
    return f"v{i}" if n == 1 else f"v[{i}:{i+n-1}]"


def a(i, n=1):
    return f"a{i}" if n == 1 else f"a[{i}:{i+n-1}]"


def s(i, n=1):
    return f"s{i}" if n == 1 else f"s[{i}:{i+n-1}]"


def L(t):
    return [x.strip() for x in t.strip("\n").split("\n") if x.strip()]


class Block(list):
    def __call__(self, t):
        self.extend(L(t) if isinstance(t, str) else t)

    def stamp(self, k):
        k = str(k)
        if OPT["seg"]:
            self.append(f"MARK_{k}:")
            return
        if OPT["probe"] is not None and k == "0":
            self("s_memtime s[96:97]")
            return
        if OPT["probe"] is not None:
            names = [OPT["probe"]]
        elif OPT["stamps"]:
            names = ["0"] + (OPT["only"] or DEFAULT_STAMPS).split(",") + ["end"]
        else:
            return
        if k in names:
            self(f"{'s_memrealtime' if OPT['real'] else 's_memtime'} s[100:101]\ns_waitcnt lgkmcnt(0)\ns_mov_b32 {s(sSTAMP + names.index(k))}, s100")


DEFAULT_STAMPS = "1,18,2,3,4,5,7,8,9,T3,P7,T12,P17,P19,T19,16"


def pk(op, d, x, y, z=None, mod=""):
    t = f"v_pk_{op}_f32 {v(d, 2)}, {x}, {y}"
    if z is not None:
        t += f", {z}"
    return t + mod


def p_t(xb, zb, n=16):
    return [pk("fma", zb + i, v(xb + i, 2), v(xb + i, 2), s(sCP, 2)) for i in range(0, n, 2)]


def p_z(xb, zb, n=16):
    return [pk("mul", zb + i, v(zb + i, 2), v(xb + i, 2), mod=" neg_lo:[1,0] neg_hi:[1,0]") for i in range(0, n, 2)]


def p_add(eb, n=16):
    return [pk("add", eb + i, v(eb + i, 2), s(sONE, 2)) for i in range(0, n, 2)]


def p_mul(rb, xb, n=16):
    return [pk("mul", rb + i, v(rb + i, 2), v(xb + i, 2)) for i in range(0, n, 2)]


def t_cvt(hb, rb, n=16):
    return [f"v_cvt_pk_bf16_f32 {v(hb + i // 2)}, {v(rb + i)}, {v(rb + i + 1)}" for i in range(0, n, 2)]


def t_rcp(rb, eb, n=16):
    return [f"v_rcp_f32 {v(rb + i)}, {v(eb + i)}" for i in range(n)]


def t_exp(eb, zb, n=16):
    return [f"v_exp_f32 {v(eb + i)}, {v(zb + i)}" for i in range(n)]


def unpack(dst, src, n):
    o = []
    for i in range(n):
        o += [f"v_lshlrev_b32 {v(dst + 2 * i)}, 16, {v(src + i)}", f"v_and_b32 {v(dst + 2 * i + 1)}, {s(sHI)}, {v(src + i)}"]
    return o


M32 = "v_mfma_f32_32x32x16_bf16"
M16 = "v_mfma_f32_16x16x32_bf16"

SLOTS = ([(t, "a", i, 0) for i in range(3) for t in "FH"] + [("F", "b", i, 0) for i in range(3)]
         + [(t, "a", i, 1) for i in range(3) for t in "HF"] + [("F", "b", i, 1) for i in range(3)])
NS = len(SLOTS)


def neww(j):
    return j == 0 or SLOTS[j][1:] != SLOTS[j - 1][1:]


UNITNO = []
for _j in range(NS):
    UNITNO.append((UNITNO[-1] if UNITNO else -1) + (1 if neww(_j) else 0))


def m_fc1(j):
    xb, bb = X[j % 3], aBt[SLOTS[j][0]]
    o = [f"{M32} {v(xb, 16)}, {a(aBIAS, 4)}, {a(aC32, 4)}, 0"]
    return o + [f"{M32} {v(xb, 16)}, {a(aW1 + 4 * k, 4)}, {a(bb + 4 * k, 4)}, {v(xb, 16)}" for k in range(6)]


def m_fc2(j):
    acc, wb = ACC[SLOTS[j][0]], aW2[UNITNO[j] % 2]
    return [f"{M32} {v(acc + 16 * t, 16)}, {a(wb + 4 * (3 * k + t), 4)}, {v(H + 4 * k, 4)}, "
            + ("0" if (j == 0 and k == 0) else v(acc + 16 * t, 16)) for k in range(2) for t in range(3)]


def r_w1(j):
    _, g, i, late = SLOTS[j]
    off = 12288 * i
    o = [f"ds_read_u16 {a(aBIAS)}, {v(vBA if g == 'a' else vBB)} offset:{128 * i + 384 * late}"]
    return o + [f"ds_read_b64_tr_b16 {a(aW1 + 4 * k + 2 * jj, 2)}, {v(vA if g == 'a' else vB)} offset:{off + 2048 * k + 256 * jj}"
                for k in range(6) for jj in range(2)]


def r_w2(j):
    _, g, i, late = SLOTS[j]
    wb = aW2[UNITNO[j] % 2]
    return [f"ds_read_b64_tr_b16 {a(wb + 4 * (3 * k + t) + 2 * jj, 2)}, {v(vW2A if g == 'a' else vW2B)} "
            f"offset:{12288 * i + 3072 * k + 1536 * jj + 64 * t}" for k in range(2) for t in range(3) for jj in range(2)]


def has(j):
    return 0 <= j < NS


STOLEN = {}


def P(j, pre=(), post=(), late_x=False):
    t = p_t(X[j % 3], Z) if has(j) else []
    z = p_z(X[j % 3], Z) if has(j) else []
    m = p_mul(R, X[(j - 2) % 3])[STOLEN.get(j, 0):] if has(j - 2) else []
    d = p_add(E) if has(j - 1) else []
    core = m + d + t + z if late_x else t + m + z + d
    o = Block(list(pre) + core + list(post))
    o.stamp(f"P{j}")
    return o


def T(j, xM=(), xF=(), xVpre=(), xV=(), xneed=None, tail=12, head=(), tmajor=False, last=("@lg all",), skip_w2=False):
    f1 = m_fc1(j + 1) if has(j + 1) else []
    f2 = m_fc2(j - 2) if has(j - 2) else []
    tmajor = tmajor or bool(int(OPT["tmaj"]))
    if tmajor and f2:
        f2 = [f2[3 * k + t] for t in range(3) for k in range(2)]
    M = f1 + f2 + list(xM)
    n = len(M)
    cv = t_cvt(H, R) if has(j - 2) else []
    V = cv + list(xVpre) + (t_rcp(R, E) if has(j - 1) else []) + (t_exp(E, Z) if has(j) else []) + list(xV)
    need = dict(xneed or {})
    if f2:
        need[len(f1)] = max(need.get(len(f1), 0), 6)
        k1 = len(f1) + (1 if tmajor else 3)
        need[k1] = max(need.get(k1, 0), 10 if len(V) >= 10 else len(V))
    F = list(xF)
    nm = len(f1) + len(f2) + sum("32x32" in m for m in xM)
    hi = max(0, nm - 4)
    if has(j + 2) and neww(j + 2):
        w = r_w1(j + 2)
        F += [(1 + k, max(1 + k, hi), [w[1 + 2 * k + jj]]) for k in range(5, -1, -1) for jj in range(2)] + [(0, hi, w[:1])]
    if has(j - 1) and neww(j - 1) and not skip_w2:
        F += [(0, hi, [x]) for x in r_w2(j - 1)]
    F += [(n - 1, n - 1, [x]) for x in last]
    steal = []
    if has(j - 1):
        base = len(cv) + len(xVpre)
        xb = X[(j - 1) % 3]
        steal = [(None, [f"v_mul_f32 {v(R + i + k)}, {v(R + i + k)}, {v(xb + i + k)}" for k in range(2)], base + i + 1)
                 for i in range(0, 16, 2)]
    o, STOLEN[j + 1] = trun2(M, F, V, need, list(head), steal, int(OPT["drain"]), int(OPT["steal"]))
    o = Block(o)
    o.stamp(f"T{j}")
    return o


def gen():
    b = Block()
    nt = OPT["nt"]
    t0, t1, t2, t3, t4, t5 = range(TMP, TMP + 6)
    vTB, vZ = TMP + 20, TMP + 24

    if OPT["pfslice"]:
        pfcalc = f"s_lshr_b32 s3, s2, 3\ns_lshl_b32 s3, s3, 10\nv_and_b32 {v(t0)}, 7, v0\nv_lshl_add_u32 {v(t0)}, {v(t0)}, 7, s3"
    else:
        pfcalc = f"v_lshlrev_b32 {v(t0)}, 7, v0"
    b.stamp(0)
    b(f"""
    s_cmp_ge_u32 s2, 256
    s_cbranch_scc1 L_end
    s_load_dwordx16 s[4:19], s[0:1], 0
    s_getpc_b64 s[52:53]
    L_pc:
    {pfcalc}
    v_min_u32 {v(t0)}, L_end-L_pc, {v(t0)}
    global_load_dword {v(vPF)}, {v(t0)}, s[52:53] ;@pf
    v_lshrrev_b32 {v(t1)}, 6, v0
    v_and_b32 {v(vL)}, 63, v0
    v_readfirstlane_b32 {s(sW)}, {v(t1)}
    s_and_b32 {s(sT0)}, s2, 1
    s_lshl_b32 {s(sT0)}, {s(sT0)}, 3
    s_bfe_u32 {s(sT1)}, s2, 0x30003
    s_add_u32 {s(sT0)}, {s(sT0)}, {s(sT1)}
    s_mul_i32 {s(sX0)}, {s(sT0)}, 14
    s_bfe_u32 {s(sT0)}, s2, 0x20001
    s_lshl_b32 {s(sT0)}, {s(sT0)}, 2
    s_lshr_b32 {s(sT1)}, s2, 6
    s_add_u32 {s(sT0)}, {s(sT0)}, {s(sT1)}
    s_mul_i32 {s(sY0)}, {s(sT0)}, 14
    v_mul_u32_u24 {v(t0)}, 43, {v(vL)}
    v_lshrrev_b32 {v(t0)}, 7, {v(t0)}
    v_mul_u32_u24 {v(t1)}, 3, {v(t0)}
    v_sub_u32 {v(t1)}, {v(vL)}, {v(t1)}
    v_and_b32 {v(t2)}, 7, {v(t0)}
    v_lshrrev_b32 {v(t0)}, 3, {v(t0)}
    v_mad_u32_u24 {v(t0)}, {v(t0)}, 5, {v(t2)}
    v_cmp_le_u32 vcc, 3, {v(t2)}
    v_mul_u32_u24 {v(t0)}, 192, {v(t0)}
    s_mul_i32 {s(sT0)}, {s(sW)}, 48
    s_sub_u32 {s(sT0)}, {s(sT0)}, 576
    v_lshl_add_u32 {v(t0)}, {v(t1)}, 4, {v(t0)}
    v_add_u32 {v(t0)}, {s(sT0)}, {v(t0)}
    v_bfrev_b32 {v(t5)}, 1
    v_cndmask_b32 {v(vTB)}, {v(t5)}, {v(t0)}, vcc
    s_mul_i32 {s(sT1)}, {s(sW)}, 56
    v_add_u32 {v(t1)}, {s(sT1)}, {v(vL)}
    v_mul_u32_u24 {v(t2)}, 171, {v(t1)}
    v_lshrrev_b32 {v(t2)}, 11, {v(t2)}
    s_sub_u32 {s(sT2)}, {s(sX0)}, 2
    v_add_u32 {v(t3)}, {s(sT2)}, {v(t2)}
    v_cmp_gt_u32 vcc, 224, {v(t3)}
    v_cmp_gt_u32 {s(sMASK, 2)}, 18, {v(t2)}
    s_mul_i32 {s(sT3)}, {s(sY0)}, {ROWB}
    s_mul_i32 {s(sT2)}, {s(sT2)}, 192
    s_add_u32 {s(sT3)}, {s(sT3)}, {s(sT2)}
    s_sub_u32 {s(sT3)}, {s(sT3)}, {2 * ROWB}
    s_and_b64 vcc, vcc, {s(sMASK, 2)}
    s_and_b32 vcc_hi, vcc_hi, 0xffffff
    v_lshl_add_u32 {v(vXO)}, {v(t1)}, 4, {s(sT3)}
    s_mul_i32 {s(sTB)}, {s(sW)}, 3072
    v_cndmask_b32 {v(vXO)}, {v(t5)}, {v(vXO)}, vcc
    s_add_u32 {s(sTB)}, {s(sTB)}, {TBL}
    s_mov_b32 m0, {s(sTB)}
    s_mov_b32 {s(SRD_X + 2)}, {XBYTES}
    s_mov_b32 {s(SRD_X + 3)}, 0x20000
    s_movk_i32 {s(SRD_DW + 2)}, 4800
    s_mov_b32 {s(SRD_DW + 3)}, 0x20000
    s_mov_b32 {s(sROW)}, {ROWB}
    """)
    b.append("@@PRE")
    b("s_waitcnt lgkmcnt(0)")
    b.stamp(1)

    def srd(dst, src, nbytes):
        return L(f"""
        s_mov_b32 {s(dst)}, {s(src)}
        s_mov_b32 {s(dst + 1)}, {s(src + 1)}
        s_mov_b32 {s(dst + 2)}, {nbytes}
        s_mov_b32 {s(dst + 3)}, 0x20000
        """)
    def xload(r):
        o = [f"buffer_load_dwordx4 {a(aSTG + 4 * r, 4)}, {v(vXO)}, {s(SRD_X, 4)}, 0 offen {nt} ;@x{r}"]
        if r < 17:
            o.append(f"v_add_u32 {v(vXO)}, {s(sROW)}, {v(vXO)}")
        return o
    b(f"s_mov_b32 {s(SRD_X)}, s4\ns_mov_b32 {s(SRD_X + 1)}, s5")
    xf = int(OPT["xfirst"])
    for r in range(xf):
        b(xload(r))
    b(f"s_mov_b32 {s(SRD_DW)}, s6\ns_mov_b32 {s(SRD_DW + 1)}, s7\ns_mov_b32 exec_hi, 0xffff")
    for d in range(4):
        b(f"buffer_load_dwordx4 {v(vTB)}, {s(SRD_DW, 4)}, 0 offen lds ;@tbl")
        if d < 3:
            b(f"s_add_u32 m0, m0, 768\nv_add_u32 {v(vTB)}, 1920, {v(vTB)}")
    b("s_mov_b32 exec_hi, -1")

    u = Block()
    ka = Block()
    ka(f"""
    s_lshl_b32 s52, {s(sW)}, 3
    s_lshr_b32 s53, 0x30302818, s52
    s_and_b32 s53, s53, 0xff
    s_load_dwordx2 {s(SRD_A, 2)}, s[0:1], s53
    s_lshr_b32 s53, 0x38382010, s52
    s_and_b32 s53, s53, 0xff
    s_load_dwordx2 {s(SRD_B, 2)}, s[0:1], s53
    s_cmp_eq_u32 {s(sW)}, 0
    s_movk_i32 s53, 192
    s_cselect_b32 {s(SRD_A + 2)}, 768, s53
    s_mov_b32 {s(SRD_A + 3)}, 0x20000
    s_min_u32 {s(sMA)}, {s(sW)}, 2
    s_lshl_b32 {s(sMA)}, {s(sMA)}, 10
    s_add_u32 {s(sMA)}, {s(sMA)}, {PB1}
    s_mov_b32 {s(SRD_B + 3)}, 0x20000
    """)
    for dst, src, n in ((SRD_W1, 8, 73728), (SRD_W2, 12, 73728), (SRD_O, 18, XBYTES)):
        ka(srd(dst, src, n))
    lut = 0
    for cp, col in enumerate([0, 4, 8, 12, 1, 5, 9, 13, 2, 6, 10, 3, 7, 11]):
        lut |= col << (4 * cp)
    lut2 = 0
    for rho in range(14):
        lut2 |= (4 * ((rho & 7) >> 1) + 2 * (rho >> 3) + (rho & 1)) << (4 * rho)
    lg, lxg, lrp, lh, lq, lr, l31, lh16 = range(TMP + 8, TMP + 16)
    ka(f"""
    s_mov_b32 {s(sLO)}, 0xffff
    s_mov_b32 {s(sHI)}, 0xffff0000
    s_mul_i32 {s(sM1)}, {s(sW)}, 3072
    s_mul_i32 {s(sM2)}, {s(sW)}, 9216
    s_mul_i32 {s(sS[0])}, {s(sW)}, 18432
    s_add_u32 {s(sS[1])}, {s(sS[0])}, 5120
    s_add_u32 {s(sS[2])}, {s(sS[0])}, 10240
    """)
    zv = [f"{M32} {v(CV + 16 * i, 16)}, {v(vZ, 4)}, {v(vZ, 4)}, 0" for i in range(6)]
    za = [f"{M32} {a(192 + 16 * i, 16)}, {v(vZ, 4)}, {v(vZ, 4)}, 0" for i in range(2)]
    za += [f"{M16} {a(rb + 32, 4)}, {v(vZ, 4)}, {v(vZ, 4)}, 0" for rb in aRB]
    u(f"""
    v_mov_b64 {v(vZ, 2)}, 0
    v_mov_b64 {v(vZ + 2, 2)}, 0
    s_and_b32 {s(sPAR)}, {s(sW)}, 1
    s_xor_b32 {s(sNP)}, {s(sPAR)}, 1
    v_mul_u32_u24 {v(t3)}, 12, {v(t2)}
    v_sub_u32 {v(t3)}, {v(t1)}, {v(t3)}
    v_subrev_u32 {v(t4)}, 56, {v(vL)}
    v_cmp_gt_u32 vcc, 56, {v(vL)}
    v_mov_b32 {v(t0)}, 18
    v_lshrrev_b32 {v(lg)}, 4, {v(vL)}
    v_cndmask_b32 {v(t3)}, {v(t4)}, {v(t3)}, vcc
    v_cndmask_b32 {v(t2)}, {v(t0)}, {v(t2)}, vcc
    v_mul_u32_u24 {v(t3)}, {XG}, {v(t3)}
    v_lshl_add_u32 {v(t3)}, {v(t2)}, 3, {v(t3)}
    v_add_u32 {v(vXW)}, {XP}, {v(t3)}
    v_and_b32 {v(lxg)}, 3, {v(vL)}
    v_bfe_u32 {v(lr)}, {v(vL)}, 2, 2
    v_lshrrev_b32 {v(lh)}, 5, {v(vL)}
    v_and_b32 {v(lq)}, 1, {v(lg)}
    v_and_b32 {v(l31)}, 31, {v(vL)}
    v_lshlrev_b32 {v(vL16)}, 4, {v(vL)}
    v_lshlrev_b32 {v(lh16)}, 4, {v(lh)}
    v_mul_u32_u24 {v(vIDX)}, 0x5555, {v(lxg)}
    v_lshl_add_u32 {v(t0)}, {v(lg)}, 2, {v(lr)}
    v_sub_u32 {v(t1)}, {v(t0)}, {v(lxg)}
    v_mul_u32_u24 {v(t1)}, 48, {v(t1)}
    s_add_u32 {s(sT0)}, {s(sTB)}, 144
    v_add_u32 {v(vTA)}, {s(sT0)}, {v(t1)}
    v_mul_u32_u24 {v(t0)}, 192, {v(t0)}
    v_lshl_add_u32 {v(t0)}, {v(lxg)}, 3, {v(t0)}
    s_mul_i32 {s(sT0)}, {s(sW)}, 6144
    s_add_u32 {s(sT1)}, {s(sT0)}, {W2L + 2 * 6144}
    v_add_u32 {v(vR2A)}, {s(sT1)}, {v(t0)}
    s_add_u32 {s(sT1)}, {s(sT0)}, {W2E + 4 * 6144}
    s_add_u32 {s(sT2)}, {s(sT0)}, {W2L - 2 * 6144}
    s_cmp_lt_u32 {s(sW)}, 2
    s_cselect_b32 {s(sT1)}, {s(sT1)}, {s(sT2)}
    v_add_u32 {v(vR2B)}, {s(sT1)}, {v(t0)}
    v_add_u32 {v(vRW)}, {s(sT0)}, {v(vL16)}
    v_lshlrev_b32 {v(t0)}, 1, {v(lxg)}
    v_add_u32 {v(t0)}, {v(t0)}, {v(lg)}
    v_min_u32 {v(t0)}, 8, {v(t0)}
    v_mul_u32_u24 {v(t1)}, 640, {v(lr)}
    s_mul_i32 {s(sT0)}, {s(sW)}, {3 * XG}
    s_add_u32 {s(sT0)}, {s(sT0)}, {XP}
    v_lshl_add_u32 {v(t0)}, {v(t0)}, 4, {v(t1)}
    v_add_u32 {v(vXB)}, {s(sT0)}, {v(t0)}
    v_lshrrev_b32 {v(t0)}, 2, {v(l31)}
    v_mul_u32_u24 {v(t0)}, 768, {v(t0)}
    v_lshl_add_u32 {v(t0)}, {v(lh)}, 6, {v(t0)}
    v_lshl_add_u32 {v(vD1)}, {v(lxg)}, 4, {v(t0)}
    v_min_u32 {v(t0)}, 11, {v(vL)}
    v_mul_u32_u24 {v(t0)}, {XG - 16}, {v(t0)}
    v_min_u32 {v(t1)}, 31, {v(vL)}
    v_lshl_add_u32 {v(t0)}, {v(t1)}, 4, {v(t0)}
    v_add_u32 {v(t0)}, {XP + 2 * XPL}, {v(t0)}
    """)
    u(f"ds_write_b128 {v(t0)}, {v(vZ, 4)}")
    pF, pH, pR = TMP + 16, TMP + 17, TMP + 18
    u(f"""
    s_mov_b32 {s(sCP)}, {f32bits(CP):#x}
    s_mov_b32 {s(sCP + 1)}, {f32bits(CP):#x}
    s_mov_b32 {s(sONE)}, 1.0
    s_mov_b32 {s(sONE + 1)}, 1.0
    s_mov_b32 {s(sINV)}, {f32bits(1 / 96):#x}
    s_mov_b32 {s(sINV + 1)}, {f32bits(1 / 96):#x}
    s_mov_b32 {s(sIA)}, {f32bits(1 / ALPHA):#x}
    s_mov_b32 {s(sIA + 1)}, {f32bits(1 / ALPHA):#x}
    s_mov_b32 {s(sAL)}, {f32bits(ALPHA):#x}
    s_mov_b32 {s(sAL + 1)}, {f32bits(ALPHA):#x}
    s_mov_b32 {s(sEPS)}, {f32bits(1e-5):#x}
    s_mov_b32 {s(sEPS + 1)}, {f32bits(1e-5):#x}
    s_mov_b32 {s(sLUT)}, {lut & 0xffffffff:#x}
    s_mov_b32 {s(sLUT + 1)}, {lut >> 32:#x}
    s_mov_b32 {s(sLUT2)}, {lut2 & 0xffffffff:#x}
    s_mov_b32 {s(sLUT2 + 1)}, {lut2 >> 32:#x}
    v_lshrrev_b32 {v(t0)}, 1, {v(lg)}
    v_and_b32 {v(t0)}, {v(t0)}, {v(lg)}
    v_lshl_add_u32 {v(t1)}, {v(lg)}, 2, {v(lxg)}
    v_sub_u32 {v(t1)}, {v(t1)}, {v(t0)}
    v_mad_u32_u24 {v(t1)}, {v(lr)}, 28, {v(t1)}
    v_lshl_add_u32 {v(t2)}, {v(lxg)}, 2, {v(lg)}
    v_cmp_gt_u32 vcc, 14, {v(t2)}
    v_mul_u32_u24 {v(t1)}, {AP}, {v(t1)}
    s_mul_i32 {s(sT0)}, {s(sW)}, 48
    s_add_u32 {s(sT0)}, {s(sT0)}, {ACT}
    v_add_u32 {v(t1)}, {s(sT0)}, {v(t1)}
    v_add_u32 {v(t2)}, {ACT + 196 * AP}, {v(vL16)}
    v_cndmask_b32 {v(vAW)}, {v(t2)}, {v(t1)}, vcc
    s_lshl_b32 {s(sT0)}, {s(sW)}, 5
    v_add_u32 {v(pF)}, {s(sT0)}, {v(l31)}
    s_lshr_b32 {s(sT0)}, {s(sW)}, 1
    s_lshl_b32 {s(sT0)}, {s(sT0)}, 5
    s_add_u32 {s(sT0)}, {s(sT0)}, 128
    s_lshl_b32 {s(sT1)}, {s(sPAR)}, 4
    v_xor_b32 {v(pH)}, {s(sT1)}, {v(l31)}
    v_add_u32 {v(pH)}, {s(sT0)}, {v(pH)}
    s_add_u32 {s(sT0)}, {s(sT0)}, {s(sT1)}
    v_and_b32 {v(pR)}, 15, {v(vL)}
    v_add_u32 {v(pR)}, {s(sT0)}, {v(pR)}
    v_add_u32 {v(t1)}, {ACT}, {v(lh16)}
    s_movk_i32 {s(sT1)}, {AP}
    v_mad_u32_u24 {v(vBF)}, {v(pF)}, {s(sT1)}, {v(t1)}
    v_mad_u32_u24 {v(vBH)}, {v(pH)}, {s(sT1)}, {v(t1)}
    v_lshlrev_b32 {v(t1)}, 4, {v(lg)}
    v_add_u32 {v(t1)}, {ACT + 192 * AP}, {v(t1)}
    v_mad_u32_u24 {v(vBR)}, {v(lxg)}, {s(sT1)}, {v(t1)}
    s_mul_i32 {s(sT2)}, {s(sY0)}, 224
    s_add_u32 {s(sT2)}, {s(sT2)}, {s(sX0)}
    s_movk_i32 {s(sT3)}, 224
    """)
    for p, dst in ((pF, vOFA), (pR, vOH)):
        u(f"""
        v_mul_u32_u24 {v(t1)}, 2341, {v(p)}
        v_lshrrev_b32 {v(t1)}, 15, {v(t1)}
        v_mul_u32_u24 {v(t2)}, 14, {v(t1)}
        v_sub_u32 {v(t2)}, {v(p)}, {v(t2)}
        v_lshlrev_b32 {v(t2)}, 2, {v(t2)}
        v_lshrrev_b64 {v(t4, 2)}, {v(t2)}, {s(sLUT, 2)}
        v_and_b32 {v(t2)}, 15, {v(t4)}
        v_lshlrev_b32 {v(t1)}, 2, {v(t1)}
        v_lshrrev_b64 {v(t4, 2)}, {v(t1)}, {s(sLUT2, 2)}
        v_and_b32 {v(t1)}, 15, {v(t4)}
        v_mad_u32_u24 {v(t1)}, {v(t1)}, {s(sT3)}, {v(t2)}
        v_add_u32 {v(t1)}, {s(sT2)}, {v(t1)}
        v_mul_u32_u24 {v(dst)}, 192, {v(t1)}
        """)
    u(f"""
    s_lshl_b32 {s(sT0)}, {s(sW)}, 2
    s_lshr_b32 {s(sT0)}, 0xb73a, {s(sT0)}
    s_and_b32 {s(sT0)}, {s(sT0)}, 15
    s_add_u32 {s(sT0)}, {s(sT0)}, {s(sT2)}
    s_add_u32 {s(sT0)}, {s(sT0)}, {11 * 224}
    s_mul_i32 {s(sT0)}, {s(sT0)}, 192
    v_lshl_add_u32 {v(t1)}, {v(vL)}, 3, {s(sT0)}
    v_cmp_gt_u32 vcc, 24, {v(vL)}
    v_bfrev_b32 {v(t5)}, 1
    v_add_u32 {v(vOFA)}, {v(vOFA)}, {v(lh16)}
    v_lshl_add_u32 {v(t2)}, {v(lq)}, 5, {v(lh16)}
    v_cndmask_b32 {v(vOR)}, {v(t5)}, {v(t1)}, vcc
    v_add_u32 {v(vOH)}, {v(vOH)}, {v(t2)}
    v_lshlrev_b32 {v(t1)}, 5, {v(lh)}
    v_add_u32 {v(vGA)}, {PG}, {v(t1)}
    s_lshl_b32 {s(sT0)}, {s(sPAR)}, 6
    s_lshl_b32 {s(sT1)}, {s(sNP)}, 6
    v_lshlrev_b32 {v(t1)}, 1, {v(l31)}
    v_add_u32 {v(t1)}, {PB1}, {v(t1)}
    v_add_u32 {v(vBA)}, {s(sT0)}, {v(t1)}
    v_add_u32 {v(vBB)}, {s(sT1)}, {v(t1)}
    v_lshlrev_b32 {v(t0)}, 6, {v(lr)}
    v_lshl_add_u32 {v(t0)}, {v(lxg)}, 3, {v(t0)}
    v_lshl_add_u32 {v(t1)}, {v(lg)}, 10, {v(t0)}
    s_lshr_b32 {s(sT2)}, {s(sW)}, 1
    s_mul_i32 {s(sT2)}, {s(sT2)}, 12288
    s_lshl_b32 {s(sT0)}, {s(sPAR)}, 9
    s_lshl_b32 {s(sT1)}, {s(sNP)}, 9
    s_add_u32 {s(sT2)}, {s(sT2)}, {s(sT0)}
    v_add_u32 {v(vR1)}, {s(sT2)}, {v(t1)}
    v_lshl_add_u32 {v(t0)}, {v(lh)}, 10, {v(t0)}
    v_lshl_add_u32 {v(t0)}, {v(lq)}, 5, {v(t0)}
    v_add_u32 {v(vA)}, {s(sT0)}, {v(t0)}
    v_add_u32 {v(vB)}, {s(sT1)}, {v(t0)}
    v_and_b32 {v(t0)}, 15, {v(vL)}
    s_lshl_b32 {s(sT0)}, {s(sW)}, 6
    s_add_u32 {s(sT0)}, {s(sT0)}, {PB1}
    v_lshl_add_u32 {v(vRB)}, {v(t0)}, 1, {s(sT0)}
    v_lshl_add_u32 {v(t0)}, {v(lh)}, 2, {v(lr)}
    v_mul_u32_u24 {v(t0)}, 192, {v(t0)}
    v_and_b32 {v(t1)}, 1, {v(lxg)}
    v_lshrrev_b32 {v(t2)}, 1, {v(lxg)}
    v_lshl_add_u32 {v(t1)}, {v(t1)}, 1, {v(t2)}
    v_lshl_add_u32 {v(t0)}, {v(t1)}, 3, {v(t0)}
    v_lshl_add_u32 {v(t0)}, {v(lq)}, 5, {v(t0)}
    s_mul_i32 {s(sT0)}, {s(sPAR)}, 6144
    s_add_u32 {s(sT0)}, {s(sT0)}, {W2E}
    s_mul_i32 {s(sT1)}, {s(sNP)}, 6144
    s_add_u32 {s(sT1)}, {s(sT1)}, {W2E}
    v_add_u32 {v(vW2A)}, {s(sT0)}, {v(t0)}
    v_add_u32 {v(vW2B)}, {s(sT1)}, {v(t0)}
    v_and_b32 {v(t1)}, 1, {v(lr)}
    v_lshrrev_b32 {v(t2)}, 1, {v(lr)}
    v_lshlrev_b32 {v(t2)}, 2, {v(t2)}
    v_lshl_add_u32 {v(t1)}, {v(t1)}, 3, {v(t2)}
    v_add_u32 {v(t1)}, {v(t1)}, {v(lxg)}
    v_lshl_add_u32 {v(t1)}, {v(lq)}, 4, {v(t1)}
    v_lshlrev_b32 {v(t1)}, 1, {v(t1)}
    v_add_u32 {v(vB2F)}, {PB2}, {v(t1)}
    v_cmp_eq_u32 vcc, {s(sPAR)}, {v(vZ)}
    v_mov_b32 {v(t2)}, {ZERO}
    v_mov_b32 {v(t0)}, {A_HI:#x}
    v_cndmask_b32 {v(vB2H)}, {v(t2)}, {v(vB2F)}, vcc
    v_mov_b32 {v(t1)}, {A_LO:#x}
    v_cmp_eq_u32 vcc, 0, {v(lh)}
    v_cmp_eq_u32 {s(sMASK, 2)}, 0, {v(lg)}
    v_mov_b32 {v(t3)}, 0
    v_cndmask_b32 {v(t2)}, {v(t1)}, {v(t0)}, vcc
    v_accvgpr_write_b32 {a(aC32)}, {v(t2)}
    v_cndmask_b32 {v(t2)}, {v(t1)}, {v(t0)}, {s(sMASK, 2)}
    v_cndmask_b32 {v(t2)}, {v(t3)}, {v(t2)}, vcc
    v_mov_b32 {v(t1)}, {ZERO}
    """)
    for q in range(4):
        u(f"""
        v_cmp_eq_u32 vcc, {q}, {v(lr)}
        s_nop 1
        v_cndmask_b32 {v(t0)}, {v(t3)}, {v(t2)}, vcc
        v_cndmask_b32 {v(vBQ + q)}, {v(t1)}, {v(vBR)}, vcc
        v_accvgpr_write_b32 {a(aC16 + 4 * q)}, {v(t0)}
        """)
    u(f"""
    s_lshl_b32 {s(sT0)}, {s(sW)}, 10
    s_add_u32 {s(sT0)}, {s(sT0)}, {ST}
    v_add_u32 {v(vSW)}, {s(sT0)}, {v(vL16)}
    s_lshr_b32 {s(sT0)}, s2, 3
    s_mul_i32 {s(sT0)}, {s(sT0)}, 2304
    s_mul_i32 {s(sT1)}, {s(sPAR)}, 13
    s_add_u32 {s(sT1)}, {s(sT1)}, {s(sY0)}
    s_mul_i32 {s(sT1)}, {s(sT1)}, {ROWB}
    s_mul_i32 {s(sT2)}, {s(sX0)}, 192
    s_add_u32 {s(sT1)}, {s(sT1)}, {s(sT2)}
    s_cmp_lt_u32 {s(sW)}, 2
    s_cselect_b32 {s(sT0)}, {s(sT0)}, {s(sT1)}
    s_cselect_b32 {s(sT1)}, {int(OPT['wlines'])}, 1
    s_cselect_b32 {s(SRD_B + 2)}, {s(SRD_W1 + 2)}, {s(SRD_O + 2)}
    v_lshl_add_u32 {v(t4)}, {v(vL)}, 7, {s(sT0)}
    v_cmp_gt_u32 vcc, {s(sT1)}, {v(vL)}
    s_nop 1
    v_cndmask_b32 {v(t4)}, {v(t5)}, {v(t4)}, vcc
    """)
    zs = za + zv
    w = Block()
    for n, x in enumerate(u):
        w.append(x)
        if n >= 4 and n % 7 == 4 and zs:
            w.append(zs.pop(0))
    assert not zs
    n0 = int(OPT["cut0"])
    while next((x for x in w[n0:] if x.startswith(("s_cmp", "s_cselect"))), "s_cmp").startswith("s_cselect"):
        n0 -= 1
    k0 = b.index("@@PRE")
    b[k0:k0 + 1] = w[:n0]
    u = Block(ka + w[n0:])
    ncut = int(OPT["cut"])
    b(u[:ncut])
    b.stamp(18)
    nh = int(OPT["hide"]) * (17 - int(OPT["early"]))
    kpre = next(k for k, x in enumerate(u) if x.startswith(f"s_lshr_b32 {s(sT0)}, s2, 3"))
    k1 = kpre - nh
    hidden = u[k1:kpre]
    pre = [x.replace(s(sT0), "s52").replace(s(sT1), "s53").replace(s(sT2), "s12").replace(v(t4), v(vG)).replace(v(t5), v(vB2V))
           .replace("vcc", s(18, 2)) for x in u[kpre:]]
    mid = u[ncut:k1] + [f"v_bfrev_b32 {v(vB2V)}, 1"] + pre
    per = min((len(mid) + 11 - xf) // (12 - xf), int(OPT["ilv"]))
    for r in range(xf, 12):
        b(xload(r))
        b(mid[per * (r - xf):per * (r - xf + 1)])
    allx = int(OPT["allx"])
    rest = mid[per * (12 - xf):]
    if allx:
        per2 = min((len(rest) + 5) // 6, allx - 1)
        for r in range(12, 18):
            b(xload(r))
            b(rest[per2 * (r - 12):per2 * (r - 11)])
        rest = rest[per2 * 6:]
    b(rest)
    b.stamp(2)

    hop = L(f"""
    s_mov_b64 exec, 0
    s_cmp_eq_u32 {s(sW)}, 1
    s_cbranch_scc1 L_pad3
    s_cmp_eq_u32 {s(sW)}, 2
    s_cbranch_scc1 L_pad5
    s_cmp_eq_u32 {s(sW)}, 3
    s_cbranch_scc1 L_pad7
    s_branch L_pad1
    .p2align 12
    L_body:
    s_mov_b64 exec, -1
    """)
    slots = L(f"""
    s_mov_b32 m0, {s(sMA)}
    buffer_load_dword {v(vB2V)}, {v(vG)}, {s(SRD_B, 4)}, 0 offen
    buffer_load_dwordx4 {v(vL16)}, {s(SRD_A, 4)}, 0 offen lds ;@par
    """)
    if OPT["hops"] and int(OPT["hoprow"]) < 0:
        b(hop)
    b("@lg all\n@vm tbl")
    b([f"ds_read_b64_tr_b16 {v(AF + (3 * j + t) * 4 + 2, 2)}, {v(vTA)} offset:{768 * t + 8 * j} ;@ard" for j in range(6) for t in range(3)])
    b.stamp(3)
    aexp = []
    for g in range(18):
        q = AF + 4 * g
        aexp += [f"v_and_b32 {v(q)}, {s(sLO)}, {v(q + 2)}", f"v_and_b32 {v(q + 1)}, {s(sHI)}, {v(q + 2)}",
                 f"v_and_b32 {v(q + 2)}, {s(sLO)}, {v(q + 3)}", f"v_and_b32 {v(q + 3)}, {s(sHI)}, {v(q + 3)}"]

    def w1dma(p, tag):
        o = []
        for i in range(3):
            pre = [f"s_add_u32 m0, {s(sM1)}, {12288 * p - 128 * p}", "s_nop 0"] if i == 0 else []
            o.append(pre + [f"buffer_load_dwordx4 {v(vD1)}, {s(SRD_W1, 4)}, {s(sS[i])} offen offset:{1024 * i + 128 * p} lds ;@{tag}"])
        return o

    def w2dma(late, tag):
        o = []
        for c in range(9):
            g = c >> 2
            pre = [f"s_add_u32 m0, {s(sM2)}, {(W2L if late else W2E) + 4096 * g}",
                   f"s_add_u32 {s(sT3)}, {s(sM2)}, {36864 * late + 4096 * g}"] if c % 4 == 0 else []
            o.append(pre + [f"buffer_load_dwordx4 {v(vL16)}, {s(SRD_W2, 4)}, {s(sT3)} offen offset:{1024 * (c & 3)} lds ;@{tag}"])
        return o
    early = (w1dma(0, "w1e") + w1dma(1, "w1e") + w1dma(2, "w1e"), w2dma(0, "w2e"))

    def stage(r):
        return [f"@vm x{r}", f"ds_write_b64 {v(vXW)}, {a(aSTG + 4 * r, 2)} offset:{160 * r}",
                f"ds_write_b64 {v(vXW)}, {a(aSTG + 4 * r + 2, 2)} offset:{XPL + 160 * r}"]
    w2m = int(OPT["w2m"])
    dmas = early[0] + ([] if w2m else early[1])
    nst = int(OPT["nstage"])
    ne = int(OPT["early"])
    for r in range(12 + ne, 18 - 6 * bool(allx)):
        b(xload(r))
    vq = aexp + hidden
    per = (len(vq) + 16 - ne) // (17 - ne)
    for r in range(18):
        if r == ne + 1:
            b("@lg ard")
        if r > ne:
            b(vq[per * (r - ne - 1):per * (r - ne)])
        b(stage(r))
        if r < ne and not allx:
            b(xload(12 + r))
        if r == int(OPT["slotrow"]):
            b(slots)
        if OPT["hops"] and r == int(OPT["hoprow"]):
            b(hop)
        b.stamp(f"x{r}")
        if int(OPT["stagerow"]) <= r < int(OPT["stagerow"]) + nst:
            b(dmas.pop(0))
    b([f"v_lshlrev_b32 {v(vG)}, 2, {v(vL)}", f"v_add_u32 {v(vG)}, {PB2}, {v(vG)}"])
    b("@lg all\ns_barrier")
    b.stamp(4)

    S, TP, TU, S2 = TMP, TMP + 8, H, H

    def acc(k, j):
        return CV + (k * 6 + j) * 4

    def reads(j):
        return [f"ds_read_b128 {a(aRB[j % 3] + 4 * r, 4)}, {v(vXB)} offset:{(j >> 1) * XG + (j & 1) * XPL + r * 160} ;@q{j}_{r}"
                for r in range(8)]

    def part(j):
        o = []
        for k in range(4):
            d = acc(k, j)
            o += [f"v_add_f32 {v(TP + 4 * j + k)}, {v(d)}, {v(d + 1)}", f"v_add_f32 {v(TU + k)}, {v(d + 2)}, {v(d + 3)}"]
        return o + [f"v_add_f32 {v(TP + 4 * j + k)}, {v(TP + 4 * j + k)}, {v(TU + k)}" for k in range(4)]
    b(reads(0))
    nstat = int(OPT["nstat"])
    sdma = dmas[len(dmas) - nstat:]
    dmas = dmas[:len(dmas) - nstat]
    ncv = len(dmas)
    where = {(72 * q + 36) // ncv: q for q in range(ncv)}
    pend = []
    for j in range(6):
        rd = reads(j + 1) if j < 5 else []
        for n in range(12):
            t, k = n >> 2, n & 3
            if j == 0 and n == 0:
                b("@lg q0_1")
            if t == 2 and int(OPT["dense"]):
                b(f"{M16} {v(acc(k, j), 4)}, {v(AF + (3 * j + t) * 4, 4)}, {a(aRB[j % 3] + 4 * (k + 4), 4)}, {v(acc(k, j), 4)}")
            else:
                b(f"v_smfmac_f32_16x16x64_bf16 {v(acc(k, j), 4)}, {v(AF + (3 * j + t) * 4, 4)}, {a(aRB[j % 3] + 4 * (k + 2 * t), 8)}, {v(vIDX)}")
            m = 12 * j + n
            if n == 4 and 0 < j < 5:
                pend += part(j - 1)
            if j == 0 and n in (0, 1, 2, 5):
                b(f"@lg q0_{(2, 3, 4, 0, 0, 7)[n]}")
            elif n == 5:
                b(f"@lg q{j}_7")
            elif n == 11 and j < 5:
                b(f"@lg q{j + 1}_4")
            if m in where:
                b(dmas[where[m]][-1:])
                continue
            pre = [x for x in dmas[where[m + 2]][:-1] if x != "s_nop 0"] if m + 2 in where else []
            b(pre)
            if rd and (j > 0 or n >= int(OPT["q0lag"])):
                b(rd.pop(0))
            if pend:
                b(pend.pop(0))
        assert len(rd) == 0, (j, rd)
    b.stamp(5)
    g0, g1, ga = AF + 16, AF + 18, vG
    b(pend)
    U = AF + 8
    for i in range(0, 24, 2):
        for k in range(4):
            d = acc(k, 0) + i
            b(pk("mul", AF + 2 * k, v(d, 2), v(d, 2)) if i == 0 else pk("fma", AF + 2 * k, v(d, 2), v(d, 2), v(AF + 2 * k, 2)))
        if sdma and i % 4 == 0:
            b(sdma.pop(0))
    for x in sdma:
        b(x)
    for k in range(4):
        b(pk("add", U + 2 * k, v(acc(k, 4), 2), v(acc(k, 4) + 2, 2)))
    for o in (0, 2):
        b(pk("add", TP + o, v(TP + o, 2), v(TP + 4 + o, 2)))
        b(pk("add", TP + 8 + o, v(TP + 8 + o, 2), v(TP + 12 + o, 2)))
    for i in (0, 2):
        for k in range(4):
            b(pk("add", U + 2 * k, v(U + 2 * k, 2), v(acc(k, 5) + i, 2)))
    for o in (0, 2):
        b(pk("add", TP + o, v(TP + o, 2), v(TP + 8 + o, 2)))
    for k in range(4):
        b(f"v_add_f32 {v(S + 4 * (k >> 1) + 2 + (k & 1))}, {v(AF + 2 * k)}, {v(AF + 2 * k + 1)}")
        b(f"v_add_f32 {v(TP + 4 + k)}, {v(U + 2 * k)}, {v(U + 2 * k + 1)}")
    for o in (0, 2):
        b(pk("add", S + 2 * o, v(TP + o, 2), v(TP + 4 + o, 2)))
    b(f"""
    ds_write_b128 {v(vSW)}, {v(S, 4)}
    ds_write_b128 {v(vSW)}, {v(S + 4, 4)} offset:4096
    v_add_u32 {v(vSW)}, {ST}, {v(vL16)}
    @vm w1e
    @lg all
    s_barrier
    """)
    b.stamp(7)

    Q = TMP
    for ph in range(2):
        for w in range(4):
            b(f"ds_read_b128 {v(Q + 16 * ph + 4 * w, 4)}, {v(vSW)} offset:{4096 * ph + 1024 * w} ;@s{ph}")
    pre = r_w1(0) + [f"ds_read_u16 {a(aRBIAS + 2 * t)}, {v(vB2H)} offset:{64 * t}" for t in range(3)]
    pre += [f"ds_read_b32 {v(g0 + 1)}, {v(ga)} offset:{PGR - PB2}", f"ds_read_b32 {v(g1 + 1)}, {v(ga)}"]
    prew = int(OPT["prew"])
    if not prew:
        b(pre[:7])
    qs = (Q, Q + 16)

    def fin(q):
        return ([pk("add", q + o, v(q + o, 2), v(q + 4 + o, 2)) for o in (0, 2)]
                + [pk("add", q + 8 + o, v(q + 8 + o, 2), v(q + 12 + o, 2)) for o in (0, 2)]
                + [pk("add", q + o, v(q + o, 2), v(q + 8 + o, 2)) for o in (0, 2)]
                + [pk("mul", q + o, v(q + o, 2), s(sINV, 2)) for o in (0, 2)]
                + [pk("fma", q + 2, v(q, 2), v(q, 2), v(q + 2, 2), " neg_lo:[1,0,0] neg_hi:[1,0,0]"),
                   f"v_max_f32 {v(q + 2)}, 0, {v(q + 2)}", f"v_max_f32 {v(q + 3)}, 0, {v(q + 3)}",
                   pk("add", q + 2, v(q + 2, 2), s(sEPS, 2)),
                   f"v_rsq_f32 {v(q + 2)}, {v(q + 2)}", f"v_rsq_f32 {v(q + 3)}, {v(q + 3)}", "s_nop 0",
                   pk("mul", q + 2, v(q + 2, 2), s(sAL, 2)),
                   pk("mul", q, v(q, 2), v(q + 2, 2), mod=" neg_lo:[1,0] neg_hi:[1,0]")])
    f0, f1 = fin(qs[0]), fin(qs[1])
    if int(OPT["ln2"]):
        b("@lg s0")
        b(f0)
        b("@lg s1")
        b(pre[7:])
        f1 = [x for x in f1 if x != "s_nop 0"]
    else:
        b("@lg s0")
        b(f0[:4])
        b("@lg s1")
        if not prew:
            b(pre[7:])
        b(f1[:4])
        b([x for p in zip(f0[4:], f1[4:]) for x in p if x != "s_nop 0"])
        f1 = []
    for k in range(4):
        ph, sx = k >> 1, k & 1
        base, q = CV + 24 * k, qs[ph]
        for jj in range(3):
            for i in range(8 * jj, 8 * jj + 8, 2):
                b(pk("fma", base + i, v(base + i, 2), v(q + 2, 2), v(q, 2), f" op_sel:[0,{sx},{sx}] op_sel_hi:[1,{sx},{sx}]"))
                if f1 and i % 4 == 0:
                    b(f1.pop(0))
            for i in range(4 * jj, 4 * jj + 4):
                b(f"v_cvt_pk_bf16_f32 {v(base + 4 * jj + i)}, {v(base + 2 * i)}, {v(base + 2 * i + 1)}")
                if f1 and i % 4 == 1:
                    b(f1.pop(0))
            b(f"ds_write_b128 {v(vAW)}, {v(base + 8 * jj, 4)} offset:{(8 * ph + sx) * 14 * AP + 16 * jj}")
            if prew:
                b(pre[:2])
                pre = pre[2:]
        assert k == 0 or not f1
    b("@lg all\ns_barrier")
    b.stamp(8)

    b([f"ds_read_b128 {a(aBt['F'] + 4 * k, 4)}, {v(vBF)} offset:{32 * k} ;@bf{k}" for k in range(6)])
    b([f"ds_read_b128 {a(aBt['H'] + 4 * k, 4)}, {v(vBH)} offset:{32 * k}" for k in range(6)])
    late = w1dma(3, "wl") + w1dma(4, "wl") + w1dma(5, "wl") + w2dma(1, "wl")
    M = m_fc1(0)
    bq = [f"ds_read_b128 {a(aBR + 12 * q + 4 * k, 4)}, {v(vBQ + q)} offset:{64 * k}" for q in range(4) for k in range(3)]
    F = [(k, k, [f"@lg bf{k}"]) for k in range(6)]
    if w2m:
        F += [(2 * k, 2 * k, early[1][k]) for k in range(4)]
    else:
        F += [(1 + k, 1 + k, bq[2 * k:2 * k + 2]) for k in range(6)]
    gt = unpack(g0, g0 + 1, 1) + unpack(g1, g1 + 1, 1) + L(f"""
    v_lshlrev_b32 {v(ga)}, 3, {v(vL)}
    v_mul_f32 {v(g1)}, {v(g1)}, {v(g0)}
    v_mul_f32 {v(g1 + 1)}, {v(g1 + 1)}, {v(g0 + 1)}
    v_mul_f32 {v(g0)}, {s(sIA)}, {v(g0)}
    v_mul_f32 {v(g0 + 1)}, {s(sIA)}, {v(g0 + 1)}
    v_add_u32 {v(ga)}, {PG}, {v(ga)}
    """)
    b(trun(M, F, gt, need={}, tail=0))
    b(f"""
    s_mov_b32 exec_hi, 0xffff
    ds_write_b64 {v(ga)}, {v(g0, 2)}
    ds_write_b64 {v(ga)}, {v(g1, 2)} offset:{PGB - PG}
    s_mov_b32 exec_hi, -1
    s_nop 5
    """)
    b.stamp(9)
    b(P(0))
    hinit = [f"{M32} {v(ACC['H'] + 16 * t, 16)}, {a(aRBIAS + 2 * t, 4)}, {a(aC32, 4)}, 0" for t in range(3)]
    if w2m:
        b(T(0, head=("@lg all",), xF=[(k, k, early[1][4 + k]) for k in range(5)] + [(0, 1, [x]) for x in bq[:3]], last=()))
        b(P(1, late_x=True))
        b(T(1, head=("@lg all",), xM=hinit, xF=[(0, 6, [x]) for x in bq[3:]], skip_w2=True))
        b(P(2))
        F_ = [(k // 3, k // 3, [x + " ;@w20"]) for k, x in enumerate(r_w2(0))] + [(6, 6, ["@lg w20"])]
        b(T(2, head=("@vm w2e", "s_barrier"), xF=F_ + [(4 + 2 * k, 4 + 2 * k, late[k]) for k in range(4)]))
        b(P(3))
        b(T(3, xF=[(1 + 2 * k, 1 + 2 * k, late[4 + k]) for k in range(5)]))
        b(P(4))
        b(T(4, xF=[(1 + 2 * k, 1 + 2 * k, late[9 + k]) for k in range(5)]))
    else:
        b(T(0, xF=[(0, 0, ["@vm w2e", "@lg all", "s_barrier"]), (2, 2, late[0]), (4, 4, late[1]), (6, 6, late[2])], last=()))
        b(P(1, late_x=True))
        b(T(1, head=("@lg all",), xM=hinit, xF=[(1 + 2 * k, 1 + 2 * k, late[3 + k]) for k in range(4)]))
        b(P(2))
        b(T(2, xF=[(1 + 3 * k, 1 + 3 * k, late[7 + k]) for k in range(4)]))
        b(P(3))
        b(T(3, xF=[(1 + 3 * k, 1 + 3 * k, late[11 + k]) for k in range(4)]))
        b(P(4))
        b(T(4, xF=[(4 * k, 4 * k, late[15 + k]) for k in range(3)]))

    XR, WK = TMP + 4, TMP + 12

    def r_fc1(m):
        rd = [f"ds_read_u16 {a(aRBIAS + 2 * mh)}, {v(vRB)} offset:{256 * m + 32 * mh}" for mh in range(2)]
        rd += [f"ds_read_b64_tr_b16 {a(aRF + 12 * mh + 4 * k + 2 * jj, 2)}, {v(vR1)} offset:{24576 * m + 4096 * k + 256 * jj + 32 * mh} ;@rf"
               for k in range(3) for mh in range(2) for jj in range(2)]
        x = a(aXR + 4 * (m >> 1), 4) if int(OPT["rlate"]) else v(XR + 4 * (m >> 1), 4)
        M = []
        for mh in range(2):
            q = (2 * m + mh) & 3
            M.append(f"{M16} {x}, {a(aRBIAS + 2 * mh, 4)}, {a(aC16 + 4 * q, 4)}, {x if q else '0'}")
            M += [f"{M16} {x}, {a(aRF + 12 * mh + 4 * k, 4)}, {a(aBR + 12 * q + 4 * k, 4)}, {x}" for k in range(3)]
        return M, [(0, 8, [x_]) for x_ in rd] + [(12, 12, ["@lg rf"])]

    bumpA = [f"v_subrev_u32 {v(vW2A)}, 36864, {v(vW2A)}", f"v_add_u32 {v(vA)}, 36864, {v(vA)}"]
    bumpB = [f"v_subrev_u32 {v(vW2B)}, 36864, {v(vW2B)}", f"v_add_u32 {v(vB)}, 36864, {v(vB)}"]
    f1pos, g0 = (((5, 7, 8), 9), ((6, 8, 10), 11))[int(OPT["rpos"])]
    rlate = int(OPT["rlate"])
    if rlate:
        g0 = 99
    for j in range(5, 15):
        post = {g0: p_t(XR, WK, 8) + p_z(XR, WK, 8), g0 + 1: p_add(WK, 8), g0 + 2: p_mul(WK, XR, 8)}.get(j, [])
        b(P(j, post=post))
        if j == 7:
            b("@vm wl\ns_barrier")
        M_, F_ = r_fc1(f1pos.index(j)) if j in f1pos else ([], [])
        if j == 5 and w2m:
            F_ = F_ + [(2 * k, 2 * k, late[14 + k]) for k in range(4)]
        V_ = {g0: t_exp(WK, WK, 8), g0 + 1: t_rcp(WK, WK, 8), g0 + 2: t_cvt(HR, WK, 8)}.get(j, [])
        b(T(j, xM=M_, xF=F_, xV=V_ + {6: bumpA, 11: bumpB}.get(j, [])))
    HX, FX, RX = TMP, TMP + 12, vA
    AH, AFc = ACC["H"], ACC["F"]
    nt2 = OPT["nt2"]
    hx = [f"buffer_load_dwordx4 {v(HX + 4 * t, 4)}, {v(vOH)}, {s(SRD_X, 4)}, 0 offen offset:{64 * t} {nt2} ;@hx" for t in range(3)]
    fx = [f"buffer_load_dwordx4 {v(FX + 4 * c, 4)}, {v(vOFA)}, {s(SRD_X, 4)}, 0 offen offset:{32 * c} {nt2} ;@fx" for c in range(6)]
    vXR_, vGH_, vOFB = vBA, vW2A, vBB
    b(P(15))
    F_ = [(1 + 2 * t, 1 + 2 * t, [hx[t]]) for t in range(3)] + [(7 + 2 * c, 7 + 2 * c, fx[c:c + 1]) for c in range(3)]
    F_ += [(0, 0, [f"s_xor_b32 {s(sT0)}, {s(sW)}, 1"]), (1, 1, [f"s_mul_i32 {s(sT0)}, {s(sT0)}, 6144"])]
    V_ = L(f"""
    v_add_u32 {v(vXR_)}, {s(sT0)}, {v(vL16)}
    v_bfe_u32 {v(vGH_)}, {v(vL)}, 4, 1
    v_lshl_add_u32 {v(vGH_)}, {v(vGH_)}, 6, {v(vGA)}
    """)
    odd = lambda c: AH + 16 * (c >> 1) + 8 + 4 * (c & 1)
    sw = [f"v_permlane16_swap_b32 {v(AH + 16 * t + i)}, {v(AH + 16 * t + 8 + i)}" for t in range(3) for i in range(8)]
    xw = [f"ds_write_b128 {v(vRW)}, {v(odd(c), 4)} offset:{XCH + 1024 * c} ;@xw" for c in range(6)]
    xr = [f"ds_read_b128 {v(odd(c), 4)}, {v(vXR_)} offset:{XCH + 1024 * c}" for c in range(6)]
    if int(OPT["xch"]):
        b(T(15, xF=F_, xV=V_ + sw[:8], tmajor=True))
        b(P(16, pre=xw[:1], post=sw[8:16] + xw[1:2] + sw[16:]))
        if int(OPT["xch"]) == 1:
            F_ = [(2 * c, 2 * c, xw[2 + c:3 + c]) for c in range(4)] + [(8, 8, ["@lg xw", "s_barrier"])]
            F_ += [(9 + c // 2, 9 + c // 2, xr[c:c + 1]) for c in range(6)]
        else:
            F_ = [(c, c, xw[2 + c:3 + c]) for c in range(4)] + [(7, 7, ["@lg xw", "s_barrier"])]
            F_ += [(8 + c // 2, 8 + c // 2, xr[c:c + 1]) for c in range(6)]
    else:
        b(T(15, xF=F_, xV=V_))
        b(P(16, post=sw))
        F_ = [(c, c, xw[c:c + 1]) for c in range(6)] + [(7, 7, ["@lg xw", "s_barrier"])]
        F_ += [(8 + c // 2, 8 + c // 2, xr[c:c + 1]) for c in range(6)]
    F_ += [(6, 6, [f"ds_read_u16 {a(aRBIAS + 2 * t)}, {v(vB2F)} offset:{64 * t}" for t in range(3)])]
    F_ += [(6, 6, fx[3:4]), (11, 11, fx[4:5]), (12, 12, [f"buffer_load_dwordx2 {v(RX, 2)}, {v(vOR)}, {s(SRD_X, 4)}, 0 offen"])]
    b(T(16, xF=F_, last=(), xV=[f"v_add_u32 {v(vOFB)}, 32, {v(vOFA)}"]))
    post = [pk("add", AH + 16 * t + i, v(AH + 16 * t + i, 2), v(AH + 16 * t + 8 + i, 2)) for t in range(3) for i in range(0, 8, 2)]
    b(P(17, post=["@lg all"] + post))
    finit = [f"{M32} {v(AFc + 16 * t, 16)}, {a(aRBIAS + 2 * t, 4)}, {a(aC32, 4)}, {v(AFc + 16 * t, 16)}" for t in range(3)]
    GH = (X[0], X[0] + 8, Z)
    GF = (AH, AH + 16, X[0], X[0] + 8, Z + 8, R)
    gh = [f"ds_read_b128 {v(GH[t] + 4 * k, 4)}, {v(vGH_)} offset:{128 * t + 16 * k}" for t in range(3) for k in range(2)]
    gf = [f"ds_read_b128 {v(GF[c] + 4 * k, 4)}, {v(vGA)} offset:{64 * c + 16 * k}" for c in range(6) for k in range(2)]

    rend = int(OPT["rend"])
    RFB = (aRF, aRF2, aBt["H"], aW1) if rend else (aRF, aRF2, aRF, aRF2)

    def rw2(q):
        fb = RFB[q]
        o = []
        for jj in range(2 - (q >> 1)):
            tau = q + 4 * jj
            reg, off = ((vR2A, 24576), (vR2B, 0), (vR2A, 0))[tau >> 1]
            o += [f"ds_read_b64_tr_b16 {a(fb + 4 * c + 2 * jj, 2)}, {v(reg)} offset:{off + 3072 * (tau & 1) + 32 * c}" for c in range(6)]
        return o
    F_ = [(0, 5, [x]) for x in gh[:4] + ([] if rlate else rw2(0))] + [(2, 2, fx[5:6]), (0, 0, ["@vm hx"])]
    V_ = [x for t in range(3) for x in unpack(AH + 16 * t + 8, HX + 4 * t, 4)]
    b(T(17, xM=finit, xF=F_, xV=V_))
    hf = lambda t: [pk("fma", AH + 16 * t + 8 + i, v(AH + 16 * t + i, 2), v(GH[t] + i, 2), v(AH + 16 * t + 8 + i, 2)) for i in range(0, 8, 2)]
    hc = lambda t: t_cvt(HX + 4 * t, AH + 16 * t + 8, 8)
    hs = [f"buffer_store_dwordx4 {v(HX + 4 * t, 4)}, {v(vOH)}, {s(SRD_O, 4)}, 0 offen offset:{64 * t} {OPT['st_h']}" for t in range(3)]
    b(P(18, post=hf(0) + hf(1)))
    UF = (X[1], X[1] + 8, X[2], X[2] + 8, E, E + 8)
    F_ = [(0, 3, [x]) for x in gh[4:] + gf[:10] + (rw2(2) if rend and not rlate else [])] + [(3, 3, hs[:1]), (5, 5, hs[1:2]), (3, 3, ["@vm fx"])]
    V_ = unpack(UF[0], FX, 4) + unpack(UF[1], FX + 4, 4) + [f"v_permlane16_swap_b32 {v(vOFA)}, {v(vOFB)}"]
    b(T(18, xF=F_, xVpre=hc(0) + hc(1), xV=V_, xneed={3: 12, 5: 16}))
    b(P(19, post=hf(2)))

    def ftail(t, plain):
        o = []
        for c in (2 * t, 2 * t + 1):
            if plain:
                o += [f"v_fma_f32 {v(UF[c] + i)}, {v(AFc + 8 * c + i)}, {v(GF[c] + i)}, {v(UF[c] + i)}" for i in range(8)]
            else:
                o += [pk("fma", UF[c] + i, v(AFc + 8 * c + i, 2), v(GF[c] + i, 2), v(UF[c] + i, 2)) for i in range(0, 8, 2)]
        for c in (2 * t, 2 * t + 1):
            o += t_cvt(FX + 4 * c, UF[c], 8)
        o += [f"v_permlane16_swap_b32 {v(FX + 8 * t + i)}, {v(FX + 8 * t + 4 + i)}" for i in range(4)]
        return o

    def fst(t):
        return [f"buffer_store_dwordx4 {v(FX + 8 * t + 4 * k, 4)}, {v((vOFA, vOFB)[k])}, {s(SRD_O, 4)}, 0 offen offset:{64 * t} {OPT['st_f']}"
                for k in range(2)]
    V_ = hc(2) + [x for c in range(2, 6) for x in unpack(UF[c], FX + 4 * c, 4)][:20] + ftail(0, True)
    F_ = [(1, 1, gf[10:]), (2, 2, hs[2:3])] + [(0, 3, [x]) for x in ([] if rlate else rw2(1) + (rw2(3) if rend else []))]
    b(T(19, xF=F_, xV=V_, xneed={2: 12}, tmajor=True))
    b(fst(0))
    b.stamp("f0")
    b([x for c in range(2, 6) for x in unpack(UF[c], FX + 4 * c, 4)][20:])
    for t in (1, 2):
        b(ftail(t, False))
        if t == 1 or not rend or (rlate and not int(OPT["st2late"])):
            b(fst(t))
        b.stamp(f"f{t}")

    HQ, RA = AH, AH + 16
    PP, PGm, PBm, RU, ra, rg, rw = X[0], X[1], X[1] + 4, X[1] + 8, X[2], X[2] + 1, X[2] + 2
    hq = lambda q: HR if q == 0 else HQ + 4 * (q - 1)
    if rlate:
        XE, WE = Z, R
        st2 = fst(2) if int(OPT["st2late"]) else ["s_nop 0", "s_nop 0"]
        b(rw2(0))
        b([f"v_accvgpr_read_b32 {v(XE + i)}, {a(aXR + i)}" for i in range(8)])
        b(p_t(XE, WE, 8) + p_z(XE, WE, 8))
        b([x for x in st2[:1] if x != "s_nop 0"] + rw2(1))
        b(t_exp(WE, WE, 8) + p_add(WE, 8))
        b([x for x in st2[1:] if x != "s_nop 0"] + rw2(2) + rw2(3))
        b(t_rcp(WE, WE, 8) + p_mul(WE, XE, 8) + t_cvt(HR, WE, 8) + ["@lg all", "s_nop 0"])
    rrot = [f"v_mov_b32_dpp {v(hq(q) + i)}, {v(HR + i)} row_ror:{16 - 4 * q} row_mask:0xf bank_mask:0xf" for q in (1, 2, 3) for i in range(4)]
    M_ = [f"{M16} {v(RA + 4 * c, 4)}, {a(RFB[q] + 4 * c, 4)}, {v(hq(q), 4)}, {v(RA + 4 * c, 4) if q else '0'}"
          for q in range(4) for c in range(6)]
    r2, r3 = rw2(2), rw2(3)
    F_ = [(c, c, r2[c:c + 1]) for c in range(6)] + [(6 + c, 6 + c, r3[c:c + 1]) for c in range(6)]
    if rend:
        F_ = [] if rlate else [(3, 3, fst(2)[:1]), (9, 9, fst(2)[1:])]
    F_ += [(0, 0, [f"s_mul_i32 {s(sT0)}, {s(sW)}, 2176"]), (1, 1, [f"s_lshl_b32 {s(sT1)}, {s(sW)}, 4"])]
    F_ += [(20, 20, [f"ds_read_b128 {v(PGm, 4)}, {v(rg)}"]), (21, 21, [f"ds_read_b128 {v(PBm, 4)}, {v(rg)} offset:{PGB - PG}"])]
    V_ = rrot + L(f"""
    v_min_u32 {v(rg)}, 23, {v(vL)}
    v_and_b32 {v(ra)}, 3, {v(rg)}
    v_mul_u32_u24 {v(ra)}, 272, {v(ra)}
    v_bfe_u32 {v(rw)}, {v(rg)}, 2, 2
    v_lshl_add_u32 {v(ra)}, {v(rw)}, 6, {v(ra)}
    v_lshrrev_b32 {v(rw)}, 4, {v(rg)}
    v_mul_u32_u24 {v(rw)}, 1088, {v(rw)}
    v_add3_u32 {v(ra)}, {v(ra)}, {v(rw)}, {s(sT1)}
    v_lshlrev_b32 {v(rg)}, 4, {v(rg)}
    v_add_u32 {v(rg)}, {PG}, {v(rg)}
    v_lshrrev_b32 {v(rw)}, 4, {v(vL)}
    v_add_u32 {v(rw)}, {v(rw)}, {v(vL)}
    v_lshl_add_u32 {v(rw)}, {v(rw)}, 4, {s(sT0)}
    """) + unpack(RU, RX, 2)
    o, _ = trun2(M_, F_, V_, {6: 6, 12: 10, 18: 14, 20: 22}, [], drain=8)
    b(o)
    b("s_nop 1")
    for c in (1, 2, 3, 5):
        for i in range(4):
            b(f"v_mov_b32_dpp {v(RA + 16 * (c >> 2) + i)}, {v(RA + 4 * c + i)} row_shr:{4 * (c & 3)} row_mask:0xf bank_mask:{1 << (c & 3):#x}")
        if c == 3:
            b(f"ds_write_b128 {v(rw)}, {v(RA, 4)} offset:{RBUF}")
    b(f"ds_write_b128 {v(rw)}, {v(RA + 16, 4)} offset:{RBUF + 1088}")
    b("@lg all\ns_barrier")
    b([f"ds_read_b128 {v(PP + 4 * w, 4)}, {v(ra)} offset:{RBUF + 2176 * w}" for w in range(4)])
    b([pk("add", RU + i, v(RU + i, 2), v(PBm + i, 2)) for i in (0, 2)])
    b([pk("add", PP + i, v(PP + i, 2), v(PP + 4 + i, 2)) for i in (0, 2)])
    b([pk("add", PP + 8 + i, v(PP + 8 + i, 2), v(PP + 12 + i, 2)) for i in (0, 2)])
    b([pk("add", PP + i, v(PP + i, 2), v(PP + 8 + i, 2)) for i in (0, 2)])
    b([pk("fma", RU + i, v(PP + i, 2), v(PGm + i, 2), v(RU + i, 2)) for i in (0, 2)])
    b(t_cvt(RX, RU, 4))
    b(f"buffer_store_dwordx2 {v(RX, 2)}, {v(vOR)}, {s(SRD_O, 4)}, 0 offen {OPT['st_r']}")
    b.stamp(16)
    if OPT["probe"] is not None:
        b("@vm all")
        b.stamp("end")
        b(f"s_sub_u32 s98, {s(sSTAMP)}, s96" if OPT["probe"] != "0" else "s_mov_b32 s98, 0")
        if OPT["probewg"] is not None:
            b(f"s_cmp_eq_u32 s2, {OPT['probewg']}\ns_cselect_b32 s98, s98, 0")
        b("""
        s_lshl_b32 s98, s98, 3
        s_add_u32 s98, s98, 40000
        L_diag:
        s_memtime s[100:101]
        s_waitcnt lgkmcnt(0)
        s_sub_u32 s100, s100, s96
        s_cmp_lt_u32 s100, s98
        s_cbranch_scc1 L_diag
        """)
    elif OPT["stamps"]:
        b("@vm all")
        b.stamp("end")
        b(f"""
        s_load_dwordx2 s[4:5], s[0:1], 72
        s_waitcnt lgkmcnt(0)
        s_lshl_b32 s6, s2, 2
        s_add_u32 s6, s6, {s(sW)}
        s_lshl_b32 s6, s6, 7
        v_mov_b32 v0, s6
        s_mov_b32 s6, 0x100000
        s_mov_b32 s7, 0x20000
        s_mov_b64 exec, 1
        """)
        for k in range(1, 20):
            kk = min(k, len((OPT["only"] or DEFAULT_STAMPS).split(",")) + 1)
            b(f"s_sub_u32 s8, {s(sSTAMP + kk)}, {s(sSTAMP)}" if not OPT["real"] else
              (f"s_mov_b32 s8, {s(sSTAMP + min(k - 1, kk + 5 if kk == k else kk))}" if k < 19 else "s_getreg_b32 s8, hwreg(HW_REG_XCC_ID, 0, 4)"))
            b("v_mov_b32 v2, s8")
            b(f"buffer_store_dword v2, v0, s[4:7], 0 offen offset:{4 * k}")
        b("@vm all")
    return b


def add_pads(lines, start):
    out = []
    off = None
    n = 0
    for t in lines:
        if t == "L_body:":
            off = start
            out.append(f".fill {start // 4}, 4, 0xbf800000")
        if off is not None and not t.endswith(":") and not t.startswith("."):
            sz = isize(t)
            if off + sz > 4096 * (n + 1):
                while off < 4096 * (n + 1):
                    out.append("s_nop 0")
                    off += 4
                n += 1
                out.append(f"L_pad{n}:")
                out.append(f"s_cbranch_execz {'L_pad%d' % (n + 1) if n % 2 else 'L_body'}")
                out.append("s_nop 0")
                off += 8
            off += sz
        out.append(t)
    return out, n, off + 4


def loop_segment(b):
    import re
    m0, m1 = OPT["seg"].split(",")
    i0, i1 = b.index(f"MARK_{m0}:"), b.index(f"MARK_{m1}:")
    body = [x for x in b[i0:i1] if not x.startswith("MARK_")]
    if OPT["drop"]:
        body = [x for x in body if not re.search(OPT["drop"], x)]
    if OPT["nop"]:
        body = [("s_nop 1" if re.match("v_exp|v_rcp", x) else "s_nop 0") if re.search(OPT["nop"], x) else x for x in body]
    o = Block([x for x in b[:i0] if not x.startswith("MARK_")])
    o("@vm all\n@lg all\ns_barrier\ns_mov_b32 s99, 0\ns_memrealtime s[94:95]\ns_memtime s[96:97]\ns_waitcnt lgkmcnt(0)\n.p2align 6\nL_seg:")
    o(body * 5)
    o("""
    s_add_u32 s99, s99, 1
    s_cmp_lt_u32 s99, 5
    s_cbranch_scc1 L_seg
    @vm all
    s_memtime s[100:101]
    s_memrealtime s[92:93]
    s_load_dwordx2 s[4:5], s[0:1], 72
    s_waitcnt lgkmcnt(0)
    s_sub_u32 s8, s100, s96
    s_sub_u32 s9, s92, s94
    s_lshl_b32 s6, s2, 2
    """ + f"s_add_u32 s6, s6, {s(sW)}" + """
    s_lshl_b32 s6, s6, 7
    v_mov_b32 v0, s6
    s_mov_b32 s6, 0x100000
    s_mov_b32 s7, 0x20000
    s_mov_b64 exec, 1
    v_mov_b32 v2, s8
    buffer_store_dword v2, v0, s[4:7], 0 offen offset:4
    v_mov_b32 v3, s9
    buffer_store_dword v3, v0, s[4:7], 0 offen offset:8
    @vm all
    """)
    return o


def build():
    b = gen()
    if OPT["seg"]:
        b = loop_segment(b)
    lines, added = autowait(b, OPT["verbose"])
    bad = 0
    if OPT["align"]:
        lines, bad = fix_align(lines)
    npad = 0
    if OPT["hops"]:
        margin = int(OPT["margin"])
        start = next(x for x in range(4096 - 64, -64, -64) if 4096 - margin - 64 < add_pads(lines, x)[2] % 4096 <= 4096 - margin or x == 0)
        lines, npad, _ = add_pads(lines, start)
        for k in range(npad + 1, 9):
            lines = [t.replace(f"L_pad{k}", "L_body") if not t.endswith(":") else t for t in lines]
    trace = [t for t in lines if not t.endswith(":") and not t.startswith(".")]
    errs = check(trace)
    hdr = open("standalone__modern_conv_block_convnext__vision.s.ref").read().split("\n")
    head = [l for l in hdr if l.startswith(";") and "@launch" not in l and "Override" not in l and "grid=ceil" not in l]
    head += """;
; Fused ConvNeXt block: one workgroup (4 waves) per 14x14 pixel tile, tiles grouped per XCD for L2 halo reuse.
;   1. x tile (18x18, zero padded) staged in LDS as 4-channel planes; weights streamed to LDS by DMA.
;   2. depthwise 5x5 conv as sparse MFMA with Toeplitz filter fragments (each wave owns 24 channels).
;   3. layer norm: per-wave partial sums exchanged through LDS, normalised activations written as bf16.
;   4. MLP per wave: a 32-pixel tile over all hidden units, a shared 32-pixel tile over half of them and a
;      4-pixel remainder over a quarter; tanh-GELU as x * rcp(1 + exp2(-x * (c + x * x))) on pre-scaled x.
;   5. out = x + gamma * (h + b2), stored in 64-byte segments.""".split("\n")
    out = head + [f"; @launch grid=(256,1,1) block=(256,1,1) lds={LDS_BYTES}",
                  '.amdgcn_target "amdgcn-amd-amdhsa--gfx950"', ".text", f".globl {KNAME}", ".p2align 12", ".p2align 8",
                  f".type {KNAME},@function", f"{KNAME}:"]
    for t in lines:
        out.append(t if t.endswith(":") or t.startswith(".") else "    " + t)
    out += ["L_end:", "    s_endpgm", '.section .rodata,"a"', ".p2align 6", f".amdhsa_kernel {KNAME}",
            "  .amdhsa_next_free_vgpr 512", "  .amdhsa_next_free_sgpr 102", "  .amdhsa_accum_offset 256",
            "  .amdhsa_group_segment_fixed_size 0", "  .amdhsa_kernarg_size 80", "  .amdhsa_user_sgpr_count 2",
            "  .amdhsa_user_sgpr_kernarg_segment_ptr 1", "  .amdhsa_system_sgpr_workgroup_id_x 1",
            ".end_amdhsa_kernel", ""]
    info = f"{len(trace)} instrs, {sum(isize(t) for t in trace)} bytes, {added} auto waits, {bad} misaligned, {npad} pads, {len(errs)} lint findings"
    return "\n".join(out), errs, info


if __name__ == "__main__":
    path = sys.argv[1]
    for kv in sys.argv[2:]:
        k, val = kv.split("=")
        OPT[k] = val if k.startswith(("probe", "only", "seg", "drop", "nop")) else {"0": False, "1": True}.get(val, val.replace("+", " "))
    text, errs, info = build()
    for e in errs:
        print("HAZARD", e)
    open(path, "w").write(text)
    print(f"wrote {path}: {info}")
```

```python
import math
import struct
import sys

from asmlint import check
from sched import trun, trun2, autowait, fix_align, isize

KNAME = "standalone__modern_conv_block_convnext__vision_kernel"
OPT = dict(nt="", stamps=False, verbose=False, align=True, st_h="sc1", st_f="sc1", st_r="sc1", hops=True, margin=16, nt2="", probe=None, probewg=None, only=None, cut0=0, cut=0, cut2=120, steal=8, drain=45, seg=None, tmaj=0, nop=None, real=False, drop=None, pfslice=True, nstage=0, nstat=0, hide=0, early=6, ilv=4, hoprow=6, rpf=0, rpos=1, xch=2, stagerow=12, ln2=0, rend=1, w2m=0, prew=0, q0lag=0, slotrow=14, wlines=18, xfirst=4, allx=0, rlate=0, st2late=0, dense=0)


def f32bits(x):
    return struct.unpack("<I", struct.pack("<f", x))[0]


def bf16_rne(x):
    u = f32bits(x)
    return (u + 0x7FFF + ((u >> 16) & 1)) >> 16


def bf16_val(h):
    return struct.unpack("<f", struct.pack("<I", h << 16))[0]


C1 = 2.0 * math.sqrt(2.0 / math.pi) * math.log2(math.e)
ALPHA = (C1 * 0.044715) ** (1.0 / 3.0)
CP = C1 / ALPHA
A_HI = bf16_rne(ALPHA)
A_LO = bf16_rne(ALPHA - bf16_val(A_HI))

W2L, W2E = 73728, 110592
XP, XG, XPL = 36864, 5776, 2880
ACT, AP = 36864, 208
TBL = 147456
ST = TBL
RBUF, XCH = 24576, 0
PB1, PB2, PGR, PG, PGB = 159744, 160768, 161792, 162816, 163200
ZERO = PB2 + 512
LDS_BYTES = 163584
ROWB = 43008
XBYTES = 9633792

SRD_X, SRD_DW, SRD_W1, SRD_W2, SRD_A, SRD_B, SRD_O = 20, 24, 28, 32, 36, 40, 48
sROW, sMA, sLUT2 = 44, 45, 46
sW, sPAR, sX0, sY0, sNP = 54, 55, 56, 57, 58
sT0, sT1, sT2, sT3 = 59, 60, 61, 62
sTB = 63
sCP, sONE, sINV, sLUT, sIA, sAL, sEPS, sMASK = 64, 66, 68, 70, 72, 74, 76, 78
sLO, sHI, sM1, sM2 = 10, 11, 14, 15
sS = (16, 17, 3)
sSTAMP = 80

vB2F, vL = 0, 1
vA, vB, vW2A, vW2B, vBA, vBB = 2, 3, 4, 5, 6, 7
vOFA, vRW, vOH, vOR, vGA, vR2A, vL16, vR2B = 8, 9, 10, 11, 12, 13, 14, 15
vR1, vRB, vR1X = 16, 17, 18
HR = 16
ACC = {"F": 20, "H": 68}
X = (116, 132, 148)
Z, E, R, H, TMP = 164, 180, 196, 212, 220
CV, AF = 116, 20
vIDX, vTA, vXB, vXW, vXO, vAW, vBF, vBH, vBR, vPF, vB2H, vG, vB2V, vSW, vBQ = range(92, 107)
vD1 = TMP + 35

aSTG = 0
aRB = (72, 108, 144)
aW1, aW2 = 0, (24, 48)
aBt = {"F": 72, "H": 96}
aBR, aRF = 120, 168
aRF2, aRACC = 120, 144
aBIAS, aC32, aC16, aRBIAS, aXR = 192, 196, 200, 216, 224


def v(i, n=1):
    return f"v{i}" if n == 1 else f"v[{i}:{i+n-1}]"


def a(i, n=1):
    return f"a{i}" if n == 1 else f"a[{i}:{i+n-1}]"


def s(i, n=1):
    return f"s{i}" if n == 1 else f"s[{i}:{i+n-1}]"


def L(t):
    return [x.strip() for x in t.strip("\n").split("\n") if x.strip()]


class Block(list):
    def __call__(self, t):
        self.extend(L(t) if isinstance(t, str) else t)

    def stamp(self, k):
        k = str(k)
        if OPT["seg"]:
            self.append(f"MARK_{k}:")
            return
        if OPT["probe"] is not None and k == "0":
            self("s_memtime s[96:97]")
            return
        if OPT["probe"] is not None:
            names = [OPT["probe"]]
        elif OPT["stamps"]:
            names = ["0"] + (OPT["only"] or DEFAULT_STAMPS).split(",") + ["end"]
        else:
            return
        if k in names:
            self(f"{'s_memrealtime' if OPT['real'] else 's_memtime'} s[100:101]\ns_waitcnt lgkmcnt(0)\ns_mov_b32 {s(sSTAMP + names.index(k))}, s100")


DEFAULT_STAMPS = "1,18,2,3,4,5,7,8,9,T3,P7,T12,P17,P19,T19,16"


def pk(op, d, x, y, z=None, mod=""):
    t = f"v_pk_{op}_f32 {v(d, 2)}, {x}, {y}"
    if z is not None:
        t += f", {z}"
    return t + mod


def p_t(xb, zb, n=16):
    return [pk("fma", zb + i, v(xb + i, 2), v(xb + i, 2), s(sCP, 2)) for i in range(0, n, 2)]


def p_z(xb, zb, n=16):
    return [pk("mul", zb + i, v(zb + i, 2), v(xb + i, 2), mod=" neg_lo:[1,0] neg_hi:[1,0]") for i in range(0, n, 2)]


def p_add(eb, n=16):
    return [pk("add", eb + i, v(eb + i, 2), s(sONE, 2)) for i in range(0, n, 2)]


def p_mul(rb, xb, n=16):
    return [pk("mul", rb + i, v(rb + i, 2), v(xb + i, 2)) for i in range(0, n, 2)]


def t_cvt(hb, rb, n=16):
    return [f"v_cvt_pk_bf16_f32 {v(hb + i // 2)}, {v(rb + i)}, {v(rb + i + 1)}" for i in range(0, n, 2)]


def t_rcp(rb, eb, n=16):
    return [f"v_rcp_f32 {v(rb + i)}, {v(eb + i)}" for i in range(n)]


def t_exp(eb, zb, n=16):
    return [f"v_exp_f32 {v(eb + i)}, {v(zb + i)}" for i in range(n)]


def unpack(dst, src, n):
    o = []
    for i in range(n):
        o += [f"v_lshlrev_b32 {v(dst + 2 * i)}, 16, {v(src + i)}", f"v_and_b32 {v(dst + 2 * i + 1)}, {s(sHI)}, {v(src + i)}"]
    return o


M32 = "v_mfma_f32_32x32x16_bf16"
M16 = "v_mfma_f32_16x16x32_bf16"

SLOTS = ([(t, "a", i, 0) for i in range(3) for t in "FH"] + [("F", "b", i, 0) for i in range(3)]
         + [(t, "a", i, 1) for i in range(3) for t in "HF"] + [("F", "b", i, 1) for i in range(3)])
NS = len(SLOTS)


def neww(j):
    return j == 0 or SLOTS[j][1:] != SLOTS[j - 1][1:]


UNITNO = []
for _j in range(NS):
    UNITNO.append((UNITNO[-1] if UNITNO else -1) + (1 if neww(_j) else 0))


def m_fc1(j):
    xb, bb = X[j % 3], aBt[SLOTS[j][0]]
    o = [f"{M32} {v(xb, 16)}, {a(aBIAS, 4)}, {a(aC32, 4)}, 0"]
    return o + [f"{M32} {v(xb, 16)}, {a(aW1 + 4 * k, 4)}, {a(bb + 4 * k, 4)}, {v(xb, 16)}" for k in range(6)]


def m_fc2(j):
    acc, wb = ACC[SLOTS[j][0]], aW2[UNITNO[j] % 2]
    return [f"{M32} {v(acc + 16 * t, 16)}, {a(wb + 4 * (3 * k + t), 4)}, {v(H + 4 * k, 4)}, "
            + ("0" if (j == 0 and k == 0) else v(acc + 16 * t, 16)) for k in range(2) for t in range(3)]


def r_w1(j):
    _, g, i, late = SLOTS[j]
    off = 12288 * i
    o = [f"ds_read_u16 {a(aBIAS)}, {v(vBA if g == 'a' else vBB)} offset:{128 * i + 384 * late}"]
    return o + [f"ds_read_b64_tr_b16 {a(aW1 + 4 * k + 2 * jj, 2)}, {v(vA if g == 'a' else vB)} offset:{off + 2048 * k + 256 * jj}"
                for k in range(6) for jj in range(2)]


def r_w2(j):
    _, g, i, late = SLOTS[j]
    wb = aW2[UNITNO[j] % 2]
    return [f"ds_read_b64_tr_b16 {a(wb + 4 * (3 * k + t) + 2 * jj, 2)}, {v(vW2A if g == 'a' else vW2B)} "
            f"offset:{12288 * i + 3072 * k + 1536 * jj + 64 * t}" for k in range(2) for t in range(3) for jj in range(2)]


def has(j):
    return 0 <= j < NS


STOLEN = {}


def P(j, pre=(), post=(), late_x=False):
    t = p_t(X[j % 3], Z) if has(j) else []
    z = p_z(X[j % 3], Z) if has(j) else []
    m = p_mul(R, X[(j - 2) % 3])[STOLEN.get(j, 0):] if has(j - 2) else []
    d = p_add(E) if has(j - 1) else []
    core = m + d + t + z if late_x else t + m + z + d
    o = Block(list(pre) + core + list(post))
    o.stamp(f"P{j}")
    return o


def T(j, xM=(), xF=(), xVpre=(), xV=(), xneed=None, tail=12, head=(), tmajor=False, last=("@lg all",), skip_w2=False):
    f1 = m_fc1(j + 1) if has(j + 1) else []
    f2 = m_fc2(j - 2) if has(j - 2) else []
    tmajor = tmajor or bool(int(OPT["tmaj"]))
    if tmajor and f2:
        f2 = [f2[3 * k + t] for t in range(3) for k in range(2)]
    M = f1 + f2 + list(xM)
    n = len(M)
    cv = t_cvt(H, R) if has(j - 2) else []
    V = cv + list(xVpre) + (t_rcp(R, E) if has(j - 1) else []) + (t_exp(E, Z) if has(j) else []) + list(xV)
    need = dict(xneed or {})
    if f2:
        need[len(f1)] = max(need.get(len(f1), 0), 6)
        k1 = len(f1) + (1 if tmajor else 3)
        need[k1] = max(need.get(k1, 0), 10 if len(V) >= 10 else len(V))
    F = list(xF)
    nm = len(f1) + len(f2) + sum("32x32" in m for m in xM)
    hi = max(0, nm - 4)
    if has(j + 2) and neww(j + 2):
        w = r_w1(j + 2)
        F += [(1 + k, max(1 + k, hi), [w[1 + 2 * k + jj]]) for k in range(5, -1, -1) for jj in range(2)] + [(0, hi, w[:1])]
    if has(j - 1) and neww(j - 1) and not skip_w2:
        F += [(0, hi, [x]) for x in r_w2(j - 1)]
    F += [(n - 1, n - 1, [x]) for x in last]
    steal = []
    if has(j - 1):
        base = len(cv) + len(xVpre)
        xb = X[(j - 1) % 3]
        steal = [(None, [f"v_mul_f32 {v(R + i + k)}, {v(R + i + k)}, {v(xb + i + k)}" for k in range(2)], base + i + 1)
                 for i in range(0, 16, 2)]
    o, STOLEN[j + 1] = trun2(M, F, V, need, list(head), steal, int(OPT["drain"]), int(OPT["steal"]))
    o = Block(o)
    o.stamp(f"T{j}")
    return o


def gen():
    b = Block()
    nt = OPT["nt"]
    t0, t1, t2, t3, t4, t5 = range(TMP, TMP + 6)
    vTB, vZ = TMP + 20, TMP + 24

    if OPT["pfslice"]:
        pfcalc = f"s_lshr_b32 s3, s2, 3\ns_lshl_b32 s3, s3, 10\nv_and_b32 {v(t0)}, 7, v0\nv_lshl_add_u32 {v(t0)}, {v(t0)}, 7, s3"
    else:
        pfcalc = f"v_lshlrev_b32 {v(t0)}, 7, v0"
    b.stamp(0)
    b(f"""
    s_cmp_ge_u32 s2, 256
    s_cbranch_scc1 L_end
    s_load_dwordx16 s[4:19], s[0:1], 0
    s_getpc_b64 s[52:53]
    L_pc:
    {pfcalc}
    v_min_u32 {v(t0)}, L_end-L_pc, {v(t0)}
    global_load_dword {v(vPF)}, {v(t0)}, s[52:53] ;@pf
    v_lshrrev_b32 {v(t1)}, 6, v0
    v_and_b32 {v(vL)}, 63, v0
    v_readfirstlane_b32 {s(sW)}, {v(t1)}
    s_and_b32 {s(sT0)}, s2, 1
    s_lshl_b32 {s(sT0)}, {s(sT0)}, 3
    s_bfe_u32 {s(sT1)}, s2, 0x30003
    s_add_u32 {s(sT0)}, {s(sT0)}, {s(sT1)}
    s_mul_i32 {s(sX0)}, {s(sT0)}, 14
    s_bfe_u32 {s(sT0)}, s2, 0x20001
    s_lshl_b32 {s(sT0)}, {s(sT0)}, 2
    s_lshr_b32 {s(sT1)}, s2, 6
    s_add_u32 {s(sT0)}, {s(sT0)}, {s(sT1)}
    s_mul_i32 {s(sY0)}, {s(sT0)}, 14
    v_mul_u32_u24 {v(t0)}, 43, {v(vL)}
    v_lshrrev_b32 {v(t0)}, 7, {v(t0)}
    v_mul_u32_u24 {v(t1)}, 3, {v(t0)}
    v_sub_u32 {v(t1)}, {v(vL)}, {v(t1)}
    v_and_b32 {v(t2)}, 7, {v(t0)}
    v_lshrrev_b32 {v(t0)}, 3, {v(t0)}
    v_mad_u32_u24 {v(t0)}, {v(t0)}, 5, {v(t2)}
    v_cmp_le_u32 vcc, 3, {v(t2)}
    v_mul_u32_u24 {v(t0)}, 192, {v(t0)}
    s_mul_i32 {s(sT0)}, {s(sW)}, 48
    s_sub_u32 {s(sT0)}, {s(sT0)}, 576
    v_lshl_add_u32 {v(t0)}, {v(t1)}, 4, {v(t0)}
    v_add_u32 {v(t0)}, {s(sT0)}, {v(t0)}
    v_bfrev_b32 {v(t5)}, 1
    v_cndmask_b32 {v(vTB)}, {v(t5)}, {v(t0)}, vcc
    s_mul_i32 {s(sT1)}, {s(sW)}, 56
    v_add_u32 {v(t1)}, {s(sT1)}, {v(vL)}
    v_mul_u32_u24 {v(t2)}, 171, {v(t1)}
    v_lshrrev_b32 {v(t2)}, 11, {v(t2)}
    s_sub_u32 {s(sT2)}, {s(sX0)}, 2
    v_add_u32 {v(t3)}, {s(sT2)}, {v(t2)}
    v_cmp_gt_u32 vcc, 224, {v(t3)}
    v_cmp_gt_u32 {s(sMASK, 2)}, 18, {v(t2)}
    s_mul_i32 {s(sT3)}, {s(sY0)}, {ROWB}
    s_mul_i32 {s(sT2)}, {s(sT2)}, 192
    s_add_u32 {s(sT3)}, {s(sT3)}, {s(sT2)}
    s_sub_u32 {s(sT3)}, {s(sT3)}, {2 * ROWB}
    s_and_b64 vcc, vcc, {s(sMASK, 2)}
    s_and_b32 vcc_hi, vcc_hi, 0xffffff
    v_lshl_add_u32 {v(vXO)}, {v(t1)}, 4, {s(sT3)}
    s_mul_i32 {s(sTB)}, {s(sW)}, 3072
    v_cndmask_b32 {v(vXO)}, {v(t5)}, {v(vXO)}, vcc
    s_add_u32 {s(sTB)}, {s(sTB)}, {TBL}
    s_mov_b32 m0, {s(sTB)}
    s_mov_b32 {s(SRD_X + 2)}, {XBYTES}
    s_mov_b32 {s(SRD_X + 3)}, 0x20000
    s_movk_i32 {s(SRD_DW + 2)}, 4800
    s_mov_b32 {s(SRD_DW + 3)}, 0x20000
    s_mov_b32 {s(sROW)}, {ROWB}
    """)
    b.append("@@PRE")
    b("s_waitcnt lgkmcnt(0)")
    b.stamp(1)

    def srd(dst, src, nbytes):
        return L(f"""
        s_mov_b32 {s(dst)}, {s(src)}
        s_mov_b32 {s(dst + 1)}, {s(src + 1)}
        s_mov_b32 {s(dst + 2)}, {nbytes}
        s_mov_b32 {s(dst + 3)}, 0x20000
        """)
    def xload(r):
        o = [f"buffer_load_dwordx4 {a(aSTG + 4 * r, 4)}, {v(vXO)}, {s(SRD_X, 4)}, 0 offen {nt} ;@x{r}"]
        if r < 17:
            o.append(f"v_add_u32 {v(vXO)}, {s(sROW)}, {v(vXO)}")
        return o
    b(f"s_mov_b32 {s(SRD_X)}, s4\ns_mov_b32 {s(SRD_X + 1)}, s5")
    xf = int(OPT["xfirst"])
    for r in range(xf):
        b(xload(r))
    b(f"s_mov_b32 {s(SRD_DW)}, s6\ns_mov_b32 {s(SRD_DW + 1)}, s7\ns_mov_b32 exec_hi, 0xffff")
    for d in range(4):
        b(f"buffer_load_dwordx4 {v(vTB)}, {s(SRD_DW, 4)}, 0 offen lds ;@tbl")
        if d < 3:
            b(f"s_add_u32 m0, m0, 768\nv_add_u32 {v(vTB)}, 1920, {v(vTB)}")
    b("s_mov_b32 exec_hi, -1")

    u = Block()
    ka = Block()
    ka(f"""
    s_lshl_b32 s52, {s(sW)}, 3
    s_lshr_b32 s53, 0x30302818, s52
    s_and_b32 s53, s53, 0xff
    s_load_dwordx2 {s(SRD_A, 2)}, s[0:1], s53
    s_lshr_b32 s53, 0x38382010, s52
    s_and_b32 s53, s53, 0xff
    s_load_dwordx2 {s(SRD_B, 2)}, s[0:1], s53
    s_cmp_eq_u32 {s(sW)}, 0
    s_movk_i32 s53, 192
    s_cselect_b32 {s(SRD_A + 2)}, 768, s53
    s_mov_b32 {s(SRD_A + 3)}, 0x20000
    s_min_u32 {s(sMA)}, {s(sW)}, 2
    s_lshl_b32 {s(sMA)}, {s(sMA)}, 10
    s_add_u32 {s(sMA)}, {s(sMA)}, {PB1}
    s_mov_b32 {s(SRD_B + 3)}, 0x20000
    """)
    for dst, src, n in ((SRD_W1, 8, 73728), (SRD_W2, 12, 73728), (SRD_O, 18, XBYTES)):
        ka(srd(dst, src, n))
    lut = 0
    for cp, col in enumerate([0, 4, 8, 12, 1, 5, 9, 13, 2, 6, 10, 3, 7, 11]):
        lut |= col << (4 * cp)
    lut2 = 0
    for rho in range(14):
        lut2 |= (4 * ((rho & 7) >> 1) + 2 * (rho >> 3) + (rho & 1)) << (4 * rho)
    lg, lxg, lrp, lh, lq, lr, l31, lh16 = range(TMP + 8, TMP + 16)
    ka(f"""
    s_mov_b32 {s(sLO)}, 0xffff
    s_mov_b32 {s(sHI)}, 0xffff0000
    s_mul_i32 {s(sM1)}, {s(sW)}, 3072
    s_mul_i32 {s(sM2)}, {s(sW)}, 9216
    s_mul_i32 {s(sS[0])}, {s(sW)}, 18432
    s_add_u32 {s(sS[1])}, {s(sS[0])}, 5120
    s_add_u32 {s(sS[2])}, {s(sS[0])}, 10240
    """)
    zv = [f"{M32} {v(CV + 16 * i, 16)}, {v(vZ, 4)}, {v(vZ, 4)}, 0" for i in range(6)]
    za = [f"{M32} {a(192 + 16 * i, 16)}, {v(vZ, 4)}, {v(vZ, 4)}, 0" for i in range(2)]
    za += [f"{M16} {a(rb + 32, 4)}, {v(vZ, 4)}, {v(vZ, 4)}, 0" for rb in aRB]
    u(f"""
    v_mov_b64 {v(vZ, 2)}, 0
    v_mov_b64 {v(vZ + 2, 2)}, 0
    s_and_b32 {s(sPAR)}, {s(sW)}, 1
    s_xor_b32 {s(sNP)}, {s(sPAR)}, 1
    v_mul_u32_u24 {v(t3)}, 12, {v(t2)}
    v_sub_u32 {v(t3)}, {v(t1)}, {v(t3)}
    v_subrev_u32 {v(t4)}, 56, {v(vL)}
    v_cmp_gt_u32 vcc, 56, {v(vL)}
    v_mov_b32 {v(t0)}, 18
    v_lshrrev_b32 {v(lg)}, 4, {v(vL)}
    v_cndmask_b32 {v(t3)}, {v(t4)}, {v(t3)}, vcc
    v_cndmask_b32 {v(t2)}, {v(t0)}, {v(t2)}, vcc
    v_mul_u32_u24 {v(t3)}, {XG}, {v(t3)}
    v_lshl_add_u32 {v(t3)}, {v(t2)}, 3, {v(t3)}
    v_add_u32 {v(vXW)}, {XP}, {v(t3)}
    v_and_b32 {v(lxg)}, 3, {v(vL)}
    v_bfe_u32 {v(lr)}, {v(vL)}, 2, 2
    v_lshrrev_b32 {v(lh)}, 5, {v(vL)}
    v_and_b32 {v(lq)}, 1, {v(lg)}
    v_and_b32 {v(l31)}, 31, {v(vL)}
    v_lshlrev_b32 {v(vL16)}, 4, {v(vL)}
    v_lshlrev_b32 {v(lh16)}, 4, {v(lh)}
    v_mul_u32_u24 {v(vIDX)}, 0x5555, {v(lxg)}
    v_lshl_add_u32 {v(t0)}, {v(lg)}, 2, {v(lr)}
    v_sub_u32 {v(t1)}, {v(t0)}, {v(lxg)}
    v_mul_u32_u24 {v(t1)}, 48, {v(t1)}
    s_add_u32 {s(sT0)}, {s(sTB)}, 144
    v_add_u32 {v(vTA)}, {s(sT0)}, {v(t1)}
    v_mul_u32_u24 {v(t0)}, 192, {v(t0)}
    v_lshl_add_u32 {v(t0)}, {v(lxg)}, 3, {v(t0)}
    s_mul_i32 {s(sT0)}, {s(sW)}, 6144
    s_add_u32 {s(sT1)}, {s(sT0)}, {W2L + 2 * 6144}
    v_add_u32 {v(vR2A)}, {s(sT1)}, {v(t0)}
    s_add_u32 {s(sT1)}, {s(sT0)}, {W2E + 4 * 6144}
    s_add_u32 {s(sT2)}, {s(sT0)}, {W2L - 2 * 6144}
    s_cmp_lt_u32 {s(sW)}, 2
    s_cselect_b32 {s(sT1)}, {s(sT1)}, {s(sT2)}
    v_add_u32 {v(vR2B)}, {s(sT1)}, {v(t0)}
    v_add_u32 {v(vRW)}, {s(sT0)}, {v(vL16)}
    v_lshlrev_b32 {v(t0)}, 1, {v(lxg)}
    v_add_u32 {v(t0)}, {v(t0)}, {v(lg)}
    v_min_u32 {v(t0)}, 8, {v(t0)}
    v_mul_u32_u24 {v(t1)}, 640, {v(lr)}
    s_mul_i32 {s(sT0)}, {s(sW)}, {3 * XG}
    s_add_u32 {s(sT0)}, {s(sT0)}, {XP}
    v_lshl_add_u32 {v(t0)}, {v(t0)}, 4, {v(t1)}
    v_add_u32 {v(vXB)}, {s(sT0)}, {v(t0)}
    v_lshrrev_b32 {v(t0)}, 2, {v(l31)}
    v_mul_u32_u24 {v(t0)}, 768, {v(t0)}
    v_lshl_add_u32 {v(t0)}, {v(lh)}, 6, {v(t0)}
    v_lshl_add_u32 {v(vD1)}, {v(lxg)}, 4, {v(t0)}
    v_min_u32 {v(t0)}, 11, {v(vL)}
    v_mul_u32_u24 {v(t0)}, {XG - 16}, {v(t0)}
    v_min_u32 {v(t1)}, 31, {v(vL)}
    v_lshl_add_u32 {v(t0)}, {v(t1)}, 4, {v(t0)}
    v_add_u32 {v(t0)}, {XP + 2 * XPL}, {v(t0)}
    """)
    u(f"ds_write_b128 {v(t0)}, {v(vZ, 4)}")
    pF, pH, pR = TMP + 16, TMP + 17, TMP + 18
    u(f"""
    s_mov_b32 {s(sCP)}, {f32bits(CP):#x}
    s_mov_b32 {s(sCP + 1)}, {f32bits(CP):#x}
    s_mov_b32 {s(sONE)}, 1.0
    s_mov_b32 {s(sONE + 1)}, 1.0
    s_mov_b32 {s(sINV)}, {f32bits(1 / 96):#x}
    s_mov_b32 {s(sINV + 1)}, {f32bits(1 / 96):#x}
    s_mov_b32 {s(sIA)}, {f32bits(1 / ALPHA):#x}
    s_mov_b32 {s(sIA + 1)}, {f32bits(1 / ALPHA):#x}
    s_mov_b32 {s(sAL)}, {f32bits(ALPHA):#x}
    s_mov_b32 {s(sAL + 1)}, {f32bits(ALPHA):#x}
    s_mov_b32 {s(sEPS)}, {f32bits(1e-5):#x}
    s_mov_b32 {s(sEPS + 1)}, {f32bits(1e-5):#x}
    s_mov_b32 {s(sLUT)}, {lut & 0xffffffff:#x}
    s_mov_b32 {s(sLUT + 1)}, {lut >> 32:#x}
    s_mov_b32 {s(sLUT2)}, {lut2 & 0xffffffff:#x}
    s_mov_b32 {s(sLUT2 + 1)}, {lut2 >> 32:#x}
    v_lshrrev_b32 {v(t0)}, 1, {v(lg)}
    v_and_b32 {v(t0)}, {v(t0)}, {v(lg)}
    v_lshl_add_u32 {v(t1)}, {v(lg)}, 2, {v(lxg)}
    v_sub_u32 {v(t1)}, {v(t1)}, {v(t0)}
    v_mad_u32_u24 {v(t1)}, {v(lr)}, 28, {v(t1)}
    v_lshl_add_u32 {v(t2)}, {v(lxg)}, 2, {v(lg)}
    v_cmp_gt_u32 vcc, 14, {v(t2)}
    v_mul_u32_u24 {v(t1)}, {AP}, {v(t1)}
    s_mul_i32 {s(sT0)}, {s(sW)}, 48
    s_add_u32 {s(sT0)}, {s(sT0)}, {ACT}
    v_add_u32 {v(t1)}, {s(sT0)}, {v(t1)}
    v_add_u32 {v(t2)}, {ACT + 196 * AP}, {v(vL16)}
    v_cndmask_b32 {v(vAW)}, {v(t2)}, {v(t1)}, vcc
    s_lshl_b32 {s(sT0)}, {s(sW)}, 5
    v_add_u32 {v(pF)}, {s(sT0)}, {v(l31)}
    s_lshr_b32 {s(sT0)}, {s(sW)}, 1
    s_lshl_b32 {s(sT0)}, {s(sT0)}, 5
    s_add_u32 {s(sT0)}, {s(sT0)}, 128
    s_lshl_b32 {s(sT1)}, {s(sPAR)}, 4
    v_xor_b32 {v(pH)}, {s(sT1)}, {v(l31)}
    v_add_u32 {v(pH)}, {s(sT0)}, {v(pH)}
    s_add_u32 {s(sT0)}, {s(sT0)}, {s(sT1)}
    v_and_b32 {v(pR)}, 15, {v(vL)}
    v_add_u32 {v(pR)}, {s(sT0)}, {v(pR)}
    v_add_u32 {v(t1)}, {ACT}, {v(lh16)}
    s_movk_i32 {s(sT1)}, {AP}
    v_mad_u32_u24 {v(vBF)}, {v(pF)}, {s(sT1)}, {v(t1)}
    v_mad_u32_u24 {v(vBH)}, {v(pH)}, {s(sT1)}, {v(t1)}
    v_lshlrev_b32 {v(t1)}, 4, {v(lg)}
    v_add_u32 {v(t1)}, {ACT + 192 * AP}, {v(t1)}
    v_mad_u32_u24 {v(vBR)}, {v(lxg)}, {s(sT1)}, {v(t1)}
    s_mul_i32 {s(sT2)}, {s(sY0)}, 224
    s_add_u32 {s(sT2)}, {s(sT2)}, {s(sX0)}
    s_movk_i32 {s(sT3)}, 224
    """)
    for p, dst in ((pF, vOFA), (pR, vOH)):
        u(f"""
        v_mul_u32_u24 {v(t1)}, 2341, {v(p)}
        v_lshrrev_b32 {v(t1)}, 15, {v(t1)}
        v_mul_u32_u24 {v(t2)}, 14, {v(t1)}
        v_sub_u32 {v(t2)}, {v(p)}, {v(t2)}
        v_lshlrev_b32 {v(t2)}, 2, {v(t2)}
        v_lshrrev_b64 {v(t4, 2)}, {v(t2)}, {s(sLUT, 2)}
        v_and_b32 {v(t2)}, 15, {v(t4)}
        v_lshlrev_b32 {v(t1)}, 2, {v(t1)}
        v_lshrrev_b64 {v(t4, 2)}, {v(t1)}, {s(sLUT2, 2)}
        v_and_b32 {v(t1)}, 15, {v(t4)}
        v_mad_u32_u24 {v(t1)}, {v(t1)}, {s(sT3)}, {v(t2)}
        v_add_u32 {v(t1)}, {s(sT2)}, {v(t1)}
        v_mul_u32_u24 {v(dst)}, 192, {v(t1)}
        """)
    u(f"""
    s_lshl_b32 {s(sT0)}, {s(sW)}, 2
    s_lshr_b32 {s(sT0)}, 0xb73a, {s(sT0)}
    s_and_b32 {s(sT0)}, {s(sT0)}, 15
    s_add_u32 {s(sT0)}, {s(sT0)}, {s(sT2)}
    s_add_u32 {s(sT0)}, {s(sT0)}, {11 * 224}
    s_mul_i32 {s(sT0)}, {s(sT0)}, 192
    v_lshl_add_u32 {v(t1)}, {v(vL)}, 3, {s(sT0)}
    v_cmp_gt_u32 vcc, 24, {v(vL)}
    v_bfrev_b32 {v(t5)}, 1
    v_add_u32 {v(vOFA)}, {v(vOFA)}, {v(lh16)}
    v_lshl_add_u32 {v(t2)}, {v(lq)}, 5, {v(lh16)}
    v_cndmask_b32 {v(vOR)}, {v(t5)}, {v(t1)}, vcc
    v_add_u32 {v(vOH)}, {v(vOH)}, {v(t2)}
    v_lshlrev_b32 {v(t1)}, 5, {v(lh)}
    v_add_u32 {v(vGA)}, {PG}, {v(t1)}
    s_lshl_b32 {s(sT0)}, {s(sPAR)}, 6
    s_lshl_b32 {s(sT1)}, {s(sNP)}, 6
    v_lshlrev_b32 {v(t1)}, 1, {v(l31)}
    v_add_u32 {v(t1)}, {PB1}, {v(t1)}
    v_add_u32 {v(vBA)}, {s(sT0)}, {v(t1)}
    v_add_u32 {v(vBB)}, {s(sT1)}, {v(t1)}
    v_lshlrev_b32 {v(t0)}, 6, {v(lr)}
    v_lshl_add_u32 {v(t0)}, {v(lxg)}, 3, {v(t0)}
    v_lshl_add_u32 {v(t1)}, {v(lg)}, 10, {v(t0)}
    s_lshr_b32 {s(sT2)}, {s(sW)}, 1
    s_mul_i32 {s(sT2)}, {s(sT2)}, 12288
    s_lshl_b32 {s(sT0)}, {s(sPAR)}, 9
    s_lshl_b32 {s(sT1)}, {s(sNP)}, 9
    s_add_u32 {s(sT2)}, {s(sT2)}, {s(sT0)}
    v_lshl_add_u32 {v(t1)}, {v(lq)}, 5, {v(t1)}
    v_add_u32 {v(vR1)}, {s(sT2)}, {v(t1)}
    v_xor_b32 {v(vR1X)}, 32, {v(vR1)}
    v_lshl_add_u32 {v(t0)}, {v(lh)}, 10, {v(t0)}
    v_lshl_add_u32 {v(t0)}, {v(lq)}, 5, {v(t0)}
    v_add_u32 {v(vA)}, {s(sT0)}, {v(t0)}
    v_add_u32 {v(vB)}, {s(sT1)}, {v(t0)}
    v_and_b32 {v(t0)}, 15, {v(vL)}
    s_lshl_b32 {s(sT0)}, {s(sW)}, 6
    s_add_u32 {s(sT0)}, {s(sT0)}, {PB1}
    v_lshl_add_u32 {v(vRB)}, {v(t0)}, 1, {s(sT0)}
    v_lshl_add_u32 {v(t0)}, {v(lh)}, 2, {v(lr)}
    v_mul_u32_u24 {v(t0)}, 192, {v(t0)}
    v_and_b32 {v(t1)}, 1, {v(lxg)}
    v_lshrrev_b32 {v(t2)}, 1, {v(lxg)}
    v_lshl_add_u32 {v(t1)}, {v(t1)}, 1, {v(t2)}
    v_lshl_add_u32 {v(t0)}, {v(t1)}, 3, {v(t0)}
    v_lshl_add_u32 {v(t0)}, {v(lq)}, 5, {v(t0)}
    s_mul_i32 {s(sT0)}, {s(sPAR)}, 6144
    s_add_u32 {s(sT0)}, {s(sT0)}, {W2E}
    s_mul_i32 {s(sT1)}, {s(sNP)}, 6144
    s_add_u32 {s(sT1)}, {s(sT1)}, {W2E}
    v_add_u32 {v(vW2A)}, {s(sT0)}, {v(t0)}
    v_add_u32 {v(vW2B)}, {s(sT1)}, {v(t0)}
    v_and_b32 {v(t1)}, 1, {v(lr)}
    v_lshrrev_b32 {v(t2)}, 1, {v(lr)}
    v_lshlrev_b32 {v(t2)}, 2, {v(t2)}
    v_lshl_add_u32 {v(t1)}, {v(t1)}, 3, {v(t2)}
    v_add_u32 {v(t1)}, {v(t1)}, {v(lxg)}
    v_lshl_add_u32 {v(t1)}, {v(lq)}, 4, {v(t1)}
    v_lshlrev_b32 {v(t1)}, 1, {v(t1)}
    v_add_u32 {v(vB2F)}, {PB2}, {v(t1)}
    v_cmp_eq_u32 vcc, {s(sPAR)}, {v(vZ)}
    v_mov_b32 {v(t2)}, {ZERO}
    v_mov_b32 {v(t0)}, {A_HI:#x}
    v_cndmask_b32 {v(vB2H)}, {v(t2)}, {v(vB2F)}, vcc
    v_mov_b32 {v(t1)}, {A_LO:#x}
    v_cmp_eq_u32 vcc, 0, {v(lh)}
    v_cmp_eq_u32 {s(sMASK, 2)}, 0, {v(lg)}
    v_mov_b32 {v(t3)}, 0
    v_cndmask_b32 {v(t2)}, {v(t1)}, {v(t0)}, vcc
    v_accvgpr_write_b32 {a(aC32)}, {v(t2)}
    v_cndmask_b32 {v(t2)}, {v(t1)}, {v(t0)}, {s(sMASK, 2)}
    v_cndmask_b32 {v(t2)}, {v(t3)}, {v(t2)}, vcc
    v_mov_b32 {v(t1)}, {ZERO}
    v_xor_b32 {v(t4)}, {v(lr)}, {v(lq)}
    """)
    for q in range(4):
        u(f"""
        v_cmp_eq_u32 vcc, {q}, {v(lr)}
        v_cmp_eq_u32 {s(sMASK, 2)}, {q}, {v(t4)}
        s_nop 0
        v_cndmask_b32 {v(t0)}, {v(t3)}, {v(t2)}, vcc
        v_cndmask_b32 {v(vBQ + q)}, {v(t1)}, {v(vBR)}, {s(sMASK, 2)}
        v_accvgpr_write_b32 {a(aC16 + 4 * q)}, {v(t0)}
        """)
    u(f"""
    s_lshl_b32 {s(sT0)}, {s(sW)}, 10
    s_add_u32 {s(sT0)}, {s(sT0)}, {ST}
    v_add_u32 {v(vSW)}, {s(sT0)}, {v(vL16)}
    s_lshr_b32 {s(sT0)}, s2, 3
    s_mul_i32 {s(sT0)}, {s(sT0)}, 2304
    s_mul_i32 {s(sT1)}, {s(sPAR)}, 13
    s_add_u32 {s(sT1)}, {s(sT1)}, {s(sY0)}
    s_mul_i32 {s(sT1)}, {s(sT1)}, {ROWB}
    s_mul_i32 {s(sT2)}, {s(sX0)}, 192
    s_add_u32 {s(sT1)}, {s(sT1)}, {s(sT2)}
    s_cmp_lt_u32 {s(sW)}, 2
    s_cselect_b32 {s(sT0)}, {s(sT0)}, {s(sT1)}
    s_cselect_b32 {s(sT1)}, {int(OPT['wlines'])}, 1
    s_cselect_b32 {s(SRD_B + 2)}, {s(SRD_W1 + 2)}, {s(SRD_O + 2)}
    v_lshl_add_u32 {v(t4)}, {v(vL)}, 7, {s(sT0)}
    v_cmp_gt_u32 vcc, {s(sT1)}, {v(vL)}
    s_nop 1
    v_cndmask_b32 {v(t4)}, {v(t5)}, {v(t4)}, vcc
    """)
    zs = za + zv
    w = Block()
    for n, x in enumerate(u):
        w.append(x)
        if n >= 4 and n % 7 == 4 and zs:
            w.append(zs.pop(0))
    assert not zs
    n0 = int(OPT["cut0"])
    while next((x for x in w[n0:] if x.startswith(("s_cmp", "s_cselect"))), "s_cmp").startswith("s_cselect"):
        n0 -= 1
    k0 = b.index("@@PRE")
    b[k0:k0 + 1] = w[:n0]
    u = Block(ka + w[n0:])
    ncut = int(OPT["cut"])
    b(u[:ncut])
    b.stamp(18)
    nh = int(OPT["hide"]) * (17 - int(OPT["early"]))
    kpre = next(k for k, x in enumerate(u) if x.startswith(f"s_lshr_b32 {s(sT0)}, s2, 3"))
    k1 = kpre - nh
    hidden = u[k1:kpre]
    pre = [x.replace(s(sT0), "s52").replace(s(sT1), "s53").replace(s(sT2), "s12").replace(v(t4), v(vG)).replace(v(t5), v(vB2V))
           .replace("vcc", s(18, 2)) for x in u[kpre:]]
    mid = u[ncut:k1] + [f"v_bfrev_b32 {v(vB2V)}, 1"] + pre
    per = min((len(mid) + 11 - xf) // (12 - xf), int(OPT["ilv"]))
    for r in range(xf, 12):
        b(xload(r))
        b(mid[per * (r - xf):per * (r - xf + 1)])
    allx = int(OPT["allx"])
    rest = mid[per * (12 - xf):]
    if allx:
        per2 = min((len(rest) + 5) // 6, allx - 1)
        for r in range(12, 18):
            b(xload(r))
            b(rest[per2 * (r - 12):per2 * (r - 11)])
        rest = rest[per2 * 6:]
    b(rest)
    b.stamp(2)

    hop = L(f"""
    s_mov_b64 exec, 0
    s_cmp_eq_u32 {s(sW)}, 1
    s_cbranch_scc1 L_pad3
    s_cmp_eq_u32 {s(sW)}, 2
    s_cbranch_scc1 L_pad5
    s_cmp_eq_u32 {s(sW)}, 3
    s_cbranch_scc1 L_pad7
    s_branch L_pad1
    .p2align 12
    L_body:
    s_mov_b64 exec, -1
    """)
    slots = L(f"""
    s_mov_b32 m0, {s(sMA)}
    buffer_load_dword {v(vB2V)}, {v(vG)}, {s(SRD_B, 4)}, 0 offen
    buffer_load_dwordx4 {v(vL16)}, {s(SRD_A, 4)}, 0 offen lds ;@par
    """)
    if OPT["hops"] and int(OPT["hoprow"]) < 0:
        b(hop)
    b("@lg all\n@vm tbl")
    b([f"ds_read_b64_tr_b16 {v(AF + (3 * j + t) * 4 + 2, 2)}, {v(vTA)} offset:{768 * t + 8 * j} ;@ard" for j in range(6) for t in range(3)])
    b.stamp(3)
    aexp = []
    for g in range(18):
        q = AF + 4 * g
        aexp += [f"v_and_b32 {v(q)}, {s(sLO)}, {v(q + 2)}", f"v_and_b32 {v(q + 1)}, {s(sHI)}, {v(q + 2)}",
                 f"v_and_b32 {v(q + 2)}, {s(sLO)}, {v(q + 3)}", f"v_and_b32 {v(q + 3)}, {s(sHI)}, {v(q + 3)}"]

    def w1dma(p, tag):
        o = []
        for i in range(3):
            pre = [f"s_add_u32 m0, {s(sM1)}, {12288 * p - 128 * p}", "s_nop 0"] if i == 0 else []
            o.append(pre + [f"buffer_load_dwordx4 {v(vD1)}, {s(SRD_W1, 4)}, {s(sS[i])} offen offset:{1024 * i + 128 * p} lds ;@{tag}"])
        return o

    def w2dma(late, tag):
        o = []
        for c in range(9):
            g = c >> 2
            pre = [f"s_add_u32 m0, {s(sM2)}, {(W2L if late else W2E) + 4096 * g}",
                   f"s_add_u32 {s(sT3)}, {s(sM2)}, {36864 * late + 4096 * g}"] if c % 4 == 0 else []
            o.append(pre + [f"buffer_load_dwordx4 {v(vL16)}, {s(SRD_W2, 4)}, {s(sT3)} offen offset:{1024 * (c & 3)} lds ;@{tag}"])
        return o
    early = (w1dma(0, "w1e") + w1dma(1, "w1e") + w1dma(2, "w1e"), w2dma(0, "w2e"))

    def stage(r):
        return [f"@vm x{r}", f"ds_write_b64 {v(vXW)}, {a(aSTG + 4 * r, 2)} offset:{160 * r}",
                f"ds_write_b64 {v(vXW)}, {a(aSTG + 4 * r + 2, 2)} offset:{XPL + 160 * r}"]
    w2m = int(OPT["w2m"])
    dmas = early[0] + ([] if w2m else early[1])
    nst = int(OPT["nstage"])
    ne = int(OPT["early"])
    for r in range(12 + ne, 18 - 6 * bool(allx)):
        b(xload(r))
    vq = aexp + hidden
    per = (len(vq) + 16 - ne) // (17 - ne)
    for r in range(18):
        if r == ne + 1:
            b("@lg ard")
        if r > ne:
            b(vq[per * (r - ne - 1):per * (r - ne)])
        b(stage(r))
        if r < ne and not allx:
            b(xload(12 + r))
        if r == int(OPT["slotrow"]):
            b(slots)
        if OPT["hops"] and r == int(OPT["hoprow"]):
            b(hop)
        b.stamp(f"x{r}")
        if int(OPT["stagerow"]) <= r < int(OPT["stagerow"]) + nst:
            b(dmas.pop(0))
    b([f"v_lshlrev_b32 {v(vG)}, 2, {v(vL)}", f"v_add_u32 {v(vG)}, {PB2}, {v(vG)}"])
    b("@lg all\ns_barrier")
    b.stamp(4)

    S, TP, TU, S2 = TMP, TMP + 8, H, H

    def acc(k, j):
        return CV + (k * 6 + j) * 4

    def reads(j):
        return [f"ds_read_b128 {a(aRB[j % 3] + 4 * r, 4)}, {v(vXB)} offset:{(j >> 1) * XG + (j & 1) * XPL + r * 160} ;@q{j}_{r}"
                for r in range(8)]

    def part(j):
        o = []
        for k in range(4):
            d = acc(k, j)
            o += [f"v_add_f32 {v(TP + 4 * j + k)}, {v(d)}, {v(d + 1)}", f"v_add_f32 {v(TU + k)}, {v(d + 2)}, {v(d + 3)}"]
        return o + [f"v_add_f32 {v(TP + 4 * j + k)}, {v(TP + 4 * j + k)}, {v(TU + k)}" for k in range(4)]
    b(reads(0))
    nstat = int(OPT["nstat"])
    sdma = dmas[len(dmas) - nstat:]
    dmas = dmas[:len(dmas) - nstat]
    ncv = len(dmas)
    where = {(72 * q + 36) // ncv: q for q in range(ncv)}
    pend = []
    for j in range(6):
        rd = reads(j + 1) if j < 5 else []
        for n in range(12):
            t, k = n >> 2, n & 3
            if j == 0 and n == 0:
                b("@lg q0_1")
            if t == 2 and int(OPT["dense"]):
                b(f"{M16} {v(acc(k, j), 4)}, {v(AF + (3 * j + t) * 4, 4)}, {a(aRB[j % 3] + 4 * (k + 4), 4)}, {v(acc(k, j), 4)}")
            else:
                b(f"v_smfmac_f32_16x16x64_bf16 {v(acc(k, j), 4)}, {v(AF + (3 * j + t) * 4, 4)}, {a(aRB[j % 3] + 4 * (k + 2 * t), 8)}, {v(vIDX)}")
            m = 12 * j + n
            if n == 4 and 0 < j < 5:
                pend += part(j - 1)
            if j == 0 and n in (0, 1, 2, 5):
                b(f"@lg q0_{(2, 3, 4, 0, 0, 7)[n]}")
            elif n == 5:
                b(f"@lg q{j}_7")
            elif n == 11 and j < 5:
                b(f"@lg q{j + 1}_4")
            if m in where:
                b(dmas[where[m]][-1:])
                continue
            pre = [x for x in dmas[where[m + 2]][:-1] if x != "s_nop 0"] if m + 2 in where else []
            b(pre)
            if rd and (j > 0 or n >= int(OPT["q0lag"])):
                b(rd.pop(0))
            if pend:
                b(pend.pop(0))
        assert len(rd) == 0, (j, rd)
    b.stamp(5)
    g0, g1, ga = AF + 16, AF + 18, vG
    b(pend)
    U = AF + 8
    for i in range(0, 24, 2):
        for k in range(4):
            d = acc(k, 0) + i
            b(pk("mul", AF + 2 * k, v(d, 2), v(d, 2)) if i == 0 else pk("fma", AF + 2 * k, v(d, 2), v(d, 2), v(AF + 2 * k, 2)))
        if sdma and i % 4 == 0:
            b(sdma.pop(0))
    for x in sdma:
        b(x)
    for k in range(4):
        b(pk("add", U + 2 * k, v(acc(k, 4), 2), v(acc(k, 4) + 2, 2)))
    for o in (0, 2):
        b(pk("add", TP + o, v(TP + o, 2), v(TP + 4 + o, 2)))
        b(pk("add", TP + 8 + o, v(TP + 8 + o, 2), v(TP + 12 + o, 2)))
    for i in (0, 2):
        for k in range(4):
            b(pk("add", U + 2 * k, v(U + 2 * k, 2), v(acc(k, 5) + i, 2)))
    for o in (0, 2):
        b(pk("add", TP + o, v(TP + o, 2), v(TP + 8 + o, 2)))
    for k in range(4):
        b(f"v_add_f32 {v(S + 4 * (k >> 1) + 2 + (k & 1))}, {v(AF + 2 * k)}, {v(AF + 2 * k + 1)}")
        b(f"v_add_f32 {v(TP + 4 + k)}, {v(U + 2 * k)}, {v(U + 2 * k + 1)}")
    for o in (0, 2):
        b(pk("add", S + 2 * o, v(TP + o, 2), v(TP + 4 + o, 2)))
    b(f"""
    ds_write_b128 {v(vSW)}, {v(S, 4)}
    ds_write_b128 {v(vSW)}, {v(S + 4, 4)} offset:4096
    v_add_u32 {v(vSW)}, {ST}, {v(vL16)}
    @vm w1e
    @lg all
    s_barrier
    """)
    b.stamp(7)

    Q = TMP
    for ph in range(2):
        for w in range(4):
            b(f"ds_read_b128 {v(Q + 16 * ph + 4 * w, 4)}, {v(vSW)} offset:{4096 * ph + 1024 * w} ;@s{ph}")
    pre = r_w1(0) + [f"ds_read_u16 {a(aRBIAS + 2 * t)}, {v(vB2H)} offset:{64 * t}" for t in range(3)]
    pre += [f"ds_read_b32 {v(g0 + 1)}, {v(ga)} offset:{PGR - PB2}", f"ds_read_b32 {v(g1 + 1)}, {v(ga)}"]
    prew = int(OPT["prew"])
    if not prew:
        b(pre[:7])
    qs = (Q, Q + 16)

    def fin(q):
        return ([pk("add", q + o, v(q + o, 2), v(q + 4 + o, 2)) for o in (0, 2)]
                + [pk("add", q + 8 + o, v(q + 8 + o, 2), v(q + 12 + o, 2)) for o in (0, 2)]
                + [pk("add", q + o, v(q + o, 2), v(q + 8 + o, 2)) for o in (0, 2)]
                + [pk("mul", q + o, v(q + o, 2), s(sINV, 2)) for o in (0, 2)]
                + [pk("fma", q + 2, v(q, 2), v(q, 2), v(q + 2, 2), " neg_lo:[1,0,0] neg_hi:[1,0,0]"),
                   f"v_max_f32 {v(q + 2)}, 0, {v(q + 2)}", f"v_max_f32 {v(q + 3)}, 0, {v(q + 3)}",
                   pk("add", q + 2, v(q + 2, 2), s(sEPS, 2)),
                   f"v_rsq_f32 {v(q + 2)}, {v(q + 2)}", f"v_rsq_f32 {v(q + 3)}, {v(q + 3)}", "s_nop 0",
                   pk("mul", q + 2, v(q + 2, 2), s(sAL, 2)),
                   pk("mul", q, v(q, 2), v(q + 2, 2), mod=" neg_lo:[1,0] neg_hi:[1,0]")])
    f0, f1 = fin(qs[0]), fin(qs[1])
    if int(OPT["ln2"]):
        b("@lg s0")
        b(f0)
        b("@lg s1")
        b(pre[7:])
        f1 = [x for x in f1 if x != "s_nop 0"]
    else:
        b("@lg s0")
        b(f0[:4])
        b("@lg s1")
        if not prew:
            b(pre[7:])
        b(f1[:4])
        b([x for p in zip(f0[4:], f1[4:]) for x in p if x != "s_nop 0"])
        f1 = []
    for k in range(4):
        ph, sx = k >> 1, k & 1
        base, q = CV + 24 * k, qs[ph]
        for jj in range(3):
            for i in range(8 * jj, 8 * jj + 8, 2):
                b(pk("fma", base + i, v(base + i, 2), v(q + 2, 2), v(q, 2), f" op_sel:[0,{sx},{sx}] op_sel_hi:[1,{sx},{sx}]"))
                if f1 and i % 4 == 0:
                    b(f1.pop(0))
            for i in range(4 * jj, 4 * jj + 4):
                b(f"v_cvt_pk_bf16_f32 {v(base + 4 * jj + i)}, {v(base + 2 * i)}, {v(base + 2 * i + 1)}")
                if f1 and i % 4 == 1:
                    b(f1.pop(0))
            b(f"ds_write_b128 {v(vAW)}, {v(base + 8 * jj, 4)} offset:{(8 * ph + sx) * 14 * AP + 16 * jj}")
            if prew:
                b(pre[:2])
                pre = pre[2:]
        assert k == 0 or not f1
    b("@lg all\ns_barrier")
    b.stamp(8)

    b([f"ds_read_b128 {a(aBt['F'] + 4 * k, 4)}, {v(vBF)} offset:{32 * k} ;@bf{k}" for k in range(6)])
    b([f"ds_read_b128 {a(aBt['H'] + 4 * k, 4)}, {v(vBH)} offset:{32 * k}" for k in range(6)])
    late = w1dma(3, "wl") + w1dma(4, "wl") + w1dma(5, "wl") + w2dma(1, "wl")
    M = m_fc1(0)
    bq = [f"ds_read_b128 {a(aBR + 12 * q + 4 * k, 4)}, {v(vBQ + q)} offset:{64 * k}" for q in range(4) for k in range(3)]
    F = [(k, k, [f"@lg bf{k}"]) for k in range(6)]
    if w2m:
        F += [(2 * k, 2 * k, early[1][k]) for k in range(4)]
    else:
        F += [(1 + k, 1 + k, bq[2 * k:2 * k + 2]) for k in range(6)]
    gt = unpack(g0, g0 + 1, 1) + unpack(g1, g1 + 1, 1) + L(f"""
    v_lshlrev_b32 {v(ga)}, 3, {v(vL)}
    v_mul_f32 {v(g1)}, {v(g1)}, {v(g0)}
    v_mul_f32 {v(g1 + 1)}, {v(g1 + 1)}, {v(g0 + 1)}
    v_mul_f32 {v(g0)}, {s(sIA)}, {v(g0)}
    v_mul_f32 {v(g0 + 1)}, {s(sIA)}, {v(g0 + 1)}
    v_add_u32 {v(ga)}, {PG}, {v(ga)}
    """)
    b(trun(M, F, gt, need={}, tail=0))
    b(f"""
    s_mov_b32 exec_hi, 0xffff
    ds_write_b64 {v(ga)}, {v(g0, 2)}
    ds_write_b64 {v(ga)}, {v(g1, 2)} offset:{PGB - PG}
    s_mov_b32 exec_hi, -1
    s_nop 5
    """)
    b.stamp(9)
    b(P(0))
    hinit = [f"{M32} {v(ACC['H'] + 16 * t, 16)}, {a(aRBIAS + 2 * t, 4)}, {a(aC32, 4)}, 0" for t in range(3)]
    if w2m:
        b(T(0, head=("@lg all",), xF=[(k, k, early[1][4 + k]) for k in range(5)] + [(0, 1, [x]) for x in bq[:3]], last=()))
        b(P(1, late_x=True))
        b(T(1, head=("@lg all",), xM=hinit, xF=[(0, 6, [x]) for x in bq[3:]], skip_w2=True))
        b(P(2))
        F_ = [(k // 3, k // 3, [x + " ;@w20"]) for k, x in enumerate(r_w2(0))] + [(6, 6, ["@lg w20"])]
        b(T(2, head=("@vm w2e", "s_barrier"), xF=F_ + [(4 + 2 * k, 4 + 2 * k, late[k]) for k in range(4)]))
        b(P(3))
        b(T(3, xF=[(1 + 2 * k, 1 + 2 * k, late[4 + k]) for k in range(5)]))
        b(P(4))
        b(T(4, xF=[(1 + 2 * k, 1 + 2 * k, late[9 + k]) for k in range(5)]))
    else:
        b(T(0, xF=[(0, 0, ["@vm w2e", "@lg all", "s_barrier"]), (2, 2, late[0]), (4, 4, late[1]), (6, 6, late[2])], last=()))
        b(P(1, late_x=True))
        b(T(1, head=("@lg all",), xM=hinit, xF=[(1 + 2 * k, 1 + 2 * k, late[3 + k]) for k in range(4)]))
        b(P(2))
        b(T(2, xF=[(1 + 3 * k, 1 + 3 * k, late[7 + k]) for k in range(4)]))
        b(P(3))
        b(T(3, xF=[(1 + 3 * k, 1 + 3 * k, late[11 + k]) for k in range(4)]))
        b(P(4))
        b(T(4, xF=[(4 * k, 4 * k, late[15 + k]) for k in range(3)]))

    XR, WK = TMP + 4, TMP + 12

    def r_fc1(m):
        rd = [f"ds_read_u16 {a(aRBIAS + 2 * mh)}, {v(vRB)} offset:{256 * m + 32 * mh}" for mh in range(2)]
        rd += [f"ds_read_b64_tr_b16 {a(aRF + 12 * mh + 4 * k + 2 * jj, 2)}, {v((vR1, vR1X)[mh])} offset:{24576 * m + 4096 * k + 256 * jj} ;@rf"
               for k in range(3) for mh in range(2) for jj in range(2)]
        x = a(aXR + 4 * (m >> 1), 4) if int(OPT["rlate"]) else v(XR + 4 * (m >> 1), 4)
        M = []
        for mh in range(2):
            q = (2 * m + mh) & 3
            M.append(f"{M16} {x}, {a(aRBIAS + 2 * mh, 4)}, {a(aC16 + 4 * q, 4)}, {x if q else '0'}")
            M += [f"{M16} {x}, {a(aRF + 12 * mh + 4 * k, 4)}, {a(aBR + 12 * q + 4 * k, 4)}, {x}" for k in range(3)]
        return M, [(0, 8, [x_]) for x_ in rd] + [(12, 12, ["@lg rf"])]

    bumpA = [f"v_subrev_u32 {v(vW2A)}, 36864, {v(vW2A)}", f"v_add_u32 {v(vA)}, 36864, {v(vA)}"]
    bumpB = [f"v_subrev_u32 {v(vW2B)}, 36864, {v(vW2B)}", f"v_add_u32 {v(vB)}, 36864, {v(vB)}"]
    f1pos, g0 = (((5, 7, 8), 9), ((6, 8, 10), 11))[int(OPT["rpos"])]
    rlate = int(OPT["rlate"])
    if rlate:
        g0 = 99
    for j in range(5, 15):
        post = {g0: p_t(XR, WK, 8) + p_z(XR, WK, 8), g0 + 1: p_add(WK, 8), g0 + 2: p_mul(WK, XR, 8)}.get(j, [])
        b(P(j, post=post))
        if j == 7:
            b("@vm wl\ns_barrier")
        M_, F_ = r_fc1(f1pos.index(j)) if j in f1pos else ([], [])
        if j == 5 and w2m:
            F_ = F_ + [(2 * k, 2 * k, late[14 + k]) for k in range(4)]
        V_ = {g0: t_exp(WK, WK, 8), g0 + 1: t_rcp(WK, WK, 8), g0 + 2: t_cvt(HR, WK, 8)}.get(j, [])
        b(T(j, xM=M_, xF=F_, xV=V_ + {6: bumpA, 11: bumpB}.get(j, [])))
    HX, FX, RX = TMP, TMP + 12, vA
    AH, AFc = ACC["H"], ACC["F"]
    nt2 = OPT["nt2"]
    hx = [f"buffer_load_dwordx4 {v(HX + 4 * t, 4)}, {v(vOH)}, {s(SRD_X, 4)}, 0 offen offset:{64 * t} {nt2} ;@hx" for t in range(3)]
    fx = [f"buffer_load_dwordx4 {v(FX + 4 * c, 4)}, {v(vOFA)}, {s(SRD_X, 4)}, 0 offen offset:{32 * c} {nt2} ;@fx" for c in range(6)]
    vXR_, vGH_, vOFB = vBA, vW2A, vBB
    b(P(15))
    F_ = [(1 + 2 * t, 1 + 2 * t, [hx[t]]) for t in range(3)] + [(7 + 2 * c, 7 + 2 * c, fx[c:c + 1]) for c in range(3)]
    F_ += [(0, 0, [f"s_xor_b32 {s(sT0)}, {s(sW)}, 1"]), (1, 1, [f"s_mul_i32 {s(sT0)}, {s(sT0)}, 6144"])]
    V_ = L(f"""
    v_add_u32 {v(vXR_)}, {s(sT0)}, {v(vL16)}
    v_bfe_u32 {v(vGH_)}, {v(vL)}, 4, 1
    v_lshl_add_u32 {v(vGH_)}, {v(vGH_)}, 6, {v(vGA)}
    """)
    odd = lambda c: AH + 16 * (c >> 1) + 8 + 4 * (c & 1)
    sw = [f"v_permlane16_swap_b32 {v(AH + 16 * t + i)}, {v(AH + 16 * t + 8 + i)}" for t in range(3) for i in range(8)]
    xw = [f"ds_write_b128 {v(vRW)}, {v(odd(c), 4)} offset:{XCH + 1024 * c} ;@xw" for c in range(6)]
    xr = [f"ds_read_b128 {v(odd(c), 4)}, {v(vXR_)} offset:{XCH + 1024 * c}" for c in range(6)]
    if int(OPT["xch"]):
        b(T(15, xF=F_, xV=V_ + sw[:8], tmajor=True))
        b(P(16, pre=xw[:1], post=sw[8:16] + xw[1:2] + sw[16:]))
        if int(OPT["xch"]) == 1:
            F_ = [(2 * c, 2 * c, xw[2 + c:3 + c]) for c in range(4)] + [(8, 8, ["@lg xw", "s_barrier"])]
            F_ += [(9 + c // 2, 9 + c // 2, xr[c:c + 1]) for c in range(6)]
        else:
            F_ = [(c, c, xw[2 + c:3 + c]) for c in range(4)] + [(7, 7, ["@lg xw", "s_barrier"])]
            F_ += [(8 + c // 2, 8 + c // 2, xr[c:c + 1]) for c in range(6)]
    else:
        b(T(15, xF=F_, xV=V_))
        b(P(16, post=sw))
        F_ = [(c, c, xw[c:c + 1]) for c in range(6)] + [(7, 7, ["@lg xw", "s_barrier"])]
        F_ += [(8 + c // 2, 8 + c // 2, xr[c:c + 1]) for c in range(6)]
    F_ += [(6, 6, [f"ds_read_u16 {a(aRBIAS + 2 * t)}, {v(vB2F)} offset:{64 * t}" for t in range(3)])]
    F_ += [(6, 6, fx[3:4]), (11, 11, fx[4:5]), (12, 12, [f"buffer_load_dwordx2 {v(RX, 2)}, {v(vOR)}, {s(SRD_X, 4)}, 0 offen"])]
    b(T(16, xF=F_, last=(), xV=[f"v_add_u32 {v(vOFB)}, 32, {v(vOFA)}"]))
    post = [pk("add", AH + 16 * t + i, v(AH + 16 * t + i, 2), v(AH + 16 * t + 8 + i, 2)) for t in range(3) for i in range(0, 8, 2)]
    b(P(17, post=["@lg all"] + post))
    finit = [f"{M32} {v(AFc + 16 * t, 16)}, {a(aRBIAS + 2 * t, 4)}, {a(aC32, 4)}, {v(AFc + 16 * t, 16)}" for t in range(3)]
    GH = (X[0], X[0] + 8, Z)
    GF = (AH, AH + 16, X[0], X[0] + 8, Z + 8, R)
    gh = [f"ds_read_b128 {v(GH[t] + 4 * k, 4)}, {v(vGH_)} offset:{128 * t + 16 * k}" for t in range(3) for k in range(2)]
    gf = [f"ds_read_b128 {v(GF[c] + 4 * k, 4)}, {v(vGA)} offset:{64 * c + 16 * k}" for c in range(6) for k in range(2)]

    rend = int(OPT["rend"])
    RFB = (aRF, aRF2, aBt["H"], aW1) if rend else (aRF, aRF2, aRF, aRF2)

    def rw2(q):
        fb = RFB[q]
        o = []
        for jj in range(2 - (q >> 1)):
            tau = q + 4 * jj
            reg, off = ((vR2A, 24576), (vR2B, 0), (vR2A, 0))[tau >> 1]
            o += [f"ds_read_b64_tr_b16 {a(fb + 4 * c + 2 * jj, 2)}, {v(reg)} offset:{off + 3072 * (tau & 1) + 32 * c}" for c in range(6)]
        return o
    F_ = [(0, 5, [x]) for x in gh[:4] + ([] if rlate else rw2(0))] + [(2, 2, fx[5:6]), (0, 0, ["@vm hx"])]
    V_ = [x for t in range(3) for x in unpack(AH + 16 * t + 8, HX + 4 * t, 4)]
    b(T(17, xM=finit, xF=F_, xV=V_))
    hf = lambda t: [pk("fma", AH + 16 * t + 8 + i, v(AH + 16 * t + i, 2), v(GH[t] + i, 2), v(AH + 16 * t + 8 + i, 2)) for i in range(0, 8, 2)]
    hc = lambda t: t_cvt(HX + 4 * t, AH + 16 * t + 8, 8)
    hs = [f"buffer_store_dwordx4 {v(HX + 4 * t, 4)}, {v(vOH)}, {s(SRD_O, 4)}, 0 offen offset:{64 * t} {OPT['st_h']}" for t in range(3)]
    b(P(18, post=hf(0) + hf(1)))
    UF = (X[1], X[1] + 8, X[2], X[2] + 8, E, E + 8)
    F_ = [(0, 3, [x]) for x in gh[4:] + gf[:10] + (rw2(2) if rend and not rlate else [])] + [(3, 3, hs[:1]), (5, 5, hs[1:2]), (3, 3, ["@vm fx"])]
    V_ = unpack(UF[0], FX, 4) + unpack(UF[1], FX + 4, 4) + [f"v_permlane16_swap_b32 {v(vOFA)}, {v(vOFB)}"]
    b(T(18, xF=F_, xVpre=hc(0) + hc(1), xV=V_, xneed={3: 12, 5: 16}))
    b(P(19, post=hf(2)))

    def ftail(t, plain):
        o = []
        for c in (2 * t, 2 * t + 1):
            if plain:
                o += [f"v_fma_f32 {v(UF[c] + i)}, {v(AFc + 8 * c + i)}, {v(GF[c] + i)}, {v(UF[c] + i)}" for i in range(8)]
            else:
                o += [pk("fma", UF[c] + i, v(AFc + 8 * c + i, 2), v(GF[c] + i, 2), v(UF[c] + i, 2)) for i in range(0, 8, 2)]
        for c in (2 * t, 2 * t + 1):
            o += t_cvt(FX + 4 * c, UF[c], 8)
        o += [f"v_permlane16_swap_b32 {v(FX + 8 * t + i)}, {v(FX + 8 * t + 4 + i)}" for i in range(4)]
        return o

    def fst(t):
        return [f"buffer_store_dwordx4 {v(FX + 8 * t + 4 * k, 4)}, {v((vOFA, vOFB)[k])}, {s(SRD_O, 4)}, 0 offen offset:{64 * t} {OPT['st_f']}"
                for k in range(2)]
    V_ = hc(2) + [x for c in range(2, 6) for x in unpack(UF[c], FX + 4 * c, 4)][:20] + ftail(0, True)
    F_ = [(1, 1, gf[10:]), (2, 2, hs[2:3])] + [(0, 3, [x]) for x in ([] if rlate else rw2(1) + (rw2(3) if rend else []))]
    b(T(19, xF=F_, xV=V_, xneed={2: 12}, tmajor=True))
    b(fst(0))
    b.stamp("f0")
    b([x for c in range(2, 6) for x in unpack(UF[c], FX + 4 * c, 4)][20:])
    for t in (1, 2):
        b(ftail(t, False))
        if t == 1 or not rend or (rlate and not int(OPT["st2late"])):
            b(fst(t))
        b.stamp(f"f{t}")

    HQ, RA = AH, AH + 16
    PP, PGm, PBm, RU, ra, rg, rw = X[0], X[1], X[1] + 4, X[1] + 8, X[2], X[2] + 1, X[2] + 2
    hq = lambda q: HR if q == 0 else HQ + 4 * (q - 1)
    if rlate:
        XE, WE = Z, R
        st2 = fst(2) if int(OPT["st2late"]) else ["s_nop 0", "s_nop 0"]
        b(rw2(0))
        b([f"v_accvgpr_read_b32 {v(XE + i)}, {a(aXR + i)}" for i in range(8)])
        b(p_t(XE, WE, 8) + p_z(XE, WE, 8))
        b([x for x in st2[:1] if x != "s_nop 0"] + rw2(1))
        b(t_exp(WE, WE, 8) + p_add(WE, 8))
        b([x for x in st2[1:] if x != "s_nop 0"] + rw2(2) + rw2(3))
        b(t_rcp(WE, WE, 8) + p_mul(WE, XE, 8) + t_cvt(HR, WE, 8) + ["@lg all", "s_nop 0"])
    rrot = [f"v_mov_b32_dpp {v(hq(q) + i)}, {v(HR + i)} row_ror:{16 - 4 * q} row_mask:0xf bank_mask:0xf" for q in (1, 2, 3) for i in range(4)]
    M_ = [f"{M16} {v(RA + 4 * c, 4)}, {a(RFB[q] + 4 * c, 4)}, {v(hq(q), 4)}, {v(RA + 4 * c, 4) if q else '0'}"
          for q in range(4) for c in range(6)]
    r2, r3 = rw2(2), rw2(3)
    F_ = [(c, c, r2[c:c + 1]) for c in range(6)] + [(6 + c, 6 + c, r3[c:c + 1]) for c in range(6)]
    if rend:
        F_ = [] if rlate else [(3, 3, fst(2)[:1]), (9, 9, fst(2)[1:])]
    F_ += [(0, 0, [f"s_mul_i32 {s(sT0)}, {s(sW)}, 2176"]), (1, 1, [f"s_lshl_b32 {s(sT1)}, {s(sW)}, 4"])]
    F_ += [(20, 20, [f"ds_read_b128 {v(PGm, 4)}, {v(rg)}"]), (21, 21, [f"ds_read_b128 {v(PBm, 4)}, {v(rg)} offset:{PGB - PG}"])]
    V_ = rrot + L(f"""
    v_min_u32 {v(rg)}, 23, {v(vL)}
    v_and_b32 {v(ra)}, 3, {v(rg)}
    v_mul_u32_u24 {v(ra)}, 272, {v(ra)}
    v_bfe_u32 {v(rw)}, {v(rg)}, 2, 2
    v_lshl_add_u32 {v(ra)}, {v(rw)}, 6, {v(ra)}
    v_lshrrev_b32 {v(rw)}, 4, {v(rg)}
    v_mul_u32_u24 {v(rw)}, 1088, {v(rw)}
    v_add3_u32 {v(ra)}, {v(ra)}, {v(rw)}, {s(sT1)}
    v_lshlrev_b32 {v(rg)}, 4, {v(rg)}
    v_add_u32 {v(rg)}, {PG}, {v(rg)}
    v_lshrrev_b32 {v(rw)}, 4, {v(vL)}
    v_add_u32 {v(rw)}, {v(rw)}, {v(vL)}
    v_lshl_add_u32 {v(rw)}, {v(rw)}, 4, {s(sT0)}
    """) + unpack(RU, RX, 2)
    o, _ = trun2(M_, F_, V_, {6: 6, 12: 10, 18: 14, 20: 22}, [], drain=8)
    b(o)
    b("s_nop 1")
    for c in (1, 2, 3, 5):
        for i in range(4):
            b(f"v_mov_b32_dpp {v(RA + 16 * (c >> 2) + i)}, {v(RA + 4 * c + i)} row_shr:{4 * (c & 3)} row_mask:0xf bank_mask:{1 << (c & 3):#x}")
        if c == 3:
            b(f"ds_write_b128 {v(rw)}, {v(RA, 4)} offset:{RBUF}")
    b(f"ds_write_b128 {v(rw)}, {v(RA + 16, 4)} offset:{RBUF + 1088}")
    b("@lg all\ns_barrier")
    b([f"ds_read_b128 {v(PP + 4 * w, 4)}, {v(ra)} offset:{RBUF + 2176 * w}" for w in range(4)])
    b([pk("add", RU + i, v(RU + i, 2), v(PBm + i, 2)) for i in (0, 2)])
    b([pk("add", PP + i, v(PP + i, 2), v(PP + 4 + i, 2)) for i in (0, 2)])
    b([pk("add", PP + 8 + i, v(PP + 8 + i, 2), v(PP + 12 + i, 2)) for i in (0, 2)])
    b([pk("add", PP + i, v(PP + i, 2), v(PP + 8 + i, 2)) for i in (0, 2)])
    b([pk("fma", RU + i, v(PP + i, 2), v(PGm + i, 2), v(RU + i, 2)) for i in (0, 2)])
    b(t_cvt(RX, RU, 4))
    b(f"buffer_store_dwordx2 {v(RX, 2)}, {v(vOR)}, {s(SRD_O, 4)}, 0 offen {OPT['st_r']}")
    b.stamp(16)
    if OPT["probe"] is not None:
        b("@vm all")
        b.stamp("end")
        b(f"s_sub_u32 s98, {s(sSTAMP)}, s96" if OPT["probe"] != "0" else "s_mov_b32 s98, 0")
        if OPT["probewg"] is not None:
            b(f"s_cmp_eq_u32 s2, {OPT['probewg']}\ns_cselect_b32 s98, s98, 0")
        b("""
        s_lshl_b32 s98, s98, 3
        s_add_u32 s98, s98, 40000
        L_diag:
        s_memtime s[100:101]
        s_waitcnt lgkmcnt(0)
        s_sub_u32 s100, s100, s96
        s_cmp_lt_u32 s100, s98
        s_cbranch_scc1 L_diag
        """)
    elif OPT["stamps"]:
        b("@vm all")
        b.stamp("end")
        b(f"""
        s_load_dwordx2 s[4:5], s[0:1], 72
        s_waitcnt lgkmcnt(0)
        s_lshl_b32 s6, s2, 2
        s_add_u32 s6, s6, {s(sW)}
        s_lshl_b32 s6, s6, 7
        v_mov_b32 v0, s6
        s_mov_b32 s6, 0x100000
        s_mov_b32 s7, 0x20000
        s_mov_b64 exec, 1
        """)
        for k in range(1, 20):
            kk = min(k, len((OPT["only"] or DEFAULT_STAMPS).split(",")) + 1)
            b(f"s_sub_u32 s8, {s(sSTAMP + kk)}, {s(sSTAMP)}" if not OPT["real"] else
              (f"s_mov_b32 s8, {s(sSTAMP + min(k - 1, kk + 5 if kk == k else kk))}" if k < 19 else "s_getreg_b32 s8, hwreg(HW_REG_XCC_ID, 0, 4)"))
            b("v_mov_b32 v2, s8")
            b(f"buffer_store_dword v2, v0, s[4:7], 0 offen offset:{4 * k}")
        b("@vm all")
    return b


def add_pads(lines, start):
    out = []
    off = None
    n = 0
    for t in lines:
        if t == "L_body:":
            off = start
            out.append(f".fill {start // 4}, 4, 0xbf800000")
        if off is not None and not t.endswith(":") and not t.startswith("."):
            sz = isize(t)
            if off + sz > 4096 * (n + 1):
                while off < 4096 * (n + 1):
                    out.append("s_nop 0")
                    off += 4
                n += 1
                out.append(f"L_pad{n}:")
                out.append(f"s_cbranch_execz {'L_pad%d' % (n + 1) if n % 2 else 'L_body'}")
                out.append("s_nop 0")
                off += 8
            off += sz
        out.append(t)
    return out, n, off + 4


def loop_segment(b):
    import re
    m0, m1 = OPT["seg"].split(",")
    i0, i1 = b.index(f"MARK_{m0}:"), b.index(f"MARK_{m1}:")
    body = [x for x in b[i0:i1] if not x.startswith("MARK_")]
    if OPT["drop"]:
        body = [x for x in body if not re.search(OPT["drop"], x)]
    if OPT["nop"]:
        body = [("s_nop 1" if re.match("v_exp|v_rcp", x) else "s_nop 0") if re.search(OPT["nop"], x) else x for x in body]
    o = Block([x for x in b[:i0] if not x.startswith("MARK_")])
    o("@vm all\n@lg all\ns_barrier\ns_mov_b32 s99, 0\ns_memrealtime s[94:95]\ns_memtime s[96:97]\ns_waitcnt lgkmcnt(0)\n.p2align 6\nL_seg:")
    o(body * 5)
    o("""
    s_add_u32 s99, s99, 1
    s_cmp_lt_u32 s99, 5
    s_cbranch_scc1 L_seg
    @vm all
    s_memtime s[100:101]
    s_memrealtime s[92:93]
    s_load_dwordx2 s[4:5], s[0:1], 72
    s_waitcnt lgkmcnt(0)
    s_sub_u32 s8, s100, s96
    s_sub_u32 s9, s92, s94
    s_lshl_b32 s6, s2, 2
    """ + f"s_add_u32 s6, s6, {s(sW)}" + """
    s_lshl_b32 s6, s6, 7
    v_mov_b32 v0, s6
    s_mov_b32 s6, 0x100000
    s_mov_b32 s7, 0x20000
    s_mov_b64 exec, 1
    v_mov_b32 v2, s8
    buffer_store_dword v2, v0, s[4:7], 0 offen offset:4
    v_mov_b32 v3, s9
    buffer_store_dword v3, v0, s[4:7], 0 offen offset:8
    @vm all
    """)
    return o


def build():
    b = gen()
    if OPT["seg"]:
        b = loop_segment(b)
    lines, added = autowait(b, OPT["verbose"])
    bad = 0
    if OPT["align"]:
        lines, bad = fix_align(lines)
    npad = 0
    if OPT["hops"]:
        margin = int(OPT["margin"])
        start = next(x for x in range(4096 - 64, -64, -64) if 4096 - margin - 64 < add_pads(lines, x)[2] % 4096 <= 4096 - margin or x == 0)
        lines, npad, _ = add_pads(lines, start)
        for k in range(npad + 1, 9):
            lines = [t.replace(f"L_pad{k}", "L_body") if not t.endswith(":") else t for t in lines]
    trace = [t for t in lines if not t.endswith(":") and not t.startswith(".")]
    errs = check(trace)
    hdr = open("standalone__modern_conv_block_convnext__vision.s.ref").read().split("\n")
    head = [l for l in hdr if l.startswith(";") and "@launch" not in l and "Override" not in l and "grid=ceil" not in l]
    head += """;
; Fused ConvNeXt block: one workgroup (4 waves) per 14x14 pixel tile, tiles grouped per XCD for L2 halo reuse.
;   1. x tile (18x18, zero padded) staged in LDS as 4-channel planes; weights streamed to LDS by DMA.
;   2. depthwise 5x5 conv as sparse MFMA with Toeplitz filter fragments (each wave owns 24 channels).
;   3. layer norm: per-wave partial sums exchanged through LDS, normalised activations written as bf16.
;   4. MLP per wave: a 32-pixel tile over all hidden units, a shared 32-pixel tile over half of them and a
;      4-pixel remainder over a quarter; tanh-GELU as x * rcp(1 + exp2(-x * (c + x * x))) on pre-scaled x.
;   5. out = x + gamma * (h + b2), stored in 64-byte segments.""".split("\n")
    out = head + [f"; @launch grid=(256,1,1) block=(256,1,1) lds={LDS_BYTES}",
                  '.amdgcn_target "amdgcn-amd-amdhsa--gfx950"', ".text", f".globl {KNAME}", ".p2align 12", ".p2align 8",
                  f".type {KNAME},@function", f"{KNAME}:"]
    for t in lines:
        out.append(t if t.endswith(":") or t.startswith(".") else "    " + t)
    out += ["L_end:", "    s_endpgm", '.section .rodata,"a"', ".p2align 6", f".amdhsa_kernel {KNAME}",
            "  .amdhsa_next_free_vgpr 512", "  .amdhsa_next_free_sgpr 102", "  .amdhsa_accum_offset 256",
            "  .amdhsa_group_segment_fixed_size 0", "  .amdhsa_kernarg_size 80", "  .amdhsa_user_sgpr_count 2",
            "  .amdhsa_user_sgpr_kernarg_segment_ptr 1", "  .amdhsa_system_sgpr_workgroup_id_x 1",
            ".end_amdhsa_kernel", ""]
    info = f"{len(trace)} instrs, {sum(isize(t) for t in trace)} bytes, {added} auto waits, {bad} misaligned, {npad} pads, {len(errs)} lint findings"
    return "\n".join(out), errs, info


if __name__ == "__main__":
    path = sys.argv[1]
    for kv in sys.argv[2:]:
        k, val = kv.split("=")
        OPT[k] = val if k.startswith(("probe", "only", "seg", "drop", "nop")) else {"0": False, "1": True}.get(val, val.replace("+", " "))
    text, errs, info = build()
    for e in errs:
        print("HAZARD", e)
    open(path, "w").write(text)
    print(f"wrote {path}: {info}")
```

```python
import math
import struct
import sys

from asmlint import check
from sched import trun, trun2, autowait, fix_align, isize

KNAME = "standalone__modern_conv_block_convnext__vision_kernel"
OPT = dict(nt="", stamps=False, verbose=False, align=True, st_h="sc1", st_f="sc1", st_r="sc1", hops=True, margin=16, nt2="", probe=None, probewg=None, only=None, cut0=0, cut=0, cut2=120, steal=8, drain=45, seg=None, tmaj=0, nop=None, real=False, drop=None, pfslice=True, nstage=0, nstat=0, hide=0, early=6, ilv=4, hoprow=6, rpf=0, rpos=1, xch=2, stagerow=12, ln2=0, rend=1, w2m=0, prew=0, q0lag=0, slotrow=14, wlines=18, xfirst=4, allx=0, otouch=1, rlate=0, st2late=0, dense=0)


def f32bits(x):
    return struct.unpack("<I", struct.pack("<f", x))[0]


def bf16_rne(x):
    u = f32bits(x)
    return (u + 0x7FFF + ((u >> 16) & 1)) >> 16


def bf16_val(h):
    return struct.unpack("<f", struct.pack("<I", h << 16))[0]


C1 = 2.0 * math.sqrt(2.0 / math.pi) * math.log2(math.e)
ALPHA = (C1 * 0.044715) ** (1.0 / 3.0)
CP = C1 / ALPHA
A_HI = bf16_rne(ALPHA)
A_LO = bf16_rne(ALPHA - bf16_val(A_HI))

W2L, W2E = 73728, 110592
XP, XG, XPL = 36864, 5776, 2880
ACT, AP = 36864, 208
TBL = 147456
ST = TBL
RBUF, XCH = 24576, 0
PB1, PB2, PGR, PG, PGB = 159744, 160768, 161792, 162816, 163200
ZERO = PB2 + 512
LDS_BYTES = 163584
ROWB = 43008
XBYTES = 9633792

SRD_X, SRD_DW, SRD_W1, SRD_W2, SRD_A, SRD_B, SRD_O = 20, 24, 28, 32, 36, 40, 48
sROW, sMA, sLUT2 = 44, 45, 46
sW, sPAR, sX0, sY0, sNP = 54, 55, 56, 57, 58
sT0, sT1, sT2, sT3 = 59, 60, 61, 62
sTB = 63
sCP, sONE, sINV, sLUT, sIA, sAL, sEPS, sMASK = 64, 66, 68, 70, 72, 74, 76, 78
sLO, sHI, sM1, sM2 = 10, 11, 14, 15
sS = (16, 17, 3)
sSTAMP = 80

vB2F, vL = 0, 1
vA, vB, vW2A, vW2B, vBA, vBB = 2, 3, 4, 5, 6, 7
vOFA, vRW, vOH, vOR, vGA, vR2A, vL16, vR2B = 8, 9, 10, 11, 12, 13, 14, 15
vR1, vRB, vR1X = 16, 17, 18
HR = 16
ACC = {"F": 20, "H": 68}
X = (116, 132, 148)
Z, E, R, H, TMP = 164, 180, 196, 212, 220
CV, AF = 116, 20
vIDX, vTA, vXB, vXW, vXO, vAW, vBF, vBH, vBR, vPF, vB2H, vG, vB2V, vSW, vBQ = range(92, 107)
vD1 = TMP + 35

aSTG = 0
aRB = (72, 108, 144)
aW1, aW2 = 0, (24, 48)
aBt = {"F": 72, "H": 96}
aBR, aRF = 120, 168
aRF2, aRACC = 120, 144
aBIAS, aC32, aC16, aRBIAS, aXR = 192, 196, 200, 216, 224


def v(i, n=1):
    return f"v{i}" if n == 1 else f"v[{i}:{i+n-1}]"


def a(i, n=1):
    return f"a{i}" if n == 1 else f"a[{i}:{i+n-1}]"


def s(i, n=1):
    return f"s{i}" if n == 1 else f"s[{i}:{i+n-1}]"


def L(t):
    return [x.strip() for x in t.strip("\n").split("\n") if x.strip()]


class Block(list):
    def __call__(self, t):
        self.extend(L(t) if isinstance(t, str) else t)

    def stamp(self, k):
        k = str(k)
        if OPT["seg"]:
            self.append(f"MARK_{k}:")
            return
        if OPT["probe"] is not None and k == "0":
            self("s_memtime s[96:97]")
            return
        if OPT["probe"] is not None:
            names = [OPT["probe"]]
        elif OPT["stamps"]:
            names = ["0"] + (OPT["only"] or DEFAULT_STAMPS).split(",") + ["end"]
        else:
            return
        if k in names:
            self(f"{'s_memrealtime' if OPT['real'] else 's_memtime'} s[100:101]\ns_waitcnt lgkmcnt(0)\ns_mov_b32 {s(sSTAMP + names.index(k))}, s100")


DEFAULT_STAMPS = "1,18,2,3,4,5,7,8,9,T3,P7,T12,P17,P19,T19,16"


def pk(op, d, x, y, z=None, mod=""):
    t = f"v_pk_{op}_f32 {v(d, 2)}, {x}, {y}"
    if z is not None:
        t += f", {z}"
    return t + mod


def p_t(xb, zb, n=16):
    return [pk("fma", zb + i, v(xb + i, 2), v(xb + i, 2), s(sCP, 2)) for i in range(0, n, 2)]


def p_z(xb, zb, n=16):
    return [pk("mul", zb + i, v(zb + i, 2), v(xb + i, 2), mod=" neg_lo:[1,0] neg_hi:[1,0]") for i in range(0, n, 2)]


def p_add(eb, n=16):
    return [pk("add", eb + i, v(eb + i, 2), s(sONE, 2)) for i in range(0, n, 2)]


def p_mul(rb, xb, n=16):
    return [pk("mul", rb + i, v(rb + i, 2), v(xb + i, 2)) for i in range(0, n, 2)]


def t_cvt(hb, rb, n=16):
    return [f"v_cvt_pk_bf16_f32 {v(hb + i // 2)}, {v(rb + i)}, {v(rb + i + 1)}" for i in range(0, n, 2)]


def t_rcp(rb, eb, n=16):
    return [f"v_rcp_f32 {v(rb + i)}, {v(eb + i)}" for i in range(n)]


def t_exp(eb, zb, n=16):
    return [f"v_exp_f32 {v(eb + i)}, {v(zb + i)}" for i in range(n)]


def unpack(dst, src, n):
    o = []
    for i in range(n):
        o += [f"v_lshlrev_b32 {v(dst + 2 * i)}, 16, {v(src + i)}", f"v_and_b32 {v(dst + 2 * i + 1)}, {s(sHI)}, {v(src + i)}"]
    return o


M32 = "v_mfma_f32_32x32x16_bf16"
M16 = "v_mfma_f32_16x16x32_bf16"

SLOTS = ([(t, "a", i, 0) for i in range(3) for t in "FH"] + [("F", "b", i, 0) for i in range(3)]
         + [(t, "a", i, 1) for i in range(3) for t in "HF"] + [("F", "b", i, 1) for i in range(3)])
NS = len(SLOTS)


def neww(j):
    return j == 0 or SLOTS[j][1:] != SLOTS[j - 1][1:]


UNITNO = []
for _j in range(NS):
    UNITNO.append((UNITNO[-1] if UNITNO else -1) + (1 if neww(_j) else 0))


def m_fc1(j):
    xb, bb = X[j % 3], aBt[SLOTS[j][0]]
    o = [f"{M32} {v(xb, 16)}, {a(aBIAS, 4)}, {a(aC32, 4)}, 0"]
    return o + [f"{M32} {v(xb, 16)}, {a(aW1 + 4 * k, 4)}, {a(bb + 4 * k, 4)}, {v(xb, 16)}" for k in range(6)]


def m_fc2(j):
    acc, wb = ACC[SLOTS[j][0]], aW2[UNITNO[j] % 2]
    return [f"{M32} {v(acc + 16 * t, 16)}, {a(wb + 4 * (3 * k + t), 4)}, {v(H + 4 * k, 4)}, "
            + ("0" if (j == 0 and k == 0) else v(acc + 16 * t, 16)) for k in range(2) for t in range(3)]


def r_w1(j):
    _, g, i, late = SLOTS[j]
    off = 12288 * i
    o = [f"ds_read_u16 {a(aBIAS)}, {v(vBA if g == 'a' else vBB)} offset:{128 * i + 384 * late}"]
    return o + [f"ds_read_b64_tr_b16 {a(aW1 + 4 * k + 2 * jj, 2)}, {v(vA if g == 'a' else vB)} offset:{off + 2048 * k + 256 * jj}"
                for k in range(6) for jj in range(2)]


def r_w2(j):
    _, g, i, late = SLOTS[j]
    wb = aW2[UNITNO[j] % 2]
    return [f"ds_read_b64_tr_b16 {a(wb + 4 * (3 * k + t) + 2 * jj, 2)}, {v(vW2A if g == 'a' else vW2B)} "
            f"offset:{12288 * i + 3072 * k + 1536 * jj + 64 * t}" for k in range(2) for t in range(3) for jj in range(2)]


def has(j):
    return 0 <= j < NS


STOLEN = {}


def P(j, pre=(), post=(), late_x=False):
    t = p_t(X[j % 3], Z) if has(j) else []
    z = p_z(X[j % 3], Z) if has(j) else []
    m = p_mul(R, X[(j - 2) % 3])[STOLEN.get(j, 0):] if has(j - 2) else []
    d = p_add(E) if has(j - 1) else []
    core = m + d + t + z if late_x else t + m + z + d
    o = Block(list(pre) + core + list(post))
    o.stamp(f"P{j}")
    return o


def T(j, xM=(), xF=(), xVpre=(), xV=(), xneed=None, tail=12, head=(), tmajor=False, last=("@lg all",), skip_w2=False):
    f1 = m_fc1(j + 1) if has(j + 1) else []
    f2 = m_fc2(j - 2) if has(j - 2) else []
    tmajor = tmajor or bool(int(OPT["tmaj"]))
    if tmajor and f2:
        f2 = [f2[3 * k + t] for t in range(3) for k in range(2)]
    M = f1 + f2 + list(xM)
    n = len(M)
    cv = t_cvt(H, R) if has(j - 2) else []
    V = cv + list(xVpre) + (t_rcp(R, E) if has(j - 1) else []) + (t_exp(E, Z) if has(j) else []) + list(xV)
    need = dict(xneed or {})
    if f2:
        need[len(f1)] = max(need.get(len(f1), 0), 6)
        k1 = len(f1) + (1 if tmajor else 3)
        need[k1] = max(need.get(k1, 0), 10 if len(V) >= 10 else len(V))
    F = list(xF)
    nm = len(f1) + len(f2) + sum("32x32" in m for m in xM)
    hi = max(0, nm - 4)
    if has(j + 2) and neww(j + 2):
        w = r_w1(j + 2)
        F += [(1 + k, max(1 + k, hi), [w[1 + 2 * k + jj]]) for k in range(5, -1, -1) for jj in range(2)] + [(0, hi, w[:1])]
    if has(j - 1) and neww(j - 1) and not skip_w2:
        F += [(0, hi, [x]) for x in r_w2(j - 1)]
    F += [(n - 1, n - 1, [x]) for x in last]
    steal = []
    if has(j - 1):
        base = len(cv) + len(xVpre)
        xb = X[(j - 1) % 3]
        steal = [(None, [f"v_mul_f32 {v(R + i + k)}, {v(R + i + k)}, {v(xb + i + k)}" for k in range(2)], base + i + 1)
                 for i in range(0, 16, 2)]
    o, STOLEN[j + 1] = trun2(M, F, V, need, list(head), steal, int(OPT["drain"]), int(OPT["steal"]))
    o = Block(o)
    o.stamp(f"T{j}")
    return o


def gen():
    b = Block()
    nt = OPT["nt"]
    t0, t1, t2, t3, t4, t5 = range(TMP, TMP + 6)
    vTB, vZ = TMP + 20, TMP + 24

    if OPT["pfslice"]:
        pfcalc = f"s_lshr_b32 s3, s2, 3\ns_lshl_b32 s3, s3, 10\nv_and_b32 {v(t0)}, 7, v0\nv_lshl_add_u32 {v(t0)}, {v(t0)}, 7, s3"
    else:
        pfcalc = f"v_lshlrev_b32 {v(t0)}, 7, v0"
    b.stamp(0)
    b(f"""
    s_cmp_ge_u32 s2, 256
    s_cbranch_scc1 L_end
    s_load_dwordx16 s[4:19], s[0:1], 0
    s_getpc_b64 s[52:53]
    L_pc:
    {pfcalc}
    v_min_u32 {v(t0)}, L_end-L_pc, {v(t0)}
    global_load_dword {v(vPF)}, {v(t0)}, s[52:53] ;@pf
    v_lshrrev_b32 {v(t1)}, 6, v0
    v_and_b32 {v(vL)}, 63, v0
    v_readfirstlane_b32 {s(sW)}, {v(t1)}
    s_and_b32 {s(sT0)}, s2, 1
    s_lshl_b32 {s(sT0)}, {s(sT0)}, 3
    s_bfe_u32 {s(sT1)}, s2, 0x30003
    s_add_u32 {s(sT0)}, {s(sT0)}, {s(sT1)}
    s_mul_i32 {s(sX0)}, {s(sT0)}, 14
    s_bfe_u32 {s(sT0)}, s2, 0x20001
    s_lshl_b32 {s(sT0)}, {s(sT0)}, 2
    s_lshr_b32 {s(sT1)}, s2, 6
    s_add_u32 {s(sT0)}, {s(sT0)}, {s(sT1)}
    s_mul_i32 {s(sY0)}, {s(sT0)}, 14
    v_mul_u32_u24 {v(t0)}, 43, {v(vL)}
    v_lshrrev_b32 {v(t0)}, 7, {v(t0)}
    v_mul_u32_u24 {v(t1)}, 3, {v(t0)}
    v_sub_u32 {v(t1)}, {v(vL)}, {v(t1)}
    v_and_b32 {v(t2)}, 7, {v(t0)}
    v_lshrrev_b32 {v(t0)}, 3, {v(t0)}
    v_mad_u32_u24 {v(t0)}, {v(t0)}, 5, {v(t2)}
    v_cmp_le_u32 vcc, 3, {v(t2)}
    v_mul_u32_u24 {v(t0)}, 192, {v(t0)}
    s_mul_i32 {s(sT0)}, {s(sW)}, 48
    s_sub_u32 {s(sT0)}, {s(sT0)}, 576
    v_lshl_add_u32 {v(t0)}, {v(t1)}, 4, {v(t0)}
    v_add_u32 {v(t0)}, {s(sT0)}, {v(t0)}
    v_bfrev_b32 {v(t5)}, 1
    v_cndmask_b32 {v(vTB)}, {v(t5)}, {v(t0)}, vcc
    s_mul_i32 {s(sT1)}, {s(sW)}, 56
    v_add_u32 {v(t1)}, {s(sT1)}, {v(vL)}
    v_mul_u32_u24 {v(t2)}, 171, {v(t1)}
    v_lshrrev_b32 {v(t2)}, 11, {v(t2)}
    s_sub_u32 {s(sT2)}, {s(sX0)}, 2
    v_add_u32 {v(t3)}, {s(sT2)}, {v(t2)}
    v_cmp_gt_u32 vcc, 224, {v(t3)}
    v_cmp_gt_u32 {s(sMASK, 2)}, 18, {v(t2)}
    s_mul_i32 {s(sT3)}, {s(sY0)}, {ROWB}
    s_mul_i32 {s(sT2)}, {s(sT2)}, 192
    s_add_u32 {s(sT3)}, {s(sT3)}, {s(sT2)}
    s_sub_u32 {s(sT3)}, {s(sT3)}, {2 * ROWB}
    s_and_b64 vcc, vcc, {s(sMASK, 2)}
    s_and_b32 vcc_hi, vcc_hi, 0xffffff
    v_lshl_add_u32 {v(vXO)}, {v(t1)}, 4, {s(sT3)}
    s_mul_i32 {s(sTB)}, {s(sW)}, 3072
    v_cndmask_b32 {v(vXO)}, {v(t5)}, {v(vXO)}, vcc
    s_add_u32 {s(sTB)}, {s(sTB)}, {TBL}
    s_mov_b32 m0, {s(sTB)}
    s_mov_b32 {s(SRD_X + 2)}, {XBYTES}
    s_mov_b32 {s(SRD_X + 3)}, 0x20000
    s_movk_i32 {s(SRD_DW + 2)}, 4800
    s_mov_b32 {s(SRD_DW + 3)}, 0x20000
    s_mov_b32 {s(sROW)}, {ROWB}
    """)
    b.append("@@PRE")
    b("s_waitcnt lgkmcnt(0)")
    b.stamp(1)

    def srd(dst, src, nbytes):
        return L(f"""
        s_mov_b32 {s(dst)}, {s(src)}
        s_mov_b32 {s(dst + 1)}, {s(src + 1)}
        s_mov_b32 {s(dst + 2)}, {nbytes}
        s_mov_b32 {s(dst + 3)}, 0x20000
        """)
    def xload(r):
        o = [f"buffer_load_dwordx4 {a(aSTG + 4 * r, 4)}, {v(vXO)}, {s(SRD_X, 4)}, 0 offen {nt} ;@x{r}"]
        if r < 17:
            o.append(f"v_add_u32 {v(vXO)}, {s(sROW)}, {v(vXO)}")
        return o
    b(f"s_mov_b32 {s(SRD_X)}, s4\ns_mov_b32 {s(SRD_X + 1)}, s5")
    xf = int(OPT["xfirst"])
    for r in range(xf):
        b(xload(r))
    b(f"s_mov_b32 {s(SRD_DW)}, s6\ns_mov_b32 {s(SRD_DW + 1)}, s7\ns_mov_b32 exec_hi, 0xffff")
    for d in range(4):
        b(f"buffer_load_dwordx4 {v(vTB)}, {s(SRD_DW, 4)}, 0 offen lds ;@tbl")
        if d < 3:
            b(f"s_add_u32 m0, m0, 768\nv_add_u32 {v(vTB)}, 1920, {v(vTB)}")
    b("s_mov_b32 exec_hi, -1")

    u = Block()
    ka = Block()
    ka(f"""
    s_lshl_b32 s52, {s(sW)}, 3
    s_lshr_b32 s53, 0x30302818, s52
    s_and_b32 s53, s53, 0xff
    s_load_dwordx2 {s(SRD_A, 2)}, s[0:1], s53
    s_lshr_b32 s53, {0x38382010 if int(OPT['otouch']) else 0x20102010:#x}, s52
    s_and_b32 s53, s53, 0xff
    s_load_dwordx2 {s(SRD_B, 2)}, s[0:1], s53
    s_cmp_eq_u32 {s(sW)}, 0
    s_movk_i32 s53, 192
    s_cselect_b32 {s(SRD_A + 2)}, 768, s53
    s_mov_b32 {s(SRD_A + 3)}, 0x20000
    s_min_u32 {s(sMA)}, {s(sW)}, 2
    s_lshl_b32 {s(sMA)}, {s(sMA)}, 10
    s_add_u32 {s(sMA)}, {s(sMA)}, {PB1}
    s_mov_b32 {s(SRD_B + 3)}, 0x20000
    """)
    for dst, src, n in ((SRD_W1, 8, 73728), (SRD_W2, 12, 73728), (SRD_O, 18, XBYTES)):
        ka(srd(dst, src, n))
    lut = 0
    for cp, col in enumerate([0, 4, 8, 12, 1, 5, 9, 13, 2, 6, 10, 3, 7, 11]):
        lut |= col << (4 * cp)
    lut2 = 0
    for rho in range(14):
        lut2 |= (4 * ((rho & 7) >> 1) + 2 * (rho >> 3) + (rho & 1)) << (4 * rho)
    lg, lxg, lrp, lh, lq, lr, l31, lh16 = range(TMP + 8, TMP + 16)
    ka(f"""
    s_mov_b32 {s(sLO)}, 0xffff
    s_mov_b32 {s(sHI)}, 0xffff0000
    s_mul_i32 {s(sM1)}, {s(sW)}, 3072
    s_mul_i32 {s(sM2)}, {s(sW)}, 9216
    s_mul_i32 {s(sS[0])}, {s(sW)}, 18432
    s_add_u32 {s(sS[1])}, {s(sS[0])}, 5120
    s_add_u32 {s(sS[2])}, {s(sS[0])}, 10240
    """)
    zv = [f"{M32} {v(CV + 16 * i, 16)}, {v(vZ, 4)}, {v(vZ, 4)}, 0" for i in range(6)]
    za = [f"{M32} {a(192 + 16 * i, 16)}, {v(vZ, 4)}, {v(vZ, 4)}, 0" for i in range(2)]
    za += [f"{M16} {a(rb + 32, 4)}, {v(vZ, 4)}, {v(vZ, 4)}, 0" for rb in aRB]
    u(f"""
    v_mov_b64 {v(vZ, 2)}, 0
    v_mov_b64 {v(vZ + 2, 2)}, 0
    s_and_b32 {s(sPAR)}, {s(sW)}, 1
    s_xor_b32 {s(sNP)}, {s(sPAR)}, 1
    v_mul_u32_u24 {v(t3)}, 12, {v(t2)}
    v_sub_u32 {v(t3)}, {v(t1)}, {v(t3)}
    v_subrev_u32 {v(t4)}, 56, {v(vL)}
    v_cmp_gt_u32 vcc, 56, {v(vL)}
    v_mov_b32 {v(t0)}, 18
    v_lshrrev_b32 {v(lg)}, 4, {v(vL)}
    v_cndmask_b32 {v(t3)}, {v(t4)}, {v(t3)}, vcc
    v_cndmask_b32 {v(t2)}, {v(t0)}, {v(t2)}, vcc
    v_mul_u32_u24 {v(t3)}, {XG}, {v(t3)}
    v_lshl_add_u32 {v(t3)}, {v(t2)}, 3, {v(t3)}
    v_add_u32 {v(vXW)}, {XP}, {v(t3)}
    v_and_b32 {v(lxg)}, 3, {v(vL)}
    v_bfe_u32 {v(lr)}, {v(vL)}, 2, 2
    v_lshrrev_b32 {v(lh)}, 5, {v(vL)}
    v_and_b32 {v(lq)}, 1, {v(lg)}
    v_and_b32 {v(l31)}, 31, {v(vL)}
    v_lshlrev_b32 {v(vL16)}, 4, {v(vL)}
    v_lshlrev_b32 {v(lh16)}, 4, {v(lh)}
    v_mul_u32_u24 {v(vIDX)}, 0x5555, {v(lxg)}
    v_lshl_add_u32 {v(t0)}, {v(lg)}, 2, {v(lr)}
    v_sub_u32 {v(t1)}, {v(t0)}, {v(lxg)}
    v_mul_u32_u24 {v(t1)}, 48, {v(t1)}
    s_add_u32 {s(sT0)}, {s(sTB)}, 144
    v_add_u32 {v(vTA)}, {s(sT0)}, {v(t1)}
    v_mul_u32_u24 {v(t0)}, 192, {v(t0)}
    v_lshl_add_u32 {v(t0)}, {v(lxg)}, 3, {v(t0)}
    s_mul_i32 {s(sT0)}, {s(sW)}, 6144
    s_add_u32 {s(sT1)}, {s(sT0)}, {W2L + 2 * 6144}
    v_add_u32 {v(vR2A)}, {s(sT1)}, {v(t0)}
    s_add_u32 {s(sT1)}, {s(sT0)}, {W2E + 4 * 6144}
    s_add_u32 {s(sT2)}, {s(sT0)}, {W2L - 2 * 6144}
    s_cmp_lt_u32 {s(sW)}, 2
    s_cselect_b32 {s(sT1)}, {s(sT1)}, {s(sT2)}
    v_add_u32 {v(vR2B)}, {s(sT1)}, {v(t0)}
    v_add_u32 {v(vRW)}, {s(sT0)}, {v(vL16)}
    v_lshlrev_b32 {v(t0)}, 1, {v(lxg)}
    v_add_u32 {v(t0)}, {v(t0)}, {v(lg)}
    v_min_u32 {v(t0)}, 8, {v(t0)}
    v_mul_u32_u24 {v(t1)}, 640, {v(lr)}
    s_mul_i32 {s(sT0)}, {s(sW)}, {3 * XG}
    s_add_u32 {s(sT0)}, {s(sT0)}, {XP}
    v_lshl_add_u32 {v(t0)}, {v(t0)}, 4, {v(t1)}
    v_add_u32 {v(vXB)}, {s(sT0)}, {v(t0)}
    v_lshrrev_b32 {v(t0)}, 2, {v(l31)}
    v_mul_u32_u24 {v(t0)}, 768, {v(t0)}
    v_lshl_add_u32 {v(t0)}, {v(lh)}, 6, {v(t0)}
    v_lshl_add_u32 {v(vD1)}, {v(lxg)}, 4, {v(t0)}
    v_min_u32 {v(t0)}, 11, {v(vL)}
    v_mul_u32_u24 {v(t0)}, {XG - 16}, {v(t0)}
    v_min_u32 {v(t1)}, 31, {v(vL)}
    v_lshl_add_u32 {v(t0)}, {v(t1)}, 4, {v(t0)}
    v_add_u32 {v(t0)}, {XP + 2 * XPL}, {v(t0)}
    """)
    u(f"ds_write_b128 {v(t0)}, {v(vZ, 4)}")
    pF, pH, pR = TMP + 16, TMP + 17, TMP + 18
    u(f"""
    s_mov_b32 {s(sCP)}, {f32bits(CP):#x}
    s_mov_b32 {s(sCP + 1)}, {f32bits(CP):#x}
    s_mov_b32 {s(sONE)}, 1.0
    s_mov_b32 {s(sONE + 1)}, 1.0
    s_mov_b32 {s(sINV)}, {f32bits(1 / 96):#x}
    s_mov_b32 {s(sINV + 1)}, {f32bits(1 / 96):#x}
    s_mov_b32 {s(sIA)}, {f32bits(1 / ALPHA):#x}
    s_mov_b32 {s(sIA + 1)}, {f32bits(1 / ALPHA):#x}
    s_mov_b32 {s(sAL)}, {f32bits(ALPHA):#x}
    s_mov_b32 {s(sAL + 1)}, {f32bits(ALPHA):#x}
    s_mov_b32 {s(sEPS)}, {f32bits(1e-5):#x}
    s_mov_b32 {s(sEPS + 1)}, {f32bits(1e-5):#x}
    s_mov_b32 {s(sLUT)}, {lut & 0xffffffff:#x}
    s_mov_b32 {s(sLUT + 1)}, {lut >> 32:#x}
    s_mov_b32 {s(sLUT2)}, {lut2 & 0xffffffff:#x}
    s_mov_b32 {s(sLUT2 + 1)}, {lut2 >> 32:#x}
    v_lshrrev_b32 {v(t0)}, 1, {v(lg)}
    v_and_b32 {v(t0)}, {v(t0)}, {v(lg)}
    v_lshl_add_u32 {v(t1)}, {v(lg)}, 2, {v(lxg)}
    v_sub_u32 {v(t1)}, {v(t1)}, {v(t0)}
    v_mad_u32_u24 {v(t1)}, {v(lr)}, 28, {v(t1)}
    v_lshl_add_u32 {v(t2)}, {v(lxg)}, 2, {v(lg)}
    v_cmp_gt_u32 vcc, 14, {v(t2)}
    v_mul_u32_u24 {v(t1)}, {AP}, {v(t1)}
    s_mul_i32 {s(sT0)}, {s(sW)}, 48
    s_add_u32 {s(sT0)}, {s(sT0)}, {ACT}
    v_add_u32 {v(t1)}, {s(sT0)}, {v(t1)}
    v_add_u32 {v(t2)}, {ACT + 196 * AP}, {v(vL16)}
    v_cndmask_b32 {v(vAW)}, {v(t2)}, {v(t1)}, vcc
    s_lshl_b32 {s(sT0)}, {s(sW)}, 5
    v_add_u32 {v(pF)}, {s(sT0)}, {v(l31)}
    s_lshr_b32 {s(sT0)}, {s(sW)}, 1
    s_lshl_b32 {s(sT0)}, {s(sT0)}, 5
    s_add_u32 {s(sT0)}, {s(sT0)}, 128
    s_lshl_b32 {s(sT1)}, {s(sPAR)}, 4
    v_xor_b32 {v(pH)}, {s(sT1)}, {v(l31)}
    v_add_u32 {v(pH)}, {s(sT0)}, {v(pH)}
    s_add_u32 {s(sT0)}, {s(sT0)}, {s(sT1)}
    v_and_b32 {v(pR)}, 15, {v(vL)}
    v_add_u32 {v(pR)}, {s(sT0)}, {v(pR)}
    v_add_u32 {v(t1)}, {ACT}, {v(lh16)}
    s_movk_i32 {s(sT1)}, {AP}
    v_mad_u32_u24 {v(vBF)}, {v(pF)}, {s(sT1)}, {v(t1)}
    v_mad_u32_u24 {v(vBH)}, {v(pH)}, {s(sT1)}, {v(t1)}
    v_lshlrev_b32 {v(t1)}, 4, {v(lg)}
    v_add_u32 {v(t1)}, {ACT + 192 * AP}, {v(t1)}
    v_mad_u32_u24 {v(vBR)}, {v(lxg)}, {s(sT1)}, {v(t1)}
    s_mul_i32 {s(sT2)}, {s(sY0)}, 224
    s_add_u32 {s(sT2)}, {s(sT2)}, {s(sX0)}
    s_movk_i32 {s(sT3)}, 224
    """)
    for p, dst in ((pF, vOFA), (pR, vOH)):
        u(f"""
        v_mul_u32_u24 {v(t1)}, 2341, {v(p)}
        v_lshrrev_b32 {v(t1)}, 15, {v(t1)}
        v_mul_u32_u24 {v(t2)}, 14, {v(t1)}
        v_sub_u32 {v(t2)}, {v(p)}, {v(t2)}
        v_lshlrev_b32 {v(t2)}, 2, {v(t2)}
        v_lshrrev_b64 {v(t4, 2)}, {v(t2)}, {s(sLUT, 2)}
        v_and_b32 {v(t2)}, 15, {v(t4)}
        v_lshlrev_b32 {v(t1)}, 2, {v(t1)}
        v_lshrrev_b64 {v(t4, 2)}, {v(t1)}, {s(sLUT2, 2)}
        v_and_b32 {v(t1)}, 15, {v(t4)}
        v_mad_u32_u24 {v(t1)}, {v(t1)}, {s(sT3)}, {v(t2)}
        v_add_u32 {v(t1)}, {s(sT2)}, {v(t1)}
        v_mul_u32_u24 {v(dst)}, 192, {v(t1)}
        """)
    u(f"""
    s_lshl_b32 {s(sT0)}, {s(sW)}, 2
    s_lshr_b32 {s(sT0)}, 0xb73a, {s(sT0)}
    s_and_b32 {s(sT0)}, {s(sT0)}, 15
    s_add_u32 {s(sT0)}, {s(sT0)}, {s(sT2)}
    s_add_u32 {s(sT0)}, {s(sT0)}, {11 * 224}
    s_mul_i32 {s(sT0)}, {s(sT0)}, 192
    v_lshl_add_u32 {v(t1)}, {v(vL)}, 3, {s(sT0)}
    v_cmp_gt_u32 vcc, 24, {v(vL)}
    v_bfrev_b32 {v(t5)}, 1
    v_add_u32 {v(vOFA)}, {v(vOFA)}, {v(lh16)}
    v_lshl_add_u32 {v(t2)}, {v(lq)}, 5, {v(lh16)}
    v_cndmask_b32 {v(vOR)}, {v(t5)}, {v(t1)}, vcc
    v_add_u32 {v(vOH)}, {v(vOH)}, {v(t2)}
    v_lshlrev_b32 {v(t1)}, 5, {v(lh)}
    v_add_u32 {v(vGA)}, {PG}, {v(t1)}
    s_lshl_b32 {s(sT0)}, {s(sPAR)}, 6
    s_lshl_b32 {s(sT1)}, {s(sNP)}, 6
    v_lshlrev_b32 {v(t1)}, 1, {v(l31)}
    v_add_u32 {v(t1)}, {PB1}, {v(t1)}
    v_add_u32 {v(vBA)}, {s(sT0)}, {v(t1)}
    v_add_u32 {v(vBB)}, {s(sT1)}, {v(t1)}
    v_lshlrev_b32 {v(t0)}, 6, {v(lr)}
    v_lshl_add_u32 {v(t0)}, {v(lxg)}, 3, {v(t0)}
    v_lshl_add_u32 {v(t1)}, {v(lg)}, 10, {v(t0)}
    s_lshr_b32 {s(sT2)}, {s(sW)}, 1
    s_mul_i32 {s(sT2)}, {s(sT2)}, 12288
    s_lshl_b32 {s(sT0)}, {s(sPAR)}, 9
    s_lshl_b32 {s(sT1)}, {s(sNP)}, 9
    s_add_u32 {s(sT2)}, {s(sT2)}, {s(sT0)}
    v_lshl_add_u32 {v(t1)}, {v(lq)}, 5, {v(t1)}
    v_add_u32 {v(vR1)}, {s(sT2)}, {v(t1)}
    v_xor_b32 {v(vR1X)}, 32, {v(vR1)}
    v_lshl_add_u32 {v(t0)}, {v(lh)}, 10, {v(t0)}
    v_lshl_add_u32 {v(t0)}, {v(lq)}, 5, {v(t0)}
    v_add_u32 {v(vA)}, {s(sT0)}, {v(t0)}
    v_add_u32 {v(vB)}, {s(sT1)}, {v(t0)}
    v_and_b32 {v(t0)}, 15, {v(vL)}
    s_lshl_b32 {s(sT0)}, {s(sW)}, 6
    s_add_u32 {s(sT0)}, {s(sT0)}, {PB1}
    v_lshl_add_u32 {v(vRB)}, {v(t0)}, 1, {s(sT0)}
    v_lshl_add_u32 {v(t0)}, {v(lh)}, 2, {v(lr)}
    v_mul_u32_u24 {v(t0)}, 192, {v(t0)}
    v_and_b32 {v(t1)}, 1, {v(lxg)}
    v_lshrrev_b32 {v(t2)}, 1, {v(lxg)}
    v_lshl_add_u32 {v(t1)}, {v(t1)}, 1, {v(t2)}
    v_lshl_add_u32 {v(t0)}, {v(t1)}, 3, {v(t0)}
    v_lshl_add_u32 {v(t0)}, {v(lq)}, 5, {v(t0)}
    s_mul_i32 {s(sT0)}, {s(sPAR)}, 6144
    s_add_u32 {s(sT0)}, {s(sT0)}, {W2E}
    s_mul_i32 {s(sT1)}, {s(sNP)}, 6144
    s_add_u32 {s(sT1)}, {s(sT1)}, {W2E}
    v_add_u32 {v(vW2A)}, {s(sT0)}, {v(t0)}
    v_add_u32 {v(vW2B)}, {s(sT1)}, {v(t0)}
    v_and_b32 {v(t1)}, 1, {v(lr)}
    v_lshrrev_b32 {v(t2)}, 1, {v(lr)}
    v_lshlrev_b32 {v(t2)}, 2, {v(t2)}
    v_lshl_add_u32 {v(t1)}, {v(t1)}, 3, {v(t2)}
    v_add_u32 {v(t1)}, {v(t1)}, {v(lxg)}
    v_lshl_add_u32 {v(t1)}, {v(lq)}, 4, {v(t1)}
    v_lshlrev_b32 {v(t1)}, 1, {v(t1)}
    v_add_u32 {v(vB2F)}, {PB2}, {v(t1)}
    v_cmp_eq_u32 vcc, {s(sPAR)}, {v(vZ)}
    v_mov_b32 {v(t2)}, {ZERO}
    v_mov_b32 {v(t0)}, {A_HI:#x}
    v_cndmask_b32 {v(vB2H)}, {v(t2)}, {v(vB2F)}, vcc
    v_mov_b32 {v(t1)}, {A_LO:#x}
    v_cmp_eq_u32 vcc, 0, {v(lh)}
    v_cmp_eq_u32 {s(sMASK, 2)}, 0, {v(lg)}
    v_mov_b32 {v(t3)}, 0
    v_cndmask_b32 {v(t2)}, {v(t1)}, {v(t0)}, vcc
    v_accvgpr_write_b32 {a(aC32)}, {v(t2)}
    v_cndmask_b32 {v(t2)}, {v(t1)}, {v(t0)}, {s(sMASK, 2)}
    v_cndmask_b32 {v(t2)}, {v(t3)}, {v(t2)}, vcc
    v_mov_b32 {v(t1)}, {ZERO}
    v_xor_b32 {v(t4)}, {v(lr)}, {v(lq)}
    """)
    for q in range(4):
        u(f"""
        v_cmp_eq_u32 vcc, {q}, {v(lr)}
        v_cmp_eq_u32 {s(sMASK, 2)}, {q}, {v(t4)}
        s_nop 0
        v_cndmask_b32 {v(t0)}, {v(t3)}, {v(t2)}, vcc
        v_cndmask_b32 {v(vBQ + q)}, {v(t1)}, {v(vBR)}, {s(sMASK, 2)}
        v_accvgpr_write_b32 {a(aC16 + 4 * q)}, {v(t0)}
        """)
    u(f"""
    s_lshl_b32 {s(sT0)}, {s(sW)}, 10
    s_add_u32 {s(sT0)}, {s(sT0)}, {ST}
    v_add_u32 {v(vSW)}, {s(sT0)}, {v(vL16)}
    """)
    if int(OPT["otouch"]):
        u(f"""
    s_lshr_b32 {s(sT0)}, s2, 3
    s_mul_i32 {s(sT0)}, {s(sT0)}, 2304
    s_mul_i32 {s(sT1)}, {s(sPAR)}, 13
    s_add_u32 {s(sT1)}, {s(sT1)}, {s(sY0)}
    s_mul_i32 {s(sT1)}, {s(sT1)}, {ROWB}
    s_mul_i32 {s(sT2)}, {s(sX0)}, 192
    s_add_u32 {s(sT1)}, {s(sT1)}, {s(sT2)}
    s_cmp_lt_u32 {s(sW)}, 2
    s_cselect_b32 {s(sT0)}, {s(sT0)}, {s(sT1)}
    s_cselect_b32 {s(sT1)}, {int(OPT['wlines'])}, 1
    s_cselect_b32 {s(SRD_B + 2)}, {s(SRD_W1 + 2)}, {s(SRD_O + 2)}
    """)
    else:
        u(f"""
        s_lshr_b32 {s(sT0)}, s2, 3
        s_lshl_b32 {s(sT0)}, {s(sT0)}, 1
        s_lshr_b32 {s(sT1)}, {s(sW)}, 1
        s_add_u32 {s(sT0)}, {s(sT0)}, {s(sT1)}
        s_mul_i32 {s(sT0)}, {s(sT0)}, 1152
        s_mov_b32 {s(sT1)}, 9
        s_mov_b32 {s(SRD_B + 2)}, {s(SRD_W1 + 2)}
        """)
    u(f"""
    v_lshl_add_u32 {v(t4)}, {v(vL)}, 7, {s(sT0)}
    v_cmp_gt_u32 vcc, {s(sT1)}, {v(vL)}
    s_nop 1
    v_cndmask_b32 {v(t4)}, {v(t5)}, {v(t4)}, vcc
    """)
    zs = za + zv
    w = Block()
    for n, x in enumerate(u):
        w.append(x)
        if n >= 4 and n % 7 == 4 and zs:
            w.append(zs.pop(0))
    assert not zs
    n0 = int(OPT["cut0"])
    while next((x for x in w[n0:] if x.startswith(("s_cmp", "s_cselect"))), "s_cmp").startswith("s_cselect"):
        n0 -= 1
    k0 = b.index("@@PRE")
    b[k0:k0 + 1] = w[:n0]
    u = Block(ka + w[n0:])
    ncut = int(OPT["cut"])
    b(u[:ncut])
    b.stamp(18)
    nh = int(OPT["hide"]) * (17 - int(OPT["early"]))
    kpre = next(k for k, x in enumerate(u) if x.startswith(f"s_lshr_b32 {s(sT0)}, s2, 3"))
    k1 = kpre - nh
    hidden = u[k1:kpre]
    pre = [x.replace(s(sT0), "s52").replace(s(sT1), "s53").replace(s(sT2), "s12").replace(v(t4), v(vG)).replace(v(t5), v(vB2V))
           .replace("vcc", s(18, 2)) for x in u[kpre:]]
    mid = u[ncut:k1] + [f"v_bfrev_b32 {v(vB2V)}, 1"] + pre
    per = min((len(mid) + 11 - xf) // (12 - xf), int(OPT["ilv"]))
    for r in range(xf, 12):
        b(xload(r))
        b(mid[per * (r - xf):per * (r - xf + 1)])
    allx = int(OPT["allx"])
    rest = mid[per * (12 - xf):]
    if allx:
        per2 = min((len(rest) + 5) // 6, allx - 1)
        for r in range(12, 18):
            b(xload(r))
            b(rest[per2 * (r - 12):per2 * (r - 11)])
        rest = rest[per2 * 6:]
    b(rest)
    b.stamp(2)

    hop = L(f"""
    s_mov_b64 exec, 0
    s_cmp_eq_u32 {s(sW)}, 1
    s_cbranch_scc1 L_pad3
    s_cmp_eq_u32 {s(sW)}, 2
    s_cbranch_scc1 L_pad5
    s_cmp_eq_u32 {s(sW)}, 3
    s_cbranch_scc1 L_pad7
    s_branch L_pad1
    .p2align 12
    L_body:
    s_mov_b64 exec, -1
    """)
    slots = L(f"""
    s_mov_b32 m0, {s(sMA)}
    buffer_load_dword {v(vB2V)}, {v(vG)}, {s(SRD_B, 4)}, 0 offen
    buffer_load_dwordx4 {v(vL16)}, {s(SRD_A, 4)}, 0 offen lds ;@par
    """)
    if OPT["hops"] and int(OPT["hoprow"]) < 0:
        b(hop)
    b("@lg all\n@vm tbl")
    b([f"ds_read_b64_tr_b16 {v(AF + (3 * j + t) * 4 + 2, 2)}, {v(vTA)} offset:{768 * t + 8 * j} ;@ard" for j in range(6) for t in range(3)])
    b.stamp(3)
    aexp = []
    for g in range(18):
        q = AF + 4 * g
        aexp += [f"v_and_b32 {v(q)}, {s(sLO)}, {v(q + 2)}", f"v_and_b32 {v(q + 1)}, {s(sHI)}, {v(q + 2)}",
                 f"v_and_b32 {v(q + 2)}, {s(sLO)}, {v(q + 3)}", f"v_and_b32 {v(q + 3)}, {s(sHI)}, {v(q + 3)}"]

    def w1dma(p, tag):
        o = []
        for i in range(3):
            pre = [f"s_add_u32 m0, {s(sM1)}, {12288 * p - 128 * p}", "s_nop 0"] if i == 0 else []
            o.append(pre + [f"buffer_load_dwordx4 {v(vD1)}, {s(SRD_W1, 4)}, {s(sS[i])} offen offset:{1024 * i + 128 * p} lds ;@{tag}"])
        return o

    def w2dma(late, tag):
        o = []
        for c in range(9):
            g = c >> 2
            pre = [f"s_add_u32 m0, {s(sM2)}, {(W2L if late else W2E) + 4096 * g}",
                   f"s_add_u32 {s(sT3)}, {s(sM2)}, {36864 * late + 4096 * g}"] if c % 4 == 0 else []
            o.append(pre + [f"buffer_load_dwordx4 {v(vL16)}, {s(SRD_W2, 4)}, {s(sT3)} offen offset:{1024 * (c & 3)} lds ;@{tag}"])
        return o
    early = (w1dma(0, "w1e") + w1dma(1, "w1e") + w1dma(2, "w1e"), w2dma(0, "w2e"))

    def stage(r):
        return [f"@vm x{r}", f"ds_write_b64 {v(vXW)}, {a(aSTG + 4 * r, 2)} offset:{160 * r}",
                f"ds_write_b64 {v(vXW)}, {a(aSTG + 4 * r + 2, 2)} offset:{XPL + 160 * r}"]
    w2m = int(OPT["w2m"])
    dmas = early[0] + ([] if w2m else early[1])
    nst = int(OPT["nstage"])
    ne = int(OPT["early"])
    for r in range(12 + ne, 18 - 6 * bool(allx)):
        b(xload(r))
    vq = aexp + hidden
    per = (len(vq) + 16 - ne) // (17 - ne)
    for r in range(18):
        if r == ne + 1:
            b("@lg ard")
        if r > ne:
            b(vq[per * (r - ne - 1):per * (r - ne)])
        b(stage(r))
        if r < ne and not allx:
            b(xload(12 + r))
        if r == int(OPT["slotrow"]):
            b(slots)
        if OPT["hops"] and r == int(OPT["hoprow"]):
            b(hop)
        b.stamp(f"x{r}")
        if int(OPT["stagerow"]) <= r < int(OPT["stagerow"]) + nst:
            b(dmas.pop(0))
    b([f"v_lshlrev_b32 {v(vG)}, 2, {v(vL)}", f"v_add_u32 {v(vG)}, {PB2}, {v(vG)}"])
    b("@lg all\ns_barrier")
    b.stamp(4)

    S, TP, TU, S2 = TMP, TMP + 8, H, H

    def acc(k, j):
        return CV + (k * 6 + j) * 4

    def reads(j):
        return [f"ds_read_b128 {a(aRB[j % 3] + 4 * r, 4)}, {v(vXB)} offset:{(j >> 1) * XG + (j & 1) * XPL + r * 160} ;@q{j}_{r}"
                for r in range(8)]

    def part(j):
        o = []
        for k in range(4):
            d = acc(k, j)
            o += [f"v_add_f32 {v(TP + 4 * j + k)}, {v(d)}, {v(d + 1)}", f"v_add_f32 {v(TU + k)}, {v(d + 2)}, {v(d + 3)}"]
        return o + [f"v_add_f32 {v(TP + 4 * j + k)}, {v(TP + 4 * j + k)}, {v(TU + k)}" for k in range(4)]
    b(reads(0))
    nstat = int(OPT["nstat"])
    sdma = dmas[len(dmas) - nstat:]
    dmas = dmas[:len(dmas) - nstat]
    ncv = len(dmas)
    where = {(72 * q + 36) // ncv: q for q in range(ncv)}
    pend = []
    for j in range(6):
        rd = reads(j + 1) if j < 5 else []
        for n in range(12):
            t, k = n >> 2, n & 3
            if j == 0 and n == 0:
                b("@lg q0_1")
            if t == 2 and int(OPT["dense"]):
                b(f"{M16} {v(acc(k, j), 4)}, {v(AF + (3 * j + t) * 4, 4)}, {a(aRB[j % 3] + 4 * (k + 4), 4)}, {v(acc(k, j), 4)}")
            else:
                b(f"v_smfmac_f32_16x16x64_bf16 {v(acc(k, j), 4)}, {v(AF + (3 * j + t) * 4, 4)}, {a(aRB[j % 3] + 4 * (k + 2 * t), 8)}, {v(vIDX)}")
            m = 12 * j + n
            if n == 4 and 0 < j < 5:
                pend += part(j - 1)
            if j == 0 and n in (0, 1, 2, 5):
                b(f"@lg q0_{(2, 3, 4, 0, 0, 7)[n]}")
            elif n == 5:
                b(f"@lg q{j}_7")
            elif n == 11 and j < 5:
                b(f"@lg q{j + 1}_4")
            if m in where:
                b(dmas[where[m]][-1:])
                continue
            pre = [x for x in dmas[where[m + 2]][:-1] if x != "s_nop 0"] if m + 2 in where else []
            b(pre)
            if rd and (j > 0 or n >= int(OPT["q0lag"])):
                b(rd.pop(0))
            if pend:
                b(pend.pop(0))
        assert len(rd) == 0, (j, rd)
    b.stamp(5)
    g0, g1, ga = AF + 16, AF + 18, vG
    b(pend)
    U = AF + 8
    for i in range(0, 24, 2):
        for k in range(4):
            d = acc(k, 0) + i
            b(pk("mul", AF + 2 * k, v(d, 2), v(d, 2)) if i == 0 else pk("fma", AF + 2 * k, v(d, 2), v(d, 2), v(AF + 2 * k, 2)))
        if sdma and i % 4 == 0:
            b(sdma.pop(0))
    for x in sdma:
        b(x)
    for k in range(4):
        b(pk("add", U + 2 * k, v(acc(k, 4), 2), v(acc(k, 4) + 2, 2)))
    for o in (0, 2):
        b(pk("add", TP + o, v(TP + o, 2), v(TP + 4 + o, 2)))
        b(pk("add", TP + 8 + o, v(TP + 8 + o, 2), v(TP + 12 + o, 2)))
    for i in (0, 2):
        for k in range(4):
            b(pk("add", U + 2 * k, v(U + 2 * k, 2), v(acc(k, 5) + i, 2)))
    for o in (0, 2):
        b(pk("add", TP + o, v(TP + o, 2), v(TP + 8 + o, 2)))
    for k in range(4):
        b(f"v_add_f32 {v(S + 4 * (k >> 1) + 2 + (k & 1))}, {v(AF + 2 * k)}, {v(AF + 2 * k + 1)}")
        b(f"v_add_f32 {v(TP + 4 + k)}, {v(U + 2 * k)}, {v(U + 2 * k + 1)}")
    for o in (0, 2):
        b(pk("add", S + 2 * o, v(TP + o, 2), v(TP + 4 + o, 2)))
    b(f"""
    ds_write_b128 {v(vSW)}, {v(S, 4)}
    ds_write_b128 {v(vSW)}, {v(S + 4, 4)} offset:4096
    v_add_u32 {v(vSW)}, {ST}, {v(vL16)}
    @vm w1e
    @lg all
    s_barrier
    """)
    b.stamp(7)

    Q = TMP
    for ph in range(2):
        for w in range(4):
            b(f"ds_read_b128 {v(Q + 16 * ph + 4 * w, 4)}, {v(vSW)} offset:{4096 * ph + 1024 * w} ;@s{ph}")
    pre = r_w1(0) + [f"ds_read_u16 {a(aRBIAS + 2 * t)}, {v(vB2H)} offset:{64 * t}" for t in range(3)]
    pre += [f"ds_read_b32 {v(g0 + 1)}, {v(ga)} offset:{PGR - PB2}", f"ds_read_b32 {v(g1 + 1)}, {v(ga)}"]
    prew = int(OPT["prew"])
    if not prew:
        b(pre[:7])
    qs = (Q, Q + 16)

    def fin(q):
        return ([pk("add", q + o, v(q + o, 2), v(q + 4 + o, 2)) for o in (0, 2)]
                + [pk("add", q + 8 + o, v(q + 8 + o, 2), v(q + 12 + o, 2)) for o in (0, 2)]
                + [pk("add", q + o, v(q + o, 2), v(q + 8 + o, 2)) for o in (0, 2)]
                + [pk("mul", q + o, v(q + o, 2), s(sINV, 2)) for o in (0, 2)]
                + [pk("fma", q + 2, v(q, 2), v(q, 2), v(q + 2, 2), " neg_lo:[1,0,0] neg_hi:[1,0,0]"),
                   f"v_max_f32 {v(q + 2)}, 0, {v(q + 2)}", f"v_max_f32 {v(q + 3)}, 0, {v(q + 3)}",
                   pk("add", q + 2, v(q + 2, 2), s(sEPS, 2)),
                   f"v_rsq_f32 {v(q + 2)}, {v(q + 2)}", f"v_rsq_f32 {v(q + 3)}, {v(q + 3)}", "s_nop 0",
                   pk("mul", q + 2, v(q + 2, 2), s(sAL, 2)),
                   pk("mul", q, v(q, 2), v(q + 2, 2), mod=" neg_lo:[1,0] neg_hi:[1,0]")])
    f0, f1 = fin(qs[0]), fin(qs[1])
    if int(OPT["ln2"]):
        b("@lg s0")
        b(f0)
        b("@lg s1")
        b(pre[7:])
        f1 = [x for x in f1 if x != "s_nop 0"]
    else:
        b("@lg s0")
        b(f0[:4])
        b("@lg s1")
        if not prew:
            b(pre[7:])
        b(f1[:4])
        b([x for p in zip(f0[4:], f1[4:]) for x in p if x != "s_nop 0"])
        f1 = []
    for k in range(4):
        ph, sx = k >> 1, k & 1
        base, q = CV + 24 * k, qs[ph]
        for jj in range(3):
            for i in range(8 * jj, 8 * jj + 8, 2):
                b(pk("fma", base + i, v(base + i, 2), v(q + 2, 2), v(q, 2), f" op_sel:[0,{sx},{sx}] op_sel_hi:[1,{sx},{sx}]"))
                if f1 and i % 4 == 0:
                    b(f1.pop(0))
            for i in range(4 * jj, 4 * jj + 4):
                b(f"v_cvt_pk_bf16_f32 {v(base + 4 * jj + i)}, {v(base + 2 * i)}, {v(base + 2 * i + 1)}")
                if f1 and i % 4 == 1:
                    b(f1.pop(0))
            b(f"ds_write_b128 {v(vAW)}, {v(base + 8 * jj, 4)} offset:{(8 * ph + sx) * 14 * AP + 16 * jj}")
            if prew:
                b(pre[:2])
                pre = pre[2:]
        assert k == 0 or not f1
    b("@lg all\ns_barrier")
    b.stamp(8)

    b([f"ds_read_b128 {a(aBt['F'] + 4 * k, 4)}, {v(vBF)} offset:{32 * k} ;@bf{k}" for k in range(6)])
    b([f"ds_read_b128 {a(aBt['H'] + 4 * k, 4)}, {v(vBH)} offset:{32 * k}" for k in range(6)])
    late = w1dma(3, "wl") + w1dma(4, "wl") + w1dma(5, "wl") + w2dma(1, "wl")
    M = m_fc1(0)
    bq = [f"ds_read_b128 {a(aBR + 12 * q + 4 * k, 4)}, {v(vBQ + q)} offset:{64 * k}" for q in range(4) for k in range(3)]
    F = [(k, k, [f"@lg bf{k}"]) for k in range(6)]
    if w2m:
        F += [(2 * k, 2 * k, early[1][k]) for k in range(4)]
    else:
        F += [(1 + k, 1 + k, bq[2 * k:2 * k + 2]) for k in range(6)]
    gt = unpack(g0, g0 + 1, 1) + unpack(g1, g1 + 1, 1) + L(f"""
    v_lshlrev_b32 {v(ga)}, 3, {v(vL)}
    v_mul_f32 {v(g1)}, {v(g1)}, {v(g0)}
    v_mul_f32 {v(g1 + 1)}, {v(g1 + 1)}, {v(g0 + 1)}
    v_mul_f32 {v(g0)}, {s(sIA)}, {v(g0)}
    v_mul_f32 {v(g0 + 1)}, {s(sIA)}, {v(g0 + 1)}
    v_add_u32 {v(ga)}, {PG}, {v(ga)}
    """)
    b(trun(M, F, gt, need={}, tail=0))
    b(f"""
    s_mov_b32 exec_hi, 0xffff
    ds_write_b64 {v(ga)}, {v(g0, 2)}
    ds_write_b64 {v(ga)}, {v(g1, 2)} offset:{PGB - PG}
    s_mov_b32 exec_hi, -1
    s_nop 5
    """)
    b.stamp(9)
    b(P(0))
    hinit = [f"{M32} {v(ACC['H'] + 16 * t, 16)}, {a(aRBIAS + 2 * t, 4)}, {a(aC32, 4)}, 0" for t in range(3)]
    if w2m:
        b(T(0, head=("@lg all",), xF=[(k, k, early[1][4 + k]) for k in range(5)] + [(0, 1, [x]) for x in bq[:3]], last=()))
        b(P(1, late_x=True))
        b(T(1, head=("@lg all",), xM=hinit, xF=[(0, 6, [x]) for x in bq[3:]], skip_w2=True))
        b(P(2))
        F_ = [(k // 3, k // 3, [x + " ;@w20"]) for k, x in enumerate(r_w2(0))] + [(6, 6, ["@lg w20"])]
        b(T(2, head=("@vm w2e", "s_barrier"), xF=F_ + [(4 + 2 * k, 4 + 2 * k, late[k]) for k in range(4)]))
        b(P(3))
        b(T(3, xF=[(1 + 2 * k, 1 + 2 * k, late[4 + k]) for k in range(5)]))
        b(P(4))
        b(T(4, xF=[(1 + 2 * k, 1 + 2 * k, late[9 + k]) for k in range(5)]))
    else:
        b(T(0, xF=[(0, 0, ["@vm w2e", "@lg all", "s_barrier"]), (2, 2, late[0]), (4, 4, late[1]), (6, 6, late[2])], last=()))
        b(P(1, late_x=True))
        b(T(1, head=("@lg all",), xM=hinit, xF=[(1 + 2 * k, 1 + 2 * k, late[3 + k]) for k in range(4)]))
        b(P(2))
        b(T(2, xF=[(1 + 3 * k, 1 + 3 * k, late[7 + k]) for k in range(4)]))
        b(P(3))
        b(T(3, xF=[(1 + 3 * k, 1 + 3 * k, late[11 + k]) for k in range(4)]))
        b(P(4))
        b(T(4, xF=[(4 * k, 4 * k, late[15 + k]) for k in range(3)]))

    XR, WK = TMP + 4, TMP + 12

    def r_fc1(m):
        rd = [f"ds_read_u16 {a(aRBIAS + 2 * mh)}, {v(vRB)} offset:{256 * m + 32 * mh}" for mh in range(2)]
        rd += [f"ds_read_b64_tr_b16 {a(aRF + 12 * mh + 4 * k + 2 * jj, 2)}, {v((vR1, vR1X)[mh])} offset:{24576 * m + 4096 * k + 256 * jj} ;@rf"
               for k in range(3) for mh in range(2) for jj in range(2)]
        x = a(aXR + 4 * (m >> 1), 4) if int(OPT["rlate"]) else v(XR + 4 * (m >> 1), 4)
        M = []
        for mh in range(2):
            q = (2 * m + mh) & 3
            M.append(f"{M16} {x}, {a(aRBIAS + 2 * mh, 4)}, {a(aC16 + 4 * q, 4)}, {x if q else '0'}")
            M += [f"{M16} {x}, {a(aRF + 12 * mh + 4 * k, 4)}, {a(aBR + 12 * q + 4 * k, 4)}, {x}" for k in range(3)]
        return M, [(0, 8, [x_]) for x_ in rd] + [(12, 12, ["@lg rf"])]

    bumpA = [f"v_subrev_u32 {v(vW2A)}, 36864, {v(vW2A)}", f"v_add_u32 {v(vA)}, 36864, {v(vA)}"]
    bumpB = [f"v_subrev_u32 {v(vW2B)}, 36864, {v(vW2B)}", f"v_add_u32 {v(vB)}, 36864, {v(vB)}"]
    f1pos, g0 = (((5, 7, 8), 9), ((6, 8, 10), 11))[int(OPT["rpos"])]
    rlate = int(OPT["rlate"])
    if rlate:
        g0 = 99
    for j in range(5, 15):
        post = {g0: p_t(XR, WK, 8) + p_z(XR, WK, 8), g0 + 1: p_add(WK, 8), g0 + 2: p_mul(WK, XR, 8)}.get(j, [])
        b(P(j, post=post))
        if j == 7:
            b("@vm wl\ns_barrier")
        M_, F_ = r_fc1(f1pos.index(j)) if j in f1pos else ([], [])
        if j == 5 and w2m:
            F_ = F_ + [(2 * k, 2 * k, late[14 + k]) for k in range(4)]
        V_ = {g0: t_exp(WK, WK, 8), g0 + 1: t_rcp(WK, WK, 8), g0 + 2: t_cvt(HR, WK, 8)}.get(j, [])
        b(T(j, xM=M_, xF=F_, xV=V_ + {6: bumpA, 11: bumpB}.get(j, [])))
    HX, FX, RX = TMP, TMP + 12, vA
    AH, AFc = ACC["H"], ACC["F"]
    nt2 = OPT["nt2"]
    hx = [f"buffer_load_dwordx4 {v(HX + 4 * t, 4)}, {v(vOH)}, {s(SRD_X, 4)}, 0 offen offset:{64 * t} {nt2} ;@hx" for t in range(3)]
    fx = [f"buffer_load_dwordx4 {v(FX + 4 * c, 4)}, {v(vOFA)}, {s(SRD_X, 4)}, 0 offen offset:{32 * c} {nt2} ;@fx" for c in range(6)]
    vXR_, vGH_, vOFB = vBA, vW2A, vBB
    b(P(15))
    F_ = [(1 + 2 * t, 1 + 2 * t, [hx[t]]) for t in range(3)] + [(7 + 2 * c, 7 + 2 * c, fx[c:c + 1]) for c in range(3)]
    F_ += [(0, 0, [f"s_xor_b32 {s(sT0)}, {s(sW)}, 1"]), (1, 1, [f"s_mul_i32 {s(sT0)}, {s(sT0)}, 6144"])]
    V_ = L(f"""
    v_add_u32 {v(vXR_)}, {s(sT0)}, {v(vL16)}
    v_bfe_u32 {v(vGH_)}, {v(vL)}, 4, 1
    v_lshl_add_u32 {v(vGH_)}, {v(vGH_)}, 6, {v(vGA)}
    """)
    odd = lambda c: AH + 16 * (c >> 1) + 8 + 4 * (c & 1)
    sw = [f"v_permlane16_swap_b32 {v(AH + 16 * t + i)}, {v(AH + 16 * t + 8 + i)}" for t in range(3) for i in range(8)]
    xw = [f"ds_write_b128 {v(vRW)}, {v(odd(c), 4)} offset:{XCH + 1024 * c} ;@xw" for c in range(6)]
    xr = [f"ds_read_b128 {v(odd(c), 4)}, {v(vXR_)} offset:{XCH + 1024 * c}" for c in range(6)]
    if int(OPT["xch"]):
        b(T(15, xF=F_, xV=V_ + sw[:8], tmajor=True))
        b(P(16, pre=xw[:1], post=sw[8:16] + xw[1:2] + sw[16:]))
        if int(OPT["xch"]) == 1:
            F_ = [(2 * c, 2 * c, xw[2 + c:3 + c]) for c in range(4)] + [(8, 8, ["@lg xw", "s_barrier"])]
            F_ += [(9 + c // 2, 9 + c // 2, xr[c:c + 1]) for c in range(6)]
        else:
            F_ = [(c, c, xw[2 + c:3 + c]) for c in range(4)] + [(7, 7, ["@lg xw", "s_barrier"])]
            F_ += [(8 + c // 2, 8 + c // 2, xr[c:c + 1]) for c in range(6)]
    else:
        b(T(15, xF=F_, xV=V_))
        b(P(16, post=sw))
        F_ = [(c, c, xw[c:c + 1]) for c in range(6)] + [(7, 7, ["@lg xw", "s_barrier"])]
        F_ += [(8 + c // 2, 8 + c // 2, xr[c:c + 1]) for c in range(6)]
    F_ += [(6, 6, [f"ds_read_u16 {a(aRBIAS + 2 * t)}, {v(vB2F)} offset:{64 * t}" for t in range(3)])]
    F_ += [(6, 6, fx[3:4]), (11, 11, fx[4:5]), (12, 12, [f"buffer_load_dwordx2 {v(RX, 2)}, {v(vOR)}, {s(SRD_X, 4)}, 0 offen"])]
    b(T(16, xF=F_, last=(), xV=[f"v_add_u32 {v(vOFB)}, 32, {v(vOFA)}"]))
    post = [pk("add", AH + 16 * t + i, v(AH + 16 * t + i, 2), v(AH + 16 * t + 8 + i, 2)) for t in range(3) for i in range(0, 8, 2)]
    b(P(17, post=["@lg all"] + post))
    finit = [f"{M32} {v(AFc + 16 * t, 16)}, {a(aRBIAS + 2 * t, 4)}, {a(aC32, 4)}, {v(AFc + 16 * t, 16)}" for t in range(3)]
    GH = (X[0], X[0] + 8, Z)
    GF = (AH, AH + 16, X[0], X[0] + 8, Z + 8, R)
    gh = [f"ds_read_b128 {v(GH[t] + 4 * k, 4)}, {v(vGH_)} offset:{128 * t + 16 * k}" for t in range(3) for k in range(2)]
    gf = [f"ds_read_b128 {v(GF[c] + 4 * k, 4)}, {v(vGA)} offset:{64 * c + 16 * k}" for c in range(6) for k in range(2)]

    rend = int(OPT["rend"])
    RFB = (aRF, aRF2, aBt["H"], aW1) if rend else (aRF, aRF2, aRF, aRF2)

    def rw2(q):
        fb = RFB[q]
        o = []
        for jj in range(2 - (q >> 1)):
            tau = q + 4 * jj
            reg, off = ((vR2A, 24576), (vR2B, 0), (vR2A, 0))[tau >> 1]
            o += [f"ds_read_b64_tr_b16 {a(fb + 4 * c + 2 * jj, 2)}, {v(reg)} offset:{off + 3072 * (tau & 1) + 32 * c}" for c in range(6)]
        return o
    F_ = [(0, 5, [x]) for x in gh[:4] + ([] if rlate else rw2(0))] + [(2, 2, fx[5:6]), (0, 0, ["@vm hx"])]
    V_ = [x for t in range(3) for x in unpack(AH + 16 * t + 8, HX + 4 * t, 4)]
    b(T(17, xM=finit, xF=F_, xV=V_))
    hf = lambda t: [pk("fma", AH + 16 * t + 8 + i, v(AH + 16 * t + i, 2), v(GH[t] + i, 2), v(AH + 16 * t + 8 + i, 2)) for i in range(0, 8, 2)]
    hc = lambda t: t_cvt(HX + 4 * t, AH + 16 * t + 8, 8)
    hs = [f"buffer_store_dwordx4 {v(HX + 4 * t, 4)}, {v(vOH)}, {s(SRD_O, 4)}, 0 offen offset:{64 * t} {OPT['st_h']}" for t in range(3)]
    b(P(18, post=hf(0) + hf(1)))
    UF = (X[1], X[1] + 8, X[2], X[2] + 8, E, E + 8)
    F_ = [(0, 3, [x]) for x in gh[4:] + gf[:10] + (rw2(2) if rend and not rlate else [])] + [(3, 3, hs[:1]), (5, 5, hs[1:2]), (3, 3, ["@vm fx"])]
    V_ = unpack(UF[0], FX, 4) + unpack(UF[1], FX + 4, 4) + [f"v_permlane16_swap_b32 {v(vOFA)}, {v(vOFB)}"]
    b(T(18, xF=F_, xVpre=hc(0) + hc(1), xV=V_, xneed={3: 12, 5: 16}))
    b(P(19, post=hf(2)))

    def ftail(t, plain):
        o = []
        for c in (2 * t, 2 * t + 1):
            if plain:
                o += [f"v_fma_f32 {v(UF[c] + i)}, {v(AFc + 8 * c + i)}, {v(GF[c] + i)}, {v(UF[c] + i)}" for i in range(8)]
            else:
                o += [pk("fma", UF[c] + i, v(AFc + 8 * c + i, 2), v(GF[c] + i, 2), v(UF[c] + i, 2)) for i in range(0, 8, 2)]
        for c in (2 * t, 2 * t + 1):
            o += t_cvt(FX + 4 * c, UF[c], 8)
        o += [f"v_permlane16_swap_b32 {v(FX + 8 * t + i)}, {v(FX + 8 * t + 4 + i)}" for i in range(4)]
        return o

    def fst(t):
        return [f"buffer_store_dwordx4 {v(FX + 8 * t + 4 * k, 4)}, {v((vOFA, vOFB)[k])}, {s(SRD_O, 4)}, 0 offen offset:{64 * t} {OPT['st_f']}"
                for k in range(2)]
    V_ = hc(2) + [x for c in range(2, 6) for x in unpack(UF[c], FX + 4 * c, 4)][:20] + ftail(0, True)
    F_ = [(1, 1, gf[10:]), (2, 2, hs[2:3])] + [(0, 3, [x]) for x in ([] if rlate else rw2(1) + (rw2(3) if rend else []))]
    b(T(19, xF=F_, xV=V_, xneed={2: 12}, tmajor=True))
    b(fst(0))
    b.stamp("f0")
    b([x for c in range(2, 6) for x in unpack(UF[c], FX + 4 * c, 4)][20:])
    for t in (1, 2):
        b(ftail(t, False))
        if t == 1 or not rend or (rlate and not int(OPT["st2late"])):
            b(fst(t))
        b.stamp(f"f{t}")

    HQ, RA = AH, AH + 16
    PP, PGm, PBm, RU, ra, rg, rw = X[0], X[1], X[1] + 4, X[1] + 8, X[2], X[2] + 1, X[2] + 2
    hq = lambda q: HR if q == 0 else HQ + 4 * (q - 1)
    if rlate:
        XE, WE = Z, R
        st2 = fst(2) if int(OPT["st2late"]) else ["s_nop 0", "s_nop 0"]
        b(rw2(0))
        b([f"v_accvgpr_read_b32 {v(XE + i)}, {a(aXR + i)}" for i in range(8)])
        b(p_t(XE, WE, 8) + p_z(XE, WE, 8))
        b([x for x in st2[:1] if x != "s_nop 0"] + rw2(1))
        b(t_exp(WE, WE, 8) + p_add(WE, 8))
        b([x for x in st2[1:] if x != "s_nop 0"] + rw2(2) + rw2(3))
        b(t_rcp(WE, WE, 8) + p_mul(WE, XE, 8) + t_cvt(HR, WE, 8) + ["@lg all", "s_nop 0"])
    rrot = [f"v_mov_b32_dpp {v(hq(q) + i)}, {v(HR + i)} row_ror:{16 - 4 * q} row_mask:0xf bank_mask:0xf" for q in (1, 2, 3) for i in range(4)]
    M_ = [f"{M16} {v(RA + 4 * c, 4)}, {a(RFB[q] + 4 * c, 4)}, {v(hq(q), 4)}, {v(RA + 4 * c, 4) if q else '0'}"
          for q in range(4) for c in range(6)]
    r2, r3 = rw2(2), rw2(3)
    F_ = [(c, c, r2[c:c + 1]) for c in range(6)] + [(6 + c, 6 + c, r3[c:c + 1]) for c in range(6)]
    if rend:
        F_ = [] if rlate else [(3, 3, fst(2)[:1]), (9, 9, fst(2)[1:])]
    F_ += [(0, 0, [f"s_mul_i32 {s(sT0)}, {s(sW)}, 2176"]), (1, 1, [f"s_lshl_b32 {s(sT1)}, {s(sW)}, 4"])]
    F_ += [(20, 20, [f"ds_read_b128 {v(PGm, 4)}, {v(rg)}"]), (21, 21, [f"ds_read_b128 {v(PBm, 4)}, {v(rg)} offset:{PGB - PG}"])]
    V_ = rrot + L(f"""
    v_min_u32 {v(rg)}, 23, {v(vL)}
    v_and_b32 {v(ra)}, 3, {v(rg)}
    v_mul_u32_u24 {v(ra)}, 272, {v(ra)}
    v_bfe_u32 {v(rw)}, {v(rg)}, 2, 2
    v_lshl_add_u32 {v(ra)}, {v(rw)}, 6, {v(ra)}
    v_lshrrev_b32 {v(rw)}, 4, {v(rg)}
    v_mul_u32_u24 {v(rw)}, 1088, {v(rw)}
    v_add3_u32 {v(ra)}, {v(ra)}, {v(rw)}, {s(sT1)}
    v_lshlrev_b32 {v(rg)}, 4, {v(rg)}
    v_add_u32 {v(rg)}, {PG}, {v(rg)}
    v_lshrrev_b32 {v(rw)}, 4, {v(vL)}
    v_add_u32 {v(rw)}, {v(rw)}, {v(vL)}
    v_lshl_add_u32 {v(rw)}, {v(rw)}, 4, {s(sT0)}
    """) + unpack(RU, RX, 2)
    o, _ = trun2(M_, F_, V_, {6: 6, 12: 10, 18: 14, 20: 22}, [], drain=8)
    b(o)
    b("s_nop 1")
    for c in (1, 2, 3, 5):
        for i in range(4):
            b(f"v_mov_b32_dpp {v(RA + 16 * (c >> 2) + i)}, {v(RA + 4 * c + i)} row_shr:{4 * (c & 3)} row_mask:0xf bank_mask:{1 << (c & 3):#x}")
        if c == 3:
            b(f"ds_write_b128 {v(rw)}, {v(RA, 4)} offset:{RBUF}")
    b(f"ds_write_b128 {v(rw)}, {v(RA + 16, 4)} offset:{RBUF + 1088}")
    b("@lg all\ns_barrier")
    b([f"ds_read_b128 {v(PP + 4 * w, 4)}, {v(ra)} offset:{RBUF + 2176 * w}" for w in range(4)])
    b([pk("add", RU + i, v(RU + i, 2), v(PBm + i, 2)) for i in (0, 2)])
    b([pk("add", PP + i, v(PP + i, 2), v(PP + 4 + i, 2)) for i in (0, 2)])
    b([pk("add", PP + 8 + i, v(PP + 8 + i, 2), v(PP + 12 + i, 2)) for i in (0, 2)])
    b([pk("add", PP + i, v(PP + i, 2), v(PP + 8 + i, 2)) for i in (0, 2)])
    b([pk("fma", RU + i, v(PP + i, 2), v(PGm + i, 2), v(RU + i, 2)) for i in (0, 2)])
    b(t_cvt(RX, RU, 4))
    b(f"buffer_store_dwordx2 {v(RX, 2)}, {v(vOR)}, {s(SRD_O, 4)}, 0 offen {OPT['st_r']}")
    b.stamp(16)
    if OPT["probe"] is not None:
        b("@vm all")
        b.stamp("end")
        b(f"s_sub_u32 s98, {s(sSTAMP)}, s96" if OPT["probe"] != "0" else "s_mov_b32 s98, 0")
        if OPT["probewg"] is not None:
            b(f"s_cmp_eq_u32 s2, {OPT['probewg']}\ns_cselect_b32 s98, s98, 0")
        b("""
        s_lshl_b32 s98, s98, 3
        s_add_u32 s98, s98, 40000
        L_diag:
        s_memtime s[100:101]
        s_waitcnt lgkmcnt(0)
        s_sub_u32 s100, s100, s96
        s_cmp_lt_u32 s100, s98
        s_cbranch_scc1 L_diag
        """)
    elif OPT["stamps"]:
        b("@vm all")
        b.stamp("end")
        b(f"""
        s_load_dwordx2 s[4:5], s[0:1], 72
        s_waitcnt lgkmcnt(0)
        s_lshl_b32 s6, s2, 2
        s_add_u32 s6, s6, {s(sW)}
        s_lshl_b32 s6, s6, 7
        v_mov_b32 v0, s6
        s_mov_b32 s6, 0x100000
        s_mov_b32 s7, 0x20000
        s_mov_b64 exec, 1
        """)
        for k in range(1, 20):
            kk = min(k, len((OPT["only"] or DEFAULT_STAMPS).split(",")) + 1)
            b(f"s_sub_u32 s8, {s(sSTAMP + kk)}, {s(sSTAMP)}" if not OPT["real"] else
              (f"s_mov_b32 s8, {s(sSTAMP + min(k - 1, kk + 5 if kk == k else kk))}" if k < 19 else "s_getreg_b32 s8, hwreg(HW_REG_XCC_ID, 0, 4)"))
            b("v_mov_b32 v2, s8")
            b(f"buffer_store_dword v2, v0, s[4:7], 0 offen offset:{4 * k}")
        b("@vm all")
    return b


def add_pads(lines, start):
    out = []
    off = None
    n = 0
    for t in lines:
        if t == "L_body:":
            off = start
            out.append(f".fill {start // 4}, 4, 0xbf800000")
        if off is not None and not t.endswith(":") and not t.startswith("."):
            sz = isize(t)
            if off + sz > 4096 * (n + 1):
                while off < 4096 * (n + 1):
                    out.append("s_nop 0")
                    off += 4
                n += 1
                out.append(f"L_pad{n}:")
                out.append(f"s_cbranch_execz {'L_pad%d' % (n + 1) if n % 2 else 'L_body'}")
                out.append("s_nop 0")
                off += 8
            off += sz
        out.append(t)
    return out, n, off + 4


def loop_segment(b):
    import re
    m0, m1 = OPT["seg"].split(",")
    i0, i1 = b.index(f"MARK_{m0}:"), b.index(f"MARK_{m1}:")
    body = [x for x in b[i0:i1] if not x.startswith("MARK_")]
    if OPT["drop"]:
        body = [x for x in body if not re.search(OPT["drop"], x)]
    if OPT["nop"]:
        body = [("s_nop 1" if re.match("v_exp|v_rcp", x) else "s_nop 0") if re.search(OPT["nop"], x) else x for x in body]
    o = Block([x for x in b[:i0] if not x.startswith("MARK_")])
    o("@vm all\n@lg all\ns_barrier\ns_mov_b32 s99, 0\ns_memrealtime s[94:95]\ns_memtime s[96:97]\ns_waitcnt lgkmcnt(0)\n.p2align 6\nL_seg:")
    o(body * 5)
    o("""
    s_add_u32 s99, s99, 1
    s_cmp_lt_u32 s99, 5
    s_cbranch_scc1 L_seg
    @vm all
    s_memtime s[100:101]
    s_memrealtime s[92:93]
    s_load_dwordx2 s[4:5], s[0:1], 72
    s_waitcnt lgkmcnt(0)
    s_sub_u32 s8, s100, s96
    s_sub_u32 s9, s92, s94
    s_lshl_b32 s6, s2, 2
    """ + f"s_add_u32 s6, s6, {s(sW)}" + """
    s_lshl_b32 s6, s6, 7
    v_mov_b32 v0, s6
    s_mov_b32 s6, 0x100000
    s_mov_b32 s7, 0x20000
    s_mov_b64 exec, 1
    v_mov_b32 v2, s8
    buffer_store_dword v2, v0, s[4:7], 0 offen offset:4
    v_mov_b32 v3, s9
    buffer_store_dword v3, v0, s[4:7], 0 offen offset:8
    @vm all
    """)
    return o


def build():
    b = gen()
    if OPT["seg"]:
        b = loop_segment(b)
    lines, added = autowait(b, OPT["verbose"])
    bad = 0
    if OPT["align"]:
        lines, bad = fix_align(lines)
    npad = 0
    if OPT["hops"]:
        margin = int(OPT["margin"])
        start = next(x for x in range(4096 - 64, -64, -64) if 4096 - margin - 64 < add_pads(lines, x)[2] % 4096 <= 4096 - margin or x == 0)
        lines, npad, _ = add_pads(lines, start)
        for k in range(npad + 1, 9):
            lines = [t.replace(f"L_pad{k}", "L_body") if not t.endswith(":") else t for t in lines]
    trace = [t for t in lines if not t.endswith(":") and not t.startswith(".")]
    errs = check(trace)
    hdr = open("standalone__modern_conv_block_convnext__vision.s.ref").read().split("\n")
    head = [l for l in hdr if l.startswith(";") and "@launch" not in l and "Override" not in l and "grid=ceil" not in l]
    head += """;
; Fused ConvNeXt block: one workgroup (4 waves) per 14x14 pixel tile, tiles grouped per XCD for L2 halo reuse.
;   1. x tile (18x18, zero padded) staged in LDS as 4-channel planes; weights streamed to LDS by DMA.
;   2. depthwise 5x5 conv as sparse MFMA with Toeplitz filter fragments (each wave owns 24 channels).
;   3. layer norm: per-wave partial sums exchanged through LDS, normalised activations written as bf16.
;   4. MLP per wave: a 32-pixel tile over all hidden units, a shared 32-pixel tile over half of them and a
;      4-pixel remainder over a quarter; tanh-GELU as x * rcp(1 + exp2(-x * (c + x * x))) on pre-scaled x.
;   5. out = x + gamma * (h + b2), stored in 64-byte segments.""".split("\n")
    out = head + [f"; @launch grid=(256,1,1) block=(256,1,1) lds={LDS_BYTES}",
                  '.amdgcn_target "amdgcn-amd-amdhsa--gfx950"', ".text", f".globl {KNAME}", ".p2align 12", ".p2align 8",
                  f".type {KNAME},@function", f"{KNAME}:"]
    for t in lines:
        out.append(t if t.endswith(":") or t.startswith(".") else "    " + t)
    out += ["L_end:", "    s_endpgm", '.section .rodata,"a"', ".p2align 6", f".amdhsa_kernel {KNAME}",
            "  .amdhsa_next_free_vgpr 512", "  .amdhsa_next_free_sgpr 102", "  .amdhsa_accum_offset 256",
            "  .amdhsa_group_segment_fixed_size 0", "  .amdhsa_kernarg_size 80", "  .amdhsa_user_sgpr_count 2",
            "  .amdhsa_user_sgpr_kernarg_segment_ptr 1", "  .amdhsa_system_sgpr_workgroup_id_x 1",
            ".end_amdhsa_kernel", ""]
    info = f"{len(trace)} instrs, {sum(isize(t) for t in trace)} bytes, {added} auto waits, {bad} misaligned, {npad} pads, {len(errs)} lint findings"
    return "\n".join(out), errs, info


if __name__ == "__main__":
    path = sys.argv[1]
    for kv in sys.argv[2:]:
        k, val = kv.split("=")
        OPT[k] = val if k.startswith(("probe", "only", "seg", "drop", "nop")) else {"0": False, "1": True}.get(val, val.replace("+", " "))
    text, errs, info = build()
    for e in errs:
        print("HAZARD", e)
    open(path, "w").write(text)
    print(f"wrote {path}: {info}")
```
